```python
import torch

def _softmax(x, axis=-1):
    return torch.softmax(x, dim=axis)
def _gelu(x):
    return torch.nn.functional.gelu(x, approximate="tanh")
def _silu(x):
    return torch.nn.functional.silu(x)
def _sigmoid(x):
    return torch.sigmoid(x)
def _layernorm(x, axis=-1, eps=1e-5):
    m = x.mean(dim=axis, keepdim=True)
    v = x.var(dim=axis, keepdim=True, unbiased=False)
    return (x - m) / torch.sqrt(v + eps)
def _scatter_add(tgt, idx, src, axis=0):
    return tgt.clone().index_add_(axis, idx, src)
def _segment_sum(src, seg, n):
    out = torch.zeros((n,) + src.shape[1:], dtype=src.dtype)
    return out.index_add_(0, seg, src)
def _pad(x, pw):
    flat = tuple(v for pair in reversed(pw) for v in pair)
    return torch.nn.functional.pad(x, flat)

kernel_name = 'recurrent_scan__gqa_block_cached__dense_activation_gelu__prompt'

def setup_inputs():

    _w = (lambda a: (lambda t: t.to(torch.bfloat16) if t.is_floating_point() else t)(torch.as_tensor(a)))
    def _A_setup():
        B, Sq, D = 1, 2048, 640
        Hq, Hkv, Sk, Dh = 32, 32, 2048, 192
        assert Hq % Hkv == 0, (Hq, Hkv)
        return {
            "x": _w((lambda *s: torch.randn(*s, dtype=torch.bfloat16) * 0.05)(B, Sq, D)),
            "k_cache": _w((lambda *s: torch.randn(*s, dtype=torch.bfloat16) * 3.2)(B, Hkv, Sk, Dh)),
            "v_cache": _w((lambda *s: torch.randn(*s, dtype=torch.bfloat16) * 3.2)(B, Hkv, Sk, Dh)),
            "wq": _w((lambda *s: torch.randn(*s, dtype=torch.bfloat16) * 3.2)(D, Hq * Dh) * (D ** -0.5)),
            "wo": _w((lambda *s: torch.randn(*s, dtype=torch.bfloat16) * 3.2)(Hq * Dh, D) * ((Hq * Dh) ** -0.5)),
        }
    _A_in = _A_setup()

    def _B_setup():
        B, S, D, F = 1, 2048, 640, 1536
        return {
            "x": _w((lambda *s: torch.randn(*s, dtype=torch.bfloat16) * 0.05)(B, S, D)),
            "w1": _w((lambda *s: torch.randn(*s, dtype=torch.bfloat16) * 3.2)(D, F) * (D ** -0.5)),
            "b1": _w((lambda *s: torch.randn(*s, dtype=torch.bfloat16) * 3.2)(F) * 0.01),
            "w2": _w((lambda *s: torch.randn(*s, dtype=torch.bfloat16) * 0.4)(F, D) * (F ** -0.5)),
            "b2": _w((lambda *s: torch.randn(*s, dtype=torch.bfloat16) * 0.4)(D) * 0.01),
        }
    _B_in = _B_setup()

    return {
        "A_x": _A_in["x"],
        "A_k_cache": _A_in["k_cache"],
        "A_v_cache": _A_in["v_cache"],
        "A_wq": _A_in["wq"],
        "A_wo": _A_in["wo"],
        "B_x": _B_in["x"],
        "B_w1": _B_in["w1"],
        "B_b1": _B_in["b1"],
        "B_w2": _B_in["w2"],
        "B_b2": _B_in["b2"],
    }

def reference(A_x, A_k_cache, A_v_cache, A_wq, A_wo, B_x, B_w1, B_b1, B_w2, B_b2):
    def _A_ref(x, k_cache, v_cache, wq, wo):
        B, Sq, D = x.shape
        Hq, Dh = 32, 192
        Hkv = k_cache.shape[1]
        rep = Hq // Hkv
        q = (lambda x, *d: x.permute(*d))((x @ wq).reshape(B, Sq, Hq, Dh), 0, 2, 1, 3)
        k = (lambda x, n, axis: torch.repeat_interleave(x, n, dim=axis))(k_cache, rep, axis=1)
        v = (lambda x, n, axis: torch.repeat_interleave(x, n, dim=axis))(v_cache, rep, axis=1)
        scores = torch.einsum("bhqd,bhkd->bhqk", q, k) * (Dh ** -0.5)
        p = _softmax(scores, axis=-1)
        o = torch.einsum("bhqk,bhkd->bhqd", p, v)
        return (lambda x, *d: x.permute(*d))(o, 0, 2, 1, 3).reshape(B, Sq, Hq * Dh) @ wo

    def _B_ref(x, w1, b1, w2, b2):
        h = torch.einsum("bsd,df->bsf", x, w1) + b1
        h = _gelu(h)
        return torch.einsum("bsf,fd->bsd", h, w2) + b2

    x = A_x
    xn = _layernorm(x, axis=-1)
    s = _A_ref(xn, A_k_cache, A_v_cache, A_wq, A_wo)
    g = _silu(_B_ref(xn, B_w1, B_b1, B_w2, B_b2))
    return x + s * g
```

```python
import math
import gen
from gen import vr, ar, srd, mfma, fh, stamp, stamp_store, WS_H, WS_O, H_BYTES, O_BYTES

S_B, S_W, S_HH, S_W2, S_X, S_OUT, S_B2 = 4, 8, 12, 16, 20, 24, 28
S_WAVE, S_T0, S_T1, S_BO, S_WO, S_LB, S_CNT, S_RT, S_IT = 36, 37, 38, 39, 40, 41, 42, 43, 44
V_BO = 2
V_WO = 6
V_RA = 11
V_HO = 12
V_X = 16
V_B2 = 26
V_OO = 36
RING = 40
BUF = 64
WSLOT = 5120


def rd(F, part):
    st, j = (F // 5) % 6, F % 5
    off = st * WSLOT + part * 16 * 160 + 32 * j
    return f"ds_read_b64_tr_b16 {vr(RING + 4*(F%6) + 2*part, 2)}, v{V_RA} offset:{off}"


def loads(a, L6, j):
    if j < 4:
        return [f"buffer_load_dwordx4 {vr(BUF+16*L6+4*j)}, v{V_BO+j}, s[{S_B}:{S_B+3}], s{S_BO} offen"]
    d = j - 4
    return [f"s_add_u32 m0, s{S_LB}, {L6*WSLOT + d*1024}",
            f"buffer_load_dwordx4 v{V_WO+d}, s[{S_W}:{S_W+3}], s{S_WO} offen lds"]


def body(a, accbase, label):
    for i in range(120):
        grp, t = i // 4, i % 4
        st, j = grp // 5, grp % 5
        acc = ar(accbase + 4 * (4 * j + t))
        a(mfma(acc, vr(RING + 4 * (grp % 6)), vr(BUF + 16 * st + 4 * t), acc))
        Fn = (grp + 3) % 30
        L6 = (st + 5) % 6
        if j == 0 and t == 0 and st == 1 and label:
            a(f"""s_cmp_lg_u32 s{S_IT}, 7
            s_cbranch_scc1 {label}
            s_mov_b32 s{S_B}, s{S_HH}
            s_mov_b32 s{S_B+1}, s{S_HH+1}
            s_mov_b32 s{S_B+2}, s{S_HH+2}
            s_mov_b32 s{S_W}, s{S_W2}
            s_mov_b32 s{S_W+1}, s{S_W2+1}
            s_mov_b32 s{S_W+2}, s{S_W2+2}
            s_mul_i32 s{S_BO}, s{S_WAVE}, {12*1024}
            s_mul_i32 s{S_WO}, s{S_WAVE}, {12*40960}
            v_mov_b32 v{V_BO}, v{V_HO}
            v_mov_b32 v{V_BO+1}, v{V_HO+1}
            v_mov_b32 v{V_BO+2}, v{V_HO+2}
            v_mov_b32 v{V_BO+3}, v{V_HO+3}
            {label}:""")
        if t == 0:
            if j == 2:
                a("s_waitcnt vmcnt(31)")
            a(rd(Fn, 0))
        if t == 1:
            a(rd(Fn, 1))
        if t >= 2:
            k = 2 * j + (t - 2)
            if t == 3:
                a("s_waitcnt lgkmcnt(4)")
            if k < 9:
                ins = loads(a, L6, k)
                if len(ins) == 2:
                    a(ins[0])
                    a("s_nop 0")
                    a(ins[1])
                else:
                    a(ins[0])
            else:
                a(f"s_add_u32 s{S_BO}, s{S_BO}, 1024\ns_add_u32 s{S_WO}, s{S_WO}, 40960")


def gen_out(a):
    a(".p2align 8\n.type out_kernel,@function\nout_kernel:")
    a("s_cmp_ge_u32 s2, 256\ns_cbranch_scc1 L_out_end")
    stamp(a, 0)
    a(f"""
    s_load_dwordx2 s[60:61], s[0:1], 0
    s_load_dwordx2 s[62:63], s[0:1], 32
    s_load_dwordx4 s[64:67], s[0:1], 64
    s_load_dwordx2 s[68:69], s[0:1], 80
    s_load_dwordx2 s[70:71], s[0:1], 96
    v_lshrrev_b32 v1, 6, v0
    v_and_b32 v0, 63, v0
    v_readfirstlane_b32 s{S_WAVE}, v1
    s_and_b32 s{S_T0}, s2, 7
    s_lshl_b32 s{S_T0}, s{S_T0}, 4
    s_bfe_u32 s{S_T1}, s2, 0x20003
    s_lshl_b32 s{S_T1}, s{S_T1}, 2
    s_add_u32 s{S_RT}, s{S_T0}, s{S_T1}
    s_lshr_b32 s{S_T1}, s2, 5
    s_mul_i32 s{S_CNT}, s{S_T1}, 160
    """)
    a(f"""
    s_mul_i32 s{S_T0}, s{S_RT}, {192*1024}
    v_lshl_add_u32 v{V_BO}, v0, 4, s{S_T0}
    v_add_u32 v{V_BO+1}, {192*1024}, v{V_BO}
    v_add_u32 v{V_BO+2}, {2*192*1024}, v{V_BO}
    v_add_u32 v{V_BO+3}, {3*192*1024}, v{V_BO}
    s_mul_i32 s{S_T0}, s{S_RT}, {48*1024}
    v_lshl_add_u32 v{V_HO}, v0, 4, s{S_T0}
    v_add_u32 v{V_HO+1}, {48*1024}, v{V_HO}
    v_add_u32 v{V_HO+2}, {2*48*1024}, v{V_HO}
    v_add_u32 v{V_HO+3}, {3*48*1024}, v{V_HO}
    s_mov_b32 s{S_T0}, 0x1999999a
    """)
    for d in range(5):
        a(f"""
        v_add_u32 v40, {64*d}, v0
        v_mul_hi_u32 v41, v40, s{S_T0}
        v_mul_u32_u24 v42, 10, v41
        v_sub_u32 v42, v40, v42
        v_mul_u32_u24 v41, 1280, v41
        v_lshl_add_u32 v{V_WO+d}, v42, 4, v41
        """)
    a(f"""
    s_mul_i32 s{S_LB}, s{S_WAVE}, {6*WSLOT}
    s_mul_i32 s{S_BO}, s{S_WAVE}, {48*1024}
    s_mul_i32 s{S_WO}, s{S_WAVE}, {48*40960}
    s_waitcnt lgkmcnt(0)
    """)
    srd(a, S_B, 70, 71, O_BYTES, WS_O)
    a(f"s_sub_u32 s{S_T1}, {6144*1280}, s{S_CNT}")
    srd(a, S_W, 62, 63, f"s{S_T1}", f"s{S_CNT}")
    for L in range(5):
        for k in range(9):
            ins = loads(a, L, k)
            a(ins[0])
            if len(ins) == 2:
                a("s_nop 0")
                a(ins[1])
        a(f"s_add_u32 s{S_BO}, s{S_BO}, 1024\ns_add_u32 s{S_WO}, s{S_WO}, 40960")
    srd(a, S_HH, 70, 71, H_BYTES, WS_H)
    a(f"s_sub_u32 s{S_T1}, {1536*1280}, s{S_CNT}")
    srd(a, S_W2, 64, 65, f"s{S_T1}", f"s{S_CNT}")
    srd(a, S_X, 60, 61, 2048 * 1280)
    srd(a, S_OUT, 68, 69, 2048 * 1280)
    srd(a, S_B2, 66, 67, 1280)
    a(f"""
    v_lshrrev_b32 v40, 2, v0
    v_mul_u32_u24 v40, 160, v40
    v_and_b32 v41, 3, v0
    v_lshl_add_u32 v40, v41, 3, v40
    v_add_u32 v{V_RA}, s{S_LB}, v40
    """)
    a(f"""
    s_add_u32 s{S_T0}, s{S_RT}, s{S_WAVE}
    s_lshl_b32 s{S_T0}, s{S_T0}, 4
    v_and_b32 v40, 15, v0
    v_add_u32 v40, s{S_T0}, v40
    v_mul_u32_u24 v40, 1280, v40
    v_lshrrev_b32 v41, 4, v0
    v_lshlrev_b32 v41, 3, v41
    v_add_u32 v41, s{S_CNT}, v41
    v_add_u32 v{V_OO}, v40, v41
    v_mov_b32 v44, 0
    v_mov_b32 v45, 0
    v_mov_b32 v46, 0
    v_mov_b32 v47, 0
    s_nop 1
    """)
    for i in range(10):
        a(f"v_mfma_f32_32x32x16_bf16 {ar(16*i,16)}, v[44:47], v[44:47], 0")
    a(f"v_mov_b32 v37, v41")
    a("s_waitcnt vmcnt(36)")
    stamp(a, 1)
    for F in range(3):
        a(rd(F, 0))
        a(rd(F, 1))
    a(f"s_mov_b32 s{S_IT}, 0\ns_waitcnt lgkmcnt(4)")
    a(".p2align 6\nL_out_l1:")
    body(a, 0, "L_out_sw")
    a(f"s_add_u32 s{S_IT}, s{S_IT}, 1\ns_cmp_lg_u32 s{S_IT}, 8\ns_cbranch_scc1 L_out_l1")
    stamp(a, 2)
    a(".p2align 6\nL_out_l2:")
    body(a, 80, None)
    a(f"s_add_u32 s{S_IT}, s{S_IT}, 1\ns_cmp_lg_u32 s{S_IT}, 10\ns_cbranch_scc1 L_out_l2")
    stamp(a, 3)
    for j in range(5):
        a(f"buffer_load_dwordx2 {vr(V_X+2*j,2)}, v{V_OO}, s[{S_X}:{S_X+3}], 0 offen offset:{32*j}")
        a(f"buffer_load_dwordx2 {vr(V_B2+2*j,2)}, v37, s[{S_B2}:{S_B2+3}], 0 offen offset:{32*j}")
    a("s_waitcnt vmcnt(10) lgkmcnt(0)\ns_barrier")
    a(f"""
    s_mul_i32 s{S_T0}, s{S_WAVE}, 40960
    v_lshl_add_u32 v40, v0, 4, s{S_T0}
    s_mul_i32 s{S_T0}, s{S_WAVE}, 10240
    v_lshl_add_u32 v41, v0, 4, s{S_T0}
    v_add_u32 v42, {2*40960}, v41
    """)
    for t in range(4):
        for q in range(10):
            a(f"ds_write_b128 v40, {ar(4*(4*(q%5)+t) + 80*(q//5))} offset:{(t*10+q)*1024}")
    a("s_waitcnt lgkmcnt(0)\ns_barrier")
    stamp(a, 4)
    for src in range(4):
        for q in range(10):
            a(f"ds_read_b128 {vr(64+40*src+4*q)}, v{41 + src//2} offset:{(src%2)*40960 + q*1024}")
        if src >= 1:
            a("s_waitcnt lgkmcnt(10)" if src < 3 else "s_waitcnt lgkmcnt(10)")
            if src >= 2:
                for e in range(40):
                    a(f"v_add_f32 v{64+e}, v{64+40*(src-1)+e}, v{64+e}")
    a("s_waitcnt lgkmcnt(0)")
    for e in range(40):
        a(f"v_add_f32 v{64+e}, v{64+120+e}, v{64+e}")
    a("s_waitcnt vmcnt(0)")
    stamp(a, 5)
    nl2e = -math.log2(math.e)
    for j in range(5):
        s, g, u = 64 + 4 * j, 84 + 4 * j, 112
        xr, br = V_X + 2 * j, V_B2 + 2 * j
        a(f"""
        v_lshlrev_b32 v{u}, 16, v{br}
        v_and_b32 v{u+1}, 0xffff0000, v{br}
        v_lshlrev_b32 v{u+2}, 16, v{br+1}
        v_and_b32 v{u+3}, 0xffff0000, v{br+1}
        """)
        for r in range(4):
            a(f"v_add_f32 v{g+r}, v{u+r}, v{g+r}")
        for r in range(4):
            a(f"v_mul_f32 v{u+r}, {fh(nl2e)}, v{g+r}")
        for r in range(4):
            a(f"v_exp_f32 v{u+r}, v{u+r}")
        for r in range(4):
            a(f"v_add_f32 v{u+r}, 1.0, v{u+r}")
        for r in range(4):
            a(f"v_rcp_f32 v{u+r}, v{u+r}")
        for r in range(4):
            a(f"v_mul_f32 v{g+r}, v{g+r}, v{s+r}")
        a(f"""
        v_lshlrev_b32 v{u+4}, 16, v{xr}
        v_and_b32 v{u+5}, 0xffff0000, v{xr}
        v_lshlrev_b32 v{u+6}, 16, v{xr+1}
        v_and_b32 v{u+7}, 0xffff0000, v{xr+1}
        """)
        for r in range(4):
            a(f"v_fmac_f32 v{u+4+r}, v{g+r}, v{u+r}")
        a(f"v_cvt_pk_bf16_f32 v{124+2*j}, v{u+4}, v{u+5}\nv_cvt_pk_bf16_f32 v{125+2*j}, v{u+6}, v{u+7}")
        a(f"buffer_store_dwordx2 {vr(124+2*j,2)}, v{V_OO}, s[{S_OUT}:{S_OUT+3}], 0 offen offset:{32*j}")
    stamp(a, 6)
    stamp(a, 7)
    if gen.STAMP:
        a("s_waitcnt vmcnt(0)")
    stamp(a, 8)
    stamp_store(a, 2, S_WAVE)
    a("L_out_end:\ns_endpgm")
```

```python
import struct, sys, math, os

NAME = "recurrent_scan__gqa_block_cached__dense_activation_gelu__prompt"
WS_XN = 0
WS_H = 4 << 20
WS_O = 16 << 20
XN_BYTES = 2048 * 640 * 2
H_BYTES = 2048 * 1536 * 2
O_BYTES = 2048 * 6144 * 2


def fh(x):
    return "0x%08x" % struct.unpack("<I", struct.pack("<f", x))[0]


class Asm:
    def __init__(self):
        self.l = []

    def __call__(self, s):
        for line in s.strip("\n").split("\n"):
            line = line.strip()
            if line:
                self.l.append(line if line.endswith(":") or line.startswith(".") else "    " + line)

    def text(self):
        return "\n".join(self.l) + "\n"


def vr(b, n=4, p="v"):
    return f"{p}[{b}:{b+n-1}]"


def ar(b, n=4):
    return vr(b, n, "a")


def kd(name, vgpr, sgpr, accum):
    return f""".amdhsa_kernel {name}
  .amdhsa_next_free_vgpr {vgpr}
  .amdhsa_next_free_sgpr {sgpr}
  .amdhsa_accum_offset {accum}
  .amdhsa_group_segment_fixed_size 0
  .amdhsa_kernarg_size 104
  .amdhsa_user_sgpr_count 2
  .amdhsa_user_sgpr_kernarg_segment_ptr 1
  .amdhsa_system_sgpr_workgroup_id_x 1
.end_amdhsa_kernel
"""


def srd(a, d, lo, hi, nbytes, add=None):
    if add is None:
        a(f"s_mov_b32 s{d}, s{lo}\ns_mov_b32 s{d+1}, s{hi}")
    else:
        a(f"s_add_u32 s{d}, s{lo}, {add}\ns_addc_u32 s{d+1}, s{hi}, 0")
    a(f"s_mov_b32 s{d+2}, {nbytes}\ns_mov_b32 s{d+3}, 0x00020000")


STAMP = False
WS_DBG = 64 << 20


V_ST = 38


def stamp(a, i, V_ST=38):
    if STAMP:
        a(f"""s_memtime s[96:97]
        s_memrealtime s[98:99]
        s_waitcnt lgkmcnt(0)
        v_writelane_b32 v{V_ST}, s96, {i}
        v_writelane_b32 v{V_ST+1}, s98, {i}""")


def stamp_store(a, kern, wave_s, V_ST=38):
    if STAMP:
        a("s_load_dwordx2 s[66:67], s[0:1], 96\ns_waitcnt lgkmcnt(0)")
        srd(a, 4, 66, 67, 1 << 20, WS_DBG + kern * (1 << 20))
        a(f"s_lshl_b32 s3, s2, 2\ns_add_u32 s3, s3, s{wave_s}\ns_lshl_b32 s3, s3, 9")
        a("v_mbcnt_lo_u32_b32 v2, -1, 0\nv_mbcnt_hi_u32_b32 v2, -1, v2\nv_lshlrev_b32 v2, 3, v2\nv_add_u32 v2, s3, v2")
        a(f"buffer_store_dwordx2 v[{V_ST}:{V_ST+1}], v2, s[4:7], 0 offen")
        a("s_waitcnt vmcnt(0)")


def gen_ln(a):
    a(".p2align 8\n.type ln_kernel,@function\nln_kernel:")
    a("""
    s_cmp_ge_u32 s2, 256
    s_cbranch_scc1 L_ln_end
    """)
    stamp(a, 0, 78)
    a("""
    s_load_dwordx2 s[4:5], s[0:1], 0
    s_load_dwordx2 s[6:7], s[0:1], 96
    v_lshrrev_b32 v1, 4, v0
    s_lshl_b32 s3, s2, 3
    v_add_u32 v1, s3, v1
    v_and_b32 v2, 15, v0
    v_mul_u32_u24 v3, 1280, v1
    v_lshl_add_u32 v3, v2, 4, v3
    s_waitcnt lgkmcnt(0)
    """)
    srd(a, 8, 4, 5, XN_BYTES)
    srd(a, 12, 6, 7, XN_BYTES)
    for i in range(5):
        a(f"buffer_load_dwordx4 {vr(8+4*i)}, v3, s[8:11], 0 offen offset:{256*i}")
    a("""
    v_lshrrev_b32 v4, 4, v1
    v_mul_u32_u24 v4, 20480, v4
    v_lshl_add_u32 v4, v2, 8, v4
    v_and_b32 v5, 15, v1
    v_lshl_add_u32 v4, v5, 4, v4
    s_mov_b32 s16, 4096
    s_mov_b32 s17, 8192
    s_mov_b32 s18, 12288
    s_mov_b32 s19, 16384
    """)
    for i in range(5):
        a(f"s_waitcnt vmcnt({4-i})")
        for j in range(4):
            r = 8 + 4 * i + j
            d = 32 + 8 * i + 2 * j
            a(f"v_lshlrev_b32 v{d}, 16, v{r}\nv_and_b32 v{d+1}, 0xffff0000, v{r}")
    for k in range(4):
        a(f"v_add_f32 v{28+k}, v{32+k}, v{36+k}")
    for e in range(8, 40):
        a(f"v_add_f32 v{28+e%4}, v{32+e}, v{28+e%4}")
    a("v_add_f32 v28, v28, v29\nv_add_f32 v30, v30, v31\nv_add_f32 v28, v28, v30")
    for sh in (8, 4, 2, 1):
        a(f"s_nop 1\nv_add_f32 v28, v28, v28 row_ror:{sh}")
    a(f"v_mul_f32 v28, {fh(1/640)}, v28")
    a("v_mov_b32 v72, 0\nv_mov_b32 v73, 0\nv_mov_b32 v74, 0\nv_mov_b32 v75, 0")
    for e in range(40):
        t = 76 + e % 4
        a(f"v_sub_f32 v{t}, v{32+e}, v28\nv_fmac_f32 v{72+e%4}, v{t}, v{t}")
    a("v_add_f32 v72, v72, v73\nv_add_f32 v74, v74, v75\nv_add_f32 v72, v72, v74")
    for sh in (8, 4, 2, 1):
        a(f"s_nop 1\nv_add_f32 v72, v72, v72 row_ror:{sh}")
    a(f"""
    v_mul_f32 v72, {fh(1/640)}, v72
    v_cvt_pk_bf16_f32 v29, v28, v72
    v_lshlrev_b32 v28, 16, v29
    v_and_b32 v72, 0xffff0000, v29
    v_add_f32 v72, {fh(1e-5)}, v72
    v_cvt_pk_bf16_f32 v72, v72, v72
    v_and_b32 v72, 0xffff0000, v72
    v_sqrt_f32 v72, v72
    s_nop 0
    v_cvt_pk_bf16_f32 v72, v72, v72
    v_and_b32 v72, 0xffff0000, v72
    v_rcp_f32 v72, v72
    s_nop 0
    """)
    so = ["0", "s16", "s17", "s18", "s19"]
    for i in range(5):
        for j in range(4):
            e = 32 + 8 * i + 2 * j
            a(f"""
            v_sub_f32 v{e}, v{e}, v28
            v_sub_f32 v{e+1}, v{e+1}, v28
            v_cvt_pk_bf16_f32 v{e}, v{e}, v{e+1}
            v_and_b32 v{e+1}, 0xffff0000, v{e}
            v_lshlrev_b32 v{e}, 16, v{e}
            v_mul_f32 v{e}, v{e}, v72
            v_mul_f32 v{e+1}, v{e+1}, v72
            v_cvt_pk_bf16_f32 v{8+4*i+j}, v{e}, v{e+1}
            """)
        a(f"buffer_store_dwordx4 {vr(8+4*i)}, v4, s[12:15], {so[i]} offen")
    if STAMP:
        a("s_waitcnt vmcnt(0)\nv_lshrrev_b32 v1, 6, v0\ns_nop 1\nv_readfirstlane_b32 s20, v1")
    for i in range(1, 9):
        stamp(a, i, 78)
    stamp_store(a, 0, 20, 78)
    a("L_ln_end:\ns_endpgm")


SLOT = 24576
LDS_K = 0
LDS_V = 3 * SLOT
LDS_X = 6 * SLOT
LDS_W1 = 2 * SLOT
LDS_FLAG = LDS_X + 12288

S_XN, S_WQ, S_W1, S_K, S_V, S_H, S_O, S_B1 = 4, 8, 12, 16, 20, 24, 28, 32
S_HEAD, S_QB, S_WAVE = 36, 37, 38
S_RD, S_DMA, S_SO0, S_SO1, S_CNT, S_T0, S_T1, S_BOFF = 40, 41, 42, 43, 44, 45, 46, 47
S_W3072, S_SV0, S_SV1, S_PASS, S_RD1, S_DMA1, S_SW0, S_SW1 = 48, 49, 50, 51, 52, 53, 54, 55
S_C0, S_C1 = 56, 57
S_M0, S_M1 = 58, 59

V_Q = 64
V_S = 160
V_P = 192
V_NM = 224
V_L = 2
V_KA = 6
V_VA = 8
V_KB = 12
V_VB = 14
V_DK = 18
V_DV = 19
V_T = 20
V_RING = 40
OFF = float(os.environ.get('OFF', 102.0))


def q_reg(s, t):
    return V_Q + 4 * (4 * s + t)


def s_reg(kt, t):
    return V_S + 4 * (4 * kt + t)


def p_reg(par, t):
    return V_P + 16 * par + 4 * t


def ring(f):
    return V_RING + 4 * (f % 6)


def mfma(d, a_, b, c):
    return f"v_mfma_f32_16x16x32_bf16 {d}, {a_}, {b}, {c}"


EXP_GAPS = None


def build_schedule():
    G = [dict(lds=None, exp=None, valu=[], dma=None, wait=None, scal=None) for _ in range(96)]
    pos = [0] * 24
    for g in range(24):
        fk = (g + 3) % 24
        if fk < 12:
            G[4 * g + pos[g]]["lds"] = (fk, 0)
            pos[g] += 1
        fv = g + 5
        if 12 <= fv < 24:
            G[4 * g + pos[g]]["lds"] = (fv, 0)
            G[4 * g + pos[g] + 1]["lds"] = (fv, 1)
            pos[g] += 2
    for i in range(6):
        G[4 * i + 1]["dma"] = i
    for f in range(24):
        G[(4 * f - 1) % 96]["wait"] = f
    free = [i for i in range(96) if G[i]["lds"] is None and G[i]["dma"] is None]
    assert len(free) == 54

    def pick(lo, hi, n):
        c = [i for i in free if lo <= i < hi]
        assert len(c) >= n, (lo, hi, n, c)
        return [c[int((k + 0.5) * len(c) / n)] for k in range(n)]
    e_a = pick(0, 20, 7)
    e_b = pick(26, 48, 8)
    e_c = pick(48, 76, 10)
    e_d = pick(76, 96, 7)
    seq = [(kt, t, r) for kt in range(2) for t in range(4) for r in range(4)]
    times = e_b + e_c + e_d + [96 + x for x in e_a]
    assert len(times) == 32 and len(set(times)) == 32
    etime = {}
    for (kt, t, r), tm in zip(seq, times):
        ready = (20 if kt == 0 else 44) + t + 3
        assert tm >= ready, (kt, t, r, tm)
        G[tm % 96]["exp"] = ("prev" if tm >= 96 else "cur", kt, t, r)
        etime[(kt, t, r)] = tm
    cap = [0] * 96
    for i in range(96):
        if G[i]["dma"] is not None or G[i]["exp"] is not None:
            cap[i] = 0
        elif G[i]["lds"] is not None:
            cap[i] = 1
        else:
            cap[i] = 2
    ops = []
    for (kt, t, r) in seq:
        ops.append((etime[(kt, t, r)] + 1, "add", kt, t, r))
        if r & 1:
            ops.append((etime[(kt, t, r)] + 1, "cvt", kt, t, r >> 1))
    ops.sort(key=lambda o: (o[0], o[1] == "add"))
    used = [0] * 96
    for o in ops:
        tm = o[0]
        while used[tm % 96] >= cap[tm % 96]:
            tm += 1
        kt, t = o[2], o[3]
        dead = (96 + t) if kt == 0 else (120 + t)
        assert tm < dead, (o, tm)
        used[tm % 96] += 1
        G[tm % 96]["valu"].append(("prev" if tm >= 96 else "cur",) + o[1:])
    spare = [cap[i] - used[i] for i in range(96)]
    return G, spare


def lds_wait_counts(G, nok=False):
    seq = []
    for rep in range(2):
        for i in range(96):
            if G[i]["lds"] is not None and not (nok and rep == 1 and G[i]["lds"][0] < 12):
                seq.append((rep * 96 + i, G[i]["lds"][0]))
    cnt = {}
    for f in range(24):
        wt = 96 + (4 * f - 1)
        last = max(tm for tm, ff in seq if ff == f and tm < wt)
        cnt[f] = sum(1 for tm, ff in seq if last < tm < wt)
    return cnt


def emit_soft(a, kind, which, kt, t, x, par_cur):
    par = par_cur if which == "cur" else 1 - par_cur
    s = s_reg(kt, t)
    if kind == "exp":
        a(f"v_exp_f32 v{s+x}, v{s+x}")
    elif kind == "add":
        a(f"v_add_f32 v{V_L+t}, v{s+x}, v{V_L+t}")
    else:
        a(f"v_cvt_pk_bf16_f32 v{p_reg(par,t)+2*kt+x}, v{s+2*x}, v{s+2*x+1}")


def k_read(f, half, addr=V_KA):
    kt, s = f // 6, f % 6
    off = (4 * half + 2 * kt) * 3072 + (s >> 1) * 1024
    return f"ds_read_b128 {vr(ring(f))}, v{addr+(s&1)} offset:{off}"


def v_read(f, part, half):
    dt = f - 12
    off = (4 * half + 2 * part) * 3072 + (dt >> 2) * 1024
    return f"ds_read_b64_tr_b16 {vr(ring(f)+2*part,2)}, v{V_VA+(dt&3)} offset:{off}"


def gen_period(a, G, spare, cnt, per, tail=False):
    par_cur = 1 - per
    par_pv = per
    extra_v = {}
    extra_s = {}
    sp = list(spare)

    def put_v(lo, hi, ins):
        for i in range(lo, hi):
            if sp[i] > 0:
                sp[i] -= 1
                extra_v.setdefault(i, []).append(ins)
                return
        raise AssertionError(ins)

    def put_s(lo, hi, ins):
        for i in range(lo, hi):
            if G[i]["lds"] is None and G[i]["dma"] is None and G[i]["wait"] is None and i not in extra_s:
                extra_s[i] = ins
                return i
        raise AssertionError(ins)

    if not tail:
        region = LDS_K if per == 0 else LDS_V
        nregion = LDS_V if per == 0 else LDS_K

        def m0(i, reg):
            return f"s_add_u32 m0, s{S_DMA}, {reg + (i//3)*12288 + (i%3)*896}"
        for i in range(1, 6):
            assert put_s(4 * i - 2, 4 * i - 1, m0(i, region)) == 4 * i - 2
        if per == 0:
            put_s(90, 91, m0(0, nregion))
            put_s(24, 40, f"s_add_u32 s{S_SO0}, s{S_SO0}, {SLOT}")
            put_s(24, 44, f"s_add_u32 s{S_SO1}, s{S_SO1}, {SLOT}")
            put_s(44, 60, f"s_sub_u32 s{S_CNT}, s{S_CNT}, 1")
            put_s(94, 95, f"s_cmp_eq_u32 s{S_CNT}, 0")
        else:
            put_s(24, 40, f"s_add_u32 s{S_SV0}, s{S_SV0}, {SLOT}")
            put_s(24, 44, f"s_add_u32 s{S_SV1}, s{S_SV1}, {SLOT}")
            i0 = put_s(44, 56, f"s_add_u32 s{S_DMA}, s{S_RD}, s{S_W3072}")
            i1 = put_s(i0 + 1, 60, f"s_add_u32 s{S_RD}, s{S_RD}, {SLOT}")
            i2 = put_s(i1 + 1, 64, f"s_cmp_eq_u32 s{S_RD}, {3*SLOT}")
            i3 = put_s(i2 + 1, 68, f"s_cselect_b32 s{S_RD}, 0, s{S_RD}")
            for j in range(2):
                put_v(i3 + 1, 84, f"v_add_u32 v{V_KA+j}, s{S_RD}, v{V_KB+j}")
            for j in range(4):
                put_v(74, 96, f"v_add_u32 v{V_VA+j}, s{S_RD}, v{V_VB+j}")
            extra_s[80] = "s_waitcnt vmcnt(12) lgkmcnt(0)"
            extra_s[81] = "s_barrier"
            put_s(94, 95, m0(0, nregion))
    for i in range(96):
        g = G[i]
        grp, t = i // 4, i % 4
        if grp < 12:
            if not tail:
                kt, s = grp // 6, grp % 6
                c = vr(V_NM + 4 * t) if s == 0 else vr(s_reg(kt, t))
                a(mfma(vr(s_reg(kt, t)), vr(ring(grp)), vr(q_reg(s, t)), c))
        else:
            dt = grp - 12
            o = ar(4 * (4 * dt + t))
            a(mfma(o, vr(ring(grp)), vr(p_reg(par_pv, t)), o))
        if g["wait"] is not None:
            f = g["wait"]
            if tail:
                if 12 <= f < 24:
                    a("s_waitcnt lgkmcnt(%d)" % cnt[f])
            elif per == 1 and f in (21, 22, 23):
                pass
            else:
                a("s_waitcnt lgkmcnt(%d)" % cnt[f])
        elif i in extra_s:
            a(extra_s[i])
        if g["lds"] is not None:
            f, part = g["lds"]
            if f < 12:
                if not tail:
                    half = per if i < 84 else 1 - per
                    a(k_read(f, half))
            else:
                a(v_read(f, part, per))
        if g["dma"] is not None and not tail:
            d = g["dma"]
            if per == 0:
                a(f"buffer_load_dwordx4 v{V_DK}, s[{S_K}:{S_K+3}], s{S_SO0 + d//3} offen offset:{(d%3)*128} lds")
            else:
                a(f"buffer_load_dwordx4 v{V_DV}, s[{S_V}:{S_V+3}], s{S_SV0 + d//3} offen offset:{(d%3)*128} lds")
        if g["exp"] is not None:
            w, kt, tt, r = g["exp"]
            if not (tail and w == "cur"):
                emit_soft(a, "exp", w, kt, tt, r, par_cur)
                if tail and grp < 12:
                    a("s_nop 0")
        for (w, kind, kt, tt, x) in g["valu"]:
            if not (tail and w == "cur"):
                emit_soft(a, kind, w, kt, tt, x, par_cur)
        for ins in extra_v.get(i, []):
            a(ins)
        if tail and i == 47:
            a("s_nop 1")


def dma_tile(a, voff, srdreg, so0, so1, lds_base_expr_reg, lds_const, n=6):
    for d in range(n):
        a(f"s_add_u32 m0, s{lds_base_expr_reg}, {lds_const + (d//3)*12288 + (d%3)*896}")
        a("s_nop 0")
        a(f"buffer_load_dwordx4 v{voff}, s[{srdreg}:{srdreg+3}], s{so0 if d < 3 else so1} offen offset:{(d%3)*128} lds")


P1_ACC = 64
P1_H = 0
P1_RING = 48
P1_B = 72
V1_WA = 6
V1_FA = 8
V1_WB = 12
V1_FB = 14
V1_DW = 20
V1_DF = 21
V1_X = 22


def p1_acc(f, t):
    if f < 12:
        s, half = f >> 1, f & 1
        return vr(P1_ACC + 8 * (4 * s + t) + 4 * half)
    return ar(P1_H + 4 * (4 * (f - 12) + t))


def p1_read(F, part):
    ks, f = F // 15, F % 15
    dst = ar(P1_RING + 4 * (F % 6) + 2 * part, 2)
    if f < 12:
        s, half = f >> 1, f & 1
        off = ks * 4 * 3072 + (s >> 1) * 1024 + part * 512 + half * 8
        return f"ds_read_b64_tr_b16 {dst}, v{V1_WA+(s&1)} offset:{off}"
    off = ks * 4096 + part * 512
    return f"ds_read_b64_tr_b16 {dst}, v{V1_FA+f-12} offset:{off}"


def gen_p1_stage(a, sp):
    NG = 30
    rg = {}
    for F in range(30):
        rg[F] = F - 5
    rg[0], rg[1], rg[2] = -3, -2, -1
    rg[3], rg[4] = 0, 1
    order = []
    slots = {g: [] for g in range(NG)}
    pend = []
    for F in range(3, 30):
        pend += [(F, 0), (F, 1)]
    g = 0
    while pend:
        while pend and len(slots[g]) < 3 and g >= pend[0][0] - 5:
            slots[g].append(pend.pop(0))
        g += 1
    assert g <= 26, g
    for k, F in enumerate((0, 1, 2)):
        slots[27 + k] = [(F + 30, 0), (F + 30, 1)]
    seq = []
    for rep in range(2):
        for gg in range(NG):
            for p, (F, part) in enumerate(slots[gg]):
                seq.append((rep * 120 + 4 * gg + p, F % 30, F >= 30))
    cnt = {}
    for F in range(30):
        wt = 120 + 4 * F - 1
        last = max(tm for tm, ff, _ in seq if ff == F and tm < wt)
        assert wt - last >= 5, (F, wt, last)
        cnt[F] = sum(1 for tm, ff, _ in seq if last < tm < wt)
        assert cnt[F] <= 15
    vm = {}
    for ks in range(2):
        cand = [gg for gg in range(15 * ks + 2, 15 * ks + 15) if len(slots[gg]) <= 2 and gg not in (25, 26)]
        assert len(cand) >= 8, cand
        for j in range(4):
            vm[cand[j]] = ("B", ks, j)
        for j in range(4):
            vm[cand[4 + j]] = ("D", ks, j)
    for i in range(120):
        grp, t = i // 4, i % 4
        ks, f = grp // 15, grp % 15
        buf = (2 * sp + ks) % 4
        acc = p1_acc(f, t)
        a(mfma(acc, ar(P1_RING + 4 * (grp % 6)), ar(P1_B + 16 * buf + 4 * t), acc))
        if t < len(slots[grp]):
            F, part = slots[grp][t]
            a(p1_read(F % 30, part))
        if t == 2 and grp in vm:
            kind, kk, j = vm[grp]
            if kind == "B":
                nb = (2 * sp + kk + 3) % 4
                a(f"buffer_load_dwordx4 {ar(P1_B+16*nb+4*j)}, v{V1_X+j}, s[{S_XN}:{S_XN+3}], s{S_BOFF} offen offset:{kk*1024}")
            else:
                d = 4 * kk + j
                if d < 6:
                    a(f"s_add_u32 m0, s{S_DMA}, {LDS_V + (d//3)*12288 + (d%3)*896}")
                else:
                    a(f"s_add_u32 m0, s{S_DMA1}, {LDS_W1 + (d-6)*4096}")
        if t == 3:
            F = (grp + 1) % 30
            w = []
            if F % 15 == 0:
                w.append("vmcnt(20)")
            if not (F in (27, 28, 29)):
                w.append(f"lgkmcnt({cnt[F]})")
            if w:
                a("s_waitcnt " + " ".join(w))
            if grp in vm and vm[grp][0] == "D":
                kind, kk, j = vm[grp]
                d = 4 * kk + j
                if d < 6:
                    a(f"buffer_load_dwordx4 v{V1_DW}, s[{S_WQ}:{S_WQ+3}], s{S_SO0 + d//3} offen offset:{(d%3)*128} lds")
                else:
                    a(f"buffer_load_dwordx4 v{V1_DF}, s[{S_W1}:{S_W1+3}], s{S_SW0 + d-6} offen lds")
        if grp == 25 and t == 0:
            a(f"s_add_u32 s{S_DMA}, s{S_RD}, s{S_W3072}")
        if grp == 25 and t == 1:
            a(f"s_add_u32 s{S_RD}, s{S_RD}, {SLOT}")
            a(f"s_cmp_eq_u32 s{S_RD}, {3*SLOT}")
            a(f"s_cselect_b32 s{S_RD}, 0, s{S_RD}")
        if grp == 25 and t == 2:
            a(f"s_lshl_b32 s{S_T0}, s{S_WAVE}, 10")
            a(f"s_add_u32 s{S_DMA1}, s{S_RD1}, s{S_T0}")
            a(f"s_add_u32 s{S_RD1}, s{S_RD1}, 8192")
        if grp == 26 and t == 0:
            a(f"s_cmp_eq_u32 s{S_RD1}, {3*8192}")
            a(f"s_cselect_b32 s{S_RD1}, 0, s{S_RD1}")
            a(f"v_add_u32 v{V1_WA}, s{S_RD}, v{V1_WB}")
        if grp == 26 and t == 1:
            a("s_waitcnt vmcnt(16) lgkmcnt(0)")
            a(f"v_add_u32 v{V1_WA+1}, s{S_RD}, v{V1_WB+1}")
            a(f"v_add_u32 v{V1_FA}, s{S_RD1}, v{V1_FB}")
        if grp == 26 and t == 2:
            a("s_barrier")
            a(f"v_add_u32 v{V1_FA+1}, s{S_RD1}, v{V1_FB+1}")
            a(f"v_add_u32 v{V1_FA+2}, s{S_RD1}, v{V1_FB+2}")
        if grp == 27 and t == 2:
            a(f"s_add_u32 s{S_SO0}, s{S_SO0}, {64*12288}")
            a(f"s_add_u32 s{S_SO1}, s{S_SO1}, {64*12288}")
            a(f"s_add_u32 s{S_BOFF}, s{S_BOFF}, 2048")
        if grp == 28 and t == 2:
            a(f"s_add_u32 s{S_SW0}, s{S_SW0}, {64*3072}")
            a(f"s_add_u32 s{S_SW1}, s{S_SW1}, {64*3072}")
    assert max(g_ for g_ in vm) < 25, vm


def gen_attn(a, dbg=False):
    G, spare = build_schedule()
    cnt = lds_wait_counts(G)
    a(".p2align 8\n.type attn_kernel,@function\nattn_kernel:")
    a(f"""
    s_cmp_ge_u32 s2, 256
    s_cbranch_scc1 L_at_end
    """)
    stamp(a, 0)
    a(f"""
    s_load_dwordx4 s[60:63], s[0:1], 8
    s_load_dwordx2 s[64:65], s[0:1], 24
    s_load_dwordx4 s[68:71], s[0:1], 48
    s_load_dwordx2 s[66:67], s[0:1], 96
    s_and_b32 s{S_T0}, s2, 7
    s_lshl_b32 s{S_T0}, s{S_T0}, 2
    s_bfe_u32 s{S_T1}, s2, 0x20003
    s_add_u32 s{S_HEAD}, s{S_T0}, s{S_T1}
    s_lshr_b32 s{S_QB}, s2, 5
    v_lshrrev_b32 v1, 6, v0
    v_and_b32 v0, 63, v0
    v_readfirstlane_b32 s{S_WAVE}, v1
    """)
    a(f"""
    v_and_b32 v26, 7, v0
    v_lshrrev_b32 v27, 3, v0
    v_lshrrev_b32 v28, 4, v0
    v_bfe_u32 v29, v0, 2, 2
    v_and_b32 v30, 3, v0
    v_and_b32 v31, 15, v0
    s_mul_i32 s{S_W3072}, s{S_WAVE}, 3072
    s_waitcnt lgkmcnt(0)
    """)
    a(f"s_mul_i32 s{S_T0}, s{S_HEAD}, 384\ns_sub_u32 s{S_T1}, {640*6144*2}, s{S_T0}")
    srd(a, S_WQ, 64, 65, f"s{S_T1}", f"s{S_T0}")
    srd(a, S_XN, 66, 67, XN_BYTES)
    a(f"""
    s_lshl_b32 s{S_T0}, s{S_WAVE}, 3
    v_add_u32 v32, s{S_T0}, v27
    v_mul_u32_u24 v33, 12288, v32
    v_bfe_u32 v34, v27, 1, 1
    v_lshlrev_b32 v35, 2, v34
    v_xor_b32 v35, v35, v26
    v_lshl_add_u32 v{V1_DW}, v35, 4, v33
    s_mov_b32 s{S_SO0}, 0
    s_mov_b32 s{S_SO1}, {32*12288}
    """)
    dma_tile(a, V1_DW, S_WQ, S_SO0, S_SO1, S_W3072, LDS_V)
    a(f"""
    s_lshl_b32 s{S_T0}, s{S_QB}, 4
    s_lshl_b32 s{S_T1}, s{S_WAVE}, 2
    s_add_u32 s{S_T0}, s{S_T0}, s{S_T1}
    s_mul_i32 s{S_T0}, s{S_T0}, 20480
    v_lshl_add_u32 v{V1_X}, v0, 4, s{S_T0}
    v_add_u32 v{V1_X+1}, 20480, v{V1_X}
    v_add_u32 v{V1_X+2}, {2*20480}, v{V1_X}
    v_add_u32 v{V1_X+3}, {3*20480}, v{V1_X}
    """)
    for j in range(4):
        a(f"buffer_load_dwordx4 {ar(P1_B+4*j)}, v{V1_X+j}, s[{S_XN}:{S_XN+3}], 0 offen")
    a(f"s_mul_i32 s{S_T0}, s{S_HEAD}, 96\ns_sub_u32 s{S_T1}, {640*1536*2}, s{S_T0}")
    srd(a, S_W1, 68, 69, f"s{S_T1}", f"s{S_T0}")
    a(f"""
    s_and_b32 s{S_T0}, s{S_WAVE}, 1
    s_lshl_b32 s{S_T0}, s{S_T0}, 2
    v_lshlrev_b32 v35, 1, v34
    v_or_b32 v35, s{S_T0}, v35
    v_xor_b32 v35, v35, v26
    v_mul_u32_u24 v33, 3072, v32
    v_lshl_add_u32 v{V1_DF}, v35, 4, v33
    s_mov_b32 s{S_SW0}, 0
    s_mov_b32 s{S_SW1}, {32*3072}
    s_lshl_b32 s{S_DMA1}, s{S_WAVE}, 10
    """)
    for d in range(2):
        a(f"s_add_u32 m0, s{S_DMA1}, {LDS_W1 + d*4096}\ns_nop 0")
        a(f"buffer_load_dwordx4 v{V1_DF}, s[{S_W1}:{S_W1+3}], s{S_SW0+d} offen lds")
    a(f"s_mul_i32 s{S_T0}, s{S_HEAD}, 96\ns_sub_u32 s{S_T1}, 3072, s{S_T0}")
    srd(a, S_B1, 70, 71, f"s{S_T1}", f"s{S_T0}")
    a("v_lshlrev_b32 v36, 3, v28")
    for ft in range(3):
        a(f"buffer_load_dwordx2 {vr(40+2*ft,2)}, v36, s[{S_B1}:{S_B1+3}], 0 offen offset:{32*ft}")
    for ks in (1, 2):
        for j in range(4):
            a(f"buffer_load_dwordx4 {ar(P1_B+16*ks+4*j)}, v{V1_X+j}, s[{S_XN}:{S_XN+3}], 0 offen offset:{1024*ks}")
    a(f"s_mov_b32 s{S_SO0}, {64*12288}\ns_mov_b32 s{S_SO1}, {96*12288}")
    a(f"s_mov_b32 s{S_SW0}, {64*3072}\ns_mov_b32 s{S_SW1}, {96*3072}")
    dma_tile(a, V1_DW, S_WQ, S_SO0, S_SO1, S_W3072, LDS_V + SLOT)
    for d in range(2):
        a(f"s_add_u32 m0, s{S_DMA1}, {LDS_W1 + 8192 + d*4096}\ns_nop 0")
        a(f"buffer_load_dwordx4 v{V1_DF}, s[{S_W1}:{S_W1+3}], s{S_SW0+d} offen lds")
    a(f"""
    s_mov_b32 s{S_SO0}, {128*12288}
    s_mov_b32 s{S_SO1}, {160*12288}
    s_mov_b32 s{S_SW0}, {128*3072}
    s_mov_b32 s{S_SW1}, {160*3072}
    s_mov_b32 s{S_BOFF}, 3072
    s_mov_b32 s{S_RD}, 0
    s_mov_b32 s{S_RD1}, 0
    s_add_u32 s{S_DMA}, s{S_W3072}, {2*SLOT}
    s_add_u32 s{S_DMA1}, s{S_DMA1}, {2*8192}
    """)
    a(f"s_mul_i32 s{S_T0}, s{S_HEAD}, 786432")
    srd(a, S_K, 60, 61, 786432, f"s{S_T0}")
    srd(a, S_V, 62, 63, 786432, f"s{S_T0}")
    srd(a, S_H, 66, 67, H_BYTES, WS_H)
    srd(a, S_O, 66, 67, O_BYTES, WS_O)
    a(f"""
    v_mul_u32_u24 v33, 3072, v28
    v_lshl_add_u32 v33, v29, 7, v33
    v_add_u32 v33, {LDS_V}, v33
    v_lshrrev_b32 v34, 1, v29
    v_lshlrev_b32 v35, 2, v34
    v_xor_b32 v35, v35, v30
    v_lshl_add_u32 v{V1_WB}, v35, 4, v33
    v_xor_b32 v{V1_WB+1}, 64, v{V1_WB}
    v_mov_b32 v{V1_WA}, v{V1_WB}
    v_mov_b32 v{V1_WA+1}, v{V1_WB+1}
    """)
    a(f"""
    v_lshlrev_b32 v33, 10, v28
    v_lshl_add_u32 v33, v29, 7, v33
    v_add_u32 v33, {LDS_W1}, v33
    v_and_b32 v35, 1, v30
    v_lshl_add_u32 v33, v35, 3, v33
    v_lshrrev_b32 v35, 1, v30
    v_lshl_add_u32 v33, v35, 4, v33
    v_and_b32 v35, 1, v28
    v_lshl_add_u32 v35, v35, 1, v34
    v_lshl_add_u32 v{V1_FB}, v35, 5, v33
    v_xor_b32 v{V1_FB+1}, 32, v{V1_FB}
    v_xor_b32 v{V1_FB+2}, 64, v{V1_FB}
    v_mov_b32 v{V1_FA}, v{V1_FB}
    v_mov_b32 v{V1_FA+1}, v{V1_FB+1}
    v_mov_b32 v{V1_FA+2}, v{V1_FB+2}
    """)
    a(f"""
    v_mul_u32_u24 v33, 384, v27
    v_add_u32 v33, s{S_W3072}, v33
    s_and_b32 s{S_T0}, s{S_WAVE}, 1
    s_lshl_b32 s{S_T0}, s{S_T0}, 2
    v_lshrrev_b32 v34, 1, v27
    v_add_u32 v35, s{S_T0}, v34
    v_xor_b32 v35, v35, v26
    v_lshl_add_u32 v{V_DK}, v35, 4, v33
    v_lshlrev_b32 v35, 1, v34
    v_xor_b32 v35, v35, v26
    v_lshl_add_u32 v{V_DV}, v35, 4, v33
    """)
    a("v_mov_b32 v48, 0\nv_mov_b32 v49, 0\nv_mov_b32 v50, 0\nv_mov_b32 v51, 0\ns_nop 1")
    for i in range(12):
        a(f"v_mfma_f32_32x32x16_bf16 {vr(64+16*i,16)}, v[48:51], v[48:51], 0")
    a("s_waitcnt vmcnt(16)")
    for ft in range(3):
        a(f"""
        v_lshlrev_b32 v52, 16, v{40+2*ft}
        v_and_b32 v53, 0xffff0000, v{40+2*ft}
        v_lshlrev_b32 v54, 16, v{41+2*ft}
        v_and_b32 v55, 0xffff0000, v{41+2*ft}
        """)
        for t in range(4):
            for r in range(4):
                a(f"v_accvgpr_write_b32 a{P1_H+4*(4*ft+t)+r}, v{52+r}")
    a("s_barrier")
    stamp(a, 1)
    for F in range(3):
        a(p1_read(F, 0))
        a(p1_read(F, 1))
    a(f"s_mov_b32 s{S_CNT}, 5\ns_waitcnt lgkmcnt(4)")
    a(".p2align 6\nL_p1_loop:")
    gen_p1_stage(a, 0)
    gen_p1_stage(a, 1)
    a(f"s_sub_u32 s{S_CNT}, s{S_CNT}, 1\ns_cmp_lg_u32 s{S_CNT}, 0\ns_cbranch_scc1 L_p1_loop")
    a("s_waitcnt lgkmcnt(0)\ns_barrier")
    stamp(a, 2)
    a(f"s_mov_b32 s{S_PASS}, 0")
    a("L_att_start:")
    a(f"s_mov_b32 s{S_SO0}, 0")
    dma_tile(a, V_DK, S_K, S_SO0, S_SO0, S_W3072, LDS_X, n=3)
    a(f"s_mov_b32 s{S_SO0}, 12288\ns_mov_b32 s{S_SO1}, {2*12288}\ns_mov_b32 s{S_SV0}, 0\ns_mov_b32 s{S_SV1}, 12288")
    dma_tile(a, V_DK, S_K, S_SO0, S_SO1, S_W3072, LDS_K)
    dma_tile(a, V_DV, S_V, S_SV0, S_SV1, S_W3072, LDS_V)
    a(f"s_mov_b32 s{S_SO0}, {3*12288}\ns_mov_b32 s{S_SO1}, {4*12288}\ns_mov_b32 s{S_SV0}, {2*12288}\ns_mov_b32 s{S_SV1}, {3*12288}")
    dma_tile(a, V_DK, S_K, S_SO0, S_SO1, S_W3072, LDS_K + SLOT)
    dma_tile(a, V_DV, S_V, S_SV0, S_SV1, S_W3072, LDS_V + SLOT)
    a(f"s_mov_b32 s{S_SO0}, {5*12288}\ns_mov_b32 s{S_SO1}, {6*12288}\ns_mov_b32 s{S_SV0}, {4*12288}\ns_mov_b32 s{S_SV1}, {5*12288}")
    c = (192 ** -0.5) * math.log2(math.e)
    a(f"s_mov_b32 s{S_C0}, {fh(c)}\ns_mov_b32 s{S_C1}, {fh(c)}")
    for i in range(24):
        b = P1_ACC + 8 * i
        for j in range(4):
            a(f"v_pk_mul_f32 {vr(b+2*j,2)}, {vr(b+2*j,2)}, s[{S_C0}:{S_C1}]")
        for j in range(4):
            a(f"v_cvt_pk_bf16_f32 v{V_Q+4*i+j}, v{b+2*j}, v{b+2*j+1}")
    k0 = -2.0 * math.log2(math.e) * math.sqrt(2 / math.pi)
    k1 = k0 * 0.044715
    a(f"""
    s_lshl_b32 s{S_T0}, s{S_QB}, 4
    s_lshl_b32 s{S_T1}, s{S_WAVE}, 2
    s_add_u32 s{S_T0}, s{S_T0}, s{S_T1}
    s_mul_i32 s{S_T0}, s{S_T0}, {48*1024}
    v_lshl_add_u32 v20, v0, 4, s{S_T0}
    v_add_u32 v21, {48*1024}, v20
    v_add_u32 v22, {2*48*1024}, v20
    v_add_u32 v23, {3*48*1024}, v20
    s_mov_b32 s{S_C0}, {fh(k1)}
    v_mov_b32 v24, {fh(k0)}
    """)
    for ft in range(3):
        a(f"""
        s_mul_i32 s{S_T0}, s{S_HEAD}, 3
        s_add_u32 s{S_T0}, s{S_T0}, {ft}
        s_lshr_b32 s{S_T1}, s{S_T0}, 1
        s_lshl_b32 s{S_T1}, s{S_T1}, 10
        s_and_b32 s{S_T0}, s{S_T0}, 1
        s_lshl_b32 s{S_T0}, s{S_T0}, 3
        s_add_u32 s{S_M0}, s{S_T0}, s{S_T1}
        """)
        x, u = 160, 176
        for e in range(16):
            a(f"v_accvgpr_read_b32 v{x+e}, a{P1_H+16*ft+e}")
        for e in range(16):
            a(f"v_mul_f32 v{u+e}, v{x+e}, v{x+e}")
        for e in range(16):
            a(f"v_fma_f32 v{u+e}, v{u+e}, s{S_C0}, v24")
        for e in range(16):
            a(f"v_mul_f32 v{u+e}, v{u+e}, v{x+e}")
        for e in range(16):
            a(f"v_exp_f32 v{u+e}, v{u+e}")
        for e in range(16):
            a(f"v_add_f32 v{u+e}, 1.0, v{u+e}")
        for e in range(16):
            a(f"v_rcp_f32 v{u+e}, v{u+e}")
        for e in range(16):
            a(f"v_mul_f32 v{x+e}, v{u+e}, v{x+e}")
        for e in range(8):
            a(f"v_cvt_pk_bf16_f32 v{192+8*ft+e}, v{x+2*e}, v{x+2*e+1}")
        for t in range(4):
            a(f"buffer_store_dwordx2 {vr(192+8*ft+2*t,2)}, v{20+t}, s[{S_H}:{S_H+3}], s{S_M0} offen")
    a(f"""
    v_lshrrev_b32 v33, 3, v31
    v_mul_u32_u24 v33, 3072, v33
    v_lshl_add_u32 v33, v26, 7, v33
    v_lshrrev_b32 v34, 1, v31
    v_xor_b32 v34, v34, v28
    v_lshl_add_u32 v{V_KB}, v34, 4, v33
    v_xor_b32 v{V_KB+1}, 64, v{V_KB}
    v_add_u32 v{V_KA}, {LDS_X}, v{V_KB}
    v_add_u32 v{V_KA+1}, {LDS_X}, v{V_KB+1}
    """)
    a(f"""
    v_lshrrev_b32 v33, 1, v28
    v_mul_u32_u24 v33, 3072, v33
    v_add_u32 v33, {LDS_V}, v33
    v_and_b32 v34, 1, v28
    v_lshl_add_u32 v34, v34, 2, v29
    v_lshl_add_u32 v33, v34, 7, v33
    v_and_b32 v35, 1, v30
    v_lshl_add_u32 v33, v35, 3, v33
    v_lshrrev_b32 v35, 1, v30
    v_lshl_add_u32 v33, v35, 4, v33
    v_lshrrev_b32 v34, 1, v34
    v_lshl_add_u32 v{V_VB}, v34, 5, v33
    v_xor_b32 v{V_VB+1}, 32, v{V_VB}
    v_xor_b32 v{V_VB+2}, 64, v{V_VB}
    v_xor_b32 v{V_VB+3}, 96, v{V_VB}
    """)
    for j in range(4):
        a(f"v_mov_b32 v{V_VA+j}, v{V_VB+j}\nv_mov_b32 v{V_L+j}, 0")
    a("v_mov_b32 v20, 0\nv_mov_b32 v21, 0\nv_mov_b32 v22, 0\nv_mov_b32 v23, 0\ns_nop 1")
    for i in range(12):
        a(f"v_mfma_f32_32x32x16_bf16 {ar(16*i,16)}, v[20:23], v[20:23], 0")
    stamp(a, 3)
    a("s_waitcnt vmcnt(36)\ns_barrier")
    stamp(a, 4)
    for f in range(6):
        a(k_read(f, 0))
    for f in range(12):
        kt, s = f // 6, f % 6
        a(f"s_waitcnt lgkmcnt({min(5, 11-f)})")
        for t in range(4):
            cc = "0" if s == 0 else vr(s_reg(kt, t))
            a(mfma(vr(s_reg(kt, t)), vr(ring(f)), vr(q_reg(s, t)), cc))
        if f + 6 < 12:
            a(k_read(f + 6, 0))
    a(f"v_mov_b32 v{V_KA}, v{V_KB}\nv_mov_b32 v{V_KA+1}, v{V_KB+1}")
    a("s_waitcnt vmcnt(24)\ns_barrier")
    for f in range(3):
        a(k_read(f, 0))
    a("s_nop 4")
    for t in range(4):
        s0, s1 = s_reg(0, t), s_reg(1, t)
        a(f"""
        v_max3_f32 v{20+t}, v{s0}, v{s0+1}, v{s0+2}
        v_max3_f32 v{20+t}, v{20+t}, v{s0+3}, v{s1}
        v_max3_f32 v{20+t}, v{20+t}, v{s1+1}, v{s1+2}
        v_max_f32 v{20+t}, v{20+t}, v{s1+3}
        """)
    for perm in ("v_permlane32_swap_b32", "v_permlane16_swap_b32"):
        for t in range(4):
            a(f"v_mov_b32 v{24+t}, v{20+t}")
        a("s_nop 1")
        for t in range(4):
            a(f"{perm} v{20+t}, v{24+t}")
        a("s_nop 1")
        for t in range(4):
            a(f"v_max_f32 v{20+t}, v{20+t}, v{24+t}")
    for t in range(4):
        a(f"v_sub_f32 v{V_NM+4*t}, {fh(-OFF)}, v{20+t}")
    for t in range(4):
        for r in range(1, 4):
            a(f"v_mov_b32 v{V_NM+4*t+r}, v{V_NM+4*t}")
    for kt in range(2):
        for t in range(4):
            for r in range(4):
                a(f"v_add_f32 v{s_reg(kt,t)+r}, v{V_NM+4*t}, v{s_reg(kt,t)+r}")
    for i in range(96):
        g = G[i]
        if g["exp"] is not None and g["exp"][0] == "cur":
            emit_soft(a, "exp", "cur", *g["exp"][1:], 0)
    a("s_nop 0")
    for i in range(96):
        for (w, kind, kt, tt, x) in G[i]["valu"]:
            if w == "cur":
                emit_soft(a, kind, w, kt, tt, x, 0)
    a(f"""
    s_mov_b32 s{S_RD}, 0
    s_add_u32 s{S_DMA}, s{S_W3072}, {2*SLOT}
    s_mov_b32 s{S_CNT}, 32
    s_add_u32 m0, s{S_DMA}, {LDS_K}
    s_waitcnt lgkmcnt({cnt[0]})
    """)
    stamp(a, 5)
    a(".p2align 6\nL_att_loop:")
    gen_period(a, G, spare, cnt, 0)
    a("s_cbranch_scc1 L_att_tail")
    gen_period(a, G, spare, cnt, 1)
    a("s_branch L_att_loop")
    a("L_att_tail:")
    gen_period(a, G, spare, lds_wait_counts(G, nok=True), 1, tail=True)
    stamp(a, 6)
    for perm in ("v_permlane32_swap_b32", "v_permlane16_swap_b32"):
        for t in range(4):
            a(f"v_mov_b32 v{24+t}, v{V_L+t}")
        a("s_nop 1")
        for t in range(4):
            a(f"{perm} v{V_L+t}, v{24+t}")
        a("s_nop 1")
        for t in range(4):
            a(f"v_add_f32 v{V_L+t}, v{V_L+t}, v{24+t}")
    for t in range(4):
        a(f"v_rcp_f32 v{20+2*t}, v{V_L+t}")
    a("s_nop 0")
    for t in range(4):
        a(f"v_mov_b32 v{21+2*t}, v{20+2*t}")
    a(f"""
    s_lshl_b32 s{S_T0}, s{S_QB}, 4
    s_lshl_b32 s{S_T1}, s{S_WAVE}, 2
    s_add_u32 s{S_T0}, s{S_T0}, s{S_T1}
    s_mul_i32 s{S_T0}, s{S_T0}, {192*1024}
    s_mul_i32 s{S_T1}, s{S_HEAD}, {6*1024}
    s_add_u32 s{S_T0}, s{S_T0}, s{S_T1}
    v_lshl_add_u32 v28, v0, 4, s{S_T0}
    v_add_u32 v29, {192*1024}, v28
    v_add_u32 v30, {2*192*1024}, v28
    v_add_u32 v31, {3*192*1024}, v28
    s_mov_b32 s{S_M0}, 4096
    """)
    n = 0
    for s in range(6):
        for t in range(4):
            b = 64 + 8 * (n % 16)
            o = 192 + 4 * (n % 12)
            n += 1
            for h in range(2):
                for r in range(4):
                    a(f"v_accvgpr_read_b32 v{b+4*h+r}, a{4*(4*(2*s+h)+t)+r}")
            for j in range(4):
                a(f"v_pk_mul_f32 {vr(b+2*j,2)}, {vr(b+2*j,2)}, {vr(20+2*t,2)}")
            for j in range(4):
                a(f"v_cvt_pk_bf16_f32 v{o+j}, v{b+2*j}, v{b+2*j+1}")
            so = "0" if s < 4 else f"s{S_M0}"
            a(f"buffer_store_dwordx4 {vr(o)}, v{28+t}, s[{S_O}:{S_O+3}], {so} offen offset:{(s%4)*1024}")
    stamp(a, 7)
    if STAMP:
        a("s_waitcnt vmcnt(0)")
    stamp(a, 8)
    stamp_store(a, 1, S_WAVE)
    a("L_at_end:\ns_endpgm")


def build(with_out=True):
    a = Asm()
    a.l.append("; @launch kernel=ln_kernel grid=(256,1,1) block=(128,1,1) lds=0")
    a.l.append("; @launch kernel=attn_kernel grid=(256,1,1) block=(256,1,1) lds=163840")
    if with_out:
        a.l.append("; @launch kernel=out_kernel grid=(256,1,1) block=(256,1,1) lds=163840")
    a('.amdgcn_target "amdgcn-amd-amdhsa--gfx950"\n.text')
    a(".globl ln_kernel\n.globl attn_kernel")
    gen_ln(a)
    gen_attn(a)
    if with_out:
        import gen_out
        a(".globl out_kernel")
        gen_out.gen_out(a)
    a('.section .rodata,"a"\n.p2align 6')
    a.l.append(kd("ln_kernel", 80, 102 if STAMP else 24, 80))
    a(".p2align 6")
    a.l.append(kd("attn_kernel", 512, 102, 256))
    if with_out:
        a(".p2align 6")
        a.l.append(kd("out_kernel", 512, 102, 256))
    return a.text()


if __name__ == "__main__":
    out = sys.argv[1] if len(sys.argv) > 1 else "k.s"
    import gen as _g
    _g.STAMP = "stamp" in sys.argv
    open(out, "w").write(_g.build(with_out=("noout" not in sys.argv)))
```

```python
import math
import gen
from gen import vr, ar, srd, mfma, fh, stamp, stamp_store
from gen import WS_H, WS_O, H_BYTES, O_BYTES, WS_WF, WF_BYTES, WS_PART, PART_BYTES, WS_FLAG

S_O, S_WF, S_HH, S_PT, S_X, S_OUT, S_B2, S_FL = 4, 8, 12, 16, 20, 24, 28, 32
S_WAVE, S_T0, S_T1, S_J, S_MB, S_NB, S_CNT = 36, 37, 38, 39, 40, 41, 42
S_OO, S_WO, S_WO4, S_RD, S_DO, S_DW, S_LO, S_LW, S_TILE = 43, 44, 45, 46, 47, 48, 49, 50, 51
S_HO, S_FO = 52, 53
V_L16 = 1
V_DO = 2
V_RB = 4
V_RA = 5
V_RB0 = 6
V_RA0 = 7
V_HO = 8
V_X = 12
V_B2 = 22
V_OO = 32
V_BO = 33
V_PO = 34
FR = 64
STG = 36864
LDS_WOFF = 16384


def dma(k):
    if k < 4:
        r, ks = k >> 1, k & 1
        pre = [f"s_add_u32 m0, s{S_DO}, {r*2048}"] if ks == 0 else []
        return pre, f"buffer_load_dwordx4 v{V_DO+r}, s[{S_O}:{S_O+3}], s{S_OO} offen offset:{ks*1024} lds"
    i = k - 4
    if i < 4:
        pre = [f"s_mov_b32 m0, s{S_DW}"] if i == 0 else []
        return pre, f"buffer_load_dwordx4 v{V_L16}, s[{S_WF}:{S_WF+3}], s{S_WO} offen offset:{i*1024} lds"
    return [f"s_add_u32 m0, s{S_DW}, 4096"], f"buffer_load_dwordx4 v{V_L16}, s[{S_WF}:{S_WF+3}], s{S_WO4} offen lds"


def rd(par, ks, n):
    if n < 4:
        return f"ds_read_b128 {vr(FR+36*par+4*n)}, v{V_RB} offset:{(2*n+ks)*1024}"
    return f"ds_read_b128 {vr(FR+36*par+4*n)}, v{V_RA} offset:{(10*ks+n-4)*1024}"


RD_ORDER = [0, 4, 1, 2, 3, 5, 6, 7, 8]


def advance():
    return [f"s_add_u32 s{S_OO}, s{S_OO}, 2048", f"s_add_u32 s{S_WO}, s{S_WO}, {2*40960}", f"s_add_u32 s{S_WO4}, s{S_WO4}, {2*40960}"]


def p3b_body(a):
    for per in range(2):
        for g in range(20):
            i, t = g // 4, g % 4
            acc = ar(4 * (4 * i + t))
            a(mfma(acc, vr(FR + 36 * per + 16 + 4 * i), vr(FR + 36 * per + 4 * t), acc))
            if per == 0:
                if g < 9:
                    a(rd(1, 1, RD_ORDER[g]))
                elif g in (10, 12, 14):
                    k = 5 + (g - 10) // 2
                    pre, ld = dma(k)
                    assert not pre
                    a(ld)
                elif g == 15:
                    a(dma(8)[0][0])
                elif g == 16:
                    a(dma(8)[1])
                elif g == 17:
                    for x in advance():
                        a(x)
                elif g == 18:
                    a(f"s_add_u32 s{S_DO}, s{S_RD}, s{S_LO}\ns_add_u32 s{S_DW}, s{S_RD}, s{S_LW}\ns_add_u32 s{S_RD}, s{S_RD}, {STG}")
                elif g == 19:
                    a(f"s_cmp_eq_u32 s{S_RD}, {4*STG}\ns_cselect_b32 s{S_RD}, 0, s{S_RD}\ns_waitcnt lgkmcnt(0)")
            else:
                if g == 0:
                    a("s_waitcnt vmcnt(18)")
                    a(f"v_add_u32 v{V_RB}, s{S_RD}, v{V_RB0}\nv_add_u32 v{V_RA}, s{S_RD}, v{V_RA0}")
                elif g == 1:
                    a("s_barrier")
                    a(f"s_cmp_le_u32 s{S_CNT}, 4\ns_cselect_b32 s{S_O+2}, 0, s{S_O+2}\ns_cselect_b32 s{S_WF+2}, 0, s{S_WF+2}")
                elif 2 <= g < 11:
                    a(rd(0, 0, RD_ORDER[g - 2]))
                elif g == 11:
                    a(dma(0)[0][0])
                elif g in (12, 13):
                    a(dma(g - 12)[1])
                elif g == 14:
                    a(dma(2)[0][0])
                elif g in (15, 16):
                    a(dma(g - 13)[1])
                elif g == 17:
                    a(dma(4)[0][0])
                    a(f"s_sub_u32 s{S_CNT}, s{S_CNT}, 1")
                elif g == 18:
                    a(dma(4)[1])
                elif g == 19:
                    a(f"s_waitcnt lgkmcnt(0)\ns_cmp_lg_u32 s{S_CNT}, 0")


def ffn2_regs(half):
    if half == 0:
        base = [("v", 64 + 4 * n) for n in range(48)] + [("a", 160 + 4 * n) for n in range(6)]
    else:
        base = [("v", 64 + 4 * n) for n in range(48)] + [("a", 160 + 4 * n) for n in range(6)]
    return [vr(b, 4, p) for p, b in base]


def ffn2_loads(a, half, sc=""):
    R = ffn2_regs(half)
    a(f"""
    s_mul_i32 s{S_HO}, s{S_WAVE}, {12*1024}
    s_add_u32 s{S_HO}, s{S_HO}, {half*6*1024}
    s_mul_i32 s{S_FO}, s{S_WAVE}, {12*40960}
    s_mul_i32 s{S_T0}, s{S_NB}, 10240
    s_add_u32 s{S_FO}, s{S_FO}, s{S_T0}
    s_and_b32 s{S_T0}, s{S_J}, 1
    s_mul_i32 s{S_T0}, s{S_T0}, 5120
    s_add_u32 s{S_FO}, s{S_FO}, s{S_T0}
    s_add_u32 s{S_FO}, s{S_FO}, {(192+6*half)*40960}
    """)
    for ks in range(6):
        for t in range(4):
            a(f"buffer_load_dwordx4 {R[9*ks+t]}, v{V_HO+t}, s[{S_HH}:{S_HH+3}], s{S_HO} offen{sc}")
        for i in range(4):
            a(f"buffer_load_dwordx4 {R[9*ks+4+i]}, v{V_L16}, s[{S_WF}:{S_WF+3}], s{S_FO} offen offset:{i*1024}{sc}")
        a(f"s_add_u32 s{S_T0}, s{S_FO}, 4096\ns_add_u32 s{S_HO}, s{S_HO}, 1024\ns_add_u32 s{S_FO}, s{S_FO}, 40960")
        a(f"buffer_load_dwordx4 {R[9*ks+8]}, v{V_L16}, s[{S_WF}:{S_WF+3}], s{S_T0} offen{sc}")


def ffn2_mfma(a, half, younger=0):
    R = ffn2_regs(half)
    for ks in range(6):
        a(f"s_waitcnt vmcnt({9*(5-ks)+younger})")
        for i in range(5):
            for t in range(4):
                acc = ar(80 + 4 * (4 * i + t))
                a(mfma(acc, R[9 * ks + 4 + i], R[9 * ks + t], acc))


def gen_out(a):
    a(".p2align 8\n.type out_kernel,@function\nout_kernel:")
    a("s_cmp_ge_u32 s2, 256\ns_cbranch_scc1 L_out_end")
    stamp(a, 0)
    a(f"""
    s_load_dwordx2 s[60:61], s[0:1], 0
    s_load_dwordx4 s[64:67], s[0:1], 72
    s_load_dwordx2 s[70:71], s[0:1], 96
    v_lshrrev_b32 v1, 6, v0
    v_and_b32 v0, 63, v0
    v_readfirstlane_b32 s{S_WAVE}, v1
    v_lshlrev_b32 v{V_L16}, 4, v0
    s_and_b32 s{S_J}, s2, 3
    s_bfe_u32 s{S_T0}, s2, 0x10002
    s_lshl_b32 s{S_T0}, s{S_T0}, 3
    s_bfe_u32 s{S_MB}, s2, 0x30003
    s_add_u32 s{S_MB}, s{S_MB}, s{S_T0}
    s_lshr_b32 s{S_NB}, s2, 6
    s_lshl_b32 s{S_TILE}, s{S_MB}, 2
    s_add_u32 s{S_TILE}, s{S_TILE}, s{S_NB}
    """)
    a(f"""
    s_lshl_b32 s{S_T0}, s{S_MB}, 3
    s_lshl_b32 s{S_T1}, s{S_WAVE}, 1
    s_add_u32 s{S_T0}, s{S_T0}, s{S_T1}
    s_mul_i32 s{S_T0}, s{S_T0}, {192*1024}
    v_add_u32 v{V_DO}, s{S_T0}, v{V_L16}
    v_add_u32 v{V_DO+1}, {192*1024}, v{V_DO}
    s_mul_i32 s{S_OO}, s{S_J}, {48*1024}
    s_mul_i32 s{S_WO}, s{S_J}, {48*40960}
    s_lshr_b32 s{S_T0}, s{S_WAVE}, 1
    s_mul_i32 s{S_T1}, s{S_T0}, 40960
    s_add_u32 s{S_WO}, s{S_WO}, s{S_T1}
    s_mul_i32 s{S_LW}, s{S_T0}, 10240
    s_and_b32 s{S_T0}, s{S_WAVE}, 1
    s_mul_i32 s{S_T0}, s{S_T0}, 5120
    s_add_u32 s{S_WO}, s{S_WO}, s{S_T0}
    s_add_u32 s{S_LW}, s{S_LW}, s{S_T0}
    s_add_u32 s{S_LW}, s{S_LW}, {LDS_WOFF}
    s_mul_i32 s{S_T0}, s{S_NB}, 10240
    s_add_u32 s{S_WO}, s{S_WO}, s{S_T0}
    s_add_u32 s{S_WO4}, s{S_WO}, 4096
    s_lshl_b32 s{S_LO}, s{S_WAVE}, 12
    s_waitcnt lgkmcnt(0)
    """)
    srd(a, S_O, 70, 71, O_BYTES, WS_O)
    srd(a, S_WF, 70, 71, WF_BYTES, WS_WF)
    for st in range(4):
        a(f"s_add_u32 s{S_DO}, s{S_LO}, {st*STG}\ns_add_u32 s{S_DW}, s{S_LW}, {st*STG}")
        for k in range(9 if st < 3 else 5):
            pre, ld = dma(k)
            for x in pre:
                a(x + "\ns_nop 0")
            a(ld)
        if st < 3:
            for x in advance():
                a(x)
    srd(a, S_HH, 70, 71, H_BYTES, WS_H)
    srd(a, S_PT, 70, 71, PART_BYTES, WS_PART)
    srd(a, S_FL, 70, 71, 64 * 128, WS_FLAG)
    srd(a, S_X, 60, 61, 2048 * 1280)
    srd(a, S_OUT, 66, 67, 2048 * 1280)
    srd(a, S_B2, 64, 65, 1280)
    a(f"""
    s_lshl_b32 s{S_T0}, s{S_MB}, 3
    s_lshr_b32 s{S_T1}, s{S_J}, 1
    s_lshl_b32 s{S_T1}, s{S_T1}, 2
    s_add_u32 s{S_T0}, s{S_T0}, s{S_T1}
    s_mul_i32 s{S_T1}, s{S_T0}, {48*1024}
    v_add_u32 v{V_HO}, s{S_T1}, v{V_L16}
    v_add_u32 v{V_HO+1}, {48*1024}, v{V_HO}
    v_add_u32 v{V_HO+2}, {2*48*1024}, v{V_HO}
    v_add_u32 v{V_HO+3}, {3*48*1024}, v{V_HO}
    s_add_u32 s{S_T0}, s{S_T0}, s{S_WAVE}
    s_lshl_b32 s{S_T0}, s{S_T0}, 4
    v_and_b32 v40, 15, v0
    v_add_u32 v40, s{S_T0}, v40
    v_mul_u32_u24 v40, 1280, v40
    s_mul_i32 s{S_T0}, s{S_NB}, 320
    s_and_b32 s{S_T1}, s{S_J}, 1
    s_mul_i32 s{S_T1}, s{S_T1}, 160
    s_add_u32 s{S_T0}, s{S_T0}, s{S_T1}
    v_lshrrev_b32 v41, 4, v0
    v_lshlrev_b32 v41, 3, v41
    v_add_u32 v{V_BO}, s{S_T0}, v41
    v_add_u32 v{V_OO}, v40, v{V_BO}
    """)
    a(f"""
    s_lshr_b32 s{S_T0}, s{S_WAVE}, 1
    s_lshl_b32 s{S_T0}, s{S_T0}, 13
    v_add_u32 v{V_RB0}, s{S_T0}, v{V_L16}
    s_and_b32 s{S_T0}, s{S_WAVE}, 1
    s_mul_i32 s{S_T0}, s{S_T0}, 5120
    s_add_u32 s{S_T0}, s{S_T0}, {LDS_WOFF}
    v_add_u32 v{V_RA0}, s{S_T0}, v{V_L16}
    v_mov_b32 v{V_RB}, v{V_RB0}
    v_mov_b32 v{V_RA}, v{V_RA0}
    v_mov_b32 v44, 0
    v_mov_b32 v45, 0
    v_mov_b32 v46, 0
    v_mov_b32 v47, 0
    s_mov_b32 s{S_RD}, 0
    s_mov_b32 s{S_CNT}, 24
    """)
    for i in range(10):
        a(f"v_mfma_f32_32x32x16_bf16 {ar(16*i,16)}, v[44:47], v[44:47], 0")
    a("s_waitcnt vmcnt(23)\ns_barrier")
    stamp(a, 1)
    for n in RD_ORDER:
        a(rd(0, 0, n))
    a("s_waitcnt lgkmcnt(0)")
    a(".p2align 6\nL_out_l1:")
    p3b_body(a)
    a("s_cbranch_scc1 L_out_l1")
    stamp(a, 2)
    a(f"""
    s_lshl_b32 s{S_T0}, s{S_TILE}, 2
    s_add_u32 s{S_T0}, s{S_T0}, s{S_WAVE}
    s_lshl_b32 s{S_T0}, s{S_T0}, 2
    s_add_u32 s{S_T0}, s{S_T0}, s{S_J}
    s_mul_i32 s{S_T0}, s{S_T0}, 10240
    v_lshlrev_b32 v{V_PO}, 3, v0
    s_mov_b32 s{S_WF+2}, {WF_BYTES}
    s_nop 3
    """)
    for t in range(4):
        b = 136 + 20 * (t % 2)
        o = 176 + 12 * t
        for i in range(5):
            for r in range(4):
                a(f"v_accvgpr_read_b32 v{b+4*i+r}, a{4*(4*i+t)+r}")
        for e in range(10):
            a(f"v_cvt_pk_bf16_f32 v{o+e}, v{b+2*e}, v{b+2*e+1}")
        a(f"""
        buffer_store_dwordx4 {vr(o)}, v{V_L16}, s[{S_PT}:{S_PT+3}], s{S_T0} offen sc1
        buffer_store_dwordx4 {vr(o+4)}, v{V_L16}, s[{S_PT}:{S_PT+3}], s{S_T0} offen offset:1024 sc1
        buffer_store_dwordx2 {vr(o+8,2)}, v{V_PO}, s[{S_PT}:{S_PT+3}], s{S_T0} offen offset:2048 sc1
        s_add_u32 s{S_T0}, s{S_T0}, 2560
        """)
    a("s_nop 1")
    ffn2_loads(a, 0)
    a("s_waitcnt vmcnt(54)\ns_barrier")
    stamp(a, 3)
    a(f"""
    s_cmp_lg_u32 s{S_WAVE}, 0
    s_cbranch_scc1 L_out_nosig
    s_lshl_b32 s{S_T0}, s{S_TILE}, 7
    s_lshl_b32 s{S_T1}, s{S_J}, 2
    s_add_u32 s{S_T0}, s{S_T0}, s{S_T1}
    v_mov_b32 v40, 0
    v_mov_b32 v41, 1
    s_mov_b64 s[56:57], exec
    s_mov_b64 exec, 1
    buffer_store_dword v41, v40, s[{S_FL}:{S_FL+3}], s{S_T0} offen sc1
    s_mov_b64 exec, s[56:57]
    L_out_nosig:
    """)
    ffn2_mfma(a, 0)
    ffn2_loads(a, 1)
    for j in range(5):
        a(f"buffer_load_dwordx2 {vr(V_X+2*j,2)}, v{V_OO}, s[{S_X}:{S_X+3}], 0 offen offset:{32*j}")
        a(f"buffer_load_dwordx2 {vr(V_B2+2*j,2)}, v{V_BO}, s[{S_B2}:{S_B2+3}], 0 offen offset:{32*j}")
    ffn2_mfma(a, 1, younger=10)
    stamp(a, 4)
    a(f"""
    s_mul_i32 s{S_T0}, s{S_WAVE}, 20480
    v_add_u32 v40, s{S_T0}, v{V_L16}
    s_mul_i32 s{S_T0}, s{S_WAVE}, 5120
    v_add_u32 v41, s{S_T0}, v{V_L16}
    v_add_u32 v44, 40960, v41
    s_nop 4
    """)
    for t in range(4):
        for i in range(5):
            a(f"ds_write_b128 v40, {ar(80+4*(4*i+t))} offset:{(t*5+i)*1024}")
    a(f"""
    s_cmp_lg_u32 s{S_WAVE}, 0
    s_cbranch_scc1 L_out_pdone
    s_lshl_b32 s{S_T0}, s{S_TILE}, 7
    v_and_b32 v42, 3, v0
    v_lshlrev_b32 v42, 2, v42
    L_out_poll:
    buffer_load_dword v43, v42, s[{S_FL}:{S_FL+3}], s{S_T0} offen sc1
    s_waitcnt vmcnt(0)
    v_cmp_ne_u32 vcc, 1, v43
    s_cbranch_vccnz L_out_poll
    L_out_pdone:
    s_waitcnt lgkmcnt(0)
    s_barrier
    """)
    stamp(a, 5)
    a(f"""
    s_lshl_b32 s{S_T0}, s{S_TILE}, 2
    s_add_u32 s{S_T0}, s{S_T0}, s{S_J}
    s_mul_i32 s{S_T0}, s{S_T0}, 40960
    s_mul_i32 s{S_T1}, s{S_WAVE}, 2560
    s_add_u32 s{S_T0}, s{S_T0}, s{S_T1}
    """)
    for src in range(4):
        o = 176 + 12 * src
        a(f"""
        buffer_load_dwordx4 {vr(o)}, v{V_L16}, s[{S_PT}:{S_PT+3}], s{S_T0} offen sc1
        buffer_load_dwordx4 {vr(o+4)}, v{V_L16}, s[{S_PT}:{S_PT+3}], s{S_T0} offen offset:1024 sc1
        buffer_load_dwordx2 {vr(o+8,2)}, v{V_PO}, s[{S_PT}:{S_PT+3}], s{S_T0} offen offset:2048 sc1
        s_add_u32 s{S_T0}, s{S_T0}, 10240
        """)
    for src in range(4):
        for i in range(5):
            a(f"ds_read_b128 {vr(64+20*src+4*i)}, v{41 if src < 2 else 44} offset:{(src%2)*20480 + i*1024}")
    a("s_waitcnt lgkmcnt(10)")
    for e in range(20):
        a(f"v_add_f32 v{64+e}, v{84+e}, v{64+e}")
    a("s_waitcnt lgkmcnt(0)")
    for e in range(20):
        a(f"v_add_f32 v{104+e}, v{124+e}, v{104+e}")
    for e in range(20):
        a(f"v_add_f32 v{64+e}, v{104+e}, v{64+e}")
    nl2e = -math.log2(math.e)
    for e in range(10):
        a(f"v_lshlrev_b32 v{84+2*e}, 16, v{V_B2+e}\nv_and_b32 v{85+2*e}, 0xffff0000, v{V_B2+e}")
    for e in range(20):
        a(f"v_add_f32 v{64+e}, v{84+e}, v{64+e}")
    for e in range(20):
        a(f"v_mul_f32 v{84+e}, {fh(nl2e)}, v{64+e}")
    for e in range(20):
        a(f"v_exp_f32 v{84+e}, v{84+e}")
    for e in range(20):
        a(f"v_add_f32 v{84+e}, 1.0, v{84+e}")
    for e in range(20):
        a(f"v_rcp_f32 v{84+e}, v{84+e}")
    for e in range(10):
        a(f"v_lshlrev_b32 v{104+2*e}, 16, v{V_X+e}\nv_and_b32 v{105+2*e}, 0xffff0000, v{V_X+e}")
    for e in range(20):
        a(f"v_mul_f32 v{64+e}, v{64+e}, v{84+e}")
    stamp(a, 6)
    for src in range(4):
        o = 176 + 12 * src
        a(f"s_waitcnt vmcnt({3*(3-src)})")
        for e in range(10):
            if src == 0:
                a(f"v_lshlrev_b32 v{124+2*e}, 16, v{o+e}\nv_and_b32 v{125+2*e}, 0xffff0000, v{o+e}")
            else:
                a(f"v_lshlrev_b32 v84, 16, v{o+e}\nv_and_b32 v85, 0xffff0000, v{o+e}")
                a(f"v_add_f32 v{124+2*e}, v84, v{124+2*e}\nv_add_f32 v{125+2*e}, v85, v{125+2*e}")
    for e in range(20):
        a(f"v_fmac_f32 v{104+e}, v{64+e}, v{124+e}")
    for j in range(5):
        a(f"v_cvt_pk_bf16_f32 v{144+2*j}, v{104+4*j}, v{105+4*j}\nv_cvt_pk_bf16_f32 v{145+2*j}, v{106+4*j}, v{107+4*j}")
        a(f"buffer_store_dwordx2 {vr(144+2*j,2)}, v{V_OO}, s[{S_OUT}:{S_OUT+3}], 0 offen offset:{32*j}")
    stamp(a, 7)
    if gen.STAMP:
        a("s_waitcnt vmcnt(0)")
    stamp(a, 8)
    stamp_store(a, 2, S_WAVE)
    a("L_out_end:\ns_endpgm")
```

```python
import struct, sys, math, os

NAME = "recurrent_scan__gqa_block_cached__dense_activation_gelu__prompt"
WS_XN = 0
WS_H = 4 << 20
WS_O = 16 << 20
WS_WF = 48 << 20
WS_PART = 80 << 20
WS_FLAG = 96 << 20
WF_BYTES = 240 * 40960
PART_BYTES = 64 * 64 * 2560
XN_BYTES = 2048 * 640 * 2
H_BYTES = 2048 * 1536 * 2
O_BYTES = 2048 * 6144 * 2


def fh(x):
    return "0x%08x" % struct.unpack("<I", struct.pack("<f", x))[0]


class Asm:
    def __init__(self):
        self.l = []

    def __call__(self, s):
        for line in s.strip("\n").split("\n"):
            line = line.strip()
            if line:
                self.l.append(line if line.endswith(":") or line.startswith(".") else "    " + line)

    def text(self):
        return "\n".join(self.l) + "\n"


def vr(b, n=4, p="v"):
    return f"{p}[{b}:{b+n-1}]"


def ar(b, n=4):
    return vr(b, n, "a")


def kd(name, vgpr, sgpr, accum):
    return f""".amdhsa_kernel {name}
  .amdhsa_next_free_vgpr {vgpr}
  .amdhsa_next_free_sgpr {sgpr}
  .amdhsa_accum_offset {accum}
  .amdhsa_group_segment_fixed_size 0
  .amdhsa_kernarg_size 104
  .amdhsa_user_sgpr_count 2
  .amdhsa_user_sgpr_kernarg_segment_ptr 1
  .amdhsa_system_sgpr_workgroup_id_x 1
.end_amdhsa_kernel
"""


def srd(a, d, lo, hi, nbytes, add=None):
    if add is None:
        a(f"s_mov_b32 s{d}, s{lo}\ns_mov_b32 s{d+1}, s{hi}")
    else:
        a(f"s_add_u32 s{d}, s{lo}, {add}\ns_addc_u32 s{d+1}, s{hi}, 0")
    a(f"s_mov_b32 s{d+2}, {nbytes}\ns_mov_b32 s{d+3}, 0x00020000")


STAMP = False
WS_DBG = 64 << 20


V_ST = 38


def stamp(a, i, V_ST=38):
    if STAMP:
        a(f"""s_memtime s[96:97]
        s_memrealtime s[98:99]
        s_waitcnt lgkmcnt(0)
        v_writelane_b32 v{V_ST}, s96, {i}
        v_writelane_b32 v{V_ST+1}, s98, {i}""")


def stamp_store(a, kern, wave_s, V_ST=38):
    if STAMP:
        a("s_load_dwordx2 s[66:67], s[0:1], 96\ns_waitcnt lgkmcnt(0)")
        srd(a, 4, 66, 67, 1 << 20, WS_DBG + kern * (1 << 20))
        a(f"s_lshl_b32 s3, s2, 2\ns_add_u32 s3, s3, s{wave_s}\ns_lshl_b32 s3, s3, 9")
        a("v_mbcnt_lo_u32_b32 v2, -1, 0\nv_mbcnt_hi_u32_b32 v2, -1, v2\nv_lshlrev_b32 v2, 3, v2\nv_add_u32 v2, s3, v2")
        a(f"buffer_store_dwordx2 v[{V_ST}:{V_ST+1}], v2, s[4:7], 0 offen")
        a("s_waitcnt vmcnt(0)")


def gen_repack_issue(a, s_wg, s_wave, wo, w2, srdreg, t0, t1, vlane16, lds_base=0):
    a(f"""
    s_mov_b32 s{srdreg+2}, {48*40960}
    s_cmp_lt_u32 s{s_wg}, 192
    s_cselect_b32 s{srdreg}, s{wo}, s{w2}
    s_cselect_b32 s{srdreg+1}, s{wo+1}, s{w2+1}
    s_cselect_b32 s{srdreg+2}, {6144*1280}, s{srdreg+2}
    s_cselect_b32 s{t0}, 0, 192
    s_mov_b32 s{srdreg+3}, 0x00020000
    s_sub_u32 s{t0}, s{s_wg}, s{t0}
    s_mul_i32 s{t0}, s{t0}, 40960
    s_mul_i32 s{t1}, s{s_wave}, 10240
    s_add_u32 s{t0}, s{t0}, s{t1}
    """)
    for i in range(10):
        if i % 4 == 0:
            a(f"s_add_u32 m0, s{t1}, {lds_base + i*1024}")
            if i:
                a(f"s_add_u32 s{t0}, s{t0}, 4096")
            else:
                a("s_nop 0")
        a(f"buffer_load_dwordx4 v{vlane16}, s[{srdreg}:{srdreg+3}], s{t0} offen offset:{(i%4)*1024} lds")


def gen_repack_finish(a, s_wg, s_wave, wfsrd, t0, t1, vlane, vtmp, vdat, lds_base=0, sc=""):
    a(f"""
    v_lshrrev_b32 v{vtmp}, 2, v{vlane}
    v_mul_u32_u24 v{vtmp}, 1280, v{vtmp}
    v_and_b32 v{vtmp+1}, 3, v{vlane}
    v_lshl_add_u32 v{vtmp}, v{vtmp+1}, 3, v{vtmp}
    s_mul_i32 s{t0}, s{s_wave}, 320
    s_add_u32 s{t0}, s{t0}, {lds_base}
    v_add_u32 v{vtmp}, s{t0}, v{vtmp}
    v_lshlrev_b32 v{vtmp+1}, 4, v{vlane}
    s_mul_i32 s{t0}, s{s_wg}, 40960
    s_mul_i32 s{t1}, s{s_wave}, 10240
    s_add_u32 s{t0}, s{t0}, s{t1}
    """)
    for i in range(10):
        for p in range(2):
            a(f"ds_read_b64_tr_b16 {vr(vdat+4*i+2*p,2)}, v{vtmp} offset:{p*20480+i*32}")
    for i in range(10):
        if i < 3:
            a("s_waitcnt lgkmcnt(14)")
        else:
            a(f"s_waitcnt lgkmcnt({2*(9-i)})")
        if i and i % 4 == 0:
            a(f"s_add_u32 s{t0}, s{t0}, 4096")
        a(f"buffer_store_dwordx4 {vr(vdat+4*i)}, v{vtmp+1}, s[{wfsrd}:{wfsrd+3}], s{t0} offen offset:{(i%4)*1024}{sc}")


def gen_ln(a):
    a(".p2align 8\n.type ln_kernel,@function\nln_kernel:")
    a("""
    s_cmp_ge_u32 s2, 256
    s_cbranch_scc1 L_ln_end
    s_load_dwordx2 s[4:5], s[0:1], 0
    s_load_dwordx2 s[6:7], s[0:1], 96
    s_load_dwordx2 s[24:25], s[0:1], 32
    s_load_dwordx2 s[26:27], s[0:1], 64
    v_lshrrev_b32 v1, 6, v0
    v_and_b32 v80, 63, v0
    v_readfirstlane_b32 s20, v1
    v_lshlrev_b32 v81, 4, v80
    v_lshrrev_b32 v1, 4, v0
    s_lshl_b32 s3, s2, 3
    v_add_u32 v1, s3, v1
    v_and_b32 v2, 15, v0
    v_mul_u32_u24 v3, 1280, v1
    v_lshl_add_u32 v3, v2, 4, v3
    s_waitcnt lgkmcnt(0)
    """)
    srd(a, 36, 6, 7, 64 * 128, WS_FLAG)
    a("s_lshl_b32 s21, s2, 5\nv_mov_b32 v82, 0\nv_lshlrev_b32 v83, 2, v0\nv_cmp_gt_u32 vcc, 8, v0\ns_and_saveexec_b64 s[40:41], vcc\ns_cbranch_execz L_ln_nz")
    a("buffer_store_dword v82, v83, s[36:39], s21 offen\nL_ln_nz:\ns_mov_b64 exec, s[40:41]")
    srd(a, 8, 4, 5, XN_BYTES)
    srd(a, 12, 6, 7, XN_BYTES)
    a("s_cmp_ge_u32 s20, 2\ns_cbranch_scc1 L_ln_nox")
    for i in range(5):
        a(f"buffer_load_dwordx4 {vr(8+4*i)}, v3, s[8:11], 0 offen offset:{256*i}")
    a("L_ln_nox:")
    gen_repack_issue(a, 2, 20, 24, 26, 28, 21, 22, 81)
    a("s_cmp_ge_u32 s20, 2\ns_cbranch_scc1 L_ln_rp")
    a("""
    v_lshrrev_b32 v4, 4, v1
    v_mul_u32_u24 v4, 20480, v4
    v_lshl_add_u32 v4, v2, 8, v4
    v_and_b32 v5, 15, v1
    v_lshl_add_u32 v4, v5, 4, v4
    s_mov_b32 s16, 4096
    s_mov_b32 s17, 8192
    s_mov_b32 s18, 12288
    s_mov_b32 s19, 16384
    """)
    for i in range(5):
        a(f"s_waitcnt vmcnt({14-i})")
        for j in range(4):
            r = 8 + 4 * i + j
            d = 32 + 8 * i + 2 * j
            a(f"v_lshlrev_b32 v{d}, 16, v{r}\nv_and_b32 v{d+1}, 0xffff0000, v{r}")
    for k in range(4):
        a(f"v_add_f32 v{28+k}, v{32+k}, v{36+k}")
    for e in range(8, 40):
        a(f"v_add_f32 v{28+e%4}, v{32+e}, v{28+e%4}")
    a("v_add_f32 v28, v28, v29\nv_add_f32 v30, v30, v31\nv_add_f32 v28, v28, v30")
    for sh in (8, 4, 2, 1):
        a(f"s_nop 1\nv_add_f32 v28, v28, v28 row_ror:{sh}")
    a(f"v_mul_f32 v28, {fh(1/640)}, v28")
    a("v_mov_b32 v72, 0\nv_mov_b32 v73, 0\nv_mov_b32 v74, 0\nv_mov_b32 v75, 0")
    for e in range(40):
        t = 76 + e % 4
        a(f"v_sub_f32 v{t}, v{32+e}, v28\nv_fmac_f32 v{72+e%4}, v{t}, v{t}")
    a("v_add_f32 v72, v72, v73\nv_add_f32 v74, v74, v75\nv_add_f32 v72, v72, v74")
    for sh in (8, 4, 2, 1):
        a(f"s_nop 1\nv_add_f32 v72, v72, v72 row_ror:{sh}")
    a(f"""
    v_mul_f32 v72, {fh(1/640)}, v72
    v_cvt_pk_bf16_f32 v29, v28, v72
    v_lshlrev_b32 v28, 16, v29
    v_and_b32 v72, 0xffff0000, v29
    v_add_f32 v72, {fh(1e-5)}, v72
    v_cvt_pk_bf16_f32 v72, v72, v72
    v_and_b32 v72, 0xffff0000, v72
    v_sqrt_f32 v72, v72
    s_nop 0
    v_cvt_pk_bf16_f32 v72, v72, v72
    v_and_b32 v72, 0xffff0000, v72
    v_rcp_f32 v72, v72
    s_nop 0
    """)
    so = ["0", "s16", "s17", "s18", "s19"]
    for i in range(5):
        for j in range(4):
            e = 32 + 8 * i + 2 * j
            a(f"""
            v_sub_f32 v{e}, v{e}, v28
            v_sub_f32 v{e+1}, v{e+1}, v28
            v_cvt_pk_bf16_f32 v{e}, v{e}, v{e+1}
            v_and_b32 v{e+1}, 0xffff0000, v{e}
            v_lshlrev_b32 v{e}, 16, v{e}
            v_mul_f32 v{e}, v{e}, v72
            v_mul_f32 v{e+1}, v{e+1}, v72
            v_cvt_pk_bf16_f32 v{8+4*i+j}, v{e}, v{e+1}
            """)
        a(f"buffer_store_dwordx4 {vr(8+4*i)}, v4, s[12:15], {so[i]} offen")
    a("L_ln_rp:\ns_cmp_ge_u32 s2, 240\ns_cbranch_scc1 L_ln_end\ns_waitcnt vmcnt(0)\ns_barrier")
    srd(a, 32, 6, 7, WF_BYTES, WS_WF)
    gen_repack_finish(a, 2, 20, 32, 21, 22, 80, 82, 84)
    a("L_ln_end:\ns_endpgm")


SLOT = 24576
LDS_K = 0
LDS_V = 3 * SLOT
LDS_X = 6 * SLOT
LDS_W1 = 2 * SLOT
LDS_FLAG = LDS_X + 12288

S_XN, S_WQ, S_W1, S_K, S_V, S_H, S_O, S_B1 = 4, 8, 12, 16, 20, 24, 28, 32
S_HEAD, S_QB, S_WAVE = 36, 37, 38
S_RD, S_DMA, S_SO0, S_SO1, S_CNT, S_T0, S_T1, S_BOFF = 40, 41, 42, 43, 44, 45, 46, 47
S_W3072, S_SV0, S_SV1, S_PASS, S_RD1, S_DMA1, S_SW0, S_SW1 = 48, 49, 50, 51, 52, 53, 54, 55
S_C0, S_C1 = 56, 57
S_M0, S_M1 = 58, 59

V_Q = 64
V_S = 160
V_P = 192
V_NM = 224
V_L = 2
V_KA = 6
V_VA = 8
V_KB = 12
V_VB = 14
V_DK = 18
V_DV = 19
V_T = 20
V_RING = 40
OFF = float(os.environ.get('OFF', 102.0))


def q_reg(s, t):
    return V_Q + 4 * (4 * s + t)


def s_reg(kt, t):
    return V_S + 4 * (4 * kt + t)


def p_reg(par, t):
    return V_P + 16 * par + 4 * t


def ring(f):
    return V_RING + 4 * (f % 6)


def mfma(d, a_, b, c):
    return f"v_mfma_f32_16x16x32_bf16 {d}, {a_}, {b}, {c}"


EXP_GAPS = None


def build_schedule():
    G = [dict(lds=None, exp=None, valu=[], dma=None, wait=None, scal=None) for _ in range(96)]
    pos = [0] * 24
    for g in range(24):
        fk = (g + 3) % 24
        if fk < 12:
            G[4 * g + pos[g]]["lds"] = (fk, 0)
            pos[g] += 1
        fv = g + 5
        if 12 <= fv < 24:
            G[4 * g + pos[g]]["lds"] = (fv, 0)
            G[4 * g + pos[g] + 1]["lds"] = (fv, 1)
            pos[g] += 2
    for i in range(6):
        G[4 * i + 1]["dma"] = i
    for f in range(24):
        G[(4 * f - 1) % 96]["wait"] = f
    free = [i for i in range(96) if G[i]["lds"] is None and G[i]["dma"] is None]
    assert len(free) == 54

    def pick(lo, hi, n):
        c = [i for i in free if lo <= i < hi]
        assert len(c) >= n, (lo, hi, n, c)
        return [c[int((k + 0.5) * len(c) / n)] for k in range(n)]
    e_a = pick(0, 20, 7)
    e_b = pick(26, 48, 8)
    e_c = pick(48, 76, 10)
    e_d = pick(76, 96, 7)
    seq = [(kt, t, r) for kt in range(2) for t in range(4) for r in range(4)]
    times = e_b + e_c + e_d + [96 + x for x in e_a]
    assert len(times) == 32 and len(set(times)) == 32
    etime = {}
    for (kt, t, r), tm in zip(seq, times):
        ready = (20 if kt == 0 else 44) + t + 3
        assert tm >= ready, (kt, t, r, tm)
        G[tm % 96]["exp"] = ("prev" if tm >= 96 else "cur", kt, t, r)
        etime[(kt, t, r)] = tm
    cap = [0] * 96
    for i in range(96):
        if G[i]["dma"] is not None or G[i]["exp"] is not None:
            cap[i] = 0
        elif G[i]["lds"] is not None:
            cap[i] = 1
        else:
            cap[i] = 2
    ops = []
    for (kt, t, r) in seq:
        ops.append((etime[(kt, t, r)] + 1, "add", kt, t, r))
        if r & 1:
            ops.append((etime[(kt, t, r)] + 1, "cvt", kt, t, r >> 1))
    ops.sort(key=lambda o: (o[0], o[1] == "add"))
    used = [0] * 96
    for o in ops:
        tm = o[0]
        while used[tm % 96] >= cap[tm % 96]:
            tm += 1
        kt, t = o[2], o[3]
        dead = (96 + t) if kt == 0 else (120 + t)
        assert tm < dead, (o, tm)
        used[tm % 96] += 1
        G[tm % 96]["valu"].append(("prev" if tm >= 96 else "cur",) + o[1:])
    spare = [cap[i] - used[i] for i in range(96)]
    return G, spare


def lds_wait_counts(G, nok=False):
    seq = []
    for rep in range(2):
        for i in range(96):
            if G[i]["lds"] is not None and not (nok and rep == 1 and G[i]["lds"][0] < 12):
                seq.append((rep * 96 + i, G[i]["lds"][0]))
    cnt = {}
    for f in range(24):
        wt = 96 + (4 * f - 1)
        last = max(tm for tm, ff in seq if ff == f and tm < wt)
        cnt[f] = sum(1 for tm, ff in seq if last < tm < wt)
    return cnt


def emit_soft(a, kind, which, kt, t, x, par_cur):
    par = par_cur if which == "cur" else 1 - par_cur
    s = s_reg(kt, t)
    if kind == "exp":
        a(f"v_exp_f32 v{s+x}, v{s+x}")
    elif kind == "add":
        a(f"v_add_f32 v{V_L+t}, v{s+x}, v{V_L+t}")
    else:
        a(f"v_cvt_pk_bf16_f32 v{p_reg(par,t)+2*kt+x}, v{s+2*x}, v{s+2*x+1}")


def k_read(f, half, addr=V_KA):
    kt, s = f // 6, f % 6
    off = (4 * half + 2 * kt) * 3072 + (s >> 1) * 1024
    return f"ds_read_b128 {vr(ring(f))}, v{addr+(s&1)} offset:{off}"


def v_read(f, part, half):
    dt = f - 12
    off = (4 * half + 2 * part) * 3072 + (dt >> 2) * 1024
    return f"ds_read_b64_tr_b16 {vr(ring(f)+2*part,2)}, v{V_VA+(dt&3)} offset:{off}"


def gen_period(a, G, spare, cnt, per, tail=False):
    par_cur = 1 - per
    par_pv = per
    extra_v = {}
    extra_s = {}
    sp = list(spare)

    def put_v(lo, hi, ins):
        for i in range(lo, hi):
            if sp[i] > 0:
                sp[i] -= 1
                extra_v.setdefault(i, []).append(ins)
                return
        raise AssertionError(ins)

    def put_s(lo, hi, ins):
        for i in range(lo, hi):
            if G[i]["lds"] is None and G[i]["dma"] is None and G[i]["wait"] is None and i not in extra_s:
                extra_s[i] = ins
                return i
        raise AssertionError(ins)

    if not tail:
        region = LDS_K if per == 0 else LDS_V
        nregion = LDS_V if per == 0 else LDS_K

        def m0(i, reg):
            return f"s_add_u32 m0, s{S_DMA}, {reg + (i//3)*12288 + (i%3)*896}"
        for i in range(1, 6):
            assert put_s(4 * i - 2, 4 * i - 1, m0(i, region)) == 4 * i - 2
        if per == 0:
            put_s(90, 91, m0(0, nregion))
            put_s(24, 40, f"s_add_u32 s{S_SO0}, s{S_SO0}, {SLOT}")
            put_s(24, 44, f"s_add_u32 s{S_SO1}, s{S_SO1}, {SLOT}")
            put_s(44, 60, f"s_sub_u32 s{S_CNT}, s{S_CNT}, 1")
            put_s(94, 95, f"s_cmp_eq_u32 s{S_CNT}, 0")
        else:
            put_s(24, 40, f"s_add_u32 s{S_SV0}, s{S_SV0}, {SLOT}")
            put_s(24, 44, f"s_add_u32 s{S_SV1}, s{S_SV1}, {SLOT}")
            i0 = put_s(44, 56, f"s_add_u32 s{S_DMA}, s{S_RD}, s{S_W3072}")
            i1 = put_s(i0 + 1, 60, f"s_add_u32 s{S_RD}, s{S_RD}, {SLOT}")
            i2 = put_s(i1 + 1, 64, f"s_cmp_eq_u32 s{S_RD}, {3*SLOT}")
            i3 = put_s(i2 + 1, 68, f"s_cselect_b32 s{S_RD}, 0, s{S_RD}")
            for j in range(2):
                put_v(i3 + 1, 84, f"v_add_u32 v{V_KA+j}, s{S_RD}, v{V_KB+j}")
            for j in range(4):
                put_v(74, 96, f"v_add_u32 v{V_VA+j}, s{S_RD}, v{V_VB+j}")
            extra_s[80] = "s_waitcnt vmcnt(12) lgkmcnt(0)"
            extra_s[81] = "s_barrier"
            put_s(94, 95, m0(0, nregion))
    for i in range(96):
        g = G[i]
        grp, t = i // 4, i % 4
        if grp < 12:
            if not tail:
                kt, s = grp // 6, grp % 6
                c = vr(V_NM + 4 * t) if s == 0 else vr(s_reg(kt, t))
                a(mfma(vr(s_reg(kt, t)), vr(ring(grp)), vr(q_reg(s, t)), c))
        else:
            dt = grp - 12
            o = ar(4 * (4 * dt + t))
            a(mfma(o, vr(ring(grp)), vr(p_reg(par_pv, t)), o))
        if g["wait"] is not None:
            f = g["wait"]
            if tail:
                if 12 <= f < 24:
                    a("s_waitcnt lgkmcnt(%d)" % cnt[f])
            elif per == 1 and f in (21, 22, 23):
                pass
            else:
                a("s_waitcnt lgkmcnt(%d)" % cnt[f])
        elif i in extra_s:
            a(extra_s[i])
        if g["lds"] is not None:
            f, part = g["lds"]
            if f < 12:
                if not tail:
                    half = per if i < 84 else 1 - per
                    a(k_read(f, half))
            else:
                a(v_read(f, part, per))
        if g["dma"] is not None and not tail:
            d = g["dma"]
            if per == 0:
                a(f"buffer_load_dwordx4 v{V_DK}, s[{S_K}:{S_K+3}], s{S_SO0 + d//3} offen offset:{(d%3)*128} lds")
            else:
                a(f"buffer_load_dwordx4 v{V_DV}, s[{S_V}:{S_V+3}], s{S_SV0 + d//3} offen offset:{(d%3)*128} lds")
        if g["exp"] is not None:
            w, kt, tt, r = g["exp"]
            if not (tail and w == "cur"):
                emit_soft(a, "exp", w, kt, tt, r, par_cur)
                if tail and grp < 12:
                    a("s_nop 0")
        for (w, kind, kt, tt, x) in g["valu"]:
            if not (tail and w == "cur"):
                emit_soft(a, kind, w, kt, tt, x, par_cur)
        for ins in extra_v.get(i, []):
            a(ins)
        if tail and i == 47:
            a("s_nop 1")


def dma_tile(a, voff, srdreg, so0, so1, lds_base_expr_reg, lds_const, n=6):
    for d in range(n):
        a(f"s_add_u32 m0, s{lds_base_expr_reg}, {lds_const + (d//3)*12288 + (d%3)*896}")
        a("s_nop 0")
        a(f"buffer_load_dwordx4 v{voff}, s[{srdreg}:{srdreg+3}], s{so0 if d < 3 else so1} offen offset:{(d%3)*128} lds")


P1_ACC = 64
P1_H = 0
P1_RING = 48
P1_B = 72
V1_WA = 6
V1_FA = 8
V1_WB = 12
V1_FB = 14
V1_DW = 20
V1_DF = 21
V1_X = 22


def p1_acc(f, t):
    if f < 12:
        s, half = f >> 1, f & 1
        return vr(P1_ACC + 8 * (4 * s + t) + 4 * half)
    return ar(P1_H + 4 * (4 * (f - 12) + t))


def p1_read(F, part):
    ks, f = F // 15, F % 15
    dst = ar(P1_RING + 4 * (F % 6) + 2 * part, 2)
    if f < 12:
        s, half = f >> 1, f & 1
        off = ks * 4 * 3072 + (s >> 1) * 1024 + part * 512 + half * 8
        return f"ds_read_b64_tr_b16 {dst}, v{V1_WA+(s&1)} offset:{off}"
    off = ks * 4096 + part * 512
    return f"ds_read_b64_tr_b16 {dst}, v{V1_FA+f-12} offset:{off}"


def gen_p1_stage(a, sp):
    NG = 30
    rg = {}
    for F in range(30):
        rg[F] = F - 5
    rg[0], rg[1], rg[2] = -3, -2, -1
    rg[3], rg[4] = 0, 1
    order = []
    slots = {g: [] for g in range(NG)}
    pend = []
    for F in range(3, 30):
        pend += [(F, 0), (F, 1)]
    g = 0
    while pend:
        while pend and len(slots[g]) < 3 and g >= pend[0][0] - 5:
            slots[g].append(pend.pop(0))
        g += 1
    assert g <= 26, g
    for k, F in enumerate((0, 1, 2)):
        slots[27 + k] = [(F + 30, 0), (F + 30, 1)]
    seq = []
    for rep in range(2):
        for gg in range(NG):
            for p, (F, part) in enumerate(slots[gg]):
                seq.append((rep * 120 + 4 * gg + p, F % 30, F >= 30))
    cnt = {}
    for F in range(30):
        wt = 120 + 4 * F - 1
        last = max(tm for tm, ff, _ in seq if ff == F and tm < wt)
        assert wt - last >= 5, (F, wt, last)
        cnt[F] = sum(1 for tm, ff, _ in seq if last < tm < wt)
        assert cnt[F] <= 15
    vm = {}
    for ks in range(2):
        cand = [gg for gg in range(15 * ks + 2, 15 * ks + 15) if len(slots[gg]) <= 2 and gg not in (25, 26)]
        assert len(cand) >= 8, cand
        for j in range(4):
            vm[cand[j]] = ("B", ks, j)
        for j in range(4):
            vm[cand[4 + j]] = ("D", ks, j)
    for i in range(120):
        grp, t = i // 4, i % 4
        ks, f = grp // 15, grp % 15
        buf = (2 * sp + ks) % 4
        acc = p1_acc(f, t)
        a(mfma(acc, ar(P1_RING + 4 * (grp % 6)), ar(P1_B + 16 * buf + 4 * t), acc))
        if t < len(slots[grp]):
            F, part = slots[grp][t]
            a(p1_read(F % 30, part))
        if t == 2 and grp in vm:
            kind, kk, j = vm[grp]
            if kind == "B":
                nb = (2 * sp + kk + 3) % 4
                a(f"buffer_load_dwordx4 {ar(P1_B+16*nb+4*j)}, v{V1_X+j}, s[{S_XN}:{S_XN+3}], s{S_BOFF} offen offset:{kk*1024}")
            else:
                d = 4 * kk + j
                if d < 6:
                    a(f"s_add_u32 m0, s{S_DMA}, {LDS_V + (d//3)*12288 + (d%3)*896}")
                else:
                    a(f"s_add_u32 m0, s{S_DMA1}, {LDS_W1 + (d-6)*4096}")
        if t == 3:
            F = (grp + 1) % 30
            w = []
            if F % 15 == 0:
                w.append("vmcnt(20)")
            if not (F in (27, 28, 29)):
                w.append(f"lgkmcnt({cnt[F]})")
            if w:
                a("s_waitcnt " + " ".join(w))
            if grp in vm and vm[grp][0] == "D":
                kind, kk, j = vm[grp]
                d = 4 * kk + j
                if d < 6:
                    a(f"buffer_load_dwordx4 v{V1_DW}, s[{S_WQ}:{S_WQ+3}], s{S_SO0 + d//3} offen offset:{(d%3)*128} lds")
                else:
                    a(f"buffer_load_dwordx4 v{V1_DF}, s[{S_W1}:{S_W1+3}], s{S_SW0 + d-6} offen lds")
        if grp == 25 and t == 0:
            a(f"s_add_u32 s{S_DMA}, s{S_RD}, s{S_W3072}")
        if grp == 25 and t == 1:
            a(f"s_add_u32 s{S_RD}, s{S_RD}, {SLOT}")
            a(f"s_cmp_eq_u32 s{S_RD}, {3*SLOT}")
            a(f"s_cselect_b32 s{S_RD}, 0, s{S_RD}")
        if grp == 25 and t == 2:
            a(f"s_lshl_b32 s{S_T0}, s{S_WAVE}, 10")
            a(f"s_add_u32 s{S_DMA1}, s{S_RD1}, s{S_T0}")
            a(f"s_add_u32 s{S_RD1}, s{S_RD1}, 8192")
        if grp == 26 and t == 0:
            a(f"s_cmp_eq_u32 s{S_RD1}, {3*8192}")
            a(f"s_cselect_b32 s{S_RD1}, 0, s{S_RD1}")
            a(f"v_add_u32 v{V1_WA}, s{S_RD}, v{V1_WB}")
        if grp == 26 and t == 1:
            a("s_waitcnt vmcnt(16) lgkmcnt(0)")
            a(f"v_add_u32 v{V1_WA+1}, s{S_RD}, v{V1_WB+1}")
            a(f"v_add_u32 v{V1_FA}, s{S_RD1}, v{V1_FB}")
        if grp == 26 and t == 2:
            a("s_barrier")
            a(f"v_add_u32 v{V1_FA+1}, s{S_RD1}, v{V1_FB+1}")
            a(f"v_add_u32 v{V1_FA+2}, s{S_RD1}, v{V1_FB+2}")
        if grp == 27 and t == 2:
            a(f"s_add_u32 s{S_SO0}, s{S_SO0}, {64*12288}")
            a(f"s_add_u32 s{S_SO1}, s{S_SO1}, {64*12288}")
            a(f"s_add_u32 s{S_BOFF}, s{S_BOFF}, 2048")
        if grp == 28 and t == 2:
            a(f"s_add_u32 s{S_SW0}, s{S_SW0}, {64*3072}")
            a(f"s_add_u32 s{S_SW1}, s{S_SW1}, {64*3072}")
    assert max(g_ for g_ in vm) < 25, vm


def gen_attn(a, dbg=False):
    G, spare = build_schedule()
    cnt = lds_wait_counts(G)
    a(".p2align 8\n.type attn_kernel,@function\nattn_kernel:")
    a(f"""
    s_cmp_ge_u32 s2, 256
    s_cbranch_scc1 L_at_end
    """)
    stamp(a, 0)
    a(f"""
    s_load_dwordx4 s[60:63], s[0:1], 8
    s_load_dwordx2 s[64:65], s[0:1], 24
    s_load_dwordx4 s[68:71], s[0:1], 48
    s_load_dwordx2 s[66:67], s[0:1], 96
    s_and_b32 s{S_T0}, s2, 7
    s_lshl_b32 s{S_T0}, s{S_T0}, 2
    s_bfe_u32 s{S_T1}, s2, 0x20003
    s_add_u32 s{S_HEAD}, s{S_T0}, s{S_T1}
    s_lshr_b32 s{S_QB}, s2, 5
    v_lshrrev_b32 v1, 6, v0
    v_and_b32 v0, 63, v0
    v_readfirstlane_b32 s{S_WAVE}, v1
    """)
    a(f"""
    v_and_b32 v26, 7, v0
    v_lshrrev_b32 v27, 3, v0
    v_lshrrev_b32 v28, 4, v0
    v_bfe_u32 v29, v0, 2, 2
    v_and_b32 v30, 3, v0
    v_and_b32 v31, 15, v0
    s_mul_i32 s{S_W3072}, s{S_WAVE}, 3072
    s_waitcnt lgkmcnt(0)
    """)
    a(f"s_mul_i32 s{S_T0}, s{S_HEAD}, 384\ns_sub_u32 s{S_T1}, {640*6144*2}, s{S_T0}")
    srd(a, S_WQ, 64, 65, f"s{S_T1}", f"s{S_T0}")
    srd(a, S_XN, 66, 67, XN_BYTES)
    a(f"""
    s_lshl_b32 s{S_T0}, s{S_WAVE}, 3
    v_add_u32 v32, s{S_T0}, v27
    v_mul_u32_u24 v33, 12288, v32
    v_bfe_u32 v34, v27, 1, 1
    v_lshlrev_b32 v35, 2, v34
    v_xor_b32 v35, v35, v26
    v_lshl_add_u32 v{V1_DW}, v35, 4, v33
    s_mov_b32 s{S_SO0}, 0
    s_mov_b32 s{S_SO1}, {32*12288}
    """)
    dma_tile(a, V1_DW, S_WQ, S_SO0, S_SO1, S_W3072, LDS_V)
    a(f"""
    s_lshl_b32 s{S_T0}, s{S_QB}, 4
    s_lshl_b32 s{S_T1}, s{S_WAVE}, 2
    s_add_u32 s{S_T0}, s{S_T0}, s{S_T1}
    s_mul_i32 s{S_T0}, s{S_T0}, 20480
    v_lshl_add_u32 v{V1_X}, v0, 4, s{S_T0}
    v_add_u32 v{V1_X+1}, 20480, v{V1_X}
    v_add_u32 v{V1_X+2}, {2*20480}, v{V1_X}
    v_add_u32 v{V1_X+3}, {3*20480}, v{V1_X}
    """)
    for j in range(4):
        a(f"buffer_load_dwordx4 {ar(P1_B+4*j)}, v{V1_X+j}, s[{S_XN}:{S_XN+3}], 0 offen")
    a(f"s_mul_i32 s{S_T0}, s{S_HEAD}, 96\ns_sub_u32 s{S_T1}, {640*1536*2}, s{S_T0}")
    srd(a, S_W1, 68, 69, f"s{S_T1}", f"s{S_T0}")
    a(f"""
    s_and_b32 s{S_T0}, s{S_WAVE}, 1
    s_lshl_b32 s{S_T0}, s{S_T0}, 2
    v_lshlrev_b32 v35, 1, v34
    v_or_b32 v35, s{S_T0}, v35
    v_xor_b32 v35, v35, v26
    v_mul_u32_u24 v33, 3072, v32
    v_lshl_add_u32 v{V1_DF}, v35, 4, v33
    s_mov_b32 s{S_SW0}, 0
    s_mov_b32 s{S_SW1}, {32*3072}
    s_lshl_b32 s{S_DMA1}, s{S_WAVE}, 10
    """)
    for d in range(2):
        a(f"s_add_u32 m0, s{S_DMA1}, {LDS_W1 + d*4096}\ns_nop 0")
        a(f"buffer_load_dwordx4 v{V1_DF}, s[{S_W1}:{S_W1+3}], s{S_SW0+d} offen lds")
    a(f"s_mul_i32 s{S_T0}, s{S_HEAD}, 96\ns_sub_u32 s{S_T1}, 3072, s{S_T0}")
    srd(a, S_B1, 70, 71, f"s{S_T1}", f"s{S_T0}")
    a("v_lshlrev_b32 v36, 3, v28")
    for ft in range(3):
        a(f"buffer_load_dwordx2 {vr(40+2*ft,2)}, v36, s[{S_B1}:{S_B1+3}], 0 offen offset:{32*ft}")
    for ks in (1, 2):
        for j in range(4):
            a(f"buffer_load_dwordx4 {ar(P1_B+16*ks+4*j)}, v{V1_X+j}, s[{S_XN}:{S_XN+3}], 0 offen offset:{1024*ks}")
    a(f"s_mov_b32 s{S_SO0}, {64*12288}\ns_mov_b32 s{S_SO1}, {96*12288}")
    a(f"s_mov_b32 s{S_SW0}, {64*3072}\ns_mov_b32 s{S_SW1}, {96*3072}")
    dma_tile(a, V1_DW, S_WQ, S_SO0, S_SO1, S_W3072, LDS_V + SLOT)
    for d in range(2):
        a(f"s_add_u32 m0, s{S_DMA1}, {LDS_W1 + 8192 + d*4096}\ns_nop 0")
        a(f"buffer_load_dwordx4 v{V1_DF}, s[{S_W1}:{S_W1+3}], s{S_SW0+d} offen lds")
    a(f"""
    s_mov_b32 s{S_SO0}, {128*12288}
    s_mov_b32 s{S_SO1}, {160*12288}
    s_mov_b32 s{S_SW0}, {128*3072}
    s_mov_b32 s{S_SW1}, {160*3072}
    s_mov_b32 s{S_BOFF}, 3072
    s_mov_b32 s{S_RD}, 0
    s_mov_b32 s{S_RD1}, 0
    s_add_u32 s{S_DMA}, s{S_W3072}, {2*SLOT}
    s_add_u32 s{S_DMA1}, s{S_DMA1}, {2*8192}
    """)
    a(f"s_mul_i32 s{S_T0}, s{S_HEAD}, 786432")
    srd(a, S_K, 60, 61, 786432, f"s{S_T0}")
    srd(a, S_V, 62, 63, 786432, f"s{S_T0}")
    srd(a, S_H, 66, 67, H_BYTES, WS_H)
    srd(a, S_O, 66, 67, O_BYTES, WS_O)
    a(f"""
    v_mul_u32_u24 v33, 3072, v28
    v_lshl_add_u32 v33, v29, 7, v33
    v_add_u32 v33, {LDS_V}, v33
    v_lshrrev_b32 v34, 1, v29
    v_lshlrev_b32 v35, 2, v34
    v_xor_b32 v35, v35, v30
    v_lshl_add_u32 v{V1_WB}, v35, 4, v33
    v_xor_b32 v{V1_WB+1}, 64, v{V1_WB}
    v_mov_b32 v{V1_WA}, v{V1_WB}
    v_mov_b32 v{V1_WA+1}, v{V1_WB+1}
    """)
    a(f"""
    v_lshlrev_b32 v33, 10, v28
    v_lshl_add_u32 v33, v29, 7, v33
    v_add_u32 v33, {LDS_W1}, v33
    v_and_b32 v35, 1, v30
    v_lshl_add_u32 v33, v35, 3, v33
    v_lshrrev_b32 v35, 1, v30
    v_lshl_add_u32 v33, v35, 4, v33
    v_and_b32 v35, 1, v28
    v_lshl_add_u32 v35, v35, 1, v34
    v_lshl_add_u32 v{V1_FB}, v35, 5, v33
    v_xor_b32 v{V1_FB+1}, 32, v{V1_FB}
    v_xor_b32 v{V1_FB+2}, 64, v{V1_FB}
    v_mov_b32 v{V1_FA}, v{V1_FB}
    v_mov_b32 v{V1_FA+1}, v{V1_FB+1}
    v_mov_b32 v{V1_FA+2}, v{V1_FB+2}
    """)
    a(f"""
    v_mul_u32_u24 v33, 384, v27
    v_add_u32 v33, s{S_W3072}, v33
    s_and_b32 s{S_T0}, s{S_WAVE}, 1
    s_lshl_b32 s{S_T0}, s{S_T0}, 2
    v_lshrrev_b32 v34, 1, v27
    v_add_u32 v35, s{S_T0}, v34
    v_xor_b32 v35, v35, v26
    v_lshl_add_u32 v{V_DK}, v35, 4, v33
    v_lshlrev_b32 v35, 1, v34
    v_xor_b32 v35, v35, v26
    v_lshl_add_u32 v{V_DV}, v35, 4, v33
    """)
    a("v_mov_b32 v48, 0\nv_mov_b32 v49, 0\nv_mov_b32 v50, 0\nv_mov_b32 v51, 0\ns_nop 1")
    for i in range(12):
        a(f"v_mfma_f32_32x32x16_bf16 {vr(64+16*i,16)}, v[48:51], v[48:51], 0")
    a("s_waitcnt vmcnt(16)")
    for ft in range(3):
        a(f"""
        v_lshlrev_b32 v52, 16, v{40+2*ft}
        v_and_b32 v53, 0xffff0000, v{40+2*ft}
        v_lshlrev_b32 v54, 16, v{41+2*ft}
        v_and_b32 v55, 0xffff0000, v{41+2*ft}
        """)
        for t in range(4):
            for r in range(4):
                a(f"v_accvgpr_write_b32 a{P1_H+4*(4*ft+t)+r}, v{52+r}")
    a("s_barrier")
    stamp(a, 1)
    for F in range(3):
        a(p1_read(F, 0))
        a(p1_read(F, 1))
    a(f"s_mov_b32 s{S_CNT}, 5\ns_waitcnt lgkmcnt(4)")
    a(".p2align 6\nL_p1_loop:")
    gen_p1_stage(a, 0)
    gen_p1_stage(a, 1)
    a(f"s_sub_u32 s{S_CNT}, s{S_CNT}, 1\ns_cmp_lg_u32 s{S_CNT}, 0\ns_cbranch_scc1 L_p1_loop")
    a("s_waitcnt lgkmcnt(0)\ns_barrier")
    stamp(a, 2)
    a(f"s_mov_b32 s{S_PASS}, 0")
    a("L_att_start:")
    a(f"s_mov_b32 s{S_SO0}, 0")
    dma_tile(a, V_DK, S_K, S_SO0, S_SO0, S_W3072, LDS_X, n=3)
    a(f"s_mov_b32 s{S_SO0}, 12288\ns_mov_b32 s{S_SO1}, {2*12288}\ns_mov_b32 s{S_SV0}, 0\ns_mov_b32 s{S_SV1}, 12288")
    dma_tile(a, V_DK, S_K, S_SO0, S_SO1, S_W3072, LDS_K)
    dma_tile(a, V_DV, S_V, S_SV0, S_SV1, S_W3072, LDS_V)
    a(f"s_mov_b32 s{S_SO0}, {3*12288}\ns_mov_b32 s{S_SO1}, {4*12288}\ns_mov_b32 s{S_SV0}, {2*12288}\ns_mov_b32 s{S_SV1}, {3*12288}")
    dma_tile(a, V_DK, S_K, S_SO0, S_SO1, S_W3072, LDS_K + SLOT)
    dma_tile(a, V_DV, S_V, S_SV0, S_SV1, S_W3072, LDS_V + SLOT)
    a(f"s_mov_b32 s{S_SO0}, {5*12288}\ns_mov_b32 s{S_SO1}, {6*12288}\ns_mov_b32 s{S_SV0}, {4*12288}\ns_mov_b32 s{S_SV1}, {5*12288}")
    c = (192 ** -0.5) * math.log2(math.e)
    a(f"s_mov_b32 s{S_C0}, {fh(c)}\ns_mov_b32 s{S_C1}, {fh(c)}")
    for i in range(24):
        b = P1_ACC + 8 * i
        for j in range(4):
            a(f"v_pk_mul_f32 {vr(b+2*j,2)}, {vr(b+2*j,2)}, s[{S_C0}:{S_C1}]")
        for j in range(4):
            a(f"v_cvt_pk_bf16_f32 v{V_Q+4*i+j}, v{b+2*j}, v{b+2*j+1}")
    k0 = -2.0 * math.log2(math.e) * math.sqrt(2 / math.pi)
    k1 = k0 * 0.044715
    a(f"""
    s_lshl_b32 s{S_T0}, s{S_QB}, 4
    s_lshl_b32 s{S_T1}, s{S_WAVE}, 2
    s_add_u32 s{S_T0}, s{S_T0}, s{S_T1}
    s_mul_i32 s{S_T0}, s{S_T0}, {48*1024}
    v_lshl_add_u32 v20, v0, 4, s{S_T0}
    v_add_u32 v21, {48*1024}, v20
    v_add_u32 v22, {2*48*1024}, v20
    v_add_u32 v23, {3*48*1024}, v20
    s_mov_b32 s{S_C0}, {fh(k1)}
    v_mov_b32 v24, {fh(k0)}
    """)
    for ft in range(3):
        a(f"""
        s_mul_i32 s{S_T0}, s{S_HEAD}, 3
        s_add_u32 s{S_T0}, s{S_T0}, {ft}
        s_lshr_b32 s{S_T1}, s{S_T0}, 1
        s_lshl_b32 s{S_T1}, s{S_T1}, 10
        s_and_b32 s{S_T0}, s{S_T0}, 1
        s_lshl_b32 s{S_T0}, s{S_T0}, 3
        s_add_u32 s{S_M0}, s{S_T0}, s{S_T1}
        """)
        x, u = 160, 176
        for e in range(16):
            a(f"v_accvgpr_read_b32 v{x+e}, a{P1_H+16*ft+e}")
        for e in range(16):
            a(f"v_mul_f32 v{u+e}, v{x+e}, v{x+e}")
        for e in range(16):
            a(f"v_fma_f32 v{u+e}, v{u+e}, s{S_C0}, v24")
        for e in range(16):
            a(f"v_mul_f32 v{u+e}, v{u+e}, v{x+e}")
        for e in range(16):
            a(f"v_exp_f32 v{u+e}, v{u+e}")
        for e in range(16):
            a(f"v_add_f32 v{u+e}, 1.0, v{u+e}")
        for e in range(16):
            a(f"v_rcp_f32 v{u+e}, v{u+e}")
        for e in range(16):
            a(f"v_mul_f32 v{x+e}, v{u+e}, v{x+e}")
        for e in range(8):
            a(f"v_cvt_pk_bf16_f32 v{192+8*ft+e}, v{x+2*e}, v{x+2*e+1}")
        for t in range(4):
            a(f"buffer_store_dwordx2 {vr(192+8*ft+2*t,2)}, v{20+t}, s[{S_H}:{S_H+3}], s{S_M0} offen")
    a(f"""
    v_lshrrev_b32 v33, 3, v31
    v_mul_u32_u24 v33, 3072, v33
    v_lshl_add_u32 v33, v26, 7, v33
    v_lshrrev_b32 v34, 1, v31
    v_xor_b32 v34, v34, v28
    v_lshl_add_u32 v{V_KB}, v34, 4, v33
    v_xor_b32 v{V_KB+1}, 64, v{V_KB}
    v_add_u32 v{V_KA}, {LDS_X}, v{V_KB}
    v_add_u32 v{V_KA+1}, {LDS_X}, v{V_KB+1}
    """)
    a(f"""
    v_lshrrev_b32 v33, 1, v28
    v_mul_u32_u24 v33, 3072, v33
    v_add_u32 v33, {LDS_V}, v33
    v_and_b32 v34, 1, v28
    v_lshl_add_u32 v34, v34, 2, v29
    v_lshl_add_u32 v33, v34, 7, v33
    v_and_b32 v35, 1, v30
    v_lshl_add_u32 v33, v35, 3, v33
    v_lshrrev_b32 v35, 1, v30
    v_lshl_add_u32 v33, v35, 4, v33
    v_lshrrev_b32 v34, 1, v34
    v_lshl_add_u32 v{V_VB}, v34, 5, v33
    v_xor_b32 v{V_VB+1}, 32, v{V_VB}
    v_xor_b32 v{V_VB+2}, 64, v{V_VB}
    v_xor_b32 v{V_VB+3}, 96, v{V_VB}
    """)
    for j in range(4):
        a(f"v_mov_b32 v{V_VA+j}, v{V_VB+j}\nv_mov_b32 v{V_L+j}, 0")
    a("v_mov_b32 v20, 0\nv_mov_b32 v21, 0\nv_mov_b32 v22, 0\nv_mov_b32 v23, 0\ns_nop 1")
    for i in range(12):
        a(f"v_mfma_f32_32x32x16_bf16 {ar(16*i,16)}, v[20:23], v[20:23], 0")
    stamp(a, 3)
    a("s_waitcnt vmcnt(36)\ns_barrier")
    stamp(a, 4)
    for f in range(6):
        a(k_read(f, 0))
    for f in range(12):
        kt, s = f // 6, f % 6
        a(f"s_waitcnt lgkmcnt({min(5, 11-f)})")
        for t in range(4):
            cc = "0" if s == 0 else vr(s_reg(kt, t))
            a(mfma(vr(s_reg(kt, t)), vr(ring(f)), vr(q_reg(s, t)), cc))
        if f + 6 < 12:
            a(k_read(f + 6, 0))
    a(f"v_mov_b32 v{V_KA}, v{V_KB}\nv_mov_b32 v{V_KA+1}, v{V_KB+1}")
    a("s_waitcnt vmcnt(24)\ns_barrier")
    for f in range(3):
        a(k_read(f, 0))
    a("s_nop 4")
    for t in range(4):
        s0, s1 = s_reg(0, t), s_reg(1, t)
        a(f"""
        v_max3_f32 v{20+t}, v{s0}, v{s0+1}, v{s0+2}
        v_max3_f32 v{20+t}, v{20+t}, v{s0+3}, v{s1}
        v_max3_f32 v{20+t}, v{20+t}, v{s1+1}, v{s1+2}
        v_max_f32 v{20+t}, v{20+t}, v{s1+3}
        """)
    for perm in ("v_permlane32_swap_b32", "v_permlane16_swap_b32"):
        for t in range(4):
            a(f"v_mov_b32 v{24+t}, v{20+t}")
        a("s_nop 1")
        for t in range(4):
            a(f"{perm} v{20+t}, v{24+t}")
        a("s_nop 1")
        for t in range(4):
            a(f"v_max_f32 v{20+t}, v{20+t}, v{24+t}")
    for t in range(4):
        a(f"v_sub_f32 v{V_NM+4*t}, {fh(-OFF)}, v{20+t}")
    for t in range(4):
        for r in range(1, 4):
            a(f"v_mov_b32 v{V_NM+4*t+r}, v{V_NM+4*t}")
    for kt in range(2):
        for t in range(4):
            for r in range(4):
                a(f"v_add_f32 v{s_reg(kt,t)+r}, v{V_NM+4*t}, v{s_reg(kt,t)+r}")
    for i in range(96):
        g = G[i]
        if g["exp"] is not None and g["exp"][0] == "cur":
            emit_soft(a, "exp", "cur", *g["exp"][1:], 0)
    a("s_nop 0")
    for i in range(96):
        for (w, kind, kt, tt, x) in G[i]["valu"]:
            if w == "cur":
                emit_soft(a, kind, w, kt, tt, x, 0)
    a(f"""
    s_mov_b32 s{S_RD}, 0
    s_add_u32 s{S_DMA}, s{S_W3072}, {2*SLOT}
    s_mov_b32 s{S_CNT}, 32
    s_add_u32 m0, s{S_DMA}, {LDS_K}
    s_waitcnt lgkmcnt({cnt[0]})
    """)
    stamp(a, 5)
    a(".p2align 6\nL_att_loop:")
    gen_period(a, G, spare, cnt, 0)
    a("s_cbranch_scc1 L_att_tail")
    gen_period(a, G, spare, cnt, 1)
    a("s_branch L_att_loop")
    a("L_att_tail:")
    gen_period(a, G, spare, lds_wait_counts(G, nok=True), 1, tail=True)
    stamp(a, 6)
    for perm in ("v_permlane32_swap_b32", "v_permlane16_swap_b32"):
        for t in range(4):
            a(f"v_mov_b32 v{24+t}, v{V_L+t}")
        a("s_nop 1")
        for t in range(4):
            a(f"{perm} v{V_L+t}, v{24+t}")
        a("s_nop 1")
        for t in range(4):
            a(f"v_add_f32 v{V_L+t}, v{V_L+t}, v{24+t}")
    for t in range(4):
        a(f"v_rcp_f32 v{20+2*t}, v{V_L+t}")
    a("s_nop 0")
    for t in range(4):
        a(f"v_mov_b32 v{21+2*t}, v{20+2*t}")
    a(f"""
    s_lshl_b32 s{S_T0}, s{S_QB}, 4
    s_lshl_b32 s{S_T1}, s{S_WAVE}, 2
    s_add_u32 s{S_T0}, s{S_T0}, s{S_T1}
    s_mul_i32 s{S_T0}, s{S_T0}, {192*1024}
    s_mul_i32 s{S_T1}, s{S_HEAD}, {6*1024}
    s_add_u32 s{S_T0}, s{S_T0}, s{S_T1}
    v_lshl_add_u32 v28, v0, 4, s{S_T0}
    v_add_u32 v29, {192*1024}, v28
    v_add_u32 v30, {2*192*1024}, v28
    v_add_u32 v31, {3*192*1024}, v28
    s_mov_b32 s{S_M0}, 4096
    """)
    n = 0
    for s in range(6):
        for t in range(4):
            b = 64 + 8 * (n % 16)
            o = 192 + 4 * (n % 12)
            n += 1
            for h in range(2):
                for r in range(4):
                    a(f"v_accvgpr_read_b32 v{b+4*h+r}, a{4*(4*(2*s+h)+t)+r}")
            for j in range(4):
                a(f"v_pk_mul_f32 {vr(b+2*j,2)}, {vr(b+2*j,2)}, {vr(20+2*t,2)}")
            for j in range(4):
                a(f"v_cvt_pk_bf16_f32 v{o+j}, v{b+2*j}, v{b+2*j+1}")
            so = "0" if s < 4 else f"s{S_M0}"
            a(f"buffer_store_dwordx4 {vr(o)}, v{28+t}, s[{S_O}:{S_O+3}], {so} offen offset:{(s%4)*1024}")
    stamp(a, 7)
    if STAMP:
        a("s_waitcnt vmcnt(0)")
    stamp(a, 8)
    stamp_store(a, 1, S_WAVE)
    a("L_at_end:\ns_endpgm")


def build(with_out=True):
    a = Asm()
    a.l.append("; @launch kernel=ln_kernel grid=(256,1,1) block=(256,1,1) lds=40960")
    a.l.append("; @launch kernel=attn_kernel grid=(256,1,1) block=(256,1,1) lds=163840")
    if with_out:
        a.l.append("; @launch kernel=out_kernel grid=(256,1,1) block=(256,1,1) lds=163840")
    a('.amdgcn_target "amdgcn-amd-amdhsa--gfx950"\n.text')
    a(".globl ln_kernel\n.globl attn_kernel")
    gen_ln(a)
    gen_attn(a)
    if with_out:
        import gen_out
        a(".globl out_kernel")
        gen_out.gen_out(a)
    a('.section .rodata,"a"\n.p2align 6')
    a.l.append(kd("ln_kernel", 128, 48, 128))
    a(".p2align 6")
    a.l.append(kd("attn_kernel", 512, 102, 256))
    if with_out:
        a(".p2align 6")
        a.l.append(kd("out_kernel", 512, 102, 256))
    return a.text()


if __name__ == "__main__":
    out = sys.argv[1] if len(sys.argv) > 1 else "k.s"
    import gen as _g
    _g.STAMP = "stamp" in sys.argv
    open(out, "w").write(_g.build(with_out=("noout" not in sys.argv)))
```

```python
import struct, sys, math, os

NAME = "recurrent_scan__gqa_block_cached__dense_activation_gelu__prompt"
WS_XN = 0
WS_H = 4 << 20
WS_O = 16 << 20
WS_WF = 48 << 20
WS_PART = 80 << 20
WS_FLAG = 112 << 20
WF_BYTES = 240 * 40960
PART_BYTES = 64 * 64 * 2560
XN_BYTES = 2048 * 640 * 2
H_BYTES = 2048 * 1536 * 2
O_BYTES = 2048 * 6144 * 2


def fh(x):
    return "0x%08x" % struct.unpack("<I", struct.pack("<f", x))[0]


class Asm:
    def __init__(self):
        self.l = []

    def __call__(self, s):
        for line in s.strip("\n").split("\n"):
            line = line.strip()
            if line:
                self.l.append(line if line.endswith(":") or line.startswith(".") else "    " + line)

    def text(self):
        return "\n".join(self.l) + "\n"


def vr(b, n=4, p="v"):
    return f"{p}[{b}:{b+n-1}]"


def ar(b, n=4):
    return vr(b, n, "a")


def kd(name, vgpr, sgpr, accum):
    return f""".amdhsa_kernel {name}
  .amdhsa_next_free_vgpr {vgpr}
  .amdhsa_next_free_sgpr {sgpr}
  .amdhsa_accum_offset {accum}
  .amdhsa_group_segment_fixed_size 0
  .amdhsa_kernarg_size 104
  .amdhsa_user_sgpr_count 2
  .amdhsa_user_sgpr_kernarg_segment_ptr 1
  .amdhsa_system_sgpr_workgroup_id_x 1
.end_amdhsa_kernel
"""


def srd(a, d, lo, hi, nbytes, add=None):
    if add is None:
        a(f"s_mov_b32 s{d}, s{lo}\ns_mov_b32 s{d+1}, s{hi}")
    else:
        a(f"s_add_u32 s{d}, s{lo}, {add}\ns_addc_u32 s{d+1}, s{hi}, 0")
    a(f"s_mov_b32 s{d+2}, {nbytes}\ns_mov_b32 s{d+3}, 0x00020000")


STAMP = False
WS_DBG = 128 << 20


V_ST = 38


def stamp(a, i, V_ST=38):
    if STAMP:
        a(f"""s_memtime s[98:99]
        s_waitcnt lgkmcnt(0)
        v_writelane_b32 v{V_ST}, s98, {i}
        s_memrealtime s[98:99]
        s_waitcnt lgkmcnt(0)
        v_writelane_b32 v{V_ST+1}, s98, {i}""")


def stamp_store(a, kern, wave_s, V_ST=38):
    if STAMP:
        a("s_load_dwordx2 s[66:67], s[0:1], 96\ns_waitcnt lgkmcnt(0)")
        srd(a, 4, 66, 67, 1 << 20, WS_DBG + kern * (1 << 20))
        a(f"s_lshl_b32 s3, s2, 2\ns_add_u32 s3, s3, s{wave_s}\ns_lshl_b32 s3, s3, 9")
        a("v_mbcnt_lo_u32_b32 v2, -1, 0\nv_mbcnt_hi_u32_b32 v2, -1, v2\nv_lshlrev_b32 v2, 3, v2\nv_add_u32 v2, s3, v2")
        a(f"buffer_store_dwordx2 v[{V_ST}:{V_ST+1}], v2, s[4:7], 0 offen")
        a("s_waitcnt vmcnt(0)")


def gen_repack_issue(a, s_wg, s_wave, wo, w2, srdreg, t0, t1, vlane16, lds_base=0):
    a(f"""
    s_mov_b32 s{srdreg+2}, {48*40960}
    s_cmp_lt_u32 s{s_wg}, 192
    s_cselect_b32 s{srdreg}, s{wo}, s{w2}
    s_cselect_b32 s{srdreg+1}, s{wo+1}, s{w2+1}
    s_cselect_b32 s{srdreg+2}, {6144*1280}, s{srdreg+2}
    s_cselect_b32 s{t0}, 0, 192
    s_mov_b32 s{srdreg+3}, 0x00020000
    s_sub_u32 s{t0}, s{s_wg}, s{t0}
    s_mul_i32 s{t0}, s{t0}, 40960
    s_mul_i32 s{t1}, s{s_wave}, 10240
    s_add_u32 s{t0}, s{t0}, s{t1}
    """)
    for i in range(10):
        if i % 4 == 0:
            a(f"s_add_u32 m0, s{t1}, {lds_base + i*1024}")
            if i:
                a(f"s_add_u32 s{t0}, s{t0}, 4096")
            else:
                a("s_nop 0")
        a(f"buffer_load_dwordx4 v{vlane16}, s[{srdreg}:{srdreg+3}], s{t0} offen offset:{(i%4)*1024} lds")


def gen_repack_finish(a, s_wg, s_wave, wfsrd, t0, t1, vlane, vtmp, vdat, lds_base=0, sc=""):
    a(f"""
    v_lshrrev_b32 v{vtmp}, 2, v{vlane}
    v_mul_u32_u24 v{vtmp}, 1280, v{vtmp}
    v_and_b32 v{vtmp+1}, 3, v{vlane}
    v_lshl_add_u32 v{vtmp}, v{vtmp+1}, 3, v{vtmp}
    s_mul_i32 s{t0}, s{s_wave}, 320
    s_add_u32 s{t0}, s{t0}, {lds_base}
    v_add_u32 v{vtmp}, s{t0}, v{vtmp}
    v_lshlrev_b32 v{vtmp+1}, 4, v{vlane}
    s_mul_i32 s{t0}, s{s_wg}, 40960
    s_mul_i32 s{t1}, s{s_wave}, 10240
    s_add_u32 s{t0}, s{t0}, s{t1}
    """)
    for i in range(10):
        for p in range(2):
            a(f"ds_read_b64_tr_b16 {vr(vdat+4*i+2*p,2)}, v{vtmp} offset:{p*20480+i*32}")
    for i in range(10):
        if i < 3:
            a("s_waitcnt lgkmcnt(14)")
        else:
            a(f"s_waitcnt lgkmcnt({2*(9-i)})")
        if i and i % 4 == 0:
            a(f"s_add_u32 s{t0}, s{t0}, 4096")
        a(f"buffer_store_dwordx4 {vr(vdat+4*i)}, v{vtmp+1}, s[{wfsrd}:{wfsrd+3}], s{t0} offen offset:{(i%4)*1024}{sc}")


def gen_ln(a):
    a(".p2align 8\n.type ln_kernel,@function\nln_kernel:")
    a("""
    s_cmp_ge_u32 s2, 256
    s_cbranch_scc1 L_ln_end
    s_load_dwordx2 s[4:5], s[0:1], 0
    s_load_dwordx2 s[6:7], s[0:1], 96
    s_load_dwordx2 s[24:25], s[0:1], 32
    s_load_dwordx2 s[26:27], s[0:1], 64
    v_lshrrev_b32 v1, 6, v0
    v_and_b32 v80, 63, v0
    v_readfirstlane_b32 s20, v1
    v_lshlrev_b32 v81, 4, v80
    v_lshrrev_b32 v1, 4, v0
    s_lshl_b32 s3, s2, 3
    v_add_u32 v1, s3, v1
    v_and_b32 v2, 15, v0
    v_mul_u32_u24 v3, 1280, v1
    v_lshl_add_u32 v3, v2, 4, v3
    s_waitcnt lgkmcnt(0)
    """)
    srd(a, 36, 6, 7, 64 * 128, WS_FLAG)
    a("s_lshl_b32 s21, s2, 5\nv_mov_b32 v82, 0\nv_lshlrev_b32 v83, 2, v0\nv_cmp_gt_u32 vcc, 8, v0\ns_and_saveexec_b64 s[40:41], vcc\ns_cbranch_execz L_ln_nz")
    a("buffer_store_dword v82, v83, s[36:39], s21 offen\nL_ln_nz:\ns_mov_b64 exec, s[40:41]")
    srd(a, 8, 4, 5, XN_BYTES)
    srd(a, 12, 6, 7, XN_BYTES)
    a("s_cmp_ge_u32 s20, 2\ns_cbranch_scc1 L_ln_nox")
    for i in range(5):
        a(f"buffer_load_dwordx4 {vr(8+4*i)}, v3, s[8:11], 0 offen offset:{256*i}")
    a("L_ln_nox:")
    gen_repack_issue(a, 2, 20, 24, 26, 28, 21, 22, 81)
    a("s_cmp_ge_u32 s20, 2\ns_cbranch_scc1 L_ln_rp")
    a("""
    v_lshrrev_b32 v4, 4, v1
    v_mul_u32_u24 v4, 20480, v4
    v_lshl_add_u32 v4, v2, 8, v4
    v_and_b32 v5, 15, v1
    v_lshl_add_u32 v4, v5, 4, v4
    s_mov_b32 s16, 4096
    s_mov_b32 s17, 8192
    s_mov_b32 s18, 12288
    s_mov_b32 s19, 16384
    """)
    for i in range(5):
        a(f"s_waitcnt vmcnt({14-i})")
        for j in range(4):
            r = 8 + 4 * i + j
            d = 32 + 8 * i + 2 * j
            a(f"v_lshlrev_b32 v{d}, 16, v{r}\nv_and_b32 v{d+1}, 0xffff0000, v{r}")
    for k in range(4):
        a(f"v_add_f32 v{28+k}, v{32+k}, v{36+k}")
    for e in range(8, 40):
        a(f"v_add_f32 v{28+e%4}, v{32+e}, v{28+e%4}")
    a("v_add_f32 v28, v28, v29\nv_add_f32 v30, v30, v31\nv_add_f32 v28, v28, v30")
    for sh in (8, 4, 2, 1):
        a(f"s_nop 1\nv_add_f32 v28, v28, v28 row_ror:{sh}")
    a(f"v_mul_f32 v28, {fh(1/640)}, v28")
    a("v_mov_b32 v72, 0\nv_mov_b32 v73, 0\nv_mov_b32 v74, 0\nv_mov_b32 v75, 0")
    for e in range(40):
        t = 76 + e % 4
        a(f"v_sub_f32 v{t}, v{32+e}, v28\nv_fmac_f32 v{72+e%4}, v{t}, v{t}")
    a("v_add_f32 v72, v72, v73\nv_add_f32 v74, v74, v75\nv_add_f32 v72, v72, v74")
    for sh in (8, 4, 2, 1):
        a(f"s_nop 1\nv_add_f32 v72, v72, v72 row_ror:{sh}")
    a(f"""
    v_mul_f32 v72, {fh(1/640)}, v72
    v_cvt_pk_bf16_f32 v29, v28, v72
    v_lshlrev_b32 v28, 16, v29
    v_and_b32 v72, 0xffff0000, v29
    v_add_f32 v72, {fh(1e-5)}, v72
    v_cvt_pk_bf16_f32 v72, v72, v72
    v_and_b32 v72, 0xffff0000, v72
    v_sqrt_f32 v72, v72
    s_nop 0
    v_cvt_pk_bf16_f32 v72, v72, v72
    v_and_b32 v72, 0xffff0000, v72
    v_rcp_f32 v72, v72
    s_nop 0
    """)
    so = ["0", "s16", "s17", "s18", "s19"]
    for i in range(5):
        for j in range(4):
            e = 32 + 8 * i + 2 * j
            a(f"""
            v_sub_f32 v{e}, v{e}, v28
            v_sub_f32 v{e+1}, v{e+1}, v28
            v_cvt_pk_bf16_f32 v{e}, v{e}, v{e+1}
            v_and_b32 v{e+1}, 0xffff0000, v{e}
            v_lshlrev_b32 v{e}, 16, v{e}
            v_mul_f32 v{e}, v{e}, v72
            v_mul_f32 v{e+1}, v{e+1}, v72
            v_cvt_pk_bf16_f32 v{8+4*i+j}, v{e}, v{e+1}
            """)
        a(f"buffer_store_dwordx4 {vr(8+4*i)}, v4, s[12:15], {so[i]} offen")
    a("L_ln_rp:\ns_cmp_ge_u32 s2, 240\ns_cbranch_scc1 L_ln_end\ns_waitcnt vmcnt(0)\ns_barrier")
    srd(a, 32, 6, 7, WF_BYTES, WS_WF)
    gen_repack_finish(a, 2, 20, 32, 21, 22, 80, 82, 84)
    a("L_ln_end:\ns_endpgm")


SLOT = 24576
LDS_K = 0
LDS_V = 3 * SLOT
LDS_X = 6 * SLOT
LDS_W1 = 2 * SLOT
LDS_FLAG = LDS_X + 12288

S_XN, S_WQ, S_W1, S_K, S_V, S_H, S_O, S_B1 = 4, 8, 12, 16, 20, 24, 28, 32
S_HEAD, S_QB, S_WAVE = 36, 37, 38
S_RD, S_DMA, S_SO0, S_SO1, S_CNT, S_T0, S_T1, S_BOFF = 40, 41, 42, 43, 44, 45, 46, 47
S_W3072, S_SV0, S_SV1, S_PASS, S_RD1, S_DMA1, S_SW0, S_SW1 = 48, 49, 50, 51, 52, 53, 54, 55
S_C0, S_C1 = 56, 57
S_M0, S_M1 = 58, 59

V_Q = 64
V_S = 160
V_P = 192
V_NM = 224
V_L = 2
V_KA = 6
V_VA = 8
V_KB = 12
V_VB = 14
V_DK = 18
V_DV = 19
V_T = 20
V_RING = 40
OFF = float(os.environ.get('OFF', 102.0))


def q_reg(s, t):
    return V_Q + 4 * (4 * s + t)


def s_reg(kt, t):
    return V_S + 4 * (4 * kt + t)


def p_reg(par, t):
    return V_P + 16 * par + 4 * t


def ring(f):
    return V_RING + 4 * (f % 6)


def mfma(d, a_, b, c):
    return f"v_mfma_f32_16x16x32_bf16 {d}, {a_}, {b}, {c}"


EXP_GAPS = None


def build_schedule():
    G = [dict(lds=None, exp=None, valu=[], dma=None, wait=None, scal=None) for _ in range(96)]
    pos = [0] * 24
    for g in range(24):
        fk = (g + 3) % 24
        if fk < 12:
            G[4 * g + pos[g]]["lds"] = (fk, 0)
            pos[g] += 1
        fv = g + 5
        if 12 <= fv < 24:
            G[4 * g + pos[g]]["lds"] = (fv, 0)
            G[4 * g + pos[g] + 1]["lds"] = (fv, 1)
            pos[g] += 2
    for i in range(6):
        G[4 * i + 1]["dma"] = i
    for f in range(24):
        G[(4 * f - 1) % 96]["wait"] = f
    free = [i for i in range(96) if G[i]["lds"] is None and G[i]["dma"] is None]
    assert len(free) == 54

    def pick(lo, hi, n):
        c = [i for i in free if lo <= i < hi]
        assert len(c) >= n, (lo, hi, n, c)
        return [c[int((k + 0.5) * len(c) / n)] for k in range(n)]
    e_a = pick(0, 20, 7)
    e_b = pick(26, 48, 8)
    e_c = pick(48, 76, 10)
    e_d = pick(76, 96, 7)
    seq = [(kt, t, r) for kt in range(2) for t in range(4) for r in range(4)]
    times = e_b + e_c + e_d + [96 + x for x in e_a]
    assert len(times) == 32 and len(set(times)) == 32
    etime = {}
    for (kt, t, r), tm in zip(seq, times):
        ready = (20 if kt == 0 else 44) + t + 3
        assert tm >= ready, (kt, t, r, tm)
        G[tm % 96]["exp"] = ("prev" if tm >= 96 else "cur", kt, t, r)
        etime[(kt, t, r)] = tm
    cap = [0] * 96
    for i in range(96):
        if G[i]["dma"] is not None or G[i]["exp"] is not None:
            cap[i] = 0
        elif G[i]["lds"] is not None:
            cap[i] = 1
        else:
            cap[i] = 2
    ops = []
    for (kt, t, r) in seq:
        ops.append((etime[(kt, t, r)] + 1, "add", kt, t, r))
        if r & 1:
            ops.append((etime[(kt, t, r)] + 1, "cvt", kt, t, r >> 1))
    ops.sort(key=lambda o: (o[0], o[1] == "add"))
    used = [0] * 96
    for o in ops:
        tm = o[0]
        while used[tm % 96] >= cap[tm % 96]:
            tm += 1
        kt, t = o[2], o[3]
        dead = (96 + t) if kt == 0 else (120 + t)
        assert tm < dead, (o, tm)
        used[tm % 96] += 1
        G[tm % 96]["valu"].append(("prev" if tm >= 96 else "cur",) + o[1:])
    spare = [cap[i] - used[i] for i in range(96)]
    return G, spare


def lds_wait_counts(G, nok=False):
    seq = []
    for rep in range(2):
        for i in range(96):
            if G[i]["lds"] is not None and not (nok and rep == 1 and G[i]["lds"][0] < 12):
                seq.append((rep * 96 + i, G[i]["lds"][0]))
    cnt = {}
    for f in range(24):
        wt = 96 + (4 * f - 1)
        last = max(tm for tm, ff in seq if ff == f and tm < wt)
        cnt[f] = sum(1 for tm, ff in seq if last < tm < wt)
    return cnt


def emit_soft(a, kind, which, kt, t, x, par_cur):
    par = par_cur if which == "cur" else 1 - par_cur
    s = s_reg(kt, t)
    if kind == "exp":
        a(f"v_exp_f32 v{s+x}, v{s+x}")
    elif kind == "add":
        a(f"v_add_f32 v{V_L+t}, v{s+x}, v{V_L+t}")
    else:
        a(f"v_cvt_pk_bf16_f32 v{p_reg(par,t)+2*kt+x}, v{s+2*x}, v{s+2*x+1}")


def k_read(f, half, addr=V_KA):
    kt, s = f // 6, f % 6
    off = (4 * half + 2 * kt) * 3072 + (s >> 1) * 1024
    return f"ds_read_b128 {vr(ring(f))}, v{addr+(s&1)} offset:{off}"


def v_read(f, part, half):
    dt = f - 12
    off = (4 * half + 2 * part) * 3072 + (dt >> 2) * 1024
    return f"ds_read_b64_tr_b16 {vr(ring(f)+2*part,2)}, v{V_VA+(dt&3)} offset:{off}"


def gen_period(a, G, spare, cnt, per, tail=False, sig=None, tailq=None):
    par_cur = 1 - per
    par_pv = per
    extra_v = {}
    extra_s = {}
    sp = list(spare)

    def put_v(lo, hi, ins):
        for i in range(lo, hi):
            if sp[i] > 0:
                sp[i] -= 1
                extra_v.setdefault(i, []).append(ins)
                return
        raise AssertionError(ins)

    def put_s(lo, hi, ins):
        for i in range(lo, hi):
            if G[i]["lds"] is None and G[i]["dma"] is None and G[i]["wait"] is None and i not in extra_s:
                extra_s[i] = ins
                return i
        raise AssertionError(ins)

    if not tail:
        region = LDS_K if per == 0 else LDS_V
        nregion = LDS_V if per == 0 else LDS_K

        def m0(i, reg):
            return f"s_add_u32 m0, s{S_DMA}, {reg + (i//3)*12288 + (i%3)*896}"
        for i in range(1, 6):
            assert put_s(4 * i - 2, 4 * i - 1, m0(i, region)) == 4 * i - 2
        if per == 0:
            put_s(90, 91, m0(0, nregion))
            put_s(26, 40, f"s_add_u32 s{S_SO0}, s{S_SO0}, {SLOT}")
            put_s(26, 44, f"s_add_u32 s{S_SO1}, s{S_SO1}, {SLOT}")
            if sig:
                extra_s[25] = f"s_cmp_eq_u32 s{S_CNT}, s{sig[0]}\ns_cbranch_scc1 {sig[1]}\n{sig[2]}:"
            put_s(44, 60, f"s_sub_u32 s{S_CNT}, s{S_CNT}, 1")
            put_s(94, 95, f"s_cmp_eq_u32 s{S_CNT}, 0")
        else:
            put_s(24, 40, f"s_add_u32 s{S_SV0}, s{S_SV0}, {SLOT}")
            put_s(24, 44, f"s_add_u32 s{S_SV1}, s{S_SV1}, {SLOT}")
            i0 = put_s(44, 56, f"s_add_u32 s{S_DMA}, s{S_RD}, s{S_W3072}")
            i1 = put_s(i0 + 1, 60, f"s_add_u32 s{S_RD}, s{S_RD}, {SLOT}")
            i2 = put_s(i1 + 1, 64, f"s_cmp_eq_u32 s{S_RD}, {3*SLOT}")
            i3 = put_s(i2 + 1, 68, f"s_cselect_b32 s{S_RD}, 0, s{S_RD}")
            for j in range(2):
                put_v(i3 + 1, 84, f"v_add_u32 v{V_KA+j}, s{S_RD}, v{V_KB+j}")
            for j in range(4):
                put_v(74, 96, f"v_add_u32 v{V_VA+j}, s{S_RD}, v{V_VB+j}")
            extra_s[80] = "s_waitcnt vmcnt(12) lgkmcnt(0)"
            extra_s[81] = "s_barrier"
            put_s(94, 95, m0(0, nregion))
    for i in range(96):
        g = G[i]
        grp, t = i // 4, i % 4
        if grp < 12:
            if not tail:
                kt, s = grp // 6, grp % 6
                c = vr(V_NM + 4 * t) if s == 0 else vr(s_reg(kt, t))
                a(mfma(vr(s_reg(kt, t)), vr(ring(grp)), vr(q_reg(s, t)), c))
        else:
            dt = grp - 12
            o = ar(4 * (4 * dt + t))
            a(mfma(o, vr(ring(grp)), vr(p_reg(par_pv, t)), o))
        if g["wait"] is not None:
            f = g["wait"]
            if tail:
                if 12 <= f < 24:
                    a("s_waitcnt lgkmcnt(%d)" % cnt[f])
            elif per == 1 and f in (21, 22, 23):
                pass
            else:
                a("s_waitcnt lgkmcnt(%d)" % cnt[f])
        elif i in extra_s:
            a(extra_s[i])
        if g["lds"] is not None:
            f, part = g["lds"]
            if f < 12:
                if not tail:
                    half = per if i < 84 else 1 - per
                    a(k_read(f, half))
            else:
                a(v_read(f, part, per))
        if g["dma"] is not None and not tail:
            d = g["dma"]
            if per == 0:
                a(f"buffer_load_dwordx4 v{V_DK}, s[{S_K}:{S_K+3}], s{S_SO0 + d//3} offen offset:{(d%3)*128} lds")
            else:
                a(f"buffer_load_dwordx4 v{V_DV}, s[{S_V}:{S_V+3}], s{S_SV0 + d//3} offen offset:{(d%3)*128} lds")
        if g["exp"] is not None:
            w, kt, tt, r = g["exp"]
            if not (tail and w == "cur"):
                emit_soft(a, "exp", w, kt, tt, r, par_cur)
                if tail and grp < 12:
                    a("s_nop 0")
        for (w, kind, kt, tt, x) in g["valu"]:
            if not (tail and w == "cur"):
                emit_soft(a, kind, w, kt, tt, x, par_cur)
        for ins in extra_v.get(i, []):
            a(ins)
        if tail and i == 47:
            a("s_nop 1")
        if tail and tailq and i >= 48:
            qd, qv = tailq
            if g["lds"] is None and qd:
                a(qd.pop(0))
            elif qv and (g["lds"] is None or True):
                a(qv.pop(0))
    if tail and tailq:
        for x in tailq[0] + tailq[1]:
            a(x + "\ns_nop 1")


def dma_tile(a, voff, srdreg, so0, so1, lds_base_expr_reg, lds_const, n=6):
    for d in range(n):
        a(f"s_add_u32 m0, s{lds_base_expr_reg}, {lds_const + (d//3)*12288 + (d%3)*896}")
        a("s_nop 0")
        a(f"buffer_load_dwordx4 v{voff}, s[{srdreg}:{srdreg+3}], s{so0 if d < 3 else so1} offen offset:{(d%3)*128} lds")


P1_ACC = 64
P1_H = 0
P1_RING = 48
P1_B = 72
V1_WA = 6
V1_FA = 8
V1_WB = 12
V1_FB = 14
V1_DW = 20
V1_DF = 21
V1_X = 22


def p1_acc(f, t):
    if f < 12:
        s, half = f >> 1, f & 1
        return vr(P1_ACC + 8 * (4 * s + t) + 4 * half)
    return ar(P1_H + 4 * (4 * (f - 12) + t))


def p1_read(F, part):
    ks, f = F // 15, F % 15
    dst = ar(P1_RING + 4 * (F % 6) + 2 * part, 2)
    if f < 12:
        s, half = f >> 1, f & 1
        off = ks * 4 * 3072 + (s >> 1) * 1024 + part * 512 + half * 8
        return f"ds_read_b64_tr_b16 {dst}, v{V1_WA+(s&1)} offset:{off}"
    off = ks * 4096 + part * 512
    return f"ds_read_b64_tr_b16 {dst}, v{V1_FA+f-12} offset:{off}"


def gen_p1_stage(a, sp, sc="", clamp=False, aux=None):
    NG = 30
    rg = {}
    for F in range(30):
        rg[F] = F - 5
    rg[0], rg[1], rg[2] = -3, -2, -1
    rg[3], rg[4] = 0, 1
    order = []
    slots = {g: [] for g in range(NG)}
    pend = []
    for F in range(3, 30):
        pend += [(F, 0), (F, 1)]
    g = 0
    while pend:
        while pend and len(slots[g]) < 3 and g >= pend[0][0] - 5:
            slots[g].append(pend.pop(0))
        g += 1
    assert g <= 26, g
    for k, F in enumerate((0, 1, 2)):
        slots[27 + k] = [(F + 30, 0), (F + 30, 1)]
    seq = []
    for rep in range(2):
        for gg in range(NG):
            for p, (F, part) in enumerate(slots[gg]):
                seq.append((rep * 120 + 4 * gg + p, F % 30, F >= 30))
    cnt = {}
    for F in range(30):
        wt = 120 + 4 * F - 1
        last = max(tm for tm, ff, _ in seq if ff == F and tm < wt)
        assert wt - last >= 5, (F, wt, last)
        cnt[F] = sum(1 for tm, ff, _ in seq if last < tm < wt)
        assert cnt[F] <= 15
    vm = {}
    for ks in range(2):
        cand = [gg for gg in range(15 * ks + 2, 15 * ks + 15) if len(slots[gg]) <= 2 and gg not in (25, 26)]
        assert len(cand) >= 8, cand
        for j in range(4):
            vm[cand[j]] = ("B", ks, j)
        for j in range(4):
            vm[cand[4 + j]] = ("D", ks, j)
    for i in range(120):
        grp, t = i // 4, i % 4
        ks, f = grp // 15, grp % 15
        buf = (2 * sp + ks) % 4
        acc = p1_acc(f, t)
        a(mfma(acc, ar(P1_RING + 4 * (grp % 6)), ar(P1_B + 16 * buf + 4 * t), acc))
        if t < len(slots[grp]):
            F, part = slots[grp][t]
            a(p1_read(F % 30, part))
        if clamp and grp == 15 and t == 2:
            a(f"s_cmp_eq_u32 s{S_CNT}, 1\ns_cselect_b32 s{S_XN+2}, 0, s{S_XN+2}")
        if aux and (grp, t) in aux and t == 2:
            a(aux[(grp, t)])
        if t == 2 and grp in vm:
            kind, kk, j = vm[grp]
            if kind == "B":
                nb = (2 * sp + kk + 3) % 4
                a(f"buffer_load_dwordx4 {ar(P1_B+16*nb+4*j)}, v{V1_X+j}, s[{S_XN}:{S_XN+3}], s{S_BOFF} offen offset:{kk*1024}{sc}")
            else:
                d = 4 * kk + j
                if d < 6:
                    a(f"s_add_u32 m0, s{S_DMA}, {LDS_V + (d//3)*12288 + (d%3)*896}")
                else:
                    a(f"s_add_u32 m0, s{S_DMA1}, {LDS_W1 + (d-6)*4096}")
        if t == 3:
            F = (grp + 1) % 30
            w = []
            if F % 15 == 0:
                w.append("vmcnt(20)")
            if not (F in (27, 28, 29)):
                w.append(f"lgkmcnt({cnt[F]})")
            if w:
                a("s_waitcnt " + " ".join(w))
            if aux and (grp, t) in aux:
                a(aux[(grp, t)])
            if grp in vm and vm[grp][0] == "D":
                kind, kk, j = vm[grp]
                d = 4 * kk + j
                if d < 6:
                    a(f"buffer_load_dwordx4 v{V1_DW}, s[{S_WQ}:{S_WQ+3}], s{S_SO0 + d//3} offen offset:{(d%3)*128} lds")
                else:
                    a(f"buffer_load_dwordx4 v{V1_DF}, s[{S_W1}:{S_W1+3}], s{S_SW0 + d-6} offen lds")
        if grp == 25 and t == 0:
            a(f"s_add_u32 s{S_DMA}, s{S_RD}, s{S_W3072}")
        if grp == 25 and t == 1:
            a(f"s_add_u32 s{S_RD}, s{S_RD}, {SLOT}")
            a(f"s_cmp_eq_u32 s{S_RD}, {3*SLOT}")
            a(f"s_cselect_b32 s{S_RD}, 0, s{S_RD}")
        if grp == 25 and t == 2:
            a(f"s_lshl_b32 s{S_T0}, s{S_WAVE}, 10")
            a(f"s_add_u32 s{S_DMA1}, s{S_RD1}, s{S_T0}")
            a(f"s_add_u32 s{S_RD1}, s{S_RD1}, 8192")
        if grp == 26 and t == 0:
            a(f"s_cmp_eq_u32 s{S_RD1}, {3*8192}")
            a(f"s_cselect_b32 s{S_RD1}, 0, s{S_RD1}")
            a(f"v_add_u32 v{V1_WA}, s{S_RD}, v{V1_WB}")
        if grp == 26 and t == 1:
            a("s_waitcnt vmcnt(16) lgkmcnt(0)")
            a(f"v_add_u32 v{V1_WA+1}, s{S_RD}, v{V1_WB+1}")
            a(f"v_add_u32 v{V1_FA}, s{S_RD1}, v{V1_FB}")
        if grp == 26 and t == 2:
            a("s_barrier")
            a(f"v_add_u32 v{V1_FA+1}, s{S_RD1}, v{V1_FB+1}")
            a(f"v_add_u32 v{V1_FA+2}, s{S_RD1}, v{V1_FB+2}")
        if grp == 27 and t == 2:
            a(f"s_add_u32 s{S_SO0}, s{S_SO0}, {64*12288}")
            a(f"s_add_u32 s{S_SO1}, s{S_SO1}, {64*12288}")
            a(f"s_add_u32 s{S_BOFF}, s{S_BOFF}, 2048")
        if grp == 28 and t == 2:
            a(f"s_add_u32 s{S_SW0}, s{S_SW0}, {64*3072}")
            a(f"s_add_u32 s{S_SW1}, s{S_SW1}, {64*3072}")
    assert max(g_ for g_ in vm) < 25, vm


def gen_attn(a, dbg=False):
    G, spare = build_schedule()
    cnt = lds_wait_counts(G)
    a(".p2align 8\n.type attn_kernel,@function\nattn_kernel:")
    a(f"""
    s_cmp_ge_u32 s2, 256
    s_cbranch_scc1 L_at_end
    """)
    stamp(a, 0)
    a(f"""
    s_load_dwordx4 s[60:63], s[0:1], 8
    s_load_dwordx2 s[64:65], s[0:1], 24
    s_load_dwordx4 s[68:71], s[0:1], 48
    s_load_dwordx2 s[66:67], s[0:1], 96
    s_and_b32 s{S_T0}, s2, 7
    s_lshl_b32 s{S_T0}, s{S_T0}, 2
    s_bfe_u32 s{S_T1}, s2, 0x20003
    s_add_u32 s{S_HEAD}, s{S_T0}, s{S_T1}
    s_lshr_b32 s{S_QB}, s2, 5
    v_lshrrev_b32 v1, 6, v0
    v_and_b32 v0, 63, v0
    v_readfirstlane_b32 s{S_WAVE}, v1
    """)
    a(f"""
    v_and_b32 v26, 7, v0
    v_lshrrev_b32 v27, 3, v0
    v_lshrrev_b32 v28, 4, v0
    v_bfe_u32 v29, v0, 2, 2
    v_and_b32 v30, 3, v0
    v_and_b32 v31, 15, v0
    s_mul_i32 s{S_W3072}, s{S_WAVE}, 3072
    s_waitcnt lgkmcnt(0)
    """)
    a(f"s_mul_i32 s{S_T0}, s{S_HEAD}, 384\ns_sub_u32 s{S_T1}, {640*6144*2}, s{S_T0}")
    srd(a, S_WQ, 64, 65, f"s{S_T1}", f"s{S_T0}")
    srd(a, S_XN, 66, 67, XN_BYTES)
    a(f"""
    s_lshl_b32 s{S_T0}, s{S_WAVE}, 3
    v_add_u32 v32, s{S_T0}, v27
    v_mul_u32_u24 v33, 12288, v32
    v_bfe_u32 v34, v27, 1, 1
    v_lshlrev_b32 v35, 2, v34
    v_xor_b32 v35, v35, v26
    v_lshl_add_u32 v{V1_DW}, v35, 4, v33
    s_mov_b32 s{S_SO0}, 0
    s_mov_b32 s{S_SO1}, {32*12288}
    """)
    dma_tile(a, V1_DW, S_WQ, S_SO0, S_SO1, S_W3072, LDS_V)
    a(f"""
    s_lshl_b32 s{S_T0}, s{S_QB}, 4
    s_lshl_b32 s{S_T1}, s{S_WAVE}, 2
    s_add_u32 s{S_T0}, s{S_T0}, s{S_T1}
    s_mul_i32 s{S_T0}, s{S_T0}, 20480
    v_lshl_add_u32 v{V1_X}, v0, 4, s{S_T0}
    v_add_u32 v{V1_X+1}, 20480, v{V1_X}
    v_add_u32 v{V1_X+2}, {2*20480}, v{V1_X}
    v_add_u32 v{V1_X+3}, {3*20480}, v{V1_X}
    """)
    for j in range(4):
        a(f"buffer_load_dwordx4 {ar(P1_B+4*j)}, v{V1_X+j}, s[{S_XN}:{S_XN+3}], 0 offen")
    a(f"s_mul_i32 s{S_T0}, s{S_HEAD}, 96\ns_sub_u32 s{S_T1}, {640*1536*2}, s{S_T0}")
    srd(a, S_W1, 68, 69, f"s{S_T1}", f"s{S_T0}")
    a(f"""
    s_and_b32 s{S_T0}, s{S_WAVE}, 1
    s_lshl_b32 s{S_T0}, s{S_T0}, 2
    v_lshlrev_b32 v35, 1, v34
    v_or_b32 v35, s{S_T0}, v35
    v_xor_b32 v35, v35, v26
    v_mul_u32_u24 v33, 3072, v32
    v_lshl_add_u32 v{V1_DF}, v35, 4, v33
    s_mov_b32 s{S_SW0}, 0
    s_mov_b32 s{S_SW1}, {32*3072}
    s_lshl_b32 s{S_DMA1}, s{S_WAVE}, 10
    """)
    for d in range(2):
        a(f"s_add_u32 m0, s{S_DMA1}, {LDS_W1 + d*4096}\ns_nop 0")
        a(f"buffer_load_dwordx4 v{V1_DF}, s[{S_W1}:{S_W1+3}], s{S_SW0+d} offen lds")
    a(f"s_mul_i32 s{S_T0}, s{S_HEAD}, 96\ns_sub_u32 s{S_T1}, 3072, s{S_T0}")
    srd(a, S_B1, 70, 71, f"s{S_T1}", f"s{S_T0}")
    a("v_lshlrev_b32 v36, 3, v28")
    for ft in range(3):
        a(f"buffer_load_dwordx2 {vr(40+2*ft,2)}, v36, s[{S_B1}:{S_B1+3}], 0 offen offset:{32*ft}")
    for ks in (1, 2):
        for j in range(4):
            a(f"buffer_load_dwordx4 {ar(P1_B+16*ks+4*j)}, v{V1_X+j}, s[{S_XN}:{S_XN+3}], 0 offen offset:{1024*ks}")
    a(f"s_mov_b32 s{S_SO0}, {64*12288}\ns_mov_b32 s{S_SO1}, {96*12288}")
    a(f"s_mov_b32 s{S_SW0}, {64*3072}\ns_mov_b32 s{S_SW1}, {96*3072}")
    dma_tile(a, V1_DW, S_WQ, S_SO0, S_SO1, S_W3072, LDS_V + SLOT)
    for d in range(2):
        a(f"s_add_u32 m0, s{S_DMA1}, {LDS_W1 + 8192 + d*4096}\ns_nop 0")
        a(f"buffer_load_dwordx4 v{V1_DF}, s[{S_W1}:{S_W1+3}], s{S_SW0+d} offen lds")
    a(f"""
    s_mov_b32 s{S_SO0}, {128*12288}
    s_mov_b32 s{S_SO1}, {160*12288}
    s_mov_b32 s{S_SW0}, {128*3072}
    s_mov_b32 s{S_SW1}, {160*3072}
    s_mov_b32 s{S_BOFF}, 3072
    s_mov_b32 s{S_RD}, 0
    s_mov_b32 s{S_RD1}, 0
    s_add_u32 s{S_DMA}, s{S_W3072}, {2*SLOT}
    s_add_u32 s{S_DMA1}, s{S_DMA1}, {2*8192}
    """)
    a(f"s_mul_i32 s{S_T0}, s{S_HEAD}, 786432")
    srd(a, S_K, 60, 61, 786432, f"s{S_T0}")
    srd(a, S_V, 62, 63, 786432, f"s{S_T0}")
    srd(a, S_H, 66, 67, H_BYTES, WS_H)
    srd(a, S_O, 66, 67, O_BYTES, WS_O)
    a(f"""
    v_mul_u32_u24 v33, 3072, v28
    v_lshl_add_u32 v33, v29, 7, v33
    v_add_u32 v33, {LDS_V}, v33
    v_lshrrev_b32 v34, 1, v29
    v_lshlrev_b32 v35, 2, v34
    v_xor_b32 v35, v35, v30
    v_lshl_add_u32 v{V1_WB}, v35, 4, v33
    v_xor_b32 v{V1_WB+1}, 64, v{V1_WB}
    v_mov_b32 v{V1_WA}, v{V1_WB}
    v_mov_b32 v{V1_WA+1}, v{V1_WB+1}
    """)
    a(f"""
    v_lshlrev_b32 v33, 10, v28
    v_lshl_add_u32 v33, v29, 7, v33
    v_add_u32 v33, {LDS_W1}, v33
    v_and_b32 v35, 1, v30
    v_lshl_add_u32 v33, v35, 3, v33
    v_lshrrev_b32 v35, 1, v30
    v_lshl_add_u32 v33, v35, 4, v33
    v_and_b32 v35, 1, v28
    v_lshl_add_u32 v35, v35, 1, v34
    v_lshl_add_u32 v{V1_FB}, v35, 5, v33
    v_xor_b32 v{V1_FB+1}, 32, v{V1_FB}
    v_xor_b32 v{V1_FB+2}, 64, v{V1_FB}
    v_mov_b32 v{V1_FA}, v{V1_FB}
    v_mov_b32 v{V1_FA+1}, v{V1_FB+1}
    v_mov_b32 v{V1_FA+2}, v{V1_FB+2}
    """)
    a(f"""
    v_mul_u32_u24 v33, 384, v27
    v_add_u32 v33, s{S_W3072}, v33
    s_and_b32 s{S_T0}, s{S_WAVE}, 1
    s_lshl_b32 s{S_T0}, s{S_T0}, 2
    v_lshrrev_b32 v34, 1, v27
    v_add_u32 v35, s{S_T0}, v34
    v_xor_b32 v35, v35, v26
    v_lshl_add_u32 v{V_DK}, v35, 4, v33
    v_lshlrev_b32 v35, 1, v34
    v_xor_b32 v35, v35, v26
    v_lshl_add_u32 v{V_DV}, v35, 4, v33
    """)
    a("v_mov_b32 v48, 0\nv_mov_b32 v49, 0\nv_mov_b32 v50, 0\nv_mov_b32 v51, 0\ns_nop 1")
    for i in range(12):
        a(f"v_mfma_f32_32x32x16_bf16 {vr(64+16*i,16)}, v[48:51], v[48:51], 0")
    a("s_waitcnt vmcnt(16)")
    for ft in range(3):
        a(f"""
        v_lshlrev_b32 v52, 16, v{40+2*ft}
        v_and_b32 v53, 0xffff0000, v{40+2*ft}
        v_lshlrev_b32 v54, 16, v{41+2*ft}
        v_and_b32 v55, 0xffff0000, v{41+2*ft}
        """)
        for t in range(4):
            for r in range(4):
                a(f"v_accvgpr_write_b32 a{P1_H+4*(4*ft+t)+r}, v{52+r}")
    a("s_barrier")
    stamp(a, 1)
    for F in range(3):
        a(p1_read(F, 0))
        a(p1_read(F, 1))
    a(f"s_mov_b32 s{S_CNT}, 5\ns_waitcnt lgkmcnt(4)")
    a(".p2align 6\nL_p1_loop:")
    gen_p1_stage(a, 0)
    gen_p1_stage(a, 1)
    a(f"s_sub_u32 s{S_CNT}, s{S_CNT}, 1\ns_cmp_lg_u32 s{S_CNT}, 0\ns_cbranch_scc1 L_p1_loop")
    a("s_waitcnt lgkmcnt(0)\ns_barrier")
    stamp(a, 2)
    a(f"s_mov_b32 s{S_PASS}, 0")
    a("L_att_start:")
    a(f"s_mov_b32 s{S_SO0}, 0")
    dma_tile(a, V_DK, S_K, S_SO0, S_SO0, S_W3072, LDS_X, n=3)
    a(f"s_mov_b32 s{S_SO0}, 12288\ns_mov_b32 s{S_SO1}, {2*12288}\ns_mov_b32 s{S_SV0}, 0\ns_mov_b32 s{S_SV1}, 12288")
    dma_tile(a, V_DK, S_K, S_SO0, S_SO1, S_W3072, LDS_K)
    dma_tile(a, V_DV, S_V, S_SV0, S_SV1, S_W3072, LDS_V)
    a(f"s_mov_b32 s{S_SO0}, {3*12288}\ns_mov_b32 s{S_SO1}, {4*12288}\ns_mov_b32 s{S_SV0}, {2*12288}\ns_mov_b32 s{S_SV1}, {3*12288}")
    dma_tile(a, V_DK, S_K, S_SO0, S_SO1, S_W3072, LDS_K + SLOT)
    dma_tile(a, V_DV, S_V, S_SV0, S_SV1, S_W3072, LDS_V + SLOT)
    a(f"s_mov_b32 s{S_SO0}, {5*12288}\ns_mov_b32 s{S_SO1}, {6*12288}\ns_mov_b32 s{S_SV0}, {4*12288}\ns_mov_b32 s{S_SV1}, {5*12288}")
    c = (192 ** -0.5) * math.log2(math.e)
    a(f"s_mov_b32 s{S_C0}, {fh(c)}\ns_mov_b32 s{S_C1}, {fh(c)}")
    for i in range(24):
        b = P1_ACC + 8 * i
        for j in range(4):
            a(f"v_pk_mul_f32 {vr(b+2*j,2)}, {vr(b+2*j,2)}, s[{S_C0}:{S_C1}]")
        for j in range(4):
            a(f"v_cvt_pk_bf16_f32 v{V_Q+4*i+j}, v{b+2*j}, v{b+2*j+1}")
    k0 = -2.0 * math.log2(math.e) * math.sqrt(2 / math.pi)
    k1 = k0 * 0.044715
    a(f"""
    s_lshl_b32 s{S_T0}, s{S_QB}, 4
    s_lshl_b32 s{S_T1}, s{S_WAVE}, 2
    s_add_u32 s{S_T0}, s{S_T0}, s{S_T1}
    s_mul_i32 s{S_T0}, s{S_T0}, {48*1024}
    v_lshl_add_u32 v20, v0, 4, s{S_T0}
    v_add_u32 v21, {48*1024}, v20
    v_add_u32 v22, {2*48*1024}, v20
    v_add_u32 v23, {3*48*1024}, v20
    s_mov_b32 s{S_C0}, {fh(k1)}
    v_mov_b32 v24, {fh(k0)}
    """)
    for ft in range(3):
        a(f"""
        s_mul_i32 s{S_T0}, s{S_HEAD}, 3
        s_add_u32 s{S_T0}, s{S_T0}, {ft}
        s_lshr_b32 s{S_T1}, s{S_T0}, 1
        s_lshl_b32 s{S_T1}, s{S_T1}, 10
        s_and_b32 s{S_T0}, s{S_T0}, 1
        s_lshl_b32 s{S_T0}, s{S_T0}, 3
        s_add_u32 s{S_M0}, s{S_T0}, s{S_T1}
        """)
        x, u = 160, 176
        for e in range(16):
            a(f"v_accvgpr_read_b32 v{x+e}, a{P1_H+16*ft+e}")
        for e in range(16):
            a(f"v_mul_f32 v{u+e}, v{x+e}, v{x+e}")
        for e in range(16):
            a(f"v_fma_f32 v{u+e}, v{u+e}, s{S_C0}, v24")
        for e in range(16):
            a(f"v_mul_f32 v{u+e}, v{u+e}, v{x+e}")
        for e in range(16):
            a(f"v_exp_f32 v{u+e}, v{u+e}")
        for e in range(16):
            a(f"v_add_f32 v{u+e}, 1.0, v{u+e}")
        for e in range(16):
            a(f"v_rcp_f32 v{u+e}, v{u+e}")
        for e in range(16):
            a(f"v_mul_f32 v{x+e}, v{u+e}, v{x+e}")
        for e in range(8):
            a(f"v_cvt_pk_bf16_f32 v{192+8*ft+e}, v{x+2*e}, v{x+2*e+1}")
        for t in range(4):
            a(f"buffer_store_dwordx2 {vr(192+8*ft+2*t,2)}, v{20+t}, s[{S_H}:{S_H+3}], s{S_M0} offen")
    a(f"""
    v_lshrrev_b32 v33, 3, v31
    v_mul_u32_u24 v33, 3072, v33
    v_lshl_add_u32 v33, v26, 7, v33
    v_lshrrev_b32 v34, 1, v31
    v_xor_b32 v34, v34, v28
    v_lshl_add_u32 v{V_KB}, v34, 4, v33
    v_xor_b32 v{V_KB+1}, 64, v{V_KB}
    v_add_u32 v{V_KA}, {LDS_X}, v{V_KB}
    v_add_u32 v{V_KA+1}, {LDS_X}, v{V_KB+1}
    """)
    a(f"""
    v_lshrrev_b32 v33, 1, v28
    v_mul_u32_u24 v33, 3072, v33
    v_add_u32 v33, {LDS_V}, v33
    v_and_b32 v34, 1, v28
    v_lshl_add_u32 v34, v34, 2, v29
    v_lshl_add_u32 v33, v34, 7, v33
    v_and_b32 v35, 1, v30
    v_lshl_add_u32 v33, v35, 3, v33
    v_lshrrev_b32 v35, 1, v30
    v_lshl_add_u32 v33, v35, 4, v33
    v_lshrrev_b32 v34, 1, v34
    v_lshl_add_u32 v{V_VB}, v34, 5, v33
    v_xor_b32 v{V_VB+1}, 32, v{V_VB}
    v_xor_b32 v{V_VB+2}, 64, v{V_VB}
    v_xor_b32 v{V_VB+3}, 96, v{V_VB}
    """)
    for j in range(4):
        a(f"v_mov_b32 v{V_VA+j}, v{V_VB+j}\nv_mov_b32 v{V_L+j}, 0")
    a("v_mov_b32 v20, 0\nv_mov_b32 v21, 0\nv_mov_b32 v22, 0\nv_mov_b32 v23, 0\ns_nop 1")
    for i in range(12):
        a(f"v_mfma_f32_32x32x16_bf16 {ar(16*i,16)}, v[20:23], v[20:23], 0")
    stamp(a, 3)
    a("s_waitcnt vmcnt(36)\ns_barrier")
    stamp(a, 4)
    for f in range(6):
        a(k_read(f, 0))
    for f in range(12):
        kt, s = f // 6, f % 6
        a(f"s_waitcnt lgkmcnt({min(5, 11-f)})")
        for t in range(4):
            cc = "0" if s == 0 else vr(s_reg(kt, t))
            a(mfma(vr(s_reg(kt, t)), vr(ring(f)), vr(q_reg(s, t)), cc))
        if f + 6 < 12:
            a(k_read(f + 6, 0))
    a(f"v_mov_b32 v{V_KA}, v{V_KB}\nv_mov_b32 v{V_KA+1}, v{V_KB+1}")
    a("s_waitcnt vmcnt(24)\ns_barrier")
    for f in range(3):
        a(k_read(f, 0))
    a("s_nop 4")
    for t in range(4):
        s0, s1 = s_reg(0, t), s_reg(1, t)
        a(f"""
        v_max3_f32 v{20+t}, v{s0}, v{s0+1}, v{s0+2}
        v_max3_f32 v{20+t}, v{20+t}, v{s0+3}, v{s1}
        v_max3_f32 v{20+t}, v{20+t}, v{s1+1}, v{s1+2}
        v_max_f32 v{20+t}, v{20+t}, v{s1+3}
        """)
    for perm in ("v_permlane32_swap_b32", "v_permlane16_swap_b32"):
        for t in range(4):
            a(f"v_mov_b32 v{24+t}, v{20+t}")
        a("s_nop 1")
        for t in range(4):
            a(f"{perm} v{20+t}, v{24+t}")
        a("s_nop 1")
        for t in range(4):
            a(f"v_max_f32 v{20+t}, v{20+t}, v{24+t}")
    for t in range(4):
        a(f"v_sub_f32 v{V_NM+4*t}, {fh(-OFF)}, v{20+t}")
    for t in range(4):
        for r in range(1, 4):
            a(f"v_mov_b32 v{V_NM+4*t+r}, v{V_NM+4*t}")
    for kt in range(2):
        for t in range(4):
            for r in range(4):
                a(f"v_add_f32 v{s_reg(kt,t)+r}, v{V_NM+4*t}, v{s_reg(kt,t)+r}")
    for i in range(96):
        g = G[i]
        if g["exp"] is not None and g["exp"][0] == "cur":
            emit_soft(a, "exp", "cur", *g["exp"][1:], 0)
    a("s_nop 0")
    for i in range(96):
        for (w, kind, kt, tt, x) in G[i]["valu"]:
            if w == "cur":
                emit_soft(a, kind, w, kt, tt, x, 0)
    a(f"""
    s_mov_b32 s{S_RD}, 0
    s_add_u32 s{S_DMA}, s{S_W3072}, {2*SLOT}
    s_mov_b32 s{S_CNT}, 32
    s_add_u32 m0, s{S_DMA}, {LDS_K}
    s_waitcnt lgkmcnt({cnt[0]})
    """)
    stamp(a, 5)
    a(".p2align 6\nL_att_loop:")
    gen_period(a, G, spare, cnt, 0)
    a("s_cbranch_scc1 L_att_tail")
    gen_period(a, G, spare, cnt, 1)
    a("s_branch L_att_loop")
    a("L_att_tail:")
    gen_period(a, G, spare, lds_wait_counts(G, nok=True), 1, tail=True)
    stamp(a, 6)
    for perm in ("v_permlane32_swap_b32", "v_permlane16_swap_b32"):
        for t in range(4):
            a(f"v_mov_b32 v{24+t}, v{V_L+t}")
        a("s_nop 1")
        for t in range(4):
            a(f"{perm} v{V_L+t}, v{24+t}")
        a("s_nop 1")
        for t in range(4):
            a(f"v_add_f32 v{V_L+t}, v{V_L+t}, v{24+t}")
    for t in range(4):
        a(f"v_rcp_f32 v{20+2*t}, v{V_L+t}")
    a("s_nop 0")
    for t in range(4):
        a(f"v_mov_b32 v{21+2*t}, v{20+2*t}")
    a(f"""
    s_lshl_b32 s{S_T0}, s{S_QB}, 4
    s_lshl_b32 s{S_T1}, s{S_WAVE}, 2
    s_add_u32 s{S_T0}, s{S_T0}, s{S_T1}
    s_mul_i32 s{S_T0}, s{S_T0}, {192*1024}
    s_mul_i32 s{S_T1}, s{S_HEAD}, {6*1024}
    s_add_u32 s{S_T0}, s{S_T0}, s{S_T1}
    v_lshl_add_u32 v28, v0, 4, s{S_T0}
    v_add_u32 v29, {192*1024}, v28
    v_add_u32 v30, {2*192*1024}, v28
    v_add_u32 v31, {3*192*1024}, v28
    s_mov_b32 s{S_M0}, 4096
    """)
    n = 0
    for s in range(6):
        for t in range(4):
            b = 64 + 8 * (n % 16)
            o = 192 + 4 * (n % 12)
            n += 1
            for h in range(2):
                for r in range(4):
                    a(f"v_accvgpr_read_b32 v{b+4*h+r}, a{4*(4*(2*s+h)+t)+r}")
            for j in range(4):
                a(f"v_pk_mul_f32 {vr(b+2*j,2)}, {vr(b+2*j,2)}, {vr(20+2*t,2)}")
            for j in range(4):
                a(f"v_cvt_pk_bf16_f32 v{o+j}, v{b+2*j}, v{b+2*j+1}")
            so = "0" if s < 4 else f"s{S_M0}"
            a(f"buffer_store_dwordx4 {vr(o)}, v{28+t}, s[{S_O}:{S_O+3}], {so} offen offset:{(s%4)*1024}")
    stamp(a, 7)
    if STAMP:
        a("s_waitcnt vmcnt(0)")
    stamp(a, 8)
    stamp_store(a, 1, S_WAVE)
    a("L_at_end:\ns_endpgm")


def build(with_out=True):
    a = Asm()
    a.l.append("; @launch kernel=ln_kernel grid=(256,1,1) block=(256,1,1) lds=40960")
    a.l.append("; @launch kernel=attn_kernel grid=(256,1,1) block=(256,1,1) lds=163840")
    if with_out:
        a.l.append("; @launch kernel=out_kernel grid=(256,1,1) block=(256,1,1) lds=163840")
    a('.amdgcn_target "amdgcn-amd-amdhsa--gfx950"\n.text')
    a(".globl ln_kernel\n.globl attn_kernel")
    gen_ln(a)
    gen_attn(a)
    if with_out:
        import gen_out
        a(".globl out_kernel")
        gen_out.gen_out(a)
    a('.section .rodata,"a"\n.p2align 6')
    a.l.append(kd("ln_kernel", 128, 48, 128))
    a(".p2align 6")
    a.l.append(kd("attn_kernel", 512, 102, 256))
    if with_out:
        a(".p2align 6")
        a.l.append(kd("out_kernel", 512, 102, 256))
    return a.text()


if __name__ == "__main__":
    out = sys.argv[1] if len(sys.argv) > 1 else "k.s"
    import gen as _g
    _g.STAMP = "stamp" in sys.argv
    open(out, "w").write(_g.build(with_out=("noout" not in sys.argv)))
```

```python
import math
import gen
from gen import vr, ar, srd, mfma, fh, stamp, stamp_store
from gen import WS_H, WS_O, H_BYTES, O_BYTES, WS_WF, WF_BYTES, WS_PART, PART_BYTES, WS_FLAG

S_O, S_WF, S_HH, S_PT, S_X, S_OUT, S_B2, S_FL = 28, 88, 24, 4, 84, 8, 12, 92
S_WAVE, S_T0, S_T1, S_J, S_MB, S_NB, S_CNT = 38, 45, 46, 40, 41, 42, 44
S_OO, S_WO, S_WO4, S_RD, S_DO, S_DW, S_LO, S_LW, S_TILE = 43, 47, 48, 49, 50, 52, 53, 54, 55
S_WS0, S_PO = 56, 57
V_L16 = 1
V_DO = 14
V_DH = 12
V_RB, V_RA, V_RB0, V_RA0 = 6, 7, 16, 17
V_OO, V_BO, V_PO, V_FV = 18, 19, 32, 33
V_X = 136
V_B2 = 146
FR = 160
STG = 36864
LDS_WOFF = 16384
ACC_S, ACC_G = 0, 80


def dma(k, bsrd, bv):
    if k < 4:
        r, ks = k >> 1, k & 1
        pre = [f"s_add_u32 m0, s{S_DO}, {r*2048}"] if ks == 0 else []
        return pre, f"buffer_load_dwordx4 v{bv+r}, s[{bsrd}:{bsrd+3}], s{S_OO} offen offset:{ks*1024} sc1 lds"
    i = k - 4
    if i < 4:
        pre = [f"s_mov_b32 m0, s{S_DW}"] if i == 0 else []
        return pre, f"buffer_load_dwordx4 v{V_L16}, s[{S_WF}:{S_WF+3}], s{S_WO} offen offset:{i*1024} sc1 lds"
    return [f"s_add_u32 m0, s{S_DW}, 4096"], f"buffer_load_dwordx4 v{V_L16}, s[{S_WF}:{S_WF+3}], s{S_WO4} offen sc1 lds"


def rd(par, ks, n):
    if n < 4:
        return f"ds_read_b128 {vr(FR+36*par+4*n)}, v{V_RB} offset:{(2*n+ks)*1024}"
    return f"ds_read_b128 {vr(FR+36*par+4*n)}, v{V_RA} offset:{(10*ks+n-4)*1024}"


RD_ORDER = [0, 4, 1, 2, 3, 5, 6, 7, 8]


def advance():
    return [f"s_add_u32 s{S_OO}, s{S_OO}, 2048", f"s_add_u32 s{S_WO}, s{S_WO}, {2*40960}", f"s_add_u32 s{S_WO4}, s{S_WO4}, {2*40960}"]


def body(a, accb, bsrd, bv, L, hookA, waitB, afterbar):
    for per in range(2):
        for g in range(20):
            i, t = g // 4, g % 4
            acc = ar(accb + 4 * (4 * i + t))
            a(mfma(acc, vr(FR + 36 * per + 16 + 4 * i), vr(FR + 36 * per + 4 * t), acc))
            if per == 0:
                if g < 9:
                    a(rd(1, 1, RD_ORDER[g]))
                elif g == 9:
                    a(hookA)
                elif g in (10, 12, 14):
                    a(dma(5 + (g - 10) // 2, bsrd, bv)[1])
                elif g == 15:
                    a(dma(8, bsrd, bv)[0][0])
                elif g == 16:
                    a(dma(8, bsrd, bv)[1])
                elif g == 17:
                    for x in advance():
                        a(x)
                elif g == 18:
                    a(f"s_add_u32 s{S_DO}, s{S_RD}, s{S_LO}\ns_add_u32 s{S_DW}, s{S_RD}, s{S_LW}\ns_add_u32 s{S_RD}, s{S_RD}, {STG}")
                elif g == 19:
                    a(f"s_cmp_eq_u32 s{S_RD}, {4*STG}\ns_cselect_b32 s{S_RD}, 0, s{S_RD}\ns_waitcnt lgkmcnt(0)")
            else:
                if g == 0:
                    a(waitB)
                    a(f"v_add_u32 v{V_RB}, s{S_RD}, v{V_RB0}\nv_add_u32 v{V_RA}, s{S_RD}, v{V_RA0}")
                elif g == 1:
                    a("s_barrier")
                    a(afterbar)
                elif 2 <= g < 11:
                    a(rd(0, 0, RD_ORDER[g - 2]))
                elif g == 11:
                    a(dma(0, bsrd, bv)[0][0])
                elif g in (12, 13):
                    a(dma(g - 12, bsrd, bv)[1])
                elif g == 14:
                    a(dma(2, bsrd, bv)[0][0])
                elif g in (15, 16):
                    a(dma(g - 13, bsrd, bv)[1])
                elif g == 17:
                    a(f"s_sub_u32 s{S_CNT}, s{S_CNT}, 1")
                    a(dma(4, bsrd, bv)[0][0])
                elif g == 18:
                    a(dma(4, bsrd, bv)[1])
                elif g == 19:
                    a(f"s_waitcnt lgkmcnt(0)\ns_cmp_lg_u32 s{S_CNT}, 0")
    a(f"s_cbranch_scc1 {L}")


def p3_setup(a, C):
    P_WS = C["P_WS"]
    a(f"""
    s_and_b32 s{S_J}, s2, 3
    s_bfe_u32 s{S_T0}, s2, 0x10002
    s_lshl_b32 s{S_T0}, s{S_T0}, 3
    s_bfe_u32 s{S_MB}, s2, 0x30003
    s_add_u32 s{S_MB}, s{S_MB}, s{S_T0}
    s_lshr_b32 s{S_NB}, s2, 6
    s_lshl_b32 s{S_TILE}, s{S_MB}, 2
    s_add_u32 s{S_TILE}, s{S_TILE}, s{S_NB}
    s_lshl_b32 s{S_T0}, s{S_MB}, 3
    s_lshl_b32 s{S_T1}, s{S_WAVE}, 1
    s_add_u32 s{S_T0}, s{S_T0}, s{S_T1}
    s_mul_i32 s{S_T1}, s{S_T0}, {192*1024}
    v_add_u32 v{V_DO}, s{S_T1}, v{V_L16}
    v_add_u32 v{V_DO+1}, {192*1024}, v{V_DO}
    s_mul_i32 s{S_T1}, s{S_T0}, {48*1024}
    v_add_u32 v{V_DH}, s{S_T1}, v{V_L16}
    v_add_u32 v{V_DH+1}, {48*1024}, v{V_DH}
    s_mul_i32 s{S_OO}, s{S_J}, {12*1024}
    s_lshr_b32 s{S_T0}, s{S_WAVE}, 1
    s_mul_i32 s{S_WS0}, s{S_T0}, 40960
    s_mul_i32 s{S_LW}, s{S_T0}, 10240
    s_lshl_b32 s{S_T0}, s{S_T0}, 13
    v_add_u32 v{V_RB0}, s{S_T0}, v{V_L16}
    s_and_b32 s{S_T0}, s{S_WAVE}, 1
    s_mul_i32 s{S_T0}, s{S_T0}, 5120
    s_add_u32 s{S_WS0}, s{S_WS0}, s{S_T0}
    s_add_u32 s{S_T0}, s{S_T0}, {LDS_WOFF}
    s_add_u32 s{S_LW}, s{S_LW}, s{S_T0}
    v_add_u32 v{V_RA0}, s{S_T0}, v{V_L16}
    s_mul_i32 s{S_T0}, s{S_NB}, 10240
    s_add_u32 s{S_WS0}, s{S_WS0}, s{S_T0}
    s_mul_i32 s{S_T0}, s{S_J}, {12*40960}
    s_add_u32 s{S_WO}, s{S_WS0}, s{S_T0}
    s_add_u32 s{S_WO}, s{S_WO}, {192*40960}
    s_add_u32 s{S_WO4}, s{S_WO}, 4096
    s_mul_i32 s{S_T0}, s{S_J}, {48*40960}
    s_add_u32 s{S_WS0}, s{S_WS0}, s{S_T0}
    s_lshl_b32 s{S_LO}, s{S_WAVE}, 12
    v_mov_b32 v{V_RB}, v{V_RB0}
    v_mov_b32 v{V_RA}, v{V_RA0}
    """)


def g_prologue_ops():
    ops = []
    for st in range(4):
        for k in range(9):
            pre, ld = dma(k, S_HH, V_DH)
            pre = list(pre)
            if k == 0:
                pre = [f"s_add_u32 s{S_DO}, s{S_LO}, {st*STG}", f"s_add_u32 s{S_DW}, s{S_LW}, {st*STG}"] + (advance() if st else []) + pre
            ops.append((pre, ld))
    return ops


def pack_store(a, accb, region):
    a(f"""
    s_lshl_b32 s{S_T0}, s{S_TILE}, 2
    s_add_u32 s{S_T0}, s{S_T0}, s{S_WAVE}
    s_lshl_b32 s{S_T0}, s{S_T0}, 2
    s_add_u32 s{S_T0}, s{S_T0}, s{S_J}
    s_mul_i32 s{S_T0}, s{S_T0}, 10240
    s_add_u32 s{S_T0}, s{S_T0}, {region}
    """)
    for t in range(4):
        b = 40
        o = 64 + 12 * t
        for i in range(5):
            for r in range(4):
                a(f"v_accvgpr_read_b32 v{b+4*i+r}, a{accb+4*(4*i+t)+r}")
        for e in range(10):
            a(f"v_cvt_pk_bf16_f32 v{o+e}, v{b+2*e}, v{b+2*e+1}")
        a(f"""
        buffer_store_dwordx4 {vr(o)}, v{V_L16}, s[{S_PT}:{S_PT+3}], s{S_T0} offen sc1
        buffer_store_dwordx4 {vr(o+4)}, v{V_L16}, s[{S_PT}:{S_PT+3}], s{S_T0} offen offset:1024 sc1
        buffer_store_dwordx2 {vr(o+8,2)}, v{V_PO}, s[{S_PT}:{S_PT+3}], s{S_T0} offen offset:2048 sc1
        s_add_u32 s{S_T0}, s{S_T0}, 2560
        """)


def part_loads(a, region, base):
    a(f"""
    s_lshl_b32 s{S_T0}, s{S_TILE}, 2
    s_add_u32 s{S_T0}, s{S_T0}, s{S_J}
    s_mul_i32 s{S_T0}, s{S_T0}, 40960
    s_mul_i32 s{S_T1}, s{S_WAVE}, 2560
    s_add_u32 s{S_T0}, s{S_T0}, s{S_T1}
    s_add_u32 s{S_T0}, s{S_T0}, {region}
    """)
    for src in range(4):
        o = base + 12 * src
        a(f"""
        buffer_load_dwordx4 {vr(o)}, v{V_L16}, s[{S_PT}:{S_PT+3}], s{S_T0} offen sc1
        buffer_load_dwordx4 {vr(o+4)}, v{V_L16}, s[{S_PT}:{S_PT+3}], s{S_T0} offen offset:1024 sc1
        buffer_load_dwordx2 {vr(o+8,2)}, v{V_PO}, s[{S_PT}:{S_PT+3}], s{S_T0} offen offset:2048 sc1
        s_add_u32 s{S_T0}, s{S_T0}, 10240
        """)


def part_sum(a, base, dst, younger, tmp):
    for src in range(4):
        o = base + 12 * src
        a(f"s_waitcnt vmcnt({3*(3-src)+younger})")
        for e in range(10):
            if src == 0:
                a(f"v_lshlrev_b32 v{dst+2*e}, 16, v{o+e}\nv_and_b32 v{dst+1+2*e}, 0xffff0000, v{o+e}")
            else:
                a(f"v_lshlrev_b32 v{tmp}, 16, v{o+e}\nv_and_b32 v{tmp+1}, 0xffff0000, v{o+e}")
                a(f"v_add_f32 v{dst+2*e}, v{tmp}, v{dst+2*e}\nv_add_f32 v{dst+1+2*e}, v{tmp+1}, v{dst+1+2*e}")


def signal(a, C, offexpr):
    a(offexpr)
    a(f"s_mov_b32 exec_hi, 0\nbuffer_store_dword v{C['ONE']}, v{C['L4']}, s[{S_FL}:{S_FL+3}], s{S_T0} offen sc1\ns_mov_b32 exec_hi, -1")


def gen_p3(a, C, gops):
    ZERO, ONE = C["ZERO"], C["ONE"]
    P_WS = C["P_WS"]
    srd(a, S_PT, P_WS, P_WS + 1, 2 * PART_BYTES, WS_PART)
    srd(a, S_OUT, C["P_OUT"], C["P_OUT"] + 1, 2048 * 1280)
    srd(a, S_B2, C["P_B2"], C["P_B2"] + 1, 1280)
    a(f"""
    v_mov_b32 v44, 0
    v_mov_b32 v45, 0
    v_mov_b32 v46, 0
    v_mov_b32 v47, 0
    s_lshl_b32 s{S_T0}, s{S_MB}, 3
    s_lshr_b32 s{S_T1}, s{S_J}, 1
    s_lshl_b32 s{S_T1}, s{S_T1}, 2
    s_add_u32 s{S_T0}, s{S_T0}, s{S_T1}
    s_add_u32 s{S_T0}, s{S_T0}, s{S_WAVE}
    s_lshl_b32 s{S_T0}, s{S_T0}, 4
    """)
    for i in range(10):
        a(f"v_mfma_f32_32x32x16_bf16 {ar(16*((i+5)%10),16)}, v[44:47], v[44:47], 0")
    a(f"""
    v_and_b32 v40, 15, v0
    v_add_u32 v40, s{S_T0}, v40
    v_mul_u32_u24 v40, 1280, v40
    s_mul_i32 s{S_T0}, s{S_NB}, 320
    s_and_b32 s{S_T1}, s{S_J}, 1
    s_mul_i32 s{S_T1}, s{S_T1}, 160
    s_add_u32 s{S_T0}, s{S_T0}, s{S_T1}
    v_lshrrev_b32 v41, 4, v0
    v_lshlrev_b32 v41, 3, v41
    v_add_u32 v{V_BO}, s{S_T0}, v41
    v_add_u32 v{V_OO}, v40, v{V_BO}
    v_lshlrev_b32 v{V_PO}, 3, v0
    v_and_b32 v{V_FV}, 3, v0
    v_lshlrev_b32 v{V_FV}, 7, v{V_FV}
    v_mov_b32 v40, {C["LDS_FLAG"]}
    s_mov_b32 s{S_RD}, 0
    s_mov_b32 s{S_CNT}, 6
    s_waitcnt vmcnt(24) lgkmcnt(0)
    s_barrier
    ds_read_b32 v41, v40
    """)
    for n in RD_ORDER:
        a(rd(0, 0, n))
    a(f"""
    s_waitcnt lgkmcnt(9)
    v_readfirstlane_b32 s{S_T0}, v41
    s_nop 3
    s_cmp_gt_u32 s{S_T0}, s{C["PASS"]}
    s_cbranch_scc1 L_fallback
    """)
    for pre, ld in gops:
        for x in pre:
            a(x)
        if pre:
            a("s_nop 0")
        a(ld)
    a(f"s_mov_b32 m0, s{S_DW}\ns_waitcnt lgkmcnt(0)")
    for j in range(5):
        a(f"buffer_load_dwordx2 {vr(V_X+2*j,2)}, v{V_OO}, s[{S_X}:{S_X+3}], 0 offen offset:{32*j}")
        a(f"buffer_load_dwordx2 {vr(V_B2+2*j,2)}, v{V_BO}, s[{S_B2}:{S_B2+3}], 0 offen offset:{32*j}")
    stamp(a, 9)
    a(".p2align 6\nL_g_loop:")
    body(a, ACC_G, S_HH, V_DH, "L_g_loop", "",
         f"s_cmp_gt_u32 s{S_CNT}, 5\ns_cbranch_scc1 L_g_nw\ns_waitcnt vmcnt(18)\nL_g_nw:",
         f"s_cmp_le_u32 s{S_CNT}, 5\ns_cbranch_scc1 L_g_hook\nL_g_hret:")
    a(f"""
    s_branch L_g_done
    L_g_hook:
    s_cmp_eq_u32 s{S_CNT}, 4
    s_cbranch_scc0 L_g_h2
    s_mov_b32 s{S_HH+2}, 0
    s_mov_b32 s{S_WO}, s{S_WS0}
    s_add_u32 s{S_WO4}, s{S_WS0}, 4096
    s_branch L_g_hret
    L_g_h2:
    s_lshl_b32 s{S_T0}, s{S_WAVE}, 3
    s_or_b32 s{S_T0}, s{S_T0}, s{S_CNT}
    s_cmp_eq_u32 s{S_T0}, 5
    s_cbranch_scc0 L_g_hret
    """)
    signal(a, C, f"s_lshl_b32 s{S_T0}, s{C['QB']}, 12\ns_lshl_b32 s{S_T1}, s{C['HEAD']}, 7\ns_add_u32 s{S_T0}, s{S_T0}, s{S_T1}\ns_add_u32 s{S_T0}, s{S_T0}, {C['FL_F3']}")
    a("s_branch L_g_hret\nL_g_done:")
    stamp(a, 10)
    a(f"""
    s_cmp_lg_u32 s{S_WAVE}, 0
    s_cbranch_scc1 L_p3go
    s_lshr_b32 s{S_T0}, s{S_MB}, 1
    s_lshl_b32 s{S_T0}, s{S_T0}, 12
    s_lshl_b32 s{S_T1}, s{S_J}, 10
    s_add_u32 s{S_T0}, s{S_T0}, s{S_T1}
    s_add_u32 s{S_T0}, s{S_T0}, {C["FL_F3"]}
    v_and_b32 v42, 7, v0
    v_lshlrev_b32 v42, 7, v42
    L_poll3:
    buffer_load_dword v43, v42, s[{S_FL}:{S_FL+3}], s{S_T0} offen sc1
    s_waitcnt vmcnt(0)
    v_cmp_ne_u32 vcc, v{ONE}, v43
    s_cbranch_vccnz L_poll3
    L_p3go:
    s_barrier
    s_mul_i32 s{S_OO}, s{S_J}, {48*1024}
    """)
    stamp(a, 11)
    for st in range(4):
        a(f"s_add_u32 s{S_DO}, s{S_LO}, {((st+2)%4)*STG}")
        for k in range(4):
            pre, ld = dma(k, S_O, V_DO)
            for x in pre:
                a(x + "\ns_nop 0")
            a(ld)
        if st < 3:
            a(advance()[0])
    pack_store(a, ACC_G, PART_BYTES)
    a(f"s_mov_b32 m0, s{S_DW}\ns_mov_b32 s{S_CNT}, 24\ns_waitcnt vmcnt(24)\ns_barrier")
    for n in RD_ORDER:
        a(rd(0, 0, n))
    a("s_waitcnt lgkmcnt(0)")
    stamp(a, 12)
    a(".p2align 6\nL_s_loop:")
    body(a, ACC_S, S_O, V_DO, "L_s_loop",
         f"s_cmp_eq_u32 s{S_CNT}, 20\ns_cbranch_scc1 L_s_h1\nL_s_r1:",
         f"s_waitcnt vmcnt(24)\ns_cmp_gt_u32 s{S_CNT}, 22\ns_cbranch_scc1 L_s_nw\ns_waitcnt vmcnt(18)\nL_s_nw:",
         f"s_cmp_le_u32 s{S_CNT}, 4\ns_cbranch_scc1 L_s_h2\nL_s_r2:")
    a(f"""
    s_branch L_s_done
    L_s_h1:
    s_cmp_lg_u32 s{S_WAVE}, 0
    s_cbranch_scc1 L_s_r1
    """)
    signal(a, C, f"s_lshl_b32 s{S_T0}, s{S_TILE}, 9\ns_lshl_b32 s{S_T1}, s{S_J}, 7\ns_add_u32 s{S_T0}, s{S_T0}, s{S_T1}\ns_add_u32 s{S_T0}, s{S_T0}, {C['FL_F5']}")
    a(f"""
    s_branch L_s_r1
    L_s_h2:
    s_mov_b32 s{S_O+2}, 0
    s_mov_b32 s{S_WF+2}, 0
    s_cmp_eq_u32 s{S_CNT}, 4
    s_cbranch_scc0 L_s_r2
    s_lshl_b32 s{S_PO}, s{S_TILE}, 9
    s_add_u32 s{S_PO}, s{S_PO}, {C["FL_F5"]}
    buffer_load_dword v43, v{V_FV}, s[{S_FL}:{S_FL+3}], s{S_PO} offen sc1
    s_branch L_s_r2
    L_s_done:
    """)
    stamp(a, 13)
    a(f"""
    L_poll5:
    v_cmp_ne_u32 vcc, v{ONE}, v43
    s_cbranch_vccz L_f5ok
    buffer_load_dword v43, v{V_FV}, s[{S_FL}:{S_FL+3}], s{S_PO} offen sc1
    s_waitcnt vmcnt(0)
    s_branch L_poll5
    L_f5ok:
    s_sub_u32 s{S_PO}, s{S_PO}, {C["FL_F5"] - C["FL_F4"]}
    """)
    GP = 160
    part_loads(a, PART_BYTES, GP)
    pack_store(a, ACC_S, 0)
    stamp(a, 14)
    g, u, xx = 208, 228, 112
    part_sum(a, GP, g, 12, 40)
    nl2e = -math.log2(math.e)
    for e in range(10):
        a(f"v_lshlrev_b32 v{u+2*e}, 16, v{V_B2+e}\nv_and_b32 v{u+1+2*e}, 0xffff0000, v{V_B2+e}")
    for e in range(20):
        a(f"v_add_f32 v{g+e}, v{u+e}, v{g+e}")
    for e in range(20):
        a(f"v_mul_f32 v{u+e}, {fh(nl2e)}, v{g+e}")
    for e in range(20):
        a(f"v_exp_f32 v{u+e}, v{u+e}")
    for e in range(20):
        a(f"v_add_f32 v{u+e}, 1.0, v{u+e}")
    for e in range(20):
        a(f"v_rcp_f32 v{u+e}, v{u+e}")
    for e in range(10):
        a(f"v_lshlrev_b32 v{xx+2*e}, 16, v{V_X+e}\nv_and_b32 v{xx+1+2*e}, 0xffff0000, v{V_X+e}")
    for e in range(20):
        a(f"v_mul_f32 v{g+e}, v{g+e}, v{u+e}")
    a("s_waitcnt vmcnt(0)\ns_barrier")
    stamp(a, 15)
    a(f"s_cmp_lg_u32 s{S_WAVE}, 0\ns_cbranch_scc1 L_p4done")
    signal(a, C, f"s_lshl_b32 s{S_T1}, s{S_J}, 7\ns_add_u32 s{S_T0}, s{S_PO}, s{S_T1}")
    a(f"""
    L_poll4:
    buffer_load_dword v43, v{V_FV}, s[{S_FL}:{S_FL+3}], s{S_PO} offen sc1
    s_waitcnt vmcnt(0)
    v_cmp_ne_u32 vcc, v{ONE}, v43
    s_cbranch_vccnz L_poll4
    L_p4done:
    s_barrier
    """)
    stamp(a, 16)
    part_loads(a, 0, GP)
    part_sum(a, GP, u, 0, 40)
    for e in range(20):
        a(f"v_fmac_f32 v{xx+e}, v{g+e}, v{u+e}")
    for j in range(5):
        a(f"v_cvt_pk_bf16_f32 v{64+2*j}, v{xx+4*j}, v{xx+1+4*j}\nv_cvt_pk_bf16_f32 v{65+2*j}, v{xx+2+4*j}, v{xx+3+4*j}")
        a(f"buffer_store_dwordx2 {vr(64+2*j,2)}, v{V_OO}, s[{S_OUT}:{S_OUT+3}], 0 offen offset:{32*j}")
    stamp(a, 17)
    if gen.STAMP:
        a("s_waitcnt vmcnt(0)")
    stamp(a, 18)
    stamp_store(a, 0, S_WAVE)
```

```python
from gen import Asm, kd
a = Asm()
a.l.append("; @launch kernel=ev_kernel grid=(1024,1,1) block=(64,1,1) lds=0")
a('.amdgcn_target "amdgcn-amd-amdhsa--gfx950"\n.text\n.globl ev_kernel\n.p2align 8\n.type ev_kernel,@function\nev_kernel:')
a(".rept 20000\nv_fma_f32 v1, v2, v3, v1\n.endr\ns_endpgm")
a('.section .rodata,"a"\n.p2align 6')
a.l.append(kd("ev_kernel", 8, 16, 8))
open("evict.s", "w").write(a.text())
```

```python
import sys, math, os, struct

NAME = "recurrent_scan__gqa_block_cached__dense_activation_gelu__prompt"
KNAME = NAME + "_kernel"
WS_XN, WS_H, WS_O, WS_WF, WS_PART, WS_FLAG, WS_DBG = 0, 4 << 20, 16 << 20, 48 << 20, 80 << 20, 112 << 20, 128 << 20
XN_BYTES = 2048 * 640 * 2
H_BYTES = 2048 * 1536 * 2
O_BYTES = 2048 * 6144 * 2
WF_BYTES = 240 * 40960
PART_BYTES = 64 * 64 * 2560
FL_F1, FL_F3, FL_F2, FL_F4, FL_F5, FL_NONCE = 0, 32768, 65536, 98304, 131072, 163840
FLAG_BYTES = 163968
STAMP = False
OFF = float(os.environ.get("OFF", 102.0))
GUARD_LO = 2.0 ** -110


def fh(x):
    return "0x%08x" % struct.unpack("<I", struct.pack("<f", x))[0]


class Asm:
    def __init__(self):
        self.l = []

    def __call__(self, s):
        for line in s.strip("\n").split("\n"):
            line = line.strip()
            if line:
                self.l.append(line if line.endswith(":") or line.startswith(".") else "    " + line)

    def text(self):
        return "\n".join(self.l) + "\n"


def vr(b, n=4, p="v"):
    return f"{p}[{b}:{b+n-1}]"


def ar(b, n=4):
    return vr(b, n, "a")


def srd(a, d, lo, nbytes, add=None):
    if add is None:
        a(f"s_mov_b32 s{d}, s{lo}\ns_mov_b32 s{d+1}, s{lo+1}")
    else:
        a(f"s_add_u32 s{d}, s{lo}, {add}\ns_addc_u32 s{d+1}, s{lo+1}, 0")
    a(f"s_mov_b32 s{d+2}, {nbytes}\ns_mov_b32 s{d+3}, 0x00020000")


def sq(d):
    return f"s[{d}:{d+3}]"


def mfma(d, a_, b, c):
    return f"v_mfma_f32_16x16x32_bf16 {d}, {a_}, {b}, {c}"


def stamp(a, i):
    if STAMP:
        a(f"""s_memtime s[98:99]
        s_waitcnt lgkmcnt(0)
        v_writelane_b32 v38, s98, {i}
        s_memrealtime s[98:99]
        s_waitcnt lgkmcnt(0)
        v_writelane_b32 v39, s98, {i}""")


SLOT = 24576
LDS_K, LDS_V, LDS_X = 0, 3 * SLOT, 6 * SLOT
LDS_W1 = 2 * SLOT
LDS_FLAG = LDS_X + 12288
STG = 36864
LDS_WOFF = 16384

S_XN, S_WQ, S_W1, S_K, S_V, S_H, S_O, S_MISC = 4, 8, 12, 16, 20, 24, 28, 32
S_HEAD, S_QB, S_WAVE, S_HOOK = 36, 37, 38, 39
S_RD, S_DMA, S_SO0, S_SO1, S_CNT, S_T0, S_T1, S_BOFF = 40, 41, 42, 43, 44, 45, 46, 47
S_W3072, S_SV0, S_SV1, S_PASS, S_RD1, S_DMA1, S_SW0, S_SW1 = 48, 49, 50, 51, 52, 53, 54, 55
S_C0, S_C1, S_M0, S_KC = 56, 57, 58, 59
P_K, P_V, P_WQ, P_WO, P_W1, P_B1, P_W2, P_B2, P_OUT, P_DBG, P_WS, P_X = 60, 62, 64, 66, 68, 70, 72, 74, 76, 78, 80, 82
S_X, S_WF, S_FL = 84, 88, 92
S_RS, S_RO = 96, 97
S_NONCE, S_HS = 100, 101
S_RK, S_DV, S_DKM, S_DVM = S_RD1, S_DMA1, S_DMA, S_BOFF
S_PT, S_OUT, S_B2 = 4, 8, 12
S_J, S_MB, S_NB, S_OO, S_WO, S_WO4, S_R3, S_DO, S_DW, S_LO, S_LW, S_TILE, S_WS0, S_PO = 40, 41, 42, 43, 47, 48, 49, 50, 52, 53, 54, 55, 56, 57

V_L, V_KA, V_VA, V_KB, V_VB, V_DK, V_DV = 2, 6, 8, 12, 14, 18, 19
V_F2 = 20
V_RD, V_RR = 32, 33
V_ZERO, V_ONE = 36, 37
V_NM = 40
V_L4, V_L128 = 62, 63
V_Q, V_S, V_P = 64, 128, 192
A_RING, A_Q = 192, 224
P1_ACC, P1_H, P1_RING, P1_B = 64, 0, 48, 88
V1_WA, V1_FA, V1_WB, V1_FB, V1_DW, V1_DF, V1_X = 6, 8, 12, 14, 20, 21, 22
V_RB, V_RA, V_DH, V_DO, V_RB0, V_RA0, V_OO, V_BO, V_PO, V_FV = 6, 7, 12, 14, 16, 17, 18, 19, 32, 33
V_X, V_B2, FR = 64, 74, 96
ACC_S, ACC_G = 0, 80


X_RINGV = os.environ.get("RINGV")
X_QV = os.environ.get("QV")
X_NOCHAIN = os.environ.get("NOCHAIN")


def q_reg(s, t):
    i = 4 * s + t
    if X_QV:
        return vr(V_Q + 4 * (i % 16))
    return vr(V_Q + 4 * i) if i < 16 else ar(A_Q + 4 * (i - 16))


def s_reg(u, t):
    return V_S + 4 * (4 * u + t)


def p_reg(par, ch, t):
    return V_P + 32 * par + 16 * ch + 4 * t


def code_prefetch(a, tag, first, last, sreg, vdst, one=False):
    a(f"""
    s_getpc_b64 s[{sreg}:{sreg+1}]
    L_pc{tag}:
    s_add_u32 s{sreg}, s{sreg}, {first}-L_pc{tag}
    s_addc_u32 s{sreg+1}, s{sreg+1}, 0
    s_mov_b32 s{sreg+2}, {last}-{first}
    s_mov_b32 s{sreg+3}, 0x00020000
    """)
    if one:
        a(f"s_lshl_b32 s{S_T0}, s{S_WAVE}, 13\nbuffer_load_dword v{vdst}, v{V_L128}, {sq(sreg)}, s{S_T0} offen")
        return
    a(f"""
    s_mov_b32 s{S_T0}, 8192
    s_mov_b32 s{S_T1}, 16384
    buffer_load_dword v{vdst}, v{V_L128}, {sq(sreg)}, 0 offen
    buffer_load_dword v{vdst+1}, v{V_L128}, {sq(sreg)}, s{S_T0} offen
    buffer_load_dword v{vdst+2}, v{V_L128}, {sq(sreg)}, s{S_T1} offen
    """)


def half_lanes(a, ins):
    a("s_mov_b32 exec_hi, 0")
    a(ins)
    a("s_mov_b32 exec_hi, -1")


def wait_counts(seq2, period, waits):
    cnt = {}
    for k, wt in waits.items():
        last = max(tm for tm, kk in seq2 if kk == k and tm < wt)
        cnt[k] = (sum(1 for tm, kk in seq2 if last < tm < wt), wt - last)
    return cnt


DMA_GAP = [3, 19, 35, 51, 59, 67, 93, 109, 125, 141, 149, 157]


AUX_RD, AUX_ST, AUX_DMA = (26, 27), 53, 11


def build_schedule():
    N = 192
    G = [dict(lds=None, exp=None, valu=[], dma=None, wait=None) for _ in range(N)]
    for g in range(24):
        pos = 0
        fk = (g + 2) % 24
        if fk < 12:
            for k in range(2):
                G[8 * g + pos]["lds"] = (fk, k)
                pos += 1
        fv = g + 3
        if 12 <= fv < 24:
            for k in range(4):
                G[8 * g + pos]["lds"] = (fv, k)
                pos += 1
    for i in range(12):
        G[DMA_GAP[i]]["dma"] = i
    for f in range(24):
        G[(8 * f - 1) % N]["wait"] = f
    for k in range(2):
        G[AUX_RD[k]]["lds"] = (24, k)
    G[AUX_ST]["dma"] = 12
    G[AUX_DMA]["dma"] = 13
    free = [i for i in range(N) if G[i]["lds"] is None and G[i]["dma"] is None]
    free2 = free + [N + x for x in free]
    seq = [(u, t, r) for u in range(4) for t in range(4) for r in range(4)]
    start = [k for k, x in enumerate(free2) if x >= 24][0]
    etime = {}
    k = float(start)
    step = len(free) / 64.0
    for e, (u, t, r) in enumerate(seq):
        kk = int(start + e * step)
        ready = 24 * u + 16 + 2 * t + 1 + 4
        while free2[kk] < ready or G[free2[kk] % N]["exp"] is not None:
            kk += 1
        tm = free2[kk]
        G[tm % N]["exp"] = ("prev" if tm >= N else "cur", u, t, r)
        etime[(u, t, r)] = tm
    cap = [0 if (G[i]["dma"] is not None or G[i]["exp"] is not None) else (1 if G[i]["lds"] is not None else 2) for i in range(N)]
    if os.environ.get("CAP1"):
        for i in range(N):
            if G[i]["lds"] is not None and G[(i + 1) % N]["lds"] is not None:
                cap[i] = 0
    if os.environ.get("CAP2"):
        for i in range(N):
            if G[i]["lds"] is not None and G[i - 1]["lds"] is not None:
                cap[i] = 0
    ops = []
    for (u, t, r) in seq:
        ops.append((etime[(u, t, r)] + 1, "add", u, t, r))
        if r & 1:
            ops.append((etime[(u, t, r)] + 1, "cvt", u, t, r >> 1))
    ops.sort(key=lambda o: (o[0], o[1] == "add"))
    used = [0] * N
    for o in ops:
        tm = o[0]
        while used[tm % N] >= cap[tm % N]:
            tm += 1
        assert tm < N + 24 * o[2] + 2 * o[3], (o, tm)
        assert tm < N + 92
        used[tm % N] += 1
        G[tm % N]["valu"].append(("prev" if tm >= N else "cur",) + o[1:])
    return G, [cap[i] - used[i] for i in range(N)]


def att_counts(G, nok=False, aux=False):
    seq = [(rep * 192 + i, G[i]["lds"][0]) for rep in range(2) for i in range(192)
           if G[i]["lds"] is not None and not (nok and rep == 1 and G[i]["lds"][0] < 12) and (aux or G[i]["lds"][0] != 24)]
    ks = range(12, 24) if nok else range(24)
    c = wait_counts(seq, 192, {f: 192 + 8 * f - 1 for f in ks})
    assert all(v[0] <= 15 for v in c.values()), c
    return {k: v[0] for k, v in c.items()}


def soft(kind, which, u, t, x, par_cur):
    par = par_cur if which == "cur" else 1 - par_cur
    s = s_reg(u, t)
    if kind == "exp":
        return f"v_exp_f32 v{s+x}, v{s+x}"
    if kind == "add":
        return f"v_add_f32 v{V_L+t}, v{s+x}, v{V_L+t}"
    return f"v_cvt_pk_bf16_f32 v{p_reg(par, u >> 1, t) + 2*(u&1) + x}, v{s+2*x}, v{s+2*x+1}"


def ring(grp, k):
    return A_RING + 8 * (grp % 4) + 4 * k


def rr(b, n=4):
    return vr(b, n) if X_RINGV else ar(b, n)


def k_read(grp, k):
    u, s = grp // 3, 2 * (grp % 3) + k
    return f"ds_read_b128 {rr(ring(grp, k))}, v{V_KA+k} offset:{2*u*3072 + (s>>1)*1024}"


def v_read(grp, k):
    dt, ch, part = grp - 12, k >> 1, k & 1
    return f"ds_read_b64_tr_b16 {rr(ring(grp, ch) + 2*part, 2)}, v{V_VA+(dt&3)} offset:{(4*ch+2*part)*3072 + (dt>>2)*1024}"


def qk_mfma(grp, p, first_c):
    if X_NOCHAIN:
        p = 2 * (p & 3) + (p >> 2)
    u, s, t = grp // 3, 2 * (grp % 3) + (p & 1), p >> 1
    c = first_c(t) if s == 0 else vr(s_reg(u, t))
    return mfma(vr(s_reg(u, t)), rr(ring(grp, p & 1)), q_reg(s, t), c)


def gen_body(a, G, spare, par, tail=False, tailq=None, lab=""):
    cnt = att_counts(G, nok=tail, aux=(lab == "a"))
    ev, es, sp = {}, {}, list(spare)

    def put_v(lo, hi, ins):
        for i in range(lo, hi):
            if sp[i] > 0:
                sp[i] -= 1
                ev.setdefault(i, []).append(ins)
                return
        raise AssertionError(ins)

    def put_s(lo, hi, ins):
        for i in range(lo, hi):
            if G[i]["lds"] is None and G[i]["dma"] is None and G[i]["wait"] is None and i not in es:
                es[i] = ins
                return i
        raise AssertionError(ins)
    if not tail:
        for i in range(12):
            base = S_DKM if i < 6 else S_DVM
            d = i % 6
            assert G[DMA_GAP[i] - 1]["lds"] is None and G[DMA_GAP[i] - 1]["wait"] is None
            es[DMA_GAP[i] - 1] = f"s_add_u32 m0, s{base}, {(d//3)*12288 + (d%3)*896}"
        if lab == "b":
            es[AUX_DMA - 1] = f"s_add_u32 m0, s{S_W3072}, {LDS_X}"
            put_s(12, 18, f"s_add_u32 s{S_RS}, s{S_RS}, 128")
            i = put_s(20, 34, f"s_cmp_le_u32 s{S_CNT}, 12")
            put_s(i + 1, i + 3, f"s_cselect_b32 s{S_MISC+2}, 0, s{S_MISC+2}")
        else:
            put_s(54, 58, f"s_add_u32 s{S_RO}, s{S_RO}, 4096")
            i = put_s(60, 64, f"s_cmp_gt_u32 s{S_CNT}, 11")
            put_s(i + 1, i + 3, f"s_cselect_b32 s{S_WF+2}, {WF_BYTES}, 0")
        es[42] = f"s_cmp_eq_u32 s{S_CNT}, s{S_HOOK}\ns_cbranch_scc1 L_hook{lab}\nL_hret{lab}:"
        i = 68
        for x in (f"s_add_u32 s{S_SO0}, s{S_SO0}, {SLOT}", f"s_add_u32 s{S_SO1}, s{S_SO1}, {SLOT}",
                  f"s_sub_u32 s{S_CNT}, s{S_CNT}, 1",
                  f"s_mov_b32 s{S_T1}, s{S_RD}", f"s_mov_b32 s{S_RD}, s{S_RK}", f"s_mov_b32 s{S_RK}, s{S_DV}", f"s_mov_b32 s{S_DV}, s{S_T1}",
                  f"s_add_u32 s{S_DKM}, s{S_RD}, s{S_W3072}"):
            i = put_s(i, 150, x) + 1
        for j in range(2):
            put_v(max(i, 80), 172, f"v_add_u32 v{V_KA+j}, s{S_RK}, v{V_KB+j}")
        for j in range(4):
            put_v(0, 66, f"v_add_u32 v{V_VA+j}, s{S_RD}, v{V_VB+j}")
        i = 158
        for x in (f"s_add_u32 s{S_SV0}, s{S_SV0}, {SLOT}", f"s_add_u32 s{S_SV1}, s{S_SV1}, {SLOT}", f"s_add_u32 s{S_DVM}, s{S_DV}, s{S_M0}"):
            es.setdefault(169, "")
            es.setdefault(170, "")
            i = put_s(i, 184, x) + 1
        es[169] = f"s_waitcnt vmcnt({11 if lab == 'b' else 12}) lgkmcnt(0)"
        es[170] = "s_barrier"
        put_s(186, 191, f"s_cmp_lg_u32 s{S_CNT}, 0")
    for i in range(192):
        g = G[i]
        grp, p = i // 8, i % 8
        if grp < 12:
            if not tail:
                a(qk_mfma(grp, p, lambda t: vr(V_NM + 4 * t)))
        else:
            pp = 2 * (p & 3) + (p >> 2) if X_NOCHAIN else p
            o = ar(4 * (4 * (grp - 12) + (pp >> 1)))
            a(mfma(o, rr(ring(grp, pp & 1)), vr(p_reg(1 - par, pp & 1, pp >> 1)), o))
        if g["wait"] is not None:
            f = g["wait"]
            if (tail and 12 <= f < 24) or (not tail and f not in (22, 23)):
                a("s_waitcnt lgkmcnt(%d)" % cnt[f])
        elif i in es:
            a(es[i])
        if g["lds"] is not None and not os.environ.get("NOLDS"):
            f, k = g["lds"]
            if f == 24:
                if lab == "a":
                    a(f"ds_read_b64_tr_b16 {vr(28+2*k,2)}, v{V_RR} offset:{k*6144}")
            elif f >= 12:
                if not (tail and f < 15):
                    a(v_read(f, k))
            elif not tail:
                a(k_read(f, k))
        if g["dma"] is not None and not tail and not os.environ.get("NODMA"):
            d = g["dma"]
            if d == 12:
                if lab == "a":
                    a(f"buffer_store_dwordx4 v[28:31], v1, {sq(S_WF)}, s{S_RO} offen sc1")
            elif d == 13:
                if lab == "b":
                    a(f"buffer_load_dwordx4 v{V_RD}, {sq(S_MISC)}, s{S_RS} offen lds")
            elif d < 6:
                a(f"buffer_load_dwordx4 v{V_DK}, {sq(S_K)}, s{S_SO0 + d//3} offen offset:{(d%3)*128} lds")
            else:
                d -= 6
                a(f"buffer_load_dwordx4 v{V_DV}, {sq(S_V)}, s{S_SV0 + d//3} offen offset:{(d%3)*128} lds")
        if g["exp"] is not None and not (tail and g["exp"][0] == "cur"):
            w, u, t, r = g["exp"]
            a(soft("exp", w, u, t, r, par))
            if tail and grp < 12:
                a("s_nop 0")
        for (w, kind, u, t, x) in g["valu"]:
            if not (tail and w == "cur") and not os.environ.get("NOVALU"):
                a(soft(kind, w, u, t, x, par))
        for ins in ev.get(i, []):
            a(ins)
        if tail and i == 95:
            a("s_nop 1")
        if tail and i >= 96:
            qd, qv = tailq
            if g["lds"] is not None and g["lds"][0] >= 12:
                if qv:
                    a(qv.pop(0))
            elif qd:
                a(qd.pop(0))
    if tail:
        assert not tailq[0] and not tailq[1], tailq


def p1_acc(f, t):
    if f < 12:
        return vr(P1_ACC + 8 * (4 * (f >> 1) + t) + 4 * (f & 1))
    return ar(P1_H + 4 * (4 * (f - 12) + t))


def p1_read(f, k):
    ks, part = k >> 1, k & 1
    dst = ar(P1_RING + 8 * (f % 5) + 4 * ks + 2 * part, 2)
    if f < 12:
        s, half = f >> 1, f & 1
        return f"ds_read_b64_tr_b16 {dst}, v{V1_WA+(s&1)} offset:{ks*4*3072 + (s>>1)*1024 + part*512 + half*8}"
    return f"ds_read_b64_tr_b16 {dst}, v{V1_FA+f-12} offset:{ks*4096 + part*512}"


def gen_p1_stage(a, sp):
    slots = {g: [] for g in range(15)}
    pend = [(f, k) for f in range(2, 15) for k in range(4)]
    g = 0
    while pend:
        while pend and len(slots[g]) < 6 and g >= pend[0][0] - 4:
            slots[g].append(pend.pop(0))
        g += 1
    assert g <= 11, g
    slots[13] = [(0, k) for k in range(4)]
    slots[14] = [(1, k) for k in range(4)]
    seq = [(rep * 120 + 8 * gg + p, f) for rep in range(2) for gg in range(15) for p, (f, k) in enumerate(slots[gg])]
    cnt = wait_counts(seq, 120, {f: 120 + 8 * f - 1 for f in range(15)})
    assert all(c <= 15 and d >= 8 for c, d in cnt.values()), cnt
    ex = {}

    def put(grp, p, ins):
        assert p >= len(slots[grp]), (grp, p)
        ex.setdefault((grp, p), []).append(ins)
    for j in range(8):
        ks, t = j >> 2, j & 3
        put(j // 2, 6 + j % 2, f"buffer_load_dwordx4 {ar(P1_B + 32*(1-sp) + 16*ks + 4*t)}, v{V1_X+t}, {sq(S_XN)}, s{S_BOFF} offen offset:{ks*1024} sc1")
    for d in range(8):
        grp, p = 4 + d // 2, 4 + 2 * (d % 2)
        if d < 6:
            put(grp, p, f"s_add_u32 m0, s{S_DMA}, {LDS_V + (d//3)*12288 + (d%3)*896}")
            put(grp, p + 1, f"buffer_load_dwordx4 v{V1_DW}, {sq(S_WQ)}, s{S_SO0 + d//3} offen offset:{(d%3)*128} lds")
        else:
            put(grp, p, f"s_add_u32 m0, s{S_DMA1}, {LDS_W1 + (d-6)*4096}")
            put(grp, p + 1, f"buffer_load_dwordx4 v{V1_DF}, {sq(S_W1)}, s{S_SW0 + d-6} offen lds")
    nv = 8
    if sp == 0:
        for d in range(3):
            grp, p = 8 + d // 2, 4 + 2 * (d % 2)
            put(grp, p, f"s_add_u32 m0, s{S_C0}, {d*896}")
            put(grp, p + 1, f"buffer_load_dwordx4 v{V_DK}, {sq(S_K)}, s{S_SV0} offen offset:{d*128} lds")
        put(9, 6, f"buffer_load_dword v47, v46, {sq(S_O)}, s{S_M0} offen")
        put(10, 4, f"s_mov_b32 s{S_SV0}, s{S_SV1}\ns_add_u32 s{S_SV1}, s{S_SV1}, 12288\ns_add_u32 s{S_M0}, s{S_M0}, s{S_HS}")
        put(10, 5, f"s_mov_b32 s{S_C0}, s{S_C1}\ns_add_u32 s{S_C1}, s{S_C1}, 12288\ns_mov_b32 s{S_K+2}, 786432")
        put(10, 6, f"s_cmp_eq_u32 s{S_CNT}, 1\ns_cselect_b32 s{S_XN+2}, 0, s{S_XN+2}")
        nv = 12
    else:
        put(10, 4, f"s_sub_u32 s{S_CNT}, s{S_CNT}, 1")
    put(11, 0, f"s_add_u32 s{S_DMA}, s{S_RD}, s{S_W3072}\ns_add_u32 s{S_RD}, s{S_RD}, {SLOT}")
    put(11, 1, f"s_cmp_eq_u32 s{S_RD}, {3*SLOT}\ns_cselect_b32 s{S_RD}, 0, s{S_RD}")
    put(11, 2, f"s_lshl_b32 s{S_T0}, s{S_WAVE}, 10\ns_add_u32 s{S_DMA1}, s{S_RD1}, s{S_T0}\ns_add_u32 s{S_RD1}, s{S_RD1}, 8192")
    put(11, 3, f"s_cmp_eq_u32 s{S_RD1}, {3*8192}\ns_cselect_b32 s{S_RD1}, 0, s{S_RD1}")
    put(11, 4, f"s_add_u32 s{S_SO0}, s{S_SO0}, {64*12288}\nv_add_u32 v{V1_WA}, s{S_RD}, v{V1_WB}\nv_add_u32 v{V1_WA+1}, s{S_RD}, v{V1_WB+1}")
    put(11, 5, f"s_add_u32 s{S_SO1}, s{S_SO1}, {64*12288}\nv_add_u32 v{V1_FA}, s{S_RD1}, v{V1_FB}\nv_add_u32 v{V1_FA+1}, s{S_RD1}, v{V1_FB+1}")
    put(11, 6, f"s_add_u32 s{S_BOFF}, s{S_BOFF}, 2048\nv_add_u32 v{V1_FA+2}, s{S_RD1}, v{V1_FB+2}")
    put(12, 0, f"s_add_u32 s{S_SW0}, s{S_SW0}, {64*3072}")
    put(12, 1, f"s_add_u32 s{S_SW1}, s{S_SW1}, {64*3072}")
    put(12, 4, "s_waitcnt vmcnt(16) lgkmcnt(0)")
    put(12, 5, "s_barrier")
    if sp == 1:
        put(14, 5, f"s_cmp_lg_u32 s{S_CNT}, 0")
    for i in range(120):
        grp, p = i // 8, i % 8
        t, ks = p >> 1, p & 1
        acc = p1_acc(grp, t)
        a(mfma(acc, ar(P1_RING + 8 * (grp % 5) + 4 * ks), ar(P1_B + 32 * sp + 16 * ks + 4 * t), acc))
        if p < len(slots[grp]):
            a(p1_read(*slots[grp][p]))
        if p == 7:
            f = (grp + 1) % 15
            w = [f"vmcnt({nv})"] if f == 0 else []
            if f not in (13, 14):
                w.append(f"lgkmcnt({cnt[f][0]})")
            if w:
                a("s_waitcnt " + " ".join(w))
        for x in ex.get((grp, p), []):
            a(x)


def dma_tile(a, voff, srdreg, so0, so1, sbase, lds_const, n=6):
    for d in range(n):
        a(f"s_add_u32 m0, s{sbase}, {lds_const + (d//3)*12288 + (d%3)*896}\ns_nop 0")
        a(f"buffer_load_dwordx4 v{voff}, {sq(srdreg)}, s{so0 if d < 3 else so1} offen offset:{(d%3)*128} lds")


def gen_ln_body(a):
    R, U, T, Q, RO = 64, 96, 86, 136, 144
    for i in range(5):
        for j in range(4):
            r, d = R + 4 * i + j, U + 8 * i + 2 * j
            a(f"v_lshlrev_b32 v{d}, 16, v{r}\nv_and_b32 v{d+1}, 0xffff0000, v{r}")
    stamp(a, 19)
    for k in range(4):
        a(f"v_add_f32 v{T+k}, v{U+k}, v{U+4+k}")
    for e in range(8, 40):
        a(f"v_add_f32 v{T+e%4}, v{U+e}, v{T+e%4}")
    a(f"v_add_f32 v{T}, v{T}, v{T+1}\nv_add_f32 v{T+2}, v{T+2}, v{T+3}\nv_add_f32 v{T}, v{T}, v{T+2}")
    for sh in (8, 4, 2, 1):
        a(f"s_nop 1\nv_add_f32 v{T}, v{T}, v{T} row_ror:{sh}")
    a(f"v_mul_f32 v{T}, {fh(1/640)}, v{T}")
    for e in range(40):
        t = 140 + e % 4
        a(f"v_sub_f32 v{t}, v{U+e}, v{T}")
        a(f"v_mul_f32 v{Q+e}, v{t}, v{t}" if e < 4 else f"v_fmac_f32 v{Q+e%4}, v{t}, v{t}")
    a(f"v_add_f32 v{Q}, v{Q}, v{Q+1}\nv_add_f32 v{Q+2}, v{Q+2}, v{Q+3}\nv_add_f32 v{Q}, v{Q}, v{Q+2}")
    for sh in (8, 4, 2, 1):
        a(f"s_nop 1\nv_add_f32 v{Q}, v{Q}, v{Q} row_ror:{sh}")
    a(f"""
    v_mul_f32 v{Q}, {fh(1/640)}, v{Q}
    v_cvt_pk_bf16_f32 v{T+1}, v{T}, v{Q}
    v_lshlrev_b32 v{T}, 16, v{T+1}
    v_and_b32 v{Q}, 0xffff0000, v{T+1}
    v_add_f32 v{Q}, {fh(1e-5)}, v{Q}
    v_cvt_pk_bf16_f32 v{Q}, v{Q}, v{Q}
    v_and_b32 v{Q}, 0xffff0000, v{Q}
    v_sqrt_f32 v{Q}, v{Q}
    s_nop 0
    v_cvt_pk_bf16_f32 v{Q}, v{Q}, v{Q}
    v_and_b32 v{Q}, 0xffff0000, v{Q}
    v_rcp_f32 v{Q}, v{Q}
    s_mov_b32 s{S_T0}, 0
    """)
    for i in range(5):
        for j in range(4):
            e = U + 8 * i + 2 * j
            a(f"""
            v_sub_f32 v{e}, v{e}, v{T}
            v_sub_f32 v{e+1}, v{e+1}, v{T}
            v_cvt_pk_bf16_f32 v{e}, v{e}, v{e+1}
            v_and_b32 v{e+1}, 0xffff0000, v{e}
            v_lshlrev_b32 v{e}, 16, v{e}
            v_mul_f32 v{e}, v{e}, v{Q}
            v_mul_f32 v{e+1}, v{e+1}, v{Q}
            v_cvt_pk_bf16_f32 v{RO+4*i+j}, v{e}, v{e+1}
            """)
        a(f"buffer_store_dwordx4 {vr(RO+4*i)}, v84, {sq(S_MISC)}, s{S_T0} offen sc1")
        a(f"s_add_u32 s{S_T0}, s{S_T0}, 4096")


def dma3(k, bsrd, bv):
    if k < 4:
        r, ks = k >> 1, k & 1
        pre = [f"s_add_u32 m0, s{S_DO}, {r*2048}"] if ks == 0 else []
        return pre, f"buffer_load_dwordx4 v{bv+r}, {sq(bsrd)}, s{S_OO} offen offset:{ks*1024} sc1 lds"
    i = k - 4
    if i < 4:
        pre = [f"s_mov_b32 m0, s{S_DW}"] if i == 0 else []
        return pre, f"buffer_load_dwordx4 v1, {sq(S_WF)}, s{S_WO} offen offset:{i*1024} sc1 lds"
    return [f"s_add_u32 m0, s{S_DW}, 4096"], f"buffer_load_dwordx4 v1, {sq(S_WF)}, s{S_WO4} offen sc1 lds"


def fr3(par, ks, n):
    return FR + 72 * par + 36 * ks + 4 * n


def rd3(par, ks, n):
    if n < 4:
        return f"ds_read_b128 {vr(fr3(par, ks, n))}, v{V_RB} offset:{(2*n+ks)*1024}"
    return f"ds_read_b128 {vr(fr3(par, ks, n))}, v{V_RA} offset:{(10*ks+n-4)*1024}"


RD3 = [(ks, n) for n in (0, 4, 1, 2, 3, 5, 6, 7, 8) for ks in range(2)]
ADV3 = [f"s_add_u32 s{S_OO}, s{S_OO}, 2048", f"s_add_u32 s{S_WO}, s{S_WO}, {2*40960}", f"s_add_u32 s{S_WO4}, s{S_WO4}, {2*40960}"]


def stage3(a, par, accb, bsrd, bv, wait, hook, last):
    ex = {3: f"s_add_u32 s{S_DO}, s{S_R3}, s{S_LO}\ns_add_u32 s{S_DW}, s{S_R3}, s{S_LW}\ns_add_u32 s{S_R3}, s{S_R3}, {STG}",
          4: f"s_cmp_eq_u32 s{S_R3}, {4*STG}\ns_cselect_b32 s{S_R3}, 0, s{S_R3}",
          5: f"v_add_u32 v{V_RB}, s{S_R3}, v{V_RB0}\nv_add_u32 v{V_RA}, s{S_R3}, v{V_RA0}",
          6: wait, 7: "s_waitcnt lgkmcnt(0)\ns_barrier", 8: hook}
    g = 9
    for k in range(9):
        pre, ld = dma3(k, bsrd, bv)
        ex[g] = rd3(1 - par, *RD3[2 * k])
        ex[g + 1] = rd3(1 - par, *RD3[2 * k + 1]) + "".join("\n" + x for x in pre)
        ex[g + 2] = ld
        g += 3
    ex[36] = "\n".join(ADV3)
    ex[37] = f"s_sub_u32 s{S_CNT}, s{S_CNT}, 1"
    ex[39] = "s_waitcnt lgkmcnt(6)" + (f"\ns_cmp_lg_u32 s{S_CNT}, 0" if last else "")
    for g in range(40):
        i, t, ks = g // 8, (g % 8) >> 1, g & 1
        acc = ar(accb + 4 * (4 * i + t))
        a(mfma(acc, vr(fr3(par, ks, 4 + i)), vr(fr3(par, ks, t)), acc))
        if ex.get(g, "").strip():
            a(ex[g])


def pack_store(a, accb, region):
    a(f"""
    s_lshl_b32 s{S_T0}, s{S_TILE}, 2
    s_add_u32 s{S_T0}, s{S_T0}, s{S_WAVE}
    s_lshl_b32 s{S_T0}, s{S_T0}, 2
    s_add_u32 s{S_T0}, s{S_T0}, s{S_J}
    s_mul_i32 s{S_T0}, s{S_T0}, 10240
    s_add_u32 s{S_T0}, s{S_T0}, {region}
    """)
    for t in range(4):
        b, o = 40, 96 + 12 * t
        for i in range(5):
            for r in range(4):
                a(f"v_accvgpr_read_b32 v{b+4*i+r}, a{accb+4*(4*i+t)+r}")
        for e in range(10):
            a(f"v_cvt_pk_bf16_f32 v{o+e}, v{b+2*e}, v{b+2*e+1}")
        a(f"""
        buffer_store_dwordx4 {vr(o)}, v1, {sq(S_PT)}, s{S_T0} offen sc1
        buffer_store_dwordx4 {vr(o+4)}, v1, {sq(S_PT)}, s{S_T0} offen offset:1024 sc1
        buffer_store_dwordx2 {vr(o+8,2)}, v{V_PO}, {sq(S_PT)}, s{S_T0} offen offset:2048 sc1
        s_add_u32 s{S_T0}, s{S_T0}, 2560
        """)


def part_loads(a, region, base):
    a(f"""
    s_lshl_b32 s{S_T0}, s{S_TILE}, 2
    s_add_u32 s{S_T0}, s{S_T0}, s{S_J}
    s_mul_i32 s{S_T0}, s{S_T0}, 40960
    s_mul_i32 s{S_T1}, s{S_WAVE}, 2560
    s_add_u32 s{S_T0}, s{S_T0}, s{S_T1}
    s_add_u32 s{S_T0}, s{S_T0}, {region}
    """)
    for src in range(4):
        o = base + 12 * src
        a(f"""
        buffer_load_dwordx4 {vr(o)}, v1, {sq(S_PT)}, s{S_T0} offen sc1
        buffer_load_dwordx4 {vr(o+4)}, v1, {sq(S_PT)}, s{S_T0} offen offset:1024 sc1
        buffer_load_dwordx2 {vr(o+8,2)}, v{V_PO}, {sq(S_PT)}, s{S_T0} offen offset:2048 sc1
        s_add_u32 s{S_T0}, s{S_T0}, 10240
        """)


def part_sum(a, base, dst, younger, tmp):
    for src in range(4):
        o = base + 12 * src
        a(f"s_waitcnt vmcnt({3*(3-src)+younger})")
        for e in range(10):
            if src == 0:
                a(f"v_lshlrev_b32 v{dst+2*e}, 16, v{o+e}\nv_and_b32 v{dst+1+2*e}, 0xffff0000, v{o+e}")
            else:
                a(f"v_lshlrev_b32 v{tmp}, 16, v{o+e}\nv_and_b32 v{tmp+1}, 0xffff0000, v{o+e}")
                a(f"v_add_f32 v{dst+2*e}, v{tmp}, v{dst+2*e}\nv_add_f32 v{dst+1+2*e}, v{tmp+1}, v{dst+1+2*e}")


def signal(a):
    half_lanes(a, f"buffer_store_dword v{V_ONE}, v{V_L4}, {sq(S_FL)}, s{S_T0} offen sc1")


def swaps(op, src, tmp):
    q = []
    for perm in ("v_permlane32_swap_b32", "v_permlane16_swap_b32"):
        for what in ("v_mov_b32 v{b}, v{l}", perm + " v{l}, v{b}", op + " v{l}, v{l}, v{b}"):
            for t in (0, 2):
                q.append("\n".join(what.format(l=src + tt, b=tmp + tt) for tt in (t, t + 1)))
    return q


def gen_kernel(a):
    G, spare = build_schedule()
    a(f".p2align 8\n.type {KNAME},@function\n{KNAME}:")
    a("s_cmp_ge_u32 s2, 256\ns_cbranch_scc1 L_end")
    stamp(a, 0)
    a(f"""
    s_load_dwordx2 s[{P_X}:{P_X+1}], s[0:1], 0
    s_load_dwordx2 s[{P_WS}:{P_WS+1}], s[0:1], 96
    s_load_dwordx4 s[{P_K}:{P_K+3}], s[0:1], 8
    s_load_dwordx4 s[{P_WQ}:{P_WQ+3}], s[0:1], 24
    s_load_dwordx4 s[{P_W1}:{P_W1+3}], s[0:1], 48
    s_load_dwordx4 s[{P_W2}:{P_W2+3}], s[0:1], 64
    s_load_dwordx4 s[{P_OUT}:{P_OUT+3}], s[0:1], 80
    s_and_b32 s{S_T0}, s2, 7
    s_lshl_b32 s{S_T0}, s{S_T0}, 2
    s_bfe_u32 s{S_T1}, s2, 0x20003
    s_add_u32 s{S_HEAD}, s{S_T0}, s{S_T1}
    s_lshr_b32 s{S_QB}, s2, 5
    s_mov_b32 s{S_PASS}, 0
    v_lshrrev_b32 v85, 4, v0
    v_lshrrev_b32 v1, 6, v0
    v_and_b32 v0, 63, v0
    v_readfirstlane_b32 s{S_WAVE}, v1
    s_lshl_b32 s{S_T0}, s{S_QB}, 8
    s_lshl_b32 s{S_T1}, s{S_HEAD}, 3
    s_add_u32 s{S_T0}, s{S_T0}, s{S_T1}
    v_add_u32 v85, s{S_T0}, v85
    v_and_b32 v31, 15, v0
    v_mul_u32_u24 v86, 1280, v85
    v_lshl_add_u32 v86, v31, 4, v86
    s_waitcnt lgkmcnt(0)
    s_add_u32 s{S_FL}, s{P_WS}, {WS_FLAG}
    s_addc_u32 s{S_FL+1}, s{P_WS+1}, 0
    s_load_dword s{S_NONCE}, s[{S_FL}:{S_FL+1}], {FL_NONCE}
    """)
    srd(a, S_X, P_X, XN_BYTES)
    a(f"s_cmp_ge_u32 s{S_WAVE}, 2\ns_cbranch_scc1 L_restart")
    for i in range(5):
        a(f"buffer_load_dwordx4 {vr(64+4*i)}, v86, {sq(S_X)}, 0 offen offset:{256*i}")
    a(f"""
    L_restart:
    v_lshrrev_b32 v84, 4, v85
    v_mul_u32_u24 v84, 20480, v84
    v_lshrrev_b32 v87, 2, v31
    v_lshl_add_u32 v84, v87, 10, v84
    v_and_b32 v87, 3, v31
    v_lshl_add_u32 v84, v87, 6, v84
    v_bfe_u32 v87, v85, 2, 2
    v_lshl_add_u32 v84, v87, 8, v84
    v_and_b32 v87, 3, v85
    v_lshl_add_u32 v84, v87, 4, v84
    v_and_b32 v26, 7, v0
    v_lshrrev_b32 v27, 3, v0
    v_lshrrev_b32 v28, 4, v0
    v_bfe_u32 v29, v0, 2, 2
    v_and_b32 v30, 3, v0
    v_and_b32 v31, 15, v0
    v_lshlrev_b32 v1, 4, v0
    v_lshlrev_b32 v36, 3, v28
    v_lshlrev_b32 v{V_L4}, 2, v0
    v_lshlrev_b32 v{V_L128}, 7, v0
    s_mul_i32 s{S_W3072}, s{S_WAVE}, 3072
    s_mul_i32 s{S_T0}, s{S_HEAD}, 96
    s_sub_u32 s{S_T1}, 3072, s{S_T0}
    """)
    srd(a, S_MISC, P_B1, f"s{S_T1}", f"s{S_T0}")
    for ft in range(3):
        a(f"buffer_load_dwordx2 {vr(40+2*ft,2)}, v36, {sq(S_MISC)}, 0 offen offset:{32*ft}")
    a(f"s_sub_u32 s{S_T1}, {640*1536*2}, s{S_T0}")
    srd(a, S_W1, P_W1, f"s{S_T1}", f"s{S_T0}")
    a(f"s_mul_i32 s{S_T0}, s{S_HEAD}, 384\ns_sub_u32 s{S_T1}, {640*6144*2}, s{S_T0}")
    srd(a, S_WQ, P_WQ, f"s{S_T1}", f"s{S_T0}")
    a(f"""
    s_mov_b32 s{S_FL+2}, {FLAG_BYTES}
    s_mov_b32 s{S_FL+3}, 0x00020000
    s_lshl_b32 s{S_T0}, s{S_WAVE}, 3
    v_add_u32 v32, s{S_T0}, v27
    v_mul_u32_u24 v33, 12288, v32
    v_bfe_u32 v34, v27, 1, 1
    v_lshlrev_b32 v35, 2, v34
    v_xor_b32 v35, v35, v26
    v_lshl_add_u32 v{V1_DW}, v35, 4, v33
    s_and_b32 s{S_T0}, s{S_WAVE}, 1
    s_lshl_b32 s{S_T0}, s{S_T0}, 2
    v_lshlrev_b32 v35, 1, v34
    v_or_b32 v35, s{S_T0}, v35
    v_xor_b32 v35, v35, v26
    v_mul_u32_u24 v33, 3072, v32
    v_lshl_add_u32 v{V1_DF}, v35, 4, v33
    s_lshl_b32 s{S_DMA1}, s{S_WAVE}, 10
    v_mov_b32 v{V_ZERO}, 0
    s_lshl_b32 s{S_T0}, s{S_PASS}, 1
    s_or_b32 s{S_T0}, s{S_T0}, s{S_WAVE}
    s_cmp_lt_u32 s{S_T0}, 2
    s_cbranch_scc1 L_ln
    """)
    code_prefetch(a, 0, "L_setup", "L_hooka", S_XN, 57)
    a(f"""
    v_mov_b32 v52, v{V1_DW}
    v_mov_b32 v53, v{V1_DF}
    s_mov_b32 s{S_RD}, s{S_W3072}
    s_mov_b32 s{S_RD1}, s{S_DMA1}
    s_mov_b32 s{S_CNT}, s{S_PASS}
    L_pre:
    """)
    for st in range(2):
        a(f"s_mov_b32 s{S_SO0}, {64*st*12288}\ns_mov_b32 s{S_SO1}, {(64*st+32)*12288}")
        a(f"s_mov_b32 s{S_SW0}, {64*st*3072}\ns_mov_b32 s{S_SW1}, {(64*st+32)*3072}")
        dma_tile(a, 52, S_WQ, S_SO0, S_SO1, S_RD, LDS_V + st * SLOT)
        for d in range(2):
            a(f"s_add_u32 m0, s{S_RD1}, {LDS_W1 + st*8192 + d*4096}\ns_nop 0")
            a(f"buffer_load_dwordx4 v53, {sq(S_W1)}, s{S_SW0+d} offen lds")
    a(f"""
    s_cmp_lg_u32 s{S_CNT}, 0
    s_cbranch_scc1 L_predone
    s_mov_b32 s{S_CNT}, 1
    v_subrev_u32 v52, {16*12288}, v52
    v_subrev_u32 v53, {16*3072}, v53
    s_sub_u32 s{S_RD}, s{S_RD}, {2*3072}
    s_sub_u32 s{S_RD1}, s{S_RD1}, 2048
    s_branch L_pre
    L_predone:
    s_cmp_lg_u32 s{S_PASS}, 0
    s_cbranch_scc1 L_setup
    s_lshl_b32 s{S_T0}, s{S_QB}, 4
    s_add_u32 s{S_T0}, s{S_T0}, 128
    v_lshrrev_b32 v52, 2, v0
    v_add_u32 v52, s{S_T0}, v52
    v_mul_u32_u24 v53, 3072, v52
    v_lshlrev_b32 v52, 2, v53
    v_lshl_add_u32 v52, v30, 7, v52
    v_mul_u32_u24 v54, 40, v30
    v_add_u32 v53, v54, v53
    s_cmp_eq_u32 s{S_WAVE}, 2
    s_cbranch_scc1 L_pf2
    buffer_load_dword v56, v52, {sq(S_WQ)}, 0 offen
    s_branch L_pf3
    L_pf2:
    buffer_load_dword v56, v53, {sq(S_W1)}, 0 offen
    L_pf3:
    s_barrier
    s_waitcnt vmcnt(0) lgkmcnt(0)
    s_add_u32 s{S_NONCE}, s{S_NONCE}, 1
    s_branch L_setup
    L_ln:
    """)
    srd(a, S_MISC, P_WS, 0)
    a("L_lnrun:")
    gen_ln_body(a)
    a(f"s_cmp_lg_u32 s{S_MISC+2}, 0\ns_mov_b32 s{S_MISC+2}, {XN_BYTES}\ns_cbranch_scc1 L_lnfin\ns_waitcnt vmcnt(8)\ns_branch L_lnrun\nL_lnfin:")
    stamp(a, 20)
    a(f"""
    s_waitcnt vmcnt(0) lgkmcnt(0)
    s_barrier
    s_add_u32 s{S_NONCE}, s{S_NONCE}, 1
    s_cmp_lg_u32 s{S_WAVE}, 0
    s_cbranch_scc1 L_setup
    s_lshl_b32 s{S_T0}, s{S_QB}, 12
    s_lshl_b32 s{S_T1}, s{S_HEAD}, 7
    s_add_u32 s{S_T0}, s{S_T0}, s{S_T1}
    v_mov_b32 v{V_ONE}, s{S_NONCE}
    """)
    signal(a)
    a("L_setup:")
    stamp(a, 1)
    a(f"s_add_u32 s{S_T1}, s{S_QB}, 1\ns_mul_i32 s{S_T1}, s{S_T1}, {16*20480}")
    srd(a, S_XN, P_WS, f"s{S_T1}")
    srd(a, S_WF, P_WS, WF_BYTES, WS_WF)
    srd(a, S_H, P_WS, H_BYTES, WS_H)
    a(f"s_mul_i32 s{S_T0}, s{S_HEAD}, 786432")
    srd(a, S_K, P_K, 0, f"s{S_T0}")
    srd(a, S_V, P_V, 786432, f"s{S_T0}")
    a(f"""
    s_mov_b32 s{S_MISC+2}, {48*40960}
    s_cmp_lt_u32 s2, 192
    s_cselect_b32 s{S_MISC}, s{P_WO}, s{P_W2}
    s_cselect_b32 s{S_MISC+1}, s{P_WO+1}, s{P_W2+1}
    s_cselect_b32 s{S_MISC+2}, {6144*1280}, s{S_MISC+2}
    s_cselect_b32 s{S_T0}, 0, 192
    s_sub_u32 s{S_T0}, s2, s{S_T0}
    s_mul_i32 s{S_RS}, s{S_T0}, 40960
    s_mul_i32 s{S_RO}, s2, 40960
    s_lshl_b32 s{S_T0}, s{S_WAVE}, 10
    s_add_u32 s{S_RO}, s{S_RO}, s{S_T0}
    v_mov_b32 v{V_ONE}, s{S_NONCE}
    s_and_b32 s{S_T0}, s{S_WAVE}, 1
    s_lshl_b32 s{S_T0}, s{S_T0}, 2
    v_mul_u32_u24 v33, 384, v27
    v_add_u32 v33, s{S_W3072}, v33
    v_lshrrev_b32 v34, 1, v27
    v_add_u32 v35, s{S_T0}, v34
    v_xor_b32 v35, v35, v26
    v_lshl_add_u32 v{V_DK}, v35, 4, v33
    v_lshlrev_b32 v35, 1, v34
    v_xor_b32 v35, v35, v26
    v_lshl_add_u32 v{V_DV}, v35, 4, v33
    v_mul_u32_u24 v33, 1280, v32
    v_lshl_add_u32 v{V_RD}, v35, 4, v33
    s_lshl_b32 s{S_T0}, s{S_QB}, 4
    v_lshrrev_b32 v52, 2, v0
    v_add_u32 v52, s{S_T0}, v52
    v_mul_u32_u24 v53, 3072, v52
    v_lshlrev_b32 v52, 2, v53
    v_lshl_add_u32 v52, v30, 7, v52
    v_mul_u32_u24 v54, 40, v30
    v_add_u32 v53, v54, v53
    s_mul_i32 s{S_T0}, s{S_QB}, 48
    v_add_u32 v54, s{S_T0}, v0
    v_lshlrev_b32 v54, 7, v54
    s_mov_b32 s{S_O+3}, 0x00020000
    s_cmp_eq_u32 s{S_WAVE}, 1
    s_cselect_b32 s{S_O}, s{S_W1}, s{S_WQ}
    s_cselect_b32 s{S_O+1}, s{S_W1+1}, s{S_WQ+1}
    s_cselect_b32 s{S_O+2}, s{S_W1+2}, s{S_WQ+2}
    s_cselect_b64 vcc, -1, 0
    s_mov_b32 s{S_HS}, {128*12288}
    s_cselect_b32 s{S_HS}, {128*3072}, s{S_HS}
    v_cndmask_b32 v46, v52, v53, vcc
    s_cmp_eq_u32 s{S_WAVE}, 2
    s_cselect_b32 s{S_O}, s{S_V}, s{S_O}
    s_cselect_b32 s{S_O+1}, s{S_V+1}, s{S_O+1}
    s_cselect_b32 s{S_O+2}, s{S_V+2}, s{S_O+2}
    s_cselect_b64 vcc, -1, 0
    s_cselect_b32 s{S_HS}, 0, s{S_HS}
    v_cndmask_b32 v46, v46, v54, vcc
    s_cmp_eq_u32 s{S_WAVE}, 3
    s_cselect_b32 s{S_O+2}, 0, s{S_O+2}
    s_lshl_b32 s{S_M0}, s{S_HS}, 1
    s_mov_b32 s{S_SV0}, 0
    s_mov_b32 s{S_SV1}, 0
    s_add_u32 s{S_C0}, s{S_W3072}, {LDS_X}
    s_add_u32 s{S_C1}, s{S_W3072}, {LDS_K}
    s_lshl_b32 s{S_T0}, s{S_QB}, 4
    s_lshl_b32 s{S_T1}, s{S_WAVE}, 2
    s_add_u32 s{S_T0}, s{S_T0}, s{S_T1}
    s_mul_i32 s{S_T0}, s{S_T0}, 20480
    v_lshlrev_b32 v33, 8, v29
    v_lshl_add_u32 v33, v28, 6, v33
    v_lshl_add_u32 v33, v30, 4, v33
    v_add_u32 v{V1_X}, s{S_T0}, v33
    v_add_u32 v{V1_X+1}, 20480, v{V1_X}
    v_add_u32 v{V1_X+2}, {2*20480}, v{V1_X}
    v_add_u32 v{V1_X+3}, {3*20480}, v{V1_X}
    s_mov_b32 s{S_SO0}, {128*12288}
    s_mov_b32 s{S_SO1}, {160*12288}
    s_mov_b32 s{S_SW0}, {128*3072}
    s_mov_b32 s{S_SW1}, {160*3072}
    s_mov_b32 s{S_RD}, 0
    s_mov_b32 s{S_RD1}, 0
    s_add_u32 s{S_DMA}, s{S_W3072}, {2*SLOT}
    s_add_u32 s{S_DMA1}, s{S_DMA1}, {2*8192}
    v_mul_u32_u24 v33, 3072, v28
    v_lshl_add_u32 v33, v29, 7, v33
    v_add_u32 v33, {LDS_V}, v33
    v_lshrrev_b32 v34, 1, v29
    v_lshlrev_b32 v35, 2, v34
    v_xor_b32 v35, v35, v30
    v_lshl_add_u32 v{V1_WB}, v35, 4, v33
    v_xor_b32 v{V1_WB+1}, 64, v{V1_WB}
    v_mov_b32 v{V1_WA}, v{V1_WB}
    v_mov_b32 v{V1_WA+1}, v{V1_WB+1}
    v_lshlrev_b32 v33, 10, v28
    v_lshl_add_u32 v33, v29, 7, v33
    v_add_u32 v33, {LDS_W1}, v33
    v_and_b32 v35, 1, v30
    v_lshl_add_u32 v33, v35, 3, v33
    v_lshrrev_b32 v35, 1, v30
    v_lshl_add_u32 v33, v35, 4, v33
    v_and_b32 v35, 1, v28
    v_lshl_add_u32 v35, v35, 1, v34
    v_lshl_add_u32 v{V1_FB}, v35, 5, v33
    v_xor_b32 v{V1_FB+1}, 32, v{V1_FB}
    v_xor_b32 v{V1_FB+2}, 64, v{V1_FB}
    v_mov_b32 v{V1_FA}, v{V1_FB}
    v_mov_b32 v{V1_FA+1}, v{V1_FB+1}
    v_mov_b32 v{V1_FA+2}, v{V1_FB+2}
    v_mov_b32 v48, 0
    v_mov_b32 v49, 0
    v_mov_b32 v50, 0
    v_mov_b32 v51, 0
    s_cmp_eq_u32 s{S_PASS}, 0
    s_cbranch_scc1 L_nw
    s_waitcnt vmcnt(0)
    L_nw:
    """)
    for i in range(12):
        a(f"v_mfma_f32_32x32x16_bf16 {vr(64+16*i,16)}, v[48:51], v[48:51], 0")
    for ft in range(3):
        a(f"""
        v_lshlrev_b32 v52, 16, v{40+2*ft}
        v_and_b32 v53, 0xffff0000, v{40+2*ft}
        v_lshlrev_b32 v54, 16, v{41+2*ft}
        v_and_b32 v55, 0xffff0000, v{41+2*ft}
        """)
        for t in range(4):
            for r in range(4):
                a(f"v_accvgpr_write_b32 a{P1_H+4*(4*ft+t)+r}, v{52+r}")
    a(f"""
    s_or_b32 s{S_T0}, s{S_WAVE}, s{S_PASS}
    s_cmp_lg_u32 s{S_T0}, 0
    s_cbranch_scc1 L_p1go
    s_lshl_b32 s{S_T0}, s{S_QB}, 12
    v_and_b32 v53, {31*128}, v{V_L128}
    L_poll1:
    buffer_load_dword v52, v53, {sq(S_FL)}, s{S_T0} offen sc1
    s_waitcnt vmcnt(0)
    v_cmp_ne_u32 vcc, v52, v{V_ONE}
    s_cbranch_vccnz L_poll1
    L_p1go:
    s_barrier
    """)
    stamp(a, 2)
    for ks in range(2):
        for j in range(4):
            a(f"buffer_load_dwordx4 {ar(P1_B+16*ks+4*j)}, v{V1_X+j}, {sq(S_XN)}, 0 offen offset:{1024*ks} sc1")
    for f in range(2):
        for k in range(4):
            a(p1_read(f, k))
    a(f"s_mov_b32 s{S_BOFF}, 2048\ns_mov_b32 s{S_CNT}, 5\ns_waitcnt vmcnt(0) lgkmcnt(4)")
    stamp(a, 3)
    a(".p2align 6\nL_p1_loop:")
    gen_p1_stage(a, 0)
    gen_p1_stage(a, 1)
    a("s_cbranch_scc1 L_p1_loop\ns_waitcnt vmcnt(0) lgkmcnt(0)\ns_barrier")
    stamp(a, 4)
    dm = []
    for (voff, sr, so, goff, lds) in ((V_DV, S_V, S_SV0, 0, LDS_V), (V_DK, S_K, S_SO0, 2 * SLOT, LDS_K + 2 * SLOT), (V_DV, S_V, S_SV0, SLOT, LDS_V + SLOT)):
        for d in range(6):
            pre = f"s_mov_b32 s{so}, {goff}\ns_mov_b32 s{so+1}, {goff+12288}\n" if d == 0 else ""
            dm.append((pre + f"s_add_u32 m0, s{S_W3072}, {lds + (d//3)*12288 + (d%3)*896}",
                       f"buffer_load_dwordx4 v{voff}, {sq(sr)}, s{so + d//3} offen offset:{(d%3)*128} lds"))
    c = (192 ** -0.5) * math.log2(math.e)
    a(f"s_mov_b32 s{S_C0}, {fh(c)}\ns_mov_b32 s{S_C1}, {fh(c)}")
    for i in range(24):
        b = P1_ACC + 8 * i
        if i < 18:
            a(dm[i][0])
        for j in range(4):
            a(f"v_pk_mul_f32 {vr(b+2*j,2)}, {vr(b+2*j,2)}, s[{S_C0}:{S_C1}]")
        if i < 18:
            a(dm[i][1])
        if i % 2 == 1 and i // 2 + 3 < 12:
            a(f"v_mfma_f32_32x32x16_bf16 {ar(16*(i//2+3),16)}, v[48:51], v[48:51], 0")
        for j in range(4):
            a(f"v_cvt_pk_bf16_f32 v{V_Q+4*i+j}, v{b+2*j}, v{b+2*j+1}")
    for e in range(32):
        a(f"v_accvgpr_write_b32 a{A_Q+e}, v{V_Q+64+e}")
    stamp(a, 21)
    srd(a, S_O, P_WS, O_BYTES, WS_O)
    k0 = -2.0 * math.log2(math.e) * math.sqrt(2 / math.pi)
    k1 = k0 * 0.044715
    a(f"""
    s_mov_b32 s{S_SO0}, {3*SLOT}
    s_mov_b32 s{S_SO1}, {3*SLOT+12288}
    s_mov_b32 s{S_SV0}, {2*SLOT}
    s_mov_b32 s{S_SV1}, {2*SLOT+12288}
    s_lshl_b32 s{S_T0}, s{S_QB}, 4
    s_lshl_b32 s{S_T1}, s{S_WAVE}, 2
    s_add_u32 s{S_T0}, s{S_T0}, s{S_T1}
    s_mul_i32 s{S_T0}, s{S_T0}, {48*1024}
    v_add_u32 v20, s{S_T0}, v1
    v_add_u32 v21, {48*1024}, v20
    v_add_u32 v22, {2*48*1024}, v20
    v_add_u32 v23, {3*48*1024}, v20
    v_mov_b32 v24, {fh(k1)}
    """)
    stamp(a, 22)
    for ft in range(3):
        a(f"""
        s_mul_i32 s{S_T0}, s{S_HEAD}, 3
        s_add_u32 s{S_T0}, s{S_T0}, {ft}
        s_lshr_b32 s{S_T1}, s{S_T0}, 1
        s_lshl_b32 s{S_T1}, s{S_T1}, 10
        s_and_b32 s{S_T0}, s{S_T0}, 1
        s_lshl_b32 s{S_T0}, s{S_T0}, 3
        s_add_u32 s{S_M0}, s{S_T0}, s{S_T1}
        """)
        x, u = 160, 176
        for e in range(16):
            a(f"v_accvgpr_read_b32 v{x+e}, a{P1_H+16*ft+e}")
        a(f"v_mfma_f32_32x32x16_bf16 {ar(16*ft,16)}, v[48:51], v[48:51], 0")
        for tmpl in ("v_mul_f32 v{u}, v{x}, v{x}", "v_fmaak_f32 v{u}, v{u}, v24, " + fh(k0), "v_mul_f32 v{u}, v{u}, v{x}",
                     "v_exp_f32 v{u}, v{u}", "v_add_f32 v{u}, 1.0, v{u}", "v_rcp_f32 v{u}, v{u}", "v_mul_f32 v{x}, v{u}, v{x}"):
            for e in range(16):
                a(tmpl.format(u=u + e, x=x + e))
        for e in range(8):
            a(f"v_cvt_pk_bf16_f32 v{192+8*ft+e}, v{x+2*e}, v{x+2*e+1}")
        for t in range(4):
            a(f"buffer_store_dwordx2 {vr(192+8*ft+2*t,2)}, v{20+t}, {sq(S_H)}, s{S_M0} offen sc1")
    a(f"""
    v_lshrrev_b32 v33, 3, v31
    v_mul_u32_u24 v33, 3072, v33
    v_lshl_add_u32 v33, v26, 7, v33
    v_lshrrev_b32 v34, 1, v31
    v_xor_b32 v34, v34, v28
    v_lshl_add_u32 v{V_KB}, v34, 4, v33
    v_xor_b32 v{V_KB+1}, 64, v{V_KB}
    v_mov_b32 v{V_KA}, v{V_KB}
    v_mov_b32 v{V_KA+1}, v{V_KB+1}
    v_lshrrev_b32 v33, 1, v28
    v_mul_u32_u24 v33, 3072, v33
    v_add_u32 v33, {LDS_V}, v33
    v_and_b32 v34, 1, v28
    v_lshl_add_u32 v34, v34, 2, v29
    v_lshl_add_u32 v33, v34, 7, v33
    v_and_b32 v35, 1, v30
    v_lshl_add_u32 v33, v35, 3, v33
    v_lshrrev_b32 v35, 1, v30
    v_lshl_add_u32 v33, v35, 4, v33
    v_lshrrev_b32 v34, 1, v34
    v_lshl_add_u32 v{V_VB}, v34, 5, v33
    v_xor_b32 v{V_VB+1}, 32, v{V_VB}
    v_xor_b32 v{V_VB+2}, 64, v{V_VB}
    v_xor_b32 v{V_VB+3}, 96, v{V_VB}
    v_mov_b32 v34, {LDS_FLAG}
    ds_write_b32 v34, v{V_ZERO}
    s_lshl_b32 s{S_T0}, s{S_WAVE}, 5
    v_xor_b32 v{V_RR}, s{S_T0}, v{V_VB}
    v_add_u32 v{V_RR}, {LDS_X - LDS_V}, v{V_RR}
    s_mov_b32 s{S_KC}, 0
    s_cmp_eq_u32 s{S_PASS}, 0
    s_cselect_b32 s{S_HOOK}, 8, 3
    s_mov_b32 s{S_WF+2}, 0
    s_sub_u32 s{S_RO}, s{S_RO}, 4096
    s_cmp_eq_u32 s{S_PASS}, 0
    """)
    for j in range(4):
        a(f"v_mov_b32 v{V_L+j}, 0\nv_mov_b32 v{20+j}, 0xff800000")
    a("s_cbranch_scc0 L_maxfirst")
    stamp(a, 5)
    a("L_qk0:")
    for g in range(3):
        a(k_read(g, 0) + "\n" + k_read(g, 1))
    for g in range(12):
        a(f"s_waitcnt lgkmcnt({min(4, 2*(11-g))})")
        for p in range(8):
            a(qk_mfma(g, p, lambda t: "0"))
            if p < 2 and g + 3 < 12 and g >= 0:
                pass
        if g + 3 < 12:
            a(k_read(g + 3, 0) + "\n" + k_read(g + 3, 1))
        if g % 3 == 2 and g >= 5:
            u = g // 3 - 1
            for t in range(4):
                s0 = s_reg(u, t)
                a(f"v_max3_f32 v{20+t}, v{20+t}, v{s0}, v{s0+1}\nv_max3_f32 v{20+t}, v{20+t}, v{s0+2}, v{s0+3}")
    a(f"s_waitcnt vmcnt(24)\ns_barrier\ns_cmp_lg_u32 s{S_KC}, 0\nv_add_u32 v{V_KA}, {SLOT}, v{V_KB}\nv_add_u32 v{V_KA+1}, {SLOT}, v{V_KB+1}")
    for t in range(4):
        s0 = s_reg(3, t)
        a(f"v_max3_f32 v{20+t}, v{20+t}, v{s0}, v{s0+1}\nv_max3_f32 v{20+t}, v{20+t}, v{s0+2}, v{s0+3}")
    a("s_cbranch_scc1 L_maxnext")
    for g in range(2):
        a(k_read(g, 0) + "\n" + k_read(g, 1))
    for x in swaps("v_max_f32", 20, 24):
        a(x + "\ns_nop 0")
    a(f"s_cmp_eq_u32 s{S_PASS}, 0\ns_cselect_b32 s{S_T0}, {fh(-OFF)}, 0")
    for t in range(4):
        a(f"v_sub_f32 v{V_NM+4*t}, s{S_T0}, v{20+t}")
    for t in range(4):
        for r in range(1, 4):
            a(f"v_mov_b32 v{V_NM+4*t+r}, v{V_NM+4*t}")
    for u in range(4):
        for t in range(4):
            for j in range(2):
                r = s_reg(u, t) + 2 * j
                a(f"v_pk_add_f32 {vr(r,2)}, {vr(r,2)}, {vr(V_NM+4*t,2)}")
    for i in range(192):
        if G[i]["exp"] is not None and G[i]["exp"][0] == "cur":
            a(soft("exp", *G[i]["exp"], 0))
    a("s_nop 0")
    for i in range(192):
        for (w, kind, u, t, x) in G[i]["valu"]:
            if w == "cur":
                a(soft(kind, w, u, t, x, 0))
    a(f"""
    s_mov_b32 s{S_RD}, 0
    s_mov_b32 s{S_RK}, {SLOT}
    s_mov_b32 s{S_DV}, {2*SLOT}
    s_add_u32 s{S_M0}, s{S_W3072}, {LDS_V}
    s_mov_b32 s{S_DKM}, s{S_W3072}
    s_add_u32 s{S_DVM}, s{S_M0}, {2*SLOT}
    s_mov_b32 s{S_CNT}, 31
    s_waitcnt lgkmcnt({att_counts(G)[0]})
    """)
    stamp(a, 6)
    a(".p2align 6\nL_att_loop:")
    gen_body(a, G, spare, 1, lab="a")
    a("s_cbranch_scc0 L_att_tail")
    gen_body(a, G, spare, 0, lab="b")
    a("s_branch L_att_loop")
    f2 = "\n".join(f"s_mov_b32 s{S_T0}, {FL_F2 + k*8192}\nbuffer_load_dword v{V_F2+k}, v{V_L128}, {sq(S_FL)}, s{S_T0} offen sc1" for k in range(4))
    a(f"""
    L_hooka:
    s_mov_b32 s{S_KC}, 0
    s_branch L_hook
    L_hookb:
    s_mov_b32 s{S_KC}, 1
    L_hook:
    s_cmp_eq_u32 s{S_CNT}, 3
    s_cbranch_scc1 L_hF
    L_hP:
    s_mov_b32 s{S_HOOK}, 3
    s_cmp_lg_u32 s{S_WAVE}, 0
    s_cbranch_scc1 L_hdone
    s_lshl_b32 s{S_T0}, s2, 7
    s_add_u32 s{S_T0}, s{S_T0}, {FL_F2}
    """)
    signal(a)
    a(f"""
    s_nop 1
    s_branch L_hdone
    L_hF:
    """)
    code_prefetch(a, 1, "L_att_tail", "L_end", S_XN, V_F2 + 4, one=True)
    a(f"""
    s_cmp_lg_u32 s{S_WAVE}, 0
    s_cbranch_scc1 L_hdone
    {f2}
    """)
    a(f"""
    L_hdone:
    s_cmp_eq_u32 s{S_KC}, 0
    s_cbranch_scc1 L_hreta
    s_branch L_hretb
    L_maxfirst:
    s_mov_b32 s{S_KC}, {32*SLOT}
    L_maxnext:
    s_sub_u32 s{S_KC}, s{S_KC}, {SLOT}
    s_add_u32 s{S_T0}, s{S_KC}, 12288
    v_mov_b32 v{V_KA}, v{V_KB}
    v_mov_b32 v{V_KA+1}, v{V_KB+1}
    """)
    dma_tile(a, V_DK, S_K, S_KC, S_T0, S_W3072, LDS_K)
    a(f"""
    s_waitcnt vmcnt(0)
    s_barrier
    s_branch L_qk0
    L_fallback:
    s_waitcnt vmcnt(0) lgkmcnt(0)
    s_barrier
    s_mov_b32 s{S_PASS}, 1
    s_branch L_restart
    L_nonce:
    s_mov_b32 s{S_T0}, {FL_NONCE}
    """)
    signal(a)
    a(f"""
    s_nop 1
    s_branch L_nononce
    L_repoll2:
    {f2}
    s_waitcnt vmcnt(0)
    s_branch L_chk2
    L_att_tail:
    v_add_u32 v{V_VA}, s{S_RD}, v{V_VB}
    v_add_u32 v{V_VA+1}, s{S_RD}, v{V_VB+1}
    v_add_u32 v{V_VA+2}, s{S_RD}, v{V_VB+2}
    v_add_u32 v{V_VA+3}, s{S_RD}, v{V_VB+3}
    """)
    for f in (12, 13, 14):
        for k in range(4):
            a(v_read(f, k))
    a(f"""
    s_cmp_lg_u32 s{S_WAVE}, 0
    s_cbranch_scc1 L_ok2
    L_chk2:
    v_xor_b32 v{V_F2}, v{V_F2}, v{V_ONE}
    v_xor_b32 v{V_F2+1}, v{V_F2+1}, v{V_ONE}
    v_xor_b32 v{V_F2+2}, v{V_F2+2}, v{V_ONE}
    v_xor_b32 v{V_F2+3}, v{V_F2+3}, v{V_ONE}
    v_or3_b32 v{V_F2}, v{V_F2}, v{V_F2+1}, v{V_F2+2}
    v_or_b32 v{V_F2}, v{V_F2}, v{V_F2+3}
    v_cmp_ne_u32 vcc, 0, v{V_F2}
    s_cbranch_vccnz L_repoll2
    L_ok2:
    """)
    setup = f"""
    s_and_b32 s{S_J}, s2, 3
    s_bfe_u32 s{S_T0}, s2, 0x10002
    s_lshl_b32 s{S_T0}, s{S_T0}, 3
    s_bfe_u32 s{S_MB}, s2, 0x30003
    s_add_u32 s{S_MB}, s{S_MB}, s{S_T0}
    s_lshr_b32 s{S_NB}, s2, 6
    s_lshl_b32 s{S_TILE}, s{S_MB}, 2
    s_add_u32 s{S_TILE}, s{S_TILE}, s{S_NB}
    s_lshl_b32 s{S_T0}, s{S_MB}, 3
    s_lshl_b32 s{S_T1}, s{S_WAVE}, 1
    s_add_u32 s{S_T0}, s{S_T0}, s{S_T1}
    s_mul_i32 s{S_T1}, s{S_T0}, {192*1024}
    v_add_u32 v{V_DO}, s{S_T1}, v1
    v_add_u32 v{V_DO+1}, {192*1024}, v{V_DO}
    s_mul_i32 s{S_T1}, s{S_T0}, {48*1024}
    v_add_u32 v{V_DH}, s{S_T1}, v1
    v_add_u32 v{V_DH+1}, {48*1024}, v{V_DH}
    s_mul_i32 s{S_OO}, s{S_J}, {12*1024}
    s_lshr_b32 s{S_T0}, s{S_WAVE}, 1
    s_mul_i32 s{S_WS0}, s{S_T0}, 40960
    s_mul_i32 s{S_LW}, s{S_T0}, 10240
    s_lshl_b32 s{S_T0}, s{S_T0}, 13
    v_add_u32 v{V_RB0}, s{S_T0}, v1
    s_and_b32 s{S_T0}, s{S_WAVE}, 1
    s_mul_i32 s{S_T0}, s{S_T0}, 5120
    s_add_u32 s{S_WS0}, s{S_WS0}, s{S_T0}
    s_add_u32 s{S_T0}, s{S_T0}, {LDS_WOFF}
    s_add_u32 s{S_LW}, s{S_LW}, s{S_T0}
    v_add_u32 v{V_RA0}, s{S_T0}, v1
    s_mul_i32 s{S_T0}, s{S_NB}, 10240
    s_add_u32 s{S_WS0}, s{S_WS0}, s{S_T0}
    s_mul_i32 s{S_T0}, s{S_J}, {12*40960}
    s_add_u32 s{S_WO}, s{S_WS0}, s{S_T0}
    s_add_u32 s{S_WO}, s{S_WO}, {192*40960}
    s_add_u32 s{S_WO4}, s{S_WO}, 4096
    s_mul_i32 s{S_T0}, s{S_J}, {48*40960}
    s_add_u32 s{S_WS0}, s{S_WS0}, s{S_T0}
    s_lshl_b32 s{S_LO}, s{S_WAVE}, 12
    v_mov_b32 v{V_RB}, v{V_RB0}
    v_mov_b32 v{V_RA}, v{V_RA0}
    s_mov_b32 s{S_WF+2}, {WF_BYTES}
    """
    qd = ["s_waitcnt vmcnt(0)", "s_barrier",
          f"s_or_b32 s{S_T0}, s2, s{S_WAVE}\ns_cmp_eq_u32 s{S_T0}, 0\ns_cbranch_scc1 L_nonce\nL_nononce:"]
    cur, cost = [], 0
    for ln in [x.strip() for x in setup.strip().split("\n")]:
        c1 = 2 if (ln.startswith("v_") and not cur) else 1
        if cost + c1 > 3:
            qd.append("\n".join(cur))
            cur, cost = [], 0
            c1 = 2 if ln.startswith("v_") else 1
        cur.append(ln)
        cost += c1
    qd.append("\n".join(cur))
    gops = []
    for st in range(4):
        for k in range(9):
            pre, ld = dma3(k, S_H, V_DH)
            if k == 0:
                pre = [f"s_add_u32 s{S_DO}, s{S_LO}, {st*STG}", f"s_add_u32 s{S_DW}, s{S_LW}, {st*STG}"] + pre
            gops.append((pre, ld, ADV3 if k == 8 else []))
    for pre, ld, post in gops[:18]:
        if pre:
            qd.append("\n".join(pre))
        qd.append(ld)
        if post:
            qd.append("\n".join(post))
    qv = [y for x in swaps("v_add_f32", V_L, 24) for y in x.split("\n")] + [f"v_rcp_f32 v{20+2*t}, v{V_L+t}" for t in range(4)]
    gen_body(a, G, spare, 0, tail=True, tailq=(qd, qv))
    stamp(a, 7)
    a(f"""
    s_lshl_b32 s{S_T0}, s{S_QB}, 4
    s_lshl_b32 s{S_T1}, s{S_WAVE}, 2
    s_add_u32 s{S_T0}, s{S_T0}, s{S_T1}
    s_mul_i32 s{S_T0}, s{S_T0}, {192*1024}
    s_mul_i32 s{S_T1}, s{S_HEAD}, {6*1024}
    s_add_u32 s{S_T0}, s{S_T0}, s{S_T1}
    v_add_u32 v28, s{S_T0}, v1
    v_add_u32 v29, {192*1024}, v28
    v_add_u32 v30, {2*192*1024}, v28
    v_add_u32 v31, {3*192*1024}, v28
    s_mov_b32 s{S_M0}, 4096
    """)
    for n in range(24):
        s, t = n // 4, n % 4
        b, o = 40 + 8 * (n % 2), 64 + 4 * n
        for h in range(2):
            for r in range(4):
                a(f"v_accvgpr_read_b32 v{b+4*h+r}, a{4*(4*(2*s+h)+t)+r}")
        for j in range(4):
            a(f"v_pk_mul_f32 {vr(b+2*j,2)}, {vr(b+2*j,2)}, {vr(20+2*t,2)} op_sel_hi:[1,0]")
        for j in range(4):
            a(f"v_cvt_pk_bf16_f32 v{o+j}, v{b+2*j}, v{b+2*j+1}")
        a(f"buffer_store_dwordx4 {vr(o)}, v{28+t}, {sq(S_O)}, {'0' if s < 4 else f's{S_M0}'} offen offset:{(s%4)*1024} sc1")
    stamp(a, 8)
    a("v_mov_b32 v48, 0\nv_mov_b32 v49, 0\nv_mov_b32 v50, 0\nv_mov_b32 v51, 0")
    zi = 0
    for t in range(4):
        regs = [64 + 4 * (4 * s + t) + j for s in range(6) for j in range(4)]
        a(f"v_max3_f32 v{40+t}, |v{regs[0]}|, |v{regs[1]}|, |v{regs[2]}|")
        for k in range(3, 23, 2):
            a(f"v_max3_f32 v{40+t}, |v{regs[k]}|, |v{regs[k+1]}|, v{40+t}")
            if k in (3, 11, 19) and zi < 10:
                a(f"v_mfma_f32_32x32x16_bf16 {ar(16*((zi+5)%10),16)}, v[48:51], v[48:51], 0")
                zi += 1
        a(f"v_max_f32 v{40+t}, |v{regs[23]}|, v{40+t}")
    for x in swaps("v_max_f32", 40, 44):
        a(x + "\ns_nop 0")
    for t in range(4):
        a(f"v_mul_f32 v{40+t}, v{40+t}, v{V_L+t}")
    a(f"""
    v_min3_f32 v40, v40, v41, v42
    v_min_f32 v40, v40, v43
    v_add_f32 v41, v{V_L}, v{V_L+1}
    v_add_f32 v42, v{V_L+2}, v{V_L+3}
    v_add_f32 v41, v41, v42
    v_mov_b32 v42, {fh(GUARD_LO)}
    v_cmp_nle_f32 vcc, v42, v40
    v_cmp_ngt_f32 s[{S_M0}:{S_M0+1}], 1.0, v41
    v_mov_b32 v40, {LDS_FLAG}
    v_mov_b32 v41, 1
    """)
    srd(a, S_PT, P_WS, 2 * PART_BYTES, WS_PART)
    a(f"""
    s_or_b64 vcc, vcc, s[{S_M0}:{S_M0+1}]
    s_cbranch_vccz L_good
    ds_write_b32 v40, v41
    L_good:
    """)
    srd(a, S_OUT, P_OUT, 2048 * 1280)
    srd(a, S_B2, P_B2, 1280)
    a(f"""
    s_lshl_b32 s{S_T0}, s{S_MB}, 3
    s_lshr_b32 s{S_T1}, s{S_J}, 1
    s_lshl_b32 s{S_T1}, s{S_T1}, 2
    s_add_u32 s{S_T0}, s{S_T0}, s{S_T1}
    s_add_u32 s{S_T0}, s{S_T0}, s{S_WAVE}
    s_lshl_b32 s{S_T0}, s{S_T0}, 4
    v_and_b32 v42, 15, v0
    v_add_u32 v42, s{S_T0}, v42
    v_mul_u32_u24 v42, 1280, v42
    s_mul_i32 s{S_T0}, s{S_NB}, 320
    s_and_b32 s{S_T1}, s{S_J}, 1
    s_mul_i32 s{S_T1}, s{S_T1}, 160
    s_add_u32 s{S_T0}, s{S_T0}, s{S_T1}
    v_lshrrev_b32 v41, 4, v0
    v_lshlrev_b32 v41, 3, v41
    v_add_u32 v{V_BO}, s{S_T0}, v41
    v_add_u32 v{V_OO}, v42, v{V_BO}
    v_lshlrev_b32 v{V_PO}, 3, v0
    v_and_b32 v{V_FV}, {3*128}, v{V_L128}
    s_mov_b32 s{S_R3}, 0
    s_mov_b32 s{S_CNT}, 6
    s_waitcnt vmcnt(24) lgkmcnt(0)
    s_barrier
    ds_read_b32 v41, v40
    """)
    for ks, n in RD3[:14]:
        a(rd3(0, ks, n))
    a(f"""
    s_waitcnt lgkmcnt(14)
    v_readfirstlane_b32 s{S_T0}, v41
    """)
    for ks, n in RD3[14:]:
        a(rd3(0, ks, n))
    if not (X_RINGV or X_QV or os.environ.get('NOFB')):
        a(f"s_cmp_gt_u32 s{S_T0}, s{S_PASS}\ns_cbranch_scc1 L_fallback")
    for pre, ld, post in gops[18:]:
        for x in pre:
            a(x)
        if pre:
            a("s_nop 0")
        a(ld)
        for x in post:
            a(x)
    for j in range(5):
        a(f"buffer_load_dwordx2 {vr(V_X+2*j,2)}, v{V_OO}, {sq(S_X)}, 0 offen offset:{32*j}")
        a(f"buffer_load_dwordx2 {vr(V_B2+2*j,2)}, v{V_BO}, {sq(S_B2)}, 0 offen offset:{32*j}")
    a("s_waitcnt lgkmcnt(0)")
    stamp(a, 9)
    a(".p2align 6\nL_g_loop:")
    stage3(a, 0, ACC_G, S_H, V_DH, f"s_cmp_eq_u32 s{S_CNT}, 6\ns_cbranch_scc1 L_g_nw\ns_waitcnt vmcnt(18)\nL_g_nw:",
           f"s_cmp_eq_u32 s{S_CNT}, 4\ns_cbranch_scc1 L_g_h0\nL_g_r0:", False)
    stage3(a, 1, ACC_G, S_H, V_DH, "s_waitcnt vmcnt(18)",
           f"s_cmp_eq_u32 s{S_CNT}, 5\ns_cbranch_scc1 L_g_h1\nL_g_r1:", True)
    a(f"""
    s_cbranch_scc1 L_g_loop
    s_branch L_g_done
    L_g_h0:
    s_mov_b32 s{S_H+2}, 0
    s_mov_b32 s{S_WO}, s{S_WS0}
    s_add_u32 s{S_WO4}, s{S_WS0}, 4096
    s_branch L_g_r0
    L_g_h1:
    s_cmp_lg_u32 s{S_WAVE}, 0
    s_cbranch_scc1 L_g_r1
    s_lshl_b32 s{S_T0}, s{S_QB}, 12
    s_lshl_b32 s{S_T1}, s{S_HEAD}, 7
    s_add_u32 s{S_T0}, s{S_T0}, s{S_T1}
    s_add_u32 s{S_T0}, s{S_T0}, {FL_F3}
    """)
    signal(a)
    a("s_branch L_g_r1\nL_g_done:\ns_waitcnt lgkmcnt(0)")
    stamp(a, 10)
    a(f"""
    s_cmp_lg_u32 s{S_WAVE}, 0
    s_cbranch_scc1 L_p3go
    s_lshr_b32 s{S_T0}, s{S_MB}, 1
    s_lshl_b32 s{S_T0}, s{S_T0}, 12
    s_lshl_b32 s{S_T1}, s{S_J}, 10
    s_add_u32 s{S_T0}, s{S_T0}, s{S_T1}
    s_add_u32 s{S_T0}, s{S_T0}, {FL_F3}
    v_and_b32 v42, {7*128}, v{V_L128}
    L_poll3:
    buffer_load_dword v43, v42, {sq(S_FL)}, s{S_T0} offen sc1
    s_waitcnt vmcnt(0)
    v_cmp_ne_u32 vcc, v{V_ONE}, v43
    s_cbranch_vccnz L_poll3
    L_p3go:
    s_barrier
    s_mul_i32 s{S_OO}, s{S_J}, {48*1024}
    """)
    stamp(a, 11)
    for st in range(4):
        a(f"s_add_u32 s{S_DO}, s{S_LO}, {((st+2)%4)*STG}")
        for k in range(4):
            pre, ld = dma3(k, S_O, V_DO)
            for x in pre:
                a(x + "\ns_nop 0")
            a(ld)
        a(ADV3[0])
    pack_store(a, ACC_G, PART_BYTES)
    a(f"s_mov_b32 s{S_HOOK}, 20\ns_mov_b32 s{S_CNT}, 24\ns_waitcnt vmcnt(20)\ns_barrier")
    for ks, n in RD3:
        a(rd3(0, ks, n))
    a("s_waitcnt lgkmcnt(0)")
    stamp(a, 12)
    a(".p2align 6\nL_s_loop:")
    stage3(a, 0, ACC_S, S_O, V_DO, f"s_waitcnt vmcnt(30)\ns_cmp_gt_u32 s{S_CNT}, 21\ns_cbranch_scc1 L_s_n0\ns_waitcnt vmcnt(18)\nL_s_n0:",
           f"s_cmp_eq_u32 s{S_CNT}, s{S_HOOK}\ns_cbranch_scc1 L_s_h\nL_s_r:", False)
    stage3(a, 1, ACC_S, S_O, V_DO, f"s_waitcnt vmcnt(25)\ns_cmp_gt_u32 s{S_CNT}, 21\ns_cbranch_scc1 L_s_n1\ns_waitcnt vmcnt(18)\nL_s_n1:",
           "", True)
    a(f"""
    s_cbranch_scc1 L_s_loop
    s_branch L_s_done
    L_s_h:
    s_lshl_b32 s{S_PO}, s{S_TILE}, 9
    s_add_u32 s{S_PO}, s{S_PO}, {FL_F5}
    s_cmp_eq_u32 s{S_CNT}, 4
    s_cbranch_scc1 L_s_h2
    s_mov_b32 s{S_HOOK}, 4
    s_cmp_lg_u32 s{S_WAVE}, 0
    s_cbranch_scc1 L_s_r
    s_lshl_b32 s{S_T1}, s{S_J}, 7
    s_add_u32 s{S_T0}, s{S_PO}, s{S_T1}
    """)
    signal(a)
    a(f"""
    s_branch L_s_r
    L_s_h2:
    s_mov_b32 s{S_O+2}, 0
    s_mov_b32 s{S_WF+2}, 0
    buffer_load_dword v60, v{V_FV}, {sq(S_FL)}, s{S_PO} offen sc1
    s_branch L_s_r
    L_repoll5:
    buffer_load_dword v60, v{V_FV}, {sq(S_FL)}, s{S_PO} offen sc1
    s_waitcnt vmcnt(0)
    L_s_done:
    v_cmp_ne_u32 vcc, v{V_ONE}, v60
    s_cbranch_vccnz L_repoll5
    s_sub_u32 s{S_PO}, s{S_PO}, {FL_F5 - FL_F4}
    s_waitcnt lgkmcnt(0)
    """)
    stamp(a, 13)
    GP, g, u, xx = 160, 208, 228, 40
    part_loads(a, PART_BYTES, GP)
    pack_store(a, ACC_S, 0)
    stamp(a, 14)
    part_sum(a, GP, g, 12, 60)
    nl2e = -math.log2(math.e)
    for e in range(10):
        a(f"v_lshlrev_b32 v{u+2*e}, 16, v{V_B2+e}\nv_and_b32 v{u+1+2*e}, 0xffff0000, v{V_B2+e}")
    for tmpl in ("v_add_f32 v{g}, v{u}, v{g}", "v_mul_f32 v{u}, " + fh(nl2e) + ", v{g}", "v_exp_f32 v{u}, v{u}",
                 "v_add_f32 v{u}, 1.0, v{u}", "v_rcp_f32 v{u}, v{u}"):
        for e in range(20):
            a(tmpl.format(g=g + e, u=u + e))
    for e in range(10):
        a(f"v_lshlrev_b32 v{xx+2*e}, 16, v{V_X+e}\nv_and_b32 v{xx+1+2*e}, 0xffff0000, v{V_X+e}")
    for e in range(20):
        a(f"v_mul_f32 v{g+e}, v{g+e}, v{u+e}")
    a("s_waitcnt vmcnt(0)\ns_barrier")
    stamp(a, 15)
    a(f"s_cmp_lg_u32 s{S_WAVE}, 0\ns_cbranch_scc1 L_p4done\ns_lshl_b32 s{S_T1}, s{S_J}, 7\ns_add_u32 s{S_T0}, s{S_PO}, s{S_T1}")
    signal(a)
    a(f"""
    L_poll4:
    buffer_load_dword v60, v{V_FV}, {sq(S_FL)}, s{S_PO} offen sc1
    s_waitcnt vmcnt(0)
    v_cmp_ne_u32 vcc, v{V_ONE}, v60
    s_cbranch_vccnz L_poll4
    L_p4done:
    s_barrier
    """)
    stamp(a, 16)
    part_loads(a, 0, GP)
    part_sum(a, GP, u, 0, 60)
    for e in range(20):
        a(f"v_fmac_f32 v{xx+e}, v{g+e}, v{u+e}")
    for j in range(5):
        a(f"v_cvt_pk_bf16_f32 v{96+2*j}, v{xx+4*j}, v{xx+1+4*j}\nv_cvt_pk_bf16_f32 v{97+2*j}, v{xx+2+4*j}, v{xx+3+4*j}")
        a(f"buffer_store_dwordx2 {vr(96+2*j,2)}, v{V_OO}, {sq(S_OUT)}, 0 offen offset:{32*j}")
    stamp(a, 17)
    if STAMP:
        a("s_waitcnt vmcnt(0)")
        stamp(a, 18)
        srd(a, 4, P_WS, 1 << 20, WS_DBG)
        a(f"s_lshl_b32 s3, s2, 2\ns_add_u32 s3, s3, s{S_WAVE}\ns_lshl_b32 s3, s3, 9\nv_lshlrev_b32 v2, 3, v0\nv_add_u32 v2, s3, v2")
        a("buffer_store_dwordx2 v[38:39], v2, s[4:7], 0 offen\ns_waitcnt vmcnt(0)")
    a("L_end:\ns_endpgm")


def build():
    a = Asm()
    a.l.append("; @launch grid=(256,1,1) block=(256,1,1) lds=163840")
    a('.amdgcn_target "amdgcn-amd-amdhsa--gfx950"\n.text')
    a(f".globl {KNAME}")
    gen_kernel(a)
    a('.section .rodata,"a"\n.p2align 6')
    a.l.append(f""".amdhsa_kernel {KNAME}
  .amdhsa_next_free_vgpr 512
  .amdhsa_next_free_sgpr 102
  .amdhsa_accum_offset 256
  .amdhsa_group_segment_fixed_size 0
  .amdhsa_kernarg_size 104
  .amdhsa_user_sgpr_count 2
  .amdhsa_user_sgpr_kernarg_segment_ptr 1
  .amdhsa_system_sgpr_workgroup_id_x 1
.end_amdhsa_kernel""")
    return a.text()


if __name__ == "__main__":
    STAMP = "stamp" in sys.argv
    open(sys.argv[1], "w").write(build())
```

```python
import sys, math, os, struct

NAME = "recurrent_scan__gqa_block_cached__dense_activation_gelu__prompt"
KNAME = NAME + "_kernel"
WS_XN, WS_H, WS_O, WS_WF, WS_PART, WS_FLAG, WS_DBG = 0, 4 << 20, 16 << 20, 48 << 20, 80 << 20, 112 << 20, 128 << 20
XN_BYTES = 2048 * 640 * 2
H_BYTES = 2048 * 1536 * 2
O_BYTES = 2048 * 6144 * 2
WF_BYTES = 240 * 40960
PART_BYTES = 64 * 64 * 2560
FL_F1, FL_F3, FL_F2, FL_F4, FL_F5, FL_NONCE = 0, 32768, 65536, 98304, 131072, 163840
FLAG_BYTES = 163968
STAMP = False
OFF = float(os.environ.get("OFF", 102.0))
GUARD_LO = 2.0 ** -110


def fh(x):
    return "0x%08x" % struct.unpack("<I", struct.pack("<f", x))[0]


class Asm:
    def __init__(self):
        self.l = []

    def __call__(self, s):
        for line in s.strip("\n").split("\n"):
            line = line.strip()
            if line:
                self.l.append(line if line.endswith(":") or line.startswith(".") else "    " + line)

    def text(self):
        return "\n".join(self.l) + "\n"


def vr(b, n=4, p="v"):
    return f"{p}[{b}:{b+n-1}]"


def ar(b, n=4):
    return vr(b, n, "a")


def srd(a, d, lo, nbytes, add=None):
    if add is None:
        a(f"s_mov_b32 s{d}, s{lo}\ns_mov_b32 s{d+1}, s{lo+1}")
    else:
        a(f"s_add_u32 s{d}, s{lo}, {add}\ns_addc_u32 s{d+1}, s{lo+1}, 0")
    a(f"s_mov_b32 s{d+2}, {nbytes}\ns_mov_b32 s{d+3}, 0x00020000")


def sq(d):
    return f"s[{d}:{d+3}]"


def mfma(d, a_, b, c):
    return f"v_mfma_f32_16x16x32_bf16 {d}, {a_}, {b}, {c}"


def stamp(a, i):
    if STAMP:
        a(f"""s_memtime s[98:99]
        s_waitcnt lgkmcnt(0)
        v_writelane_b32 v38, s98, {i}
        s_memrealtime s[98:99]
        s_waitcnt lgkmcnt(0)
        v_writelane_b32 v39, s98, {i}""")


SLOT = 24576
LDS_K, LDS_V, LDS_X = 0, 3 * SLOT, 6 * SLOT
LDS_W1 = 2 * SLOT
LDS_FLAG = LDS_X + 12288
STG = 36864
LDS_WOFF = 16384

S_XN, S_WQ, S_W1, S_K, S_V, S_H, S_O, S_MISC = 4, 8, 12, 16, 20, 24, 28, 32
S_HEAD, S_QB, S_WAVE, S_HOOK = 36, 37, 38, 39
S_RD, S_DMA, S_SO0, S_SO1, S_CNT, S_T0, S_T1, S_BOFF = 40, 41, 42, 43, 44, 45, 46, 47
S_W3072, S_SV0, S_SV1, S_PASS, S_RD1, S_DMA1, S_SW0, S_SW1 = 48, 49, 50, 51, 52, 53, 54, 55
S_C0, S_C1, S_M0, S_KC = 56, 57, 58, 59
P_K, P_V, P_WQ, P_WO, P_W1, P_B1, P_W2, P_B2, P_OUT, P_DBG, P_WS, P_X = 60, 62, 64, 66, 68, 70, 72, 74, 76, 78, 80, 82
S_X, S_WF, S_FL = 84, 88, 92
S_RS, S_RO = 96, 97
S_NONCE, S_HS = 100, 101
S_RK, S_DV, S_DKM, S_DVM = S_RD1, S_DMA1, S_DMA, S_BOFF
S_PT, S_OUT, S_B2 = 4, 8, 12
S_J, S_MB, S_NB, S_OO, S_WO, S_WO4, S_R3, S_DO, S_DW, S_LO, S_LW, S_TILE, S_WS0, S_PO = 40, 41, 42, 43, 47, 48, 49, 50, 52, 53, 54, 55, 56, 57

V_L, V_KA, V_VA, V_KB, V_VB, V_DK, V_DV = 2, 6, 8, 12, 14, 18, 19
V_F2 = 20
V_RD, V_RR = 32, 33
V_ZERO, V_ONE = 36, 37
V_NM = 40
V_L4, V_L128 = 62, 63
V_Q, V_S, V_P = 64, 128, 192
A_RING, A_Q = 192, 224
P1_ACC, P1_H, P1_RING, P1_B = 64, 0, 48, 88
V1_WA, V1_FA, V1_WB, V1_FB, V1_DW, V1_DF, V1_X = 6, 8, 12, 14, 20, 21, 22
V_RB, V_RA, V_DH, V_DO, V_RB0, V_RA0, V_OO, V_BO, V_PO, V_FV = 6, 7, 12, 14, 16, 17, 18, 19, 32, 33
V_X, V_B2, FR = 64, 74, 96
ACC_S, ACC_G = 0, 80


X_RINGV = os.environ.get("RINGV")
X_QV = os.environ.get("QV")
X_NOCHAIN = os.environ.get("NOCHAIN")


def q_reg(s, t):
    i = 4 * s + t
    if X_QV:
        return vr(V_Q + 4 * (i % 16))
    return vr(V_Q + 4 * i) if i < 16 else ar(A_Q + 4 * (i - 16))


def s_reg(u, t):
    return V_S + 4 * (4 * u + t)


def p_reg(par, ch, t):
    return V_P + 32 * par + 16 * ch + 4 * t


def code_prefetch(a, tag, first, last, sreg, vdst, one=False):
    a(f"""
    s_getpc_b64 s[{sreg}:{sreg+1}]
    L_pc{tag}:
    s_add_u32 s{sreg}, s{sreg}, {first}-L_pc{tag}
    s_addc_u32 s{sreg+1}, s{sreg+1}, 0
    s_mov_b32 s{sreg+2}, {last}-{first}
    s_mov_b32 s{sreg+3}, 0x00020000
    """)
    if one:
        a(f"s_lshl_b32 s{S_T0}, s{S_WAVE}, 13\nbuffer_load_dword v{vdst}, v{V_L128}, {sq(sreg)}, s{S_T0} offen")
        return
    a(f"""
    s_mov_b32 s{S_T0}, 8192
    s_mov_b32 s{S_T1}, 16384
    buffer_load_dword v{vdst}, v{V_L128}, {sq(sreg)}, 0 offen
    buffer_load_dword v{vdst+1}, v{V_L128}, {sq(sreg)}, s{S_T0} offen
    buffer_load_dword v{vdst+2}, v{V_L128}, {sq(sreg)}, s{S_T1} offen
    """)


def half_lanes(a, ins):
    a("s_mov_b32 exec_hi, 0")
    a(ins)
    a("s_mov_b32 exec_hi, -1")


def wait_counts(seq2, period, waits):
    cnt = {}
    for k, wt in waits.items():
        last = max(tm for tm, kk in seq2 if kk == k and tm < wt)
        cnt[k] = (sum(1 for tm, kk in seq2 if last < tm < wt), wt - last)
    return cnt


DMA_GAP = [3, 19, 35, 51, 59, 67, 93, 109, 125, 141, 149, 157]


AUX_RD, AUX_ST, AUX_DMA = (26, 27), 53, 11


def build_schedule():
    N = 192
    G = [dict(lds=None, exp=None, valu=[], dma=None, wait=None) for _ in range(N)]
    for g in range(24):
        pos = 0
        fk = (g + 2) % 24
        if fk < 12:
            for k in range(2):
                G[8 * g + pos]["lds"] = (fk, k)
                pos += 1
        fv = g + 3
        if 12 <= fv < 24:
            for k in range(4):
                G[8 * g + pos]["lds"] = (fv, k)
                pos += 1
    for i in range(12):
        G[DMA_GAP[i]]["dma"] = i
    for f in range(24):
        G[(8 * f - 1) % N]["wait"] = f
    for k in range(2):
        G[AUX_RD[k]]["lds"] = (24, k)
    G[AUX_ST]["dma"] = 12
    G[AUX_DMA]["dma"] = 13
    free = [i for i in range(N) if G[i]["lds"] is None and G[i]["dma"] is None]
    free2 = free + [N + x for x in free]
    seq = [(u, t, r) for u in range(4) for t in range(4) for r in range(4)]
    start = [k for k, x in enumerate(free2) if x >= 24][0]
    etime = {}
    k = float(start)
    step = len(free) / 64.0
    for e, (u, t, r) in enumerate(seq):
        kk = int(start + e * step)
        ready = 24 * u + 16 + 2 * t + 1 + 4
        while free2[kk] < ready or G[free2[kk] % N]["exp"] is not None:
            kk += 1
        tm = free2[kk]
        G[tm % N]["exp"] = ("prev" if tm >= N else "cur", u, t, r)
        etime[(u, t, r)] = tm
    cap = [0 if (G[i]["dma"] is not None or G[i]["exp"] is not None) else (1 if G[i]["lds"] is not None else 2) for i in range(N)]
    if os.environ.get("CAP1"):
        for i in range(N):
            if G[i]["lds"] is not None and G[(i + 1) % N]["lds"] is not None:
                cap[i] = 0
    if os.environ.get("CAP2"):
        for i in range(N):
            if G[i]["lds"] is not None and G[i - 1]["lds"] is not None:
                cap[i] = 0
    ops = []
    for (u, t, r) in seq:
        ops.append((etime[(u, t, r)] + 1, "add", u, t, r))
        if r & 1:
            ops.append((etime[(u, t, r)] + 1, "cvt", u, t, r >> 1))
    ops.sort(key=lambda o: (o[0], o[1] == "add"))
    used = [0] * N
    for o in ops:
        tm = o[0]
        while used[tm % N] >= cap[tm % N]:
            tm += 1
        assert tm < N + 24 * o[2] + 2 * o[3], (o, tm)
        assert tm < N + 92
        used[tm % N] += 1
        G[tm % N]["valu"].append(("prev" if tm >= N else "cur",) + o[1:])
    return G, [cap[i] - used[i] for i in range(N)]


def att_counts(G, nok=False, aux=False):
    seq = [(rep * 192 + i, G[i]["lds"][0]) for rep in range(2) for i in range(192)
           if G[i]["lds"] is not None and not (nok and rep == 1 and G[i]["lds"][0] < 12) and (aux or G[i]["lds"][0] != 24)]
    ks = range(12, 24) if nok else range(24)
    c = wait_counts(seq, 192, {f: 192 + 8 * f - 1 for f in ks})
    assert all(v[0] <= 15 for v in c.values()), c
    return {k: v[0] for k, v in c.items()}


def soft(kind, which, u, t, x, par_cur):
    par = par_cur if which == "cur" else 1 - par_cur
    s = s_reg(u, t)
    if kind == "exp":
        return f"v_exp_f32 v{s+x}, v{s+x}"
    if kind == "add":
        return f"v_add_f32 v{V_L+t}, v{s+x}, v{V_L+t}"
    return f"v_cvt_pk_bf16_f32 v{p_reg(par, u >> 1, t) + 2*(u&1) + x}, v{s+2*x}, v{s+2*x+1}"


def ring(grp, k):
    return A_RING + 8 * (grp % 4) + 4 * k


def rr(b, n=4):
    return vr(b, n) if X_RINGV else ar(b, n)


def k_read(grp, k):
    u, s = grp // 3, 2 * (grp % 3) + k
    return f"ds_read_b128 {rr(ring(grp, k))}, v{V_KA+k} offset:{2*u*3072 + (s>>1)*1024}"


def v_read(grp, k):
    dt, ch, part = grp - 12, k >> 1, k & 1
    return f"ds_read_b64_tr_b16 {rr(ring(grp, ch) + 2*part, 2)}, v{V_VA+(dt&3)} offset:{(4*ch+2*part)*3072 + (dt>>2)*1024}"


def qk_mfma(grp, p, first_c):
    if X_NOCHAIN:
        p = 2 * (p & 3) + (p >> 2)
    u, s, t = grp // 3, 2 * (grp % 3) + (p & 1), p >> 1
    c = first_c(t) if s == 0 else vr(s_reg(u, t))
    return mfma(vr(s_reg(u, t)), rr(ring(grp, p & 1)), q_reg(s, t), c)


def gen_body(a, G, spare, par, tail=False, tailq=None, lab=""):
    cnt = att_counts(G, nok=tail, aux=(lab == "a"))
    ev, es, sp = {}, {}, list(spare)

    def put_v(lo, hi, ins):
        for i in range(lo, hi):
            if sp[i] > 0:
                sp[i] -= 1
                ev.setdefault(i, []).append(ins)
                return
        raise AssertionError(ins)

    def put_s(lo, hi, ins):
        for i in range(lo, hi):
            if G[i]["lds"] is None and G[i]["dma"] is None and G[i]["wait"] is None and i not in es:
                es[i] = ins
                return i
        raise AssertionError(ins)
    if not tail:
        for i in range(12):
            base = S_DKM if i < 6 else S_DVM
            d = i % 6
            assert G[DMA_GAP[i] - 1]["lds"] is None and G[DMA_GAP[i] - 1]["wait"] is None
            es[DMA_GAP[i] - 1] = f"s_add_u32 m0, s{base}, {(d//3)*12288 + (d%3)*896}"
        if lab == "b":
            es[AUX_DMA - 1] = f"s_add_u32 m0, s{S_W3072}, {LDS_X}"
            put_s(12, 18, f"s_add_u32 s{S_RS}, s{S_RS}, 128")
            i = put_s(20, 34, f"s_cmp_le_u32 s{S_CNT}, 12")
            put_s(i + 1, i + 3, f"s_cselect_b32 s{S_MISC+2}, 0, s{S_MISC+2}")
        else:
            put_s(54, 58, f"s_add_u32 s{S_RO}, s{S_RO}, 4096")
            i = put_s(60, 64, f"s_cmp_gt_u32 s{S_CNT}, 11")
            put_s(i + 1, i + 3, f"s_cselect_b32 s{S_WF+2}, {WF_BYTES}, 0")
        es[42] = f"s_cmp_eq_u32 s{S_CNT}, s{S_HOOK}\ns_cbranch_scc1 L_hook{lab}\nL_hret{lab}:"
        i = 68
        for x in (f"s_add_u32 s{S_SO0}, s{S_SO0}, {SLOT}", f"s_add_u32 s{S_SO1}, s{S_SO1}, {SLOT}",
                  f"s_sub_u32 s{S_CNT}, s{S_CNT}, 1",
                  f"s_mov_b32 s{S_T1}, s{S_RD}", f"s_mov_b32 s{S_RD}, s{S_RK}", f"s_mov_b32 s{S_RK}, s{S_DV}", f"s_mov_b32 s{S_DV}, s{S_T1}",
                  f"s_add_u32 s{S_DKM}, s{S_RD}, s{S_W3072}"):
            i = put_s(i, 150, x) + 1
        for j in range(2):
            put_v(max(i, 80), 172, f"v_add_u32 v{V_KA+j}, s{S_RK}, v{V_KB+j}")
        for j in range(4):
            put_v(0, 66, f"v_add_u32 v{V_VA+j}, s{S_RD}, v{V_VB+j}")
        i = 158
        for x in (f"s_add_u32 s{S_SV0}, s{S_SV0}, {SLOT}", f"s_add_u32 s{S_SV1}, s{S_SV1}, {SLOT}", f"s_add_u32 s{S_DVM}, s{S_DV}, s{S_M0}"):
            es.setdefault(169, "")
            es.setdefault(170, "")
            i = put_s(i, 184, x) + 1
        es[169] = f"s_waitcnt vmcnt({11 if lab == 'b' else 12}) lgkmcnt(0)"
        es[170] = "s_barrier"
        put_s(186, 191, f"s_cmp_lg_u32 s{S_CNT}, 0")
    for i in range(192):
        g = G[i]
        grp, p = i // 8, i % 8
        if grp < 12:
            if not tail:
                a(qk_mfma(grp, p, lambda t: vr(V_NM + 4 * t)))
        else:
            pp = 2 * (p & 3) + (p >> 2) if X_NOCHAIN else p
            o = ar(4 * (4 * (grp - 12) + (pp >> 1)))
            a(mfma(o, rr(ring(grp, pp & 1)), vr(p_reg(1 - par, pp & 1, pp >> 1)), o))
        if g["wait"] is not None:
            f = g["wait"]
            if (tail and 12 <= f < 24) or (not tail and f not in (22, 23)):
                a("s_waitcnt lgkmcnt(%d)" % cnt[f])
        elif i in es:
            a(es[i])
        if g["lds"] is not None and not os.environ.get("NOLDS"):
            f, k = g["lds"]
            if f == 24:
                if lab == "a":
                    a(f"ds_read_b64_tr_b16 {vr(28+2*k,2)}, v{V_RR} offset:{k*6144}")
            elif f >= 12:
                if not (tail and f < 15):
                    a(v_read(f, k))
            elif not tail:
                a(k_read(f, k))
        if g["dma"] is not None and not tail and not os.environ.get("NODMA"):
            d = g["dma"]
            if d == 12:
                if lab == "a":
                    a(f"buffer_store_dwordx4 v[28:31], v1, {sq(S_WF)}, s{S_RO} offen sc1")
            elif d == 13:
                if lab == "b":
                    a(f"buffer_load_dwordx4 v{V_RD}, {sq(S_MISC)}, s{S_RS} offen lds")
            elif d < 6:
                a(f"buffer_load_dwordx4 v{V_DK}, {sq(S_K)}, s{S_SO0 + d//3} offen offset:{(d%3)*128} lds")
            else:
                d -= 6
                a(f"buffer_load_dwordx4 v{V_DV}, {sq(S_V)}, s{S_SV0 + d//3} offen offset:{(d%3)*128} lds")
        if g["exp"] is not None and not (tail and g["exp"][0] == "cur"):
            w, u, t, r = g["exp"]
            a(soft("exp", w, u, t, r, par))
            if tail and grp < 12:
                a("s_nop 0")
        for (w, kind, u, t, x) in g["valu"]:
            if not (tail and w == "cur") and not os.environ.get("NOVALU"):
                a(soft(kind, w, u, t, x, par))
        for ins in ev.get(i, []):
            a(ins)
        if tail and i == 95:
            a("s_nop 1")
        if tail and i >= 96:
            qd, qv = tailq
            if g["lds"] is not None and g["lds"][0] >= 12:
                if qv:
                    a(qv.pop(0))
            elif qd:
                a(qd.pop(0))
    if tail:
        assert not tailq[0] and not tailq[1], tailq


def p1_acc(f, t):
    if f < 12:
        return vr(P1_ACC + 8 * (4 * (f >> 1) + t) + 4 * (f & 1))
    return ar(P1_H + 4 * (4 * (f - 12) + t))


def p1_read(f, k):
    ks, part = k >> 1, k & 1
    dst = ar(P1_RING + 8 * (f % 5) + 4 * ks + 2 * part, 2)
    if f < 12:
        s, half = f >> 1, f & 1
        return f"ds_read_b64_tr_b16 {dst}, v{V1_WA+(s&1)} offset:{ks*4*3072 + (s>>1)*1024 + part*512 + half*8}"
    return f"ds_read_b64_tr_b16 {dst}, v{V1_FA+f-12} offset:{ks*4096 + part*512}"


def gen_p1_stage(a, sp):
    slots = {g: [] for g in range(15)}
    pend = [(f, k) for f in range(2, 15) for k in range(4)]
    g = 0
    while pend:
        while pend and len(slots[g]) < 6 and g >= pend[0][0] - 4:
            slots[g].append(pend.pop(0))
        g += 1
    assert g <= 11, g
    slots[13] = [(0, k) for k in range(4)]
    slots[14] = [(1, k) for k in range(4)]
    seq = [(rep * 120 + 8 * gg + p, f) for rep in range(2) for gg in range(15) for p, (f, k) in enumerate(slots[gg])]
    cnt = wait_counts(seq, 120, {f: 120 + 8 * f - 1 for f in range(15)})
    assert all(c <= 15 and d >= 8 for c, d in cnt.values()), cnt
    ex = {}

    def put(grp, p, ins):
        assert p >= len(slots[grp]), (grp, p)
        ex.setdefault((grp, p), []).append(ins)
    for j in range(8):
        ks, t = j >> 2, j & 3
        put(j // 2, 6 + j % 2, f"buffer_load_dwordx4 {ar(P1_B + 32*(1-sp) + 16*ks + 4*t)}, v{V1_X+t}, {sq(S_XN)}, s{S_BOFF} offen offset:{ks*1024} sc1")
    for d in range(8):
        grp, p = 4 + d // 2, 4 + 2 * (d % 2)
        if d < 6:
            put(grp, p, f"s_add_u32 m0, s{S_DMA}, {LDS_V + (d//3)*12288 + (d%3)*896}")
            put(grp, p + 1, f"buffer_load_dwordx4 v{V1_DW}, {sq(S_WQ)}, s{S_SO0 + d//3} offen offset:{(d%3)*128} lds")
        else:
            put(grp, p, f"s_add_u32 m0, s{S_DMA1}, {LDS_W1 + (d-6)*4096}")
            put(grp, p + 1, f"buffer_load_dwordx4 v{V1_DF}, {sq(S_W1)}, s{S_SW0 + d-6} offen lds")
    nv = 8
    if sp == 0:
        for d in range(3):
            grp, p = 8 + d // 2, 4 + 2 * (d % 2)
            put(grp, p, f"s_add_u32 m0, s{S_C0}, {d*896}")
            put(grp, p + 1, f"buffer_load_dwordx4 v{V_DK}, {sq(S_K)}, s{S_SV0} offen offset:{d*128} lds")
        put(9, 6, f"buffer_load_dword v47, v46, {sq(S_O)}, s{S_M0} offen")
        put(10, 4, f"s_mov_b32 s{S_SV0}, s{S_SV1}\ns_add_u32 s{S_SV1}, s{S_SV1}, 12288\ns_add_u32 s{S_M0}, s{S_M0}, s{S_HS}")
        put(10, 5, f"s_mov_b32 s{S_C0}, s{S_C1}\ns_add_u32 s{S_C1}, s{S_C1}, 12288\ns_mov_b32 s{S_K+2}, 786432")
        put(10, 6, f"s_cmp_eq_u32 s{S_CNT}, 1\ns_cselect_b32 s{S_XN+2}, 0, s{S_XN+2}")
        nv = 12
    else:
        put(10, 4, f"s_sub_u32 s{S_CNT}, s{S_CNT}, 1")
    put(11, 0, f"s_add_u32 s{S_DMA}, s{S_RD}, s{S_W3072}\ns_add_u32 s{S_RD}, s{S_RD}, {SLOT}")
    put(11, 1, f"s_cmp_eq_u32 s{S_RD}, {3*SLOT}\ns_cselect_b32 s{S_RD}, 0, s{S_RD}")
    put(11, 2, f"s_lshl_b32 s{S_T0}, s{S_WAVE}, 10\ns_add_u32 s{S_DMA1}, s{S_RD1}, s{S_T0}\ns_add_u32 s{S_RD1}, s{S_RD1}, 8192")
    put(11, 3, f"s_cmp_eq_u32 s{S_RD1}, {3*8192}\ns_cselect_b32 s{S_RD1}, 0, s{S_RD1}")
    put(11, 4, f"s_add_u32 s{S_SO0}, s{S_SO0}, {64*12288}\nv_add_u32 v{V1_WA}, s{S_RD}, v{V1_WB}\nv_add_u32 v{V1_WA+1}, s{S_RD}, v{V1_WB+1}")
    put(11, 5, f"s_add_u32 s{S_SO1}, s{S_SO1}, {64*12288}\nv_add_u32 v{V1_FA}, s{S_RD1}, v{V1_FB}\nv_add_u32 v{V1_FA+1}, s{S_RD1}, v{V1_FB+1}")
    put(11, 6, f"s_add_u32 s{S_BOFF}, s{S_BOFF}, 2048\nv_add_u32 v{V1_FA+2}, s{S_RD1}, v{V1_FB+2}")
    put(12, 0, f"s_add_u32 s{S_SW0}, s{S_SW0}, {64*3072}")
    put(12, 1, f"s_add_u32 s{S_SW1}, s{S_SW1}, {64*3072}")
    put(12, 4, "s_waitcnt vmcnt(16) lgkmcnt(0)")
    put(12, 5, "s_barrier")
    if sp == 1:
        put(14, 5, f"s_cmp_lg_u32 s{S_CNT}, 0")
    for i in range(120):
        grp, p = i // 8, i % 8
        t, ks = p >> 1, p & 1
        acc = p1_acc(grp, t)
        a(mfma(acc, ar(P1_RING + 8 * (grp % 5) + 4 * ks), ar(P1_B + 32 * sp + 16 * ks + 4 * t), acc))
        if p < len(slots[grp]):
            a(p1_read(*slots[grp][p]))
        if p == 7:
            f = (grp + 1) % 15
            w = [f"vmcnt({nv})"] if f == 0 else []
            if f not in (13, 14):
                w.append(f"lgkmcnt({cnt[f][0]})")
            if w:
                a("s_waitcnt " + " ".join(w))
        for x in ex.get((grp, p), []):
            a(x)


def dma_tile(a, voff, srdreg, so0, so1, sbase, lds_const, n=6):
    for d in range(n):
        a(f"s_add_u32 m0, s{sbase}, {lds_const + (d//3)*12288 + (d%3)*896}\ns_nop 0")
        a(f"buffer_load_dwordx4 v{voff}, {sq(srdreg)}, s{so0 if d < 3 else so1} offen offset:{(d%3)*128} lds")


def gen_ln_body(a):
    R, U, T, Q, RO = 64, 96, 86, 136, 144
    for i in range(5):
        a(f"s_waitcnt vmcnt({3 + 4 - i + (2 if os.environ.get('TOUCH') else 0)})")
        for j in range(4):
            r, d = R + 4 * i + j, U + 8 * i + 2 * j
            a(f"v_lshlrev_b32 v{d}, 16, v{r}\nv_and_b32 v{d+1}, 0xffff0000, v{r}")
    stamp(a, 19)
    for k in range(4):
        a(f"v_add_f32 v{T+k}, v{U+k}, v{U+4+k}")
    for e in range(8, 40):
        a(f"v_add_f32 v{T+e%4}, v{U+e}, v{T+e%4}")
    a(f"v_add_f32 v{T}, v{T}, v{T+1}\nv_add_f32 v{T+2}, v{T+2}, v{T+3}\nv_add_f32 v{T}, v{T}, v{T+2}")
    for sh in (8, 4, 2, 1):
        a(f"s_nop 1\nv_add_f32 v{T}, v{T}, v{T} row_ror:{sh}")
    a(f"v_mul_f32 v{T}, {fh(1/640)}, v{T}")
    for e in range(40):
        t = 140 + e % 4
        a(f"v_sub_f32 v{t}, v{U+e}, v{T}")
        a(f"v_mul_f32 v{Q+e}, v{t}, v{t}" if e < 4 else f"v_fmac_f32 v{Q+e%4}, v{t}, v{t}")
    a(f"v_add_f32 v{Q}, v{Q}, v{Q+1}\nv_add_f32 v{Q+2}, v{Q+2}, v{Q+3}\nv_add_f32 v{Q}, v{Q}, v{Q+2}")
    for sh in (8, 4, 2, 1):
        a(f"s_nop 1\nv_add_f32 v{Q}, v{Q}, v{Q} row_ror:{sh}")
    a(f"""
    v_mul_f32 v{Q}, {fh(1/640)}, v{Q}
    v_cvt_pk_bf16_f32 v{T+1}, v{T}, v{Q}
    v_lshlrev_b32 v{T}, 16, v{T+1}
    v_and_b32 v{Q}, 0xffff0000, v{T+1}
    v_add_f32 v{Q}, {fh(1e-5)}, v{Q}
    v_cvt_pk_bf16_f32 v{Q}, v{Q}, v{Q}
    v_and_b32 v{Q}, 0xffff0000, v{Q}
    v_sqrt_f32 v{Q}, v{Q}
    s_nop 0
    v_cvt_pk_bf16_f32 v{Q}, v{Q}, v{Q}
    v_and_b32 v{Q}, 0xffff0000, v{Q}
    v_rcp_f32 v{Q}, v{Q}
    s_mov_b32 s{S_T0}, 0
    """)
    for i in range(5):
        for j in range(4):
            e = U + 8 * i + 2 * j
            a(f"""
            v_sub_f32 v{e}, v{e}, v{T}
            v_sub_f32 v{e+1}, v{e+1}, v{T}
            v_cvt_pk_bf16_f32 v{e}, v{e}, v{e+1}
            v_and_b32 v{e+1}, 0xffff0000, v{e}
            v_lshlrev_b32 v{e}, 16, v{e}
            v_mul_f32 v{e}, v{e}, v{Q}
            v_mul_f32 v{e+1}, v{e+1}, v{Q}
            v_cvt_pk_bf16_f32 v{RO+4*i+j}, v{e}, v{e+1}
            """)
        a(f"buffer_store_dwordx4 {vr(RO+4*i)}, v84, {sq(S_MISC)}, s{S_T0} offen sc1")
        a(f"s_add_u32 s{S_T0}, s{S_T0}, 4096")


def dma3(k, bsrd, bv):
    if k < 4:
        r, ks = k >> 1, k & 1
        pre = [f"s_add_u32 m0, s{S_DO}, {r*2048}"] if ks == 0 else []
        return pre, f"buffer_load_dwordx4 v{bv+r}, {sq(bsrd)}, s{S_OO} offen offset:{ks*1024} sc1 lds"
    i = k - 4
    if i < 4:
        pre = [f"s_mov_b32 m0, s{S_DW}"] if i == 0 else []
        return pre, f"buffer_load_dwordx4 v1, {sq(S_WF)}, s{S_WO} offen offset:{i*1024} sc1 lds"
    return [f"s_add_u32 m0, s{S_DW}, 4096"], f"buffer_load_dwordx4 v1, {sq(S_WF)}, s{S_WO4} offen sc1 lds"


def fr3(par, ks, n):
    return FR + 72 * par + 36 * ks + 4 * n


def rd3(par, ks, n):
    if n < 4:
        return f"ds_read_b128 {vr(fr3(par, ks, n))}, v{V_RB} offset:{(2*n+ks)*1024}"
    return f"ds_read_b128 {vr(fr3(par, ks, n))}, v{V_RA} offset:{(10*ks+n-4)*1024}"


RD3 = [(ks, n) for n in (0, 4, 1, 2, 3, 5, 6, 7, 8) for ks in range(2)]
ADV3 = [f"s_add_u32 s{S_OO}, s{S_OO}, 2048", f"s_add_u32 s{S_WO}, s{S_WO}, {2*40960}", f"s_add_u32 s{S_WO4}, s{S_WO4}, {2*40960}"]


def stage3(a, par, accb, bsrd, bv, wait, hook, last):
    ex = {3: f"s_add_u32 s{S_DO}, s{S_R3}, s{S_LO}\ns_add_u32 s{S_DW}, s{S_R3}, s{S_LW}\ns_add_u32 s{S_R3}, s{S_R3}, {STG}",
          4: f"s_cmp_eq_u32 s{S_R3}, {4*STG}\ns_cselect_b32 s{S_R3}, 0, s{S_R3}",
          5: f"v_add_u32 v{V_RB}, s{S_R3}, v{V_RB0}\nv_add_u32 v{V_RA}, s{S_R3}, v{V_RA0}",
          6: wait, 7: "s_waitcnt lgkmcnt(0)\ns_barrier", 8: hook}
    g = 9
    for k in range(9):
        pre, ld = dma3(k, bsrd, bv)
        ex[g] = rd3(1 - par, *RD3[2 * k])
        ex[g + 1] = rd3(1 - par, *RD3[2 * k + 1]) + "".join("\n" + x for x in pre)
        ex[g + 2] = ld
        g += 3
    ex[36] = "\n".join(ADV3)
    ex[37] = f"s_sub_u32 s{S_CNT}, s{S_CNT}, 1"
    ex[39] = "s_waitcnt lgkmcnt(6)" + (f"\ns_cmp_lg_u32 s{S_CNT}, 0" if last else "")
    for g in range(40):
        i, t, ks = g // 8, (g % 8) >> 1, g & 1
        acc = ar(accb + 4 * (4 * i + t))
        a(mfma(acc, vr(fr3(par, ks, 4 + i)), vr(fr3(par, ks, t)), acc))
        if ex.get(g, "").strip():
            a(ex[g])


def pack_store(a, accb, region):
    a(f"""
    s_lshl_b32 s{S_T0}, s{S_TILE}, 2
    s_add_u32 s{S_T0}, s{S_T0}, s{S_WAVE}
    s_lshl_b32 s{S_T0}, s{S_T0}, 2
    s_add_u32 s{S_T0}, s{S_T0}, s{S_J}
    s_mul_i32 s{S_T0}, s{S_T0}, 10240
    s_add_u32 s{S_T0}, s{S_T0}, {region}
    """)
    for t in range(4):
        b, o = 40, 96 + 12 * t
        for i in range(5):
            for r in range(4):
                a(f"v_accvgpr_read_b32 v{b+4*i+r}, a{accb+4*(4*i+t)+r}")
        for e in range(10):
            a(f"v_cvt_pk_bf16_f32 v{o+e}, v{b+2*e}, v{b+2*e+1}")
        a(f"""
        buffer_store_dwordx4 {vr(o)}, v1, {sq(S_PT)}, s{S_T0} offen sc1
        buffer_store_dwordx4 {vr(o+4)}, v1, {sq(S_PT)}, s{S_T0} offen offset:1024 sc1
        buffer_store_dwordx2 {vr(o+8,2)}, v{V_PO}, {sq(S_PT)}, s{S_T0} offen offset:2048 sc1
        s_add_u32 s{S_T0}, s{S_T0}, 2560
        """)


def part_loads(a, region, base):
    a(f"""
    s_lshl_b32 s{S_T0}, s{S_TILE}, 2
    s_add_u32 s{S_T0}, s{S_T0}, s{S_J}
    s_mul_i32 s{S_T0}, s{S_T0}, 40960
    s_mul_i32 s{S_T1}, s{S_WAVE}, 2560
    s_add_u32 s{S_T0}, s{S_T0}, s{S_T1}
    s_add_u32 s{S_T0}, s{S_T0}, {region}
    """)
    for src in range(4):
        o = base + 12 * src
        a(f"""
        buffer_load_dwordx4 {vr(o)}, v1, {sq(S_PT)}, s{S_T0} offen sc1
        buffer_load_dwordx4 {vr(o+4)}, v1, {sq(S_PT)}, s{S_T0} offen offset:1024 sc1
        buffer_load_dwordx2 {vr(o+8,2)}, v{V_PO}, {sq(S_PT)}, s{S_T0} offen offset:2048 sc1
        s_add_u32 s{S_T0}, s{S_T0}, 10240
        """)


def part_sum(a, base, dst, younger, tmp):
    for src in range(4):
        o = base + 12 * src
        a(f"s_waitcnt vmcnt({3*(3-src)+younger})")
        for e in range(10):
            if src == 0:
                a(f"v_lshlrev_b32 v{dst+2*e}, 16, v{o+e}\nv_and_b32 v{dst+1+2*e}, 0xffff0000, v{o+e}")
            else:
                a(f"v_lshlrev_b32 v{tmp}, 16, v{o+e}\nv_and_b32 v{tmp+1}, 0xffff0000, v{o+e}")
                a(f"v_add_f32 v{dst+2*e}, v{tmp}, v{dst+2*e}\nv_add_f32 v{dst+1+2*e}, v{tmp+1}, v{dst+1+2*e}")


def signal(a):
    half_lanes(a, f"buffer_store_dword v{V_ONE}, v{V_L4}, {sq(S_FL)}, s{S_T0} offen sc1")


def swaps(op, src, tmp):
    q = []
    for perm in ("v_permlane32_swap_b32", "v_permlane16_swap_b32"):
        for what in ("v_mov_b32 v{b}, v{l}", perm + " v{l}, v{b}", op + " v{l}, v{l}, v{b}"):
            for t in (0, 2):
                q.append("\n".join(what.format(l=src + tt, b=tmp + tt) for tt in (t, t + 1)))
    return q


def gen_kernel(a):
    G, spare = build_schedule()
    a(f".p2align 8\n.type {KNAME},@function\n{KNAME}:")
    a("s_cmp_ge_u32 s2, 256\ns_cbranch_scc1 L_end")
    stamp(a, 0)
    a(f"""
    s_load_dwordx2 s[{P_X}:{P_X+1}], s[0:1], 0
    s_load_dwordx2 s[{P_WS}:{P_WS+1}], s[0:1], 96
    s_load_dwordx4 s[{P_K}:{P_K+3}], s[0:1], 8
    s_load_dwordx4 s[{P_WQ}:{P_WQ+3}], s[0:1], 24
    s_load_dwordx4 s[{P_W1}:{P_W1+3}], s[0:1], 48
    s_load_dwordx4 s[{P_W2}:{P_W2+3}], s[0:1], 64
    s_load_dwordx4 s[{P_OUT}:{P_OUT+3}], s[0:1], 80
    v_and_b32 v{V_L128}, 63, v0
    v_lshlrev_b32 v{V_L128}, 7, v{V_L128}
    s_getpc_b64 s[{S_XN}:{S_XN+1}]
    L_pc2:
    s_mov_b32 s{S_XN+2}, L_p1_loop-L_pc2
    s_mov_b32 s{S_XN+3}, 0x00020000
    buffer_load_dword v61, v{V_L128}, {sq(S_XN)}, 0 offen
    s_and_b32 s{S_T0}, s2, 7
    s_lshl_b32 s{S_T0}, s{S_T0}, 2
    s_bfe_u32 s{S_T1}, s2, 0x20003
    s_add_u32 s{S_HEAD}, s{S_T0}, s{S_T1}
    s_lshr_b32 s{S_QB}, s2, 5
    s_mov_b32 s{S_PASS}, 0
    v_lshrrev_b32 v85, 4, v0
    v_lshrrev_b32 v1, 6, v0
    v_and_b32 v0, 63, v0
    v_readfirstlane_b32 s{S_WAVE}, v1
    s_lshl_b32 s{S_T0}, s{S_QB}, 8
    s_lshl_b32 s{S_T1}, s{S_HEAD}, 3
    s_add_u32 s{S_T0}, s{S_T0}, s{S_T1}
    v_add_u32 v85, s{S_T0}, v85
    v_and_b32 v31, 15, v0
    v_mul_u32_u24 v86, 1280, v85
    v_lshl_add_u32 v86, v31, 4, v86
    s_waitcnt lgkmcnt(0)
    s_add_u32 s{S_FL}, s{P_WS}, {WS_FLAG}
    s_addc_u32 s{S_FL+1}, s{P_WS+1}, 0
    s_load_dword s{S_NONCE}, s[{S_FL}:{S_FL+1}], {FL_NONCE}
    """)
    srd(a, S_X, P_X, XN_BYTES)
    a(f"s_cmp_ge_u32 s{S_WAVE}, 2\ns_cbranch_scc1 L_restart")
    for i in range(5):
        a(f"buffer_load_dwordx4 {vr(64+4*i)}, v86, {sq(S_X)}, 0 offen offset:{256*i}")
    a(f"""
    L_restart:
    v_lshrrev_b32 v84, 4, v85
    v_mul_u32_u24 v84, 20480, v84
    v_lshrrev_b32 v87, 2, v31
    v_lshl_add_u32 v84, v87, 10, v84
    v_and_b32 v87, 3, v31
    v_lshl_add_u32 v84, v87, 6, v84
    v_bfe_u32 v87, v85, 2, 2
    v_lshl_add_u32 v84, v87, 8, v84
    v_and_b32 v87, 3, v85
    v_lshl_add_u32 v84, v87, 4, v84
    v_and_b32 v26, 7, v0
    v_lshrrev_b32 v27, 3, v0
    v_lshrrev_b32 v28, 4, v0
    v_bfe_u32 v29, v0, 2, 2
    v_and_b32 v30, 3, v0
    v_and_b32 v31, 15, v0
    v_lshlrev_b32 v1, 4, v0
    v_lshlrev_b32 v36, 3, v28
    v_lshlrev_b32 v{V_L4}, 2, v0
    s_mul_i32 s{S_W3072}, s{S_WAVE}, 3072
    s_mul_i32 s{S_T0}, s{S_HEAD}, 96
    s_sub_u32 s{S_T1}, 3072, s{S_T0}
    """)
    srd(a, S_MISC, P_B1, f"s{S_T1}", f"s{S_T0}")
    for ft in range(3):
        a(f"buffer_load_dwordx2 {vr(40+2*ft,2)}, v36, {sq(S_MISC)}, 0 offen offset:{32*ft}")
    a(f"s_sub_u32 s{S_T1}, {640*1536*2}, s{S_T0}")
    srd(a, S_W1, P_W1, f"s{S_T1}", f"s{S_T0}")
    a(f"s_mul_i32 s{S_T0}, s{S_HEAD}, 384\ns_sub_u32 s{S_T1}, {640*6144*2}, s{S_T0}")
    srd(a, S_WQ, P_WQ, f"s{S_T1}", f"s{S_T0}")
    a(f"""
    s_mov_b32 s{S_FL+2}, {FLAG_BYTES}
    s_mov_b32 s{S_FL+3}, 0x00020000
    s_lshl_b32 s{S_T0}, s{S_WAVE}, 3
    v_add_u32 v32, s{S_T0}, v27
    v_mul_u32_u24 v33, 12288, v32
    v_bfe_u32 v34, v27, 1, 1
    v_lshlrev_b32 v35, 2, v34
    v_xor_b32 v35, v35, v26
    v_lshl_add_u32 v{V1_DW}, v35, 4, v33
    s_and_b32 s{S_T0}, s{S_WAVE}, 1
    s_lshl_b32 s{S_T0}, s{S_T0}, 2
    v_lshlrev_b32 v35, 1, v34
    v_or_b32 v35, s{S_T0}, v35
    v_xor_b32 v35, v35, v26
    v_mul_u32_u24 v33, 3072, v32
    v_lshl_add_u32 v{V1_DF}, v35, 4, v33
    s_lshl_b32 s{S_DMA1}, s{S_WAVE}, 10
    v_mov_b32 v{V_ZERO}, 0
    s_lshl_b32 s{S_T0}, s{S_PASS}, 1
    s_or_b32 s{S_T0}, s{S_T0}, s{S_WAVE}
    s_cmp_lt_u32 s{S_T0}, 2
    s_cbranch_scc1 L_ln
    """)
    a(f"""
    s_cmp_lg_u32 s{S_PASS}, 0
    s_cbranch_scc1 L_nopf
    s_lshl_b32 s{S_T0}, s{S_QB}, 4
    v_lshrrev_b32 v52, 2, v0
    v_add_u32 v52, s{S_T0}, v52
    v_mul_u32_u24 v53, 3072, v52
    v_lshlrev_b32 v52, 2, v53
    v_lshl_add_u32 v52, v30, 7, v52
    v_mul_u32_u24 v54, 40, v30
    v_add_u32 v53, v54, v53
    s_cmp_eq_u32 s{S_WAVE}, 2
    s_cbranch_scc1 L_pf2
    s_mov_b32 s{S_T0}, {128*12288}
    buffer_load_dword v56, v52, {sq(S_WQ)}, 0 offen
    buffer_load_dword v57, v52, {sq(S_WQ)}, s{S_T0} offen
    s_branch L_pf3
    L_pf2:
    s_mov_b32 s{S_T0}, {128*3072}
    buffer_load_dword v56, v53, {sq(S_W1)}, 0 offen
    buffer_load_dword v57, v53, {sq(S_W1)}, s{S_T0} offen
    L_pf3:
    s_getpc_b64 s[{S_XN}:{S_XN+1}]
    L_pc0:
    s_add_u32 s{S_XN}, s{S_XN}, L_p1_loop-L_pc0
    s_addc_u32 s{S_XN+1}, s{S_XN+1}, 0
    s_mov_b32 s{S_XN+2}, L_hooka-L_p1_loop
    s_and_b32 s{S_T0}, s{S_QB}, 1
    s_lshl_b32 s{S_T0}, s{S_T0}, 1
    s_add_u32 s{S_T0}, s{S_T0}, s{S_WAVE}
    s_sub_u32 s{S_T0}, s{S_T0}, 2
    s_lshl_b32 s{S_T0}, s{S_T0}, 13
    buffer_load_dword v58, v{V_L128}, {sq(S_XN)}, s{S_T0} offen
    s_waitcnt vmcnt(1) lgkmcnt(0)
    s_add_u32 s{S_NONCE}, s{S_NONCE}, 1
    L_nopf:
    """)
    a(f"""
    v_mov_b32 v52, v{V1_DW}
    v_mov_b32 v53, v{V1_DF}
    s_mov_b32 s{S_RD}, s{S_W3072}
    s_mov_b32 s{S_RD1}, s{S_DMA1}
    s_mov_b32 s{S_CNT}, s{S_PASS}
    L_pre:
    """)
    for st in range(2):
        a(f"s_mov_b32 s{S_SO0}, {64*st*12288}\ns_mov_b32 s{S_SO1}, {(64*st+32)*12288}")
        a(f"s_mov_b32 s{S_SW0}, {64*st*3072}\ns_mov_b32 s{S_SW1}, {(64*st+32)*3072}")
        dma_tile(a, 52, S_WQ, S_SO0, S_SO1, S_RD, LDS_V + st * SLOT)
        for d in range(2):
            a(f"s_add_u32 m0, s{S_RD1}, {LDS_W1 + st*8192 + d*4096}\ns_nop 0")
            a(f"buffer_load_dwordx4 v53, {sq(S_W1)}, s{S_SW0+d} offen lds")
    a(f"""
    s_cmp_lg_u32 s{S_CNT}, 0
    s_cbranch_scc1 L_setup
    s_mov_b32 s{S_CNT}, 1
    v_subrev_u32 v52, {16*12288}, v52
    v_subrev_u32 v53, {16*3072}, v53
    s_sub_u32 s{S_RD}, s{S_RD}, {2*3072}
    s_sub_u32 s{S_RD1}, s{S_RD1}, 2048
    s_branch L_pre
    L_ln:
    """)
    srd(a, S_MISC, P_WS, XN_BYTES)
    if os.environ.get("TOUCH"):
        a(f"buffer_load_dword v60, v84, {sq(S_MISC)}, 0 offen sc1\nbuffer_load_dword v59, v{V_L128}, {sq(S_FL)}, 0 offen sc1")
    gen_ln_body(a)
    stamp(a, 20)
    a(f"""
    s_waitcnt lgkmcnt(0)
    s_add_u32 s{S_NONCE}, s{S_NONCE}, 1
    v_mov_b32 v52, {LDS_FLAG + 4}
    v_mov_b32 v{V_ONE}, s{S_NONCE}
    s_lshl_b32 s{S_T0}, s{S_QB}, 12
    s_lshl_b32 s{S_T1}, s{S_HEAD}, 7
    s_add_u32 s{S_T0}, s{S_T0}, s{S_T1}
    s_cmp_eq_u32 s{S_WAVE}, 0
    s_waitcnt vmcnt(0)
    s_cbranch_scc1 L_ln0
    ds_write_b32 v52, v{V_ONE}
    s_branch L_setup
    L_ln0:
    ds_read_b32 v53, v52
    s_waitcnt lgkmcnt(0)
    v_cmp_ne_u32 vcc, v53, v{V_ONE}
    s_cbranch_vccnz L_ln0
    """)
    signal(a)
    a("L_setup:")
    stamp(a, 1)
    a(f"s_add_u32 s{S_T1}, s{S_QB}, 1\ns_mul_i32 s{S_T1}, s{S_T1}, {16*20480}")
    srd(a, S_XN, P_WS, f"s{S_T1}")
    srd(a, S_WF, P_WS, WF_BYTES, WS_WF)
    srd(a, S_H, P_WS, H_BYTES, WS_H)
    a(f"s_mul_i32 s{S_T0}, s{S_HEAD}, 786432")
    srd(a, S_K, P_K, 0, f"s{S_T0}")
    srd(a, S_V, P_V, 786432, f"s{S_T0}")
    a(f"""
    s_mov_b32 s{S_MISC+2}, {48*40960}
    s_cmp_lt_u32 s2, 192
    s_cselect_b32 s{S_MISC}, s{P_WO}, s{P_W2}
    s_cselect_b32 s{S_MISC+1}, s{P_WO+1}, s{P_W2+1}
    s_cselect_b32 s{S_MISC+2}, {6144*1280}, s{S_MISC+2}
    s_cselect_b32 s{S_T0}, 0, 192
    s_sub_u32 s{S_T0}, s2, s{S_T0}
    s_mul_i32 s{S_RS}, s{S_T0}, 40960
    s_mul_i32 s{S_RO}, s2, 40960
    s_lshl_b32 s{S_T0}, s{S_WAVE}, 10
    s_add_u32 s{S_RO}, s{S_RO}, s{S_T0}
    v_mov_b32 v{V_ONE}, s{S_NONCE}
    s_and_b32 s{S_T0}, s{S_WAVE}, 1
    s_lshl_b32 s{S_T0}, s{S_T0}, 2
    v_mul_u32_u24 v33, 384, v27
    v_add_u32 v33, s{S_W3072}, v33
    v_lshrrev_b32 v34, 1, v27
    v_add_u32 v35, s{S_T0}, v34
    v_xor_b32 v35, v35, v26
    v_lshl_add_u32 v{V_DK}, v35, 4, v33
    v_lshlrev_b32 v35, 1, v34
    v_xor_b32 v35, v35, v26
    v_lshl_add_u32 v{V_DV}, v35, 4, v33
    v_mul_u32_u24 v33, 1280, v32
    v_lshl_add_u32 v{V_RD}, v35, 4, v33
    s_lshl_b32 s{S_T0}, s{S_QB}, 4
    v_lshrrev_b32 v52, 2, v0
    v_add_u32 v52, s{S_T0}, v52
    v_mul_u32_u24 v53, 3072, v52
    v_lshlrev_b32 v52, 2, v53
    v_lshl_add_u32 v52, v30, 7, v52
    v_mul_u32_u24 v54, 40, v30
    v_add_u32 v53, v54, v53
    s_mul_i32 s{S_T0}, s{S_QB}, 48
    v_add_u32 v54, s{S_T0}, v0
    v_lshlrev_b32 v54, 7, v54
    s_mov_b32 s{S_O+3}, 0x00020000
    s_cmp_eq_u32 s{S_WAVE}, 1
    s_cselect_b32 s{S_O}, s{S_W1}, s{S_WQ}
    s_cselect_b32 s{S_O+1}, s{S_W1+1}, s{S_WQ+1}
    s_cselect_b32 s{S_O+2}, s{S_W1+2}, s{S_WQ+2}
    s_cselect_b64 vcc, -1, 0
    s_mov_b32 s{S_HS}, {128*12288}
    s_cselect_b32 s{S_HS}, {128*3072}, s{S_HS}
    v_cndmask_b32 v46, v52, v53, vcc
    s_cmp_eq_u32 s{S_WAVE}, 2
    s_cselect_b32 s{S_O}, s{S_V}, s{S_O}
    s_cselect_b32 s{S_O+1}, s{S_V+1}, s{S_O+1}
    s_cselect_b32 s{S_O+2}, s{S_V+2}, s{S_O+2}
    s_cselect_b64 vcc, -1, 0
    s_cselect_b32 s{S_HS}, 0, s{S_HS}
    v_cndmask_b32 v46, v46, v54, vcc
    s_cmp_eq_u32 s{S_WAVE}, 3
    s_cselect_b32 s{S_O+2}, 0, s{S_O+2}
    s_lshl_b32 s{S_M0}, s{S_HS}, 1
    s_mov_b32 s{S_SV0}, 0
    s_mov_b32 s{S_SV1}, 0
    s_add_u32 s{S_C0}, s{S_W3072}, {LDS_X}
    s_add_u32 s{S_C1}, s{S_W3072}, {LDS_K}
    s_lshl_b32 s{S_T0}, s{S_QB}, 4
    s_lshl_b32 s{S_T1}, s{S_WAVE}, 2
    s_add_u32 s{S_T0}, s{S_T0}, s{S_T1}
    s_mul_i32 s{S_T0}, s{S_T0}, 20480
    v_lshlrev_b32 v33, 8, v29
    v_lshl_add_u32 v33, v28, 6, v33
    v_lshl_add_u32 v33, v30, 4, v33
    v_add_u32 v{V1_X}, s{S_T0}, v33
    v_add_u32 v{V1_X+1}, 20480, v{V1_X}
    v_add_u32 v{V1_X+2}, {2*20480}, v{V1_X}
    v_add_u32 v{V1_X+3}, {3*20480}, v{V1_X}
    s_mov_b32 s{S_SO0}, {128*12288}
    s_mov_b32 s{S_SO1}, {160*12288}
    s_mov_b32 s{S_SW0}, {128*3072}
    s_mov_b32 s{S_SW1}, {160*3072}
    s_mov_b32 s{S_RD}, 0
    s_mov_b32 s{S_RD1}, 0
    s_add_u32 s{S_DMA}, s{S_W3072}, {2*SLOT}
    s_add_u32 s{S_DMA1}, s{S_DMA1}, {2*8192}
    v_mul_u32_u24 v33, 3072, v28
    v_lshl_add_u32 v33, v29, 7, v33
    v_add_u32 v33, {LDS_V}, v33
    v_lshrrev_b32 v34, 1, v29
    v_lshlrev_b32 v35, 2, v34
    v_xor_b32 v35, v35, v30
    v_lshl_add_u32 v{V1_WB}, v35, 4, v33
    v_xor_b32 v{V1_WB+1}, 64, v{V1_WB}
    v_mov_b32 v{V1_WA}, v{V1_WB}
    v_mov_b32 v{V1_WA+1}, v{V1_WB+1}
    v_lshlrev_b32 v33, 10, v28
    v_lshl_add_u32 v33, v29, 7, v33
    v_add_u32 v33, {LDS_W1}, v33
    v_and_b32 v35, 1, v30
    v_lshl_add_u32 v33, v35, 3, v33
    v_lshrrev_b32 v35, 1, v30
    v_lshl_add_u32 v33, v35, 4, v33
    v_and_b32 v35, 1, v28
    v_lshl_add_u32 v35, v35, 1, v34
    v_lshl_add_u32 v{V1_FB}, v35, 5, v33
    v_xor_b32 v{V1_FB+1}, 32, v{V1_FB}
    v_xor_b32 v{V1_FB+2}, 64, v{V1_FB}
    v_mov_b32 v{V1_FA}, v{V1_FB}
    v_mov_b32 v{V1_FA+1}, v{V1_FB+1}
    v_mov_b32 v{V1_FA+2}, v{V1_FB+2}
    v_mov_b32 v48, 0
    v_mov_b32 v49, 0
    v_mov_b32 v50, 0
    v_mov_b32 v51, 0
    s_or_b32 s{S_T0}, s{S_WAVE}, s{S_PASS}
    s_cmp_eq_u32 s{S_T0}, 0
    s_cbranch_scc1 L_nw
    s_waitcnt vmcnt(0)
    L_nw:
    """)
    for i in range(12):
        a(f"v_mfma_f32_32x32x16_bf16 {vr(64+16*i,16)}, v[48:51], v[48:51], 0")
    for ft in range(3):
        a(f"""
        v_lshlrev_b32 v52, 16, v{40+2*ft}
        v_and_b32 v53, 0xffff0000, v{40+2*ft}
        v_lshlrev_b32 v54, 16, v{41+2*ft}
        v_and_b32 v55, 0xffff0000, v{41+2*ft}
        """)
        for t in range(4):
            for r in range(4):
                a(f"v_accvgpr_write_b32 a{P1_H+4*(4*ft+t)+r}, v{52+r}")
    a(f"""
    s_or_b32 s{S_T0}, s{S_WAVE}, s{S_PASS}
    s_cmp_lg_u32 s{S_T0}, 0
    s_cbranch_scc1 L_p1go
    s_lshl_b32 s{S_T0}, s{S_QB}, 12
    v_and_b32 v53, {31*128}, v{V_L128}
    L_poll1:
    buffer_load_dword v52, v53, {sq(S_FL)}, s{S_T0} offen sc1
    s_waitcnt vmcnt(0)
    v_cmp_ne_u32 vcc, v52, v{V_ONE}
    s_cbranch_vccnz L_poll1
    L_p1go:
    s_barrier
    """)
    stamp(a, 2)
    for ks in range(2):
        for j in range(4):
            a(f"buffer_load_dwordx4 {ar(P1_B+16*ks+4*j)}, v{V1_X+j}, {sq(S_XN)}, 0 offen offset:{1024*ks} sc1")
    for f in range(2):
        for k in range(4):
            a(p1_read(f, k))
    a(f"s_mov_b32 s{S_BOFF}, 2048\ns_mov_b32 s{S_CNT}, 5\ns_waitcnt vmcnt(0) lgkmcnt(4)")
    stamp(a, 3)
    a(".p2align 6\nL_p1_loop:")
    gen_p1_stage(a, 0)
    gen_p1_stage(a, 1)
    a("s_cbranch_scc1 L_p1_loop\ns_waitcnt vmcnt(0) lgkmcnt(0)\ns_barrier")
    stamp(a, 4)
    dm = []
    for (voff, sr, so, goff, lds) in ((V_DV, S_V, S_SV0, 0, LDS_V), (V_DK, S_K, S_SO0, 2 * SLOT, LDS_K + 2 * SLOT), (V_DV, S_V, S_SV0, SLOT, LDS_V + SLOT)):
        for d in range(6):
            pre = f"s_mov_b32 s{so}, {goff}\ns_mov_b32 s{so+1}, {goff+12288}\n" if d == 0 else ""
            dm.append((pre + f"s_add_u32 m0, s{S_W3072}, {lds + (d//3)*12288 + (d%3)*896}",
                       f"buffer_load_dwordx4 v{voff}, {sq(sr)}, s{so + d//3} offen offset:{(d%3)*128} lds"))
    c = (192 ** -0.5) * math.log2(math.e)
    a(f"s_mov_b32 s{S_C0}, {fh(c)}\ns_mov_b32 s{S_C1}, {fh(c)}")
    for i in range(24):
        b = P1_ACC + 8 * i
        if i < 18:
            a(dm[i][0])
        for j in range(4):
            a(f"v_pk_mul_f32 {vr(b+2*j,2)}, {vr(b+2*j,2)}, s[{S_C0}:{S_C1}]")
        if i < 18:
            a(dm[i][1])
        if i % 2 == 1 and i // 2 + 3 < 12:
            a(f"v_mfma_f32_32x32x16_bf16 {ar(16*(i//2+3),16)}, v[48:51], v[48:51], 0")
        for j in range(4):
            a(f"v_cvt_pk_bf16_f32 v{V_Q+4*i+j}, v{b+2*j}, v{b+2*j+1}")
    for e in range(32):
        a(f"v_accvgpr_write_b32 a{A_Q+e}, v{V_Q+64+e}")
    stamp(a, 21)
    srd(a, S_O, P_WS, O_BYTES, WS_O)
    k0 = -2.0 * math.log2(math.e) * math.sqrt(2 / math.pi)
    k1 = k0 * 0.044715
    a(f"""
    s_mov_b32 s{S_SO0}, {3*SLOT}
    s_mov_b32 s{S_SO1}, {3*SLOT+12288}
    s_mov_b32 s{S_SV0}, {2*SLOT}
    s_mov_b32 s{S_SV1}, {2*SLOT+12288}
    s_lshl_b32 s{S_T0}, s{S_QB}, 4
    s_lshl_b32 s{S_T1}, s{S_WAVE}, 2
    s_add_u32 s{S_T0}, s{S_T0}, s{S_T1}
    s_mul_i32 s{S_T0}, s{S_T0}, {48*1024}
    v_add_u32 v52, s{S_T0}, v1
    v_add_u32 v53, {48*1024}, v52
    v_add_u32 v54, {2*48*1024}, v52
    v_add_u32 v55, {3*48*1024}, v52
    v_mov_b32 v56, {fh(k1)}
    v_mov_b32 v57, {fh(k0)}
    v_mov_b32 v58, 1.0
    """)
    stamp(a, 22)

    def gelu(ft, packed):
        o = [(f"""s_mul_i32 s{S_T0}, s{S_HEAD}, 3
        s_add_u32 s{S_T0}, s{S_T0}, {ft}
        s_lshr_b32 s{S_T1}, s{S_T0}, 1
        s_lshl_b32 s{S_T1}, s{S_T1}, 10
        s_and_b32 s{S_T0}, s{S_T0}, 1
        s_lshl_b32 s{S_T0}, s{S_T0}, 3
        s_add_u32 s{S_M0}, s{S_T0}, s{S_T1}""", 0)]
        x, u = 216, 232
        o += [(f"v_accvgpr_read_b32 v{x+e}, a{P1_H+16*ft+e}", 1) for e in range(16)]
        if packed:
            o.append((f"v_mfma_f32_32x32x16_bf16 {ar(16*ft,16)}, v[48:51], v[48:51], 0", 0))
        for pk, sc, sl in (("v_pk_mul_f32 {U}, {X}, {X}", "v_mul_f32 v{u}, v{x}, v{x}", 1),
                           ("v_pk_fma_f32 {U}, {U}, v[56:57], v[56:57] op_sel:[0,0,1] op_sel_hi:[1,0,1]", "v_fma_f32 v{u}, v{u}, v56, v57", 1),
                           ("v_pk_mul_f32 {U}, {U}, {X}", "v_mul_f32 v{u}, v{u}, v{x}", 1),
                           (None, "v_exp_f32 v{u}, v{u}", 2),
                           ("v_pk_add_f32 {U}, {U}, v[58:59] op_sel_hi:[1,0]", "v_add_f32 v{u}, 1.0, v{u}", 1),
                           (None, "v_rcp_f32 v{u}, v{u}", 2),
                           ("v_pk_mul_f32 {X}, {U}, {X}", "v_mul_f32 v{x}, v{u}, v{x}", 1)):
            if packed and pk:
                o += [(pk.format(U=vr(u + e, 2), X=vr(x + e, 2)), 1) for e in range(0, 16, 2)]
            else:
                o += [(sc.format(u=u + e, x=x + e), sl) for e in range(16)]
        o += [(f"v_cvt_pk_bf16_f32 v{192+8*ft+e}, v{x+2*e}, v{x+2*e+1}", 1) for e in range(8)]
        o += [(f"buffer_store_dwordx2 {vr(192+8*ft+2*t,2)}, v{52+t}, {sq(S_H)}, s{S_M0} offen sc1", 2) for t in range(4)]
        return o
    a(f"s_cmp_lg_u32 s{S_PASS}, 0\ns_cbranch_scc1 L_nogelu")
    for ft in range(2):
        for ins, _ in gelu(ft, True):
            a(ins)
    a("L_nogelu:")
    a(f"""
    v_lshrrev_b32 v33, 3, v31
    v_mul_u32_u24 v33, 3072, v33
    v_lshl_add_u32 v33, v26, 7, v33
    v_lshrrev_b32 v34, 1, v31
    v_xor_b32 v34, v34, v28
    v_lshl_add_u32 v{V_KB}, v34, 4, v33
    v_xor_b32 v{V_KB+1}, 64, v{V_KB}
    v_mov_b32 v{V_KA}, v{V_KB}
    v_mov_b32 v{V_KA+1}, v{V_KB+1}
    v_lshrrev_b32 v33, 1, v28
    v_mul_u32_u24 v33, 3072, v33
    v_add_u32 v33, {LDS_V}, v33
    v_and_b32 v34, 1, v28
    v_lshl_add_u32 v34, v34, 2, v29
    v_lshl_add_u32 v33, v34, 7, v33
    v_and_b32 v35, 1, v30
    v_lshl_add_u32 v33, v35, 3, v33
    v_lshrrev_b32 v35, 1, v30
    v_lshl_add_u32 v33, v35, 4, v33
    v_lshrrev_b32 v34, 1, v34
    v_lshl_add_u32 v{V_VB}, v34, 5, v33
    v_xor_b32 v{V_VB+1}, 32, v{V_VB}
    v_xor_b32 v{V_VB+2}, 64, v{V_VB}
    v_xor_b32 v{V_VB+3}, 96, v{V_VB}
    v_mov_b32 v34, {LDS_FLAG}
    ds_write_b32 v34, v{V_ZERO}
    s_lshl_b32 s{S_T0}, s{S_WAVE}, 5
    v_xor_b32 v{V_RR}, s{S_T0}, v{V_VB}
    v_add_u32 v{V_RR}, {LDS_X - LDS_V}, v{V_RR}
    s_mov_b32 s{S_KC}, 0
    s_cmp_eq_u32 s{S_PASS}, 0
    s_cselect_b32 s{S_HOOK}, 8, 3
    s_mov_b32 s{S_WF+2}, 0
    s_sub_u32 s{S_RO}, s{S_RO}, 4096
    s_cmp_eq_u32 s{S_PASS}, 0
    """)
    for j in range(4):
        a(f"v_mov_b32 v{V_L+j}, 0\nv_mov_b32 v{20+j}, 0xff800000")
    a("s_cbranch_scc0 L_maxfirst")
    stamp(a, 5)

    def qk0(fill):
        for g in range(3):
            a(k_read(g, 0) + "\n" + k_read(g, 1))
        for g in range(12):
            if g == 0:
                a("s_waitcnt lgkmcnt(4)")
            mx = []
            if g % 3 == 1 and g >= 4:
                for t in range(4):
                    s0 = s_reg(g // 3 - 1, t)
                    mx += [(f"v_max3_f32 v{20+t}, v{20+t}, v{s0}, v{s0+1}", 1), (f"v_max3_f32 v{20+t}, v{20+t}, v{s0+2}, v{s0+3}", 1)]
            fill[:0] = mx
            for p in range(8):
                a(qk_mfma(g, p, lambda t: "0"))
                room = 2
                if p == 7 and g < 11:
                    a(f"s_waitcnt lgkmcnt({2 if g <= 9 else 0})")
                if p < 2 and 3 <= g + 2 < 12 and g >= 1:
                    a(k_read(g + 2, p))
                    room = 1
                while fill and fill[0][1] <= room:
                    ins, sl = fill.pop(0)
                    a(ins)
                    room -= sl
        for ins, _ in fill:
            a(ins)
        a(f"s_waitcnt vmcnt(24)\ns_barrier\ns_cmp_lg_u32 s{S_KC}, 0\nv_add_u32 v{V_KA}, {SLOT}, v{V_KB}\nv_add_u32 v{V_KA+1}, {SLOT}, v{V_KB+1}\ns_nop 1")
        for t in range(4):
            s0 = s_reg(3, t)
            a(f"v_max3_f32 v{20+t}, v{20+t}, v{s0}, v{s0+1}\nv_max3_f32 v{20+t}, v{20+t}, v{s0+2}, v{s0+3}")
    g2 = gelu(2, False)
    for ins, _ in g2[:17]:
        a(ins)
    a(f"v_mfma_f32_32x32x16_bf16 {ar(32,16)}, v[48:51], v[48:51], 0")
    qk0(g2[17:])
    a("L_qkdone:")
    for g in range(2):
        a(k_read(g, 0) + "\n" + k_read(g, 1))
    for x in swaps("v_max_f32", 20, 24):
        a(x + "\ns_nop 0")
    a(f"s_cmp_eq_u32 s{S_PASS}, 0\ns_cselect_b32 s{S_T0}, {fh(-OFF)}, 0")
    for t in range(4):
        a(f"v_sub_f32 v{V_NM+4*t}, s{S_T0}, v{20+t}")
    for t in range(4):
        for r in range(1, 4):
            a(f"v_mov_b32 v{V_NM+4*t+r}, v{V_NM+4*t}")
    for u in range(4):
        for t in range(4):
            for j in range(2):
                r = s_reg(u, t) + 2 * j
                a(f"v_pk_add_f32 {vr(r,2)}, {vr(r,2)}, {vr(V_NM+4*t,2)}")
    for i in range(192):
        if G[i]["exp"] is not None and G[i]["exp"][0] == "cur":
            a(soft("exp", *G[i]["exp"], 0))
    a("s_nop 0")
    for i in range(192):
        for (w, kind, u, t, x) in G[i]["valu"]:
            if w == "cur":
                a(soft(kind, w, u, t, x, 0))
    a(f"""
    s_mov_b32 s{S_RD}, 0
    s_mov_b32 s{S_RK}, {SLOT}
    s_mov_b32 s{S_DV}, {2*SLOT}
    s_add_u32 s{S_M0}, s{S_W3072}, {LDS_V}
    s_mov_b32 s{S_DKM}, s{S_W3072}
    s_add_u32 s{S_DVM}, s{S_M0}, {2*SLOT}
    s_mov_b32 s{S_CNT}, 31
    s_waitcnt lgkmcnt({att_counts(G)[0]})
    """)
    stamp(a, 6)
    a(".p2align 6\nL_att_loop:")
    gen_body(a, G, spare, 1, lab="a")
    a("s_cbranch_scc0 L_att_tail")
    gen_body(a, G, spare, 0, lab="b")
    a("s_branch L_att_loop")
    f2 = "\n".join(f"s_mov_b32 s{S_T0}, {FL_F2 + k*8192}\nbuffer_load_dword v{V_F2+k}, v{V_L128}, {sq(S_FL)}, s{S_T0} offen sc1" for k in range(4))
    a(f"""
    L_hooka:
    s_mov_b32 s{S_KC}, 0
    s_branch L_hook
    L_hookb:
    s_mov_b32 s{S_KC}, 1
    L_hook:
    s_cmp_eq_u32 s{S_CNT}, 3
    s_cbranch_scc1 L_hF
    L_hP:
    s_mov_b32 s{S_HOOK}, 3
    s_cmp_lg_u32 s{S_WAVE}, 0
    s_cbranch_scc1 L_hdone
    s_lshl_b32 s{S_T0}, s2, 7
    s_add_u32 s{S_T0}, s{S_T0}, {FL_F2}
    """)
    signal(a)
    a(f"""
    s_nop 1
    s_branch L_hdone
    L_hF:
    """)
    code_prefetch(a, 1, "L_att_tail", "L_end", S_XN, V_F2 + 4, one=True)
    a(f"""
    s_cmp_lg_u32 s{S_WAVE}, 0
    s_cbranch_scc1 L_hdone
    {f2}
    """)
    a(f"""
    L_hdone:
    s_cmp_eq_u32 s{S_KC}, 0
    s_cbranch_scc1 L_hreta
    s_branch L_hretb
    L_maxfirst:
    v_mfma_f32_32x32x16_bf16 a[0:15], v[48:51], v[48:51], 0
    v_mfma_f32_32x32x16_bf16 a[16:31], v[48:51], v[48:51], 0
    v_mfma_f32_32x32x16_bf16 a[32:47], v[48:51], v[48:51], 0
    s_mov_b32 s{S_KC}, {32*SLOT}
    L_maxnext:
    s_sub_u32 s{S_KC}, s{S_KC}, {SLOT}
    s_add_u32 s{S_T0}, s{S_KC}, 12288
    v_mov_b32 v{V_KA}, v{V_KB}
    v_mov_b32 v{V_KA+1}, v{V_KB+1}
    """)
    dma_tile(a, V_DK, S_K, S_KC, S_T0, S_W3072, LDS_K)
    a("s_waitcnt vmcnt(0)\ns_barrier")
    qk0([])
    a(f"""
    s_cbranch_scc1 L_maxnext
    s_branch L_qkdone
    L_fallback:
    s_waitcnt vmcnt(0) lgkmcnt(0)
    s_barrier
    s_mov_b32 s{S_PASS}, 1
    s_branch L_restart
    L_nonce:
    s_mov_b32 s{S_T0}, {FL_NONCE}
    """)
    signal(a)
    a(f"""
    s_nop 1
    s_branch L_nononce
    L_repoll2:
    {f2}
    s_waitcnt vmcnt(0)
    s_branch L_chk2
    L_att_tail:
    v_add_u32 v{V_VA}, s{S_RD}, v{V_VB}
    v_add_u32 v{V_VA+1}, s{S_RD}, v{V_VB+1}
    v_add_u32 v{V_VA+2}, s{S_RD}, v{V_VB+2}
    v_add_u32 v{V_VA+3}, s{S_RD}, v{V_VB+3}
    """)
    for f in (12, 13, 14):
        for k in range(4):
            a(v_read(f, k))
    a(f"""
    s_cmp_lg_u32 s{S_WAVE}, 0
    s_cbranch_scc1 L_ok2
    L_chk2:
    v_xor_b32 v{V_F2}, v{V_F2}, v{V_ONE}
    v_xor_b32 v{V_F2+1}, v{V_F2+1}, v{V_ONE}
    v_xor_b32 v{V_F2+2}, v{V_F2+2}, v{V_ONE}
    v_xor_b32 v{V_F2+3}, v{V_F2+3}, v{V_ONE}
    v_or3_b32 v{V_F2}, v{V_F2}, v{V_F2+1}, v{V_F2+2}
    v_or_b32 v{V_F2}, v{V_F2}, v{V_F2+3}
    v_cmp_ne_u32 vcc, 0, v{V_F2}
    s_cbranch_vccnz L_repoll2
    L_ok2:
    """)
    setup = f"""
    s_and_b32 s{S_J}, s2, 3
    s_bfe_u32 s{S_T0}, s2, 0x10002
    s_lshl_b32 s{S_T0}, s{S_T0}, 3
    s_bfe_u32 s{S_MB}, s2, 0x30003
    s_add_u32 s{S_MB}, s{S_MB}, s{S_T0}
    s_lshr_b32 s{S_NB}, s2, 6
    s_lshl_b32 s{S_TILE}, s{S_MB}, 2
    s_add_u32 s{S_TILE}, s{S_TILE}, s{S_NB}
    s_lshl_b32 s{S_T0}, s{S_MB}, 3
    s_lshl_b32 s{S_T1}, s{S_WAVE}, 1
    s_add_u32 s{S_T0}, s{S_T0}, s{S_T1}
    s_mul_i32 s{S_T1}, s{S_T0}, {192*1024}
    v_add_u32 v{V_DO}, s{S_T1}, v1
    v_add_u32 v{V_DO+1}, {192*1024}, v{V_DO}
    s_mul_i32 s{S_T1}, s{S_T0}, {48*1024}
    v_add_u32 v{V_DH}, s{S_T1}, v1
    v_add_u32 v{V_DH+1}, {48*1024}, v{V_DH}
    s_mul_i32 s{S_OO}, s{S_J}, {12*1024}
    s_lshr_b32 s{S_T0}, s{S_WAVE}, 1
    s_mul_i32 s{S_WS0}, s{S_T0}, 40960
    s_mul_i32 s{S_LW}, s{S_T0}, 10240
    s_lshl_b32 s{S_T0}, s{S_T0}, 13
    v_add_u32 v{V_RB0}, s{S_T0}, v1
    s_and_b32 s{S_T0}, s{S_WAVE}, 1
    s_mul_i32 s{S_T0}, s{S_T0}, 5120
    s_add_u32 s{S_WS0}, s{S_WS0}, s{S_T0}
    s_add_u32 s{S_T0}, s{S_T0}, {LDS_WOFF}
    s_add_u32 s{S_LW}, s{S_LW}, s{S_T0}
    v_add_u32 v{V_RA0}, s{S_T0}, v1
    s_mul_i32 s{S_T0}, s{S_NB}, 10240
    s_add_u32 s{S_WS0}, s{S_WS0}, s{S_T0}
    s_mul_i32 s{S_T0}, s{S_J}, {12*40960}
    s_add_u32 s{S_WO}, s{S_WS0}, s{S_T0}
    s_add_u32 s{S_WO}, s{S_WO}, {192*40960}
    s_add_u32 s{S_WO4}, s{S_WO}, 4096
    s_mul_i32 s{S_T0}, s{S_J}, {48*40960}
    s_add_u32 s{S_WS0}, s{S_WS0}, s{S_T0}
    s_lshl_b32 s{S_LO}, s{S_WAVE}, 12
    v_mov_b32 v{V_RB}, v{V_RB0}
    v_mov_b32 v{V_RA}, v{V_RA0}
    s_mov_b32 s{S_WF+2}, {WF_BYTES}
    """
    qd = ["s_waitcnt vmcnt(0)", "s_barrier",
          f"s_or_b32 s{S_T0}, s2, s{S_WAVE}\ns_cmp_eq_u32 s{S_T0}, 0\ns_cbranch_scc1 L_nonce\nL_nononce:"]
    cur, cost = [], 0
    for ln in [x.strip() for x in setup.strip().split("\n")]:
        c1 = 2 if (ln.startswith("v_") and not cur) else 1
        if cost + c1 > 3:
            qd.append("\n".join(cur))
            cur, cost = [], 0
            c1 = 2 if ln.startswith("v_") else 1
        cur.append(ln)
        cost += c1
    qd.append("\n".join(cur))
    gops = []
    for st in range(4):
        for k in range(9):
            pre, ld = dma3(k, S_H, V_DH)
            if k == 0:
                pre = [f"s_add_u32 s{S_DO}, s{S_LO}, {st*STG}", f"s_add_u32 s{S_DW}, s{S_LW}, {st*STG}"] + pre
            gops.append((pre, ld, ADV3 if k == 8 else []))
    for pre, ld, post in gops[:18]:
        if pre:
            qd.append("\n".join(pre))
        qd.append(ld)
        if post:
            qd.append("\n".join(post))
    qv = [y for x in swaps("v_add_f32", V_L, 24) for y in x.split("\n")] + [f"v_rcp_f32 v{20+2*t}, v{V_L+t}" for t in range(4)]
    gen_body(a, G, spare, 0, tail=True, tailq=(qd, qv))
    stamp(a, 7)
    a(f"""
    s_lshl_b32 s{S_T0}, s{S_QB}, 4
    s_lshl_b32 s{S_T1}, s{S_WAVE}, 2
    s_add_u32 s{S_T0}, s{S_T0}, s{S_T1}
    s_mul_i32 s{S_T0}, s{S_T0}, {192*1024}
    s_mul_i32 s{S_T1}, s{S_HEAD}, {6*1024}
    s_add_u32 s{S_T0}, s{S_T0}, s{S_T1}
    v_add_u32 v28, s{S_T0}, v1
    v_add_u32 v29, {192*1024}, v28
    v_add_u32 v30, {2*192*1024}, v28
    v_add_u32 v31, {3*192*1024}, v28
    s_mov_b32 s{S_M0}, 4096
    """)
    for n in range(24):
        s, t = n // 4, n % 4
        b, o = 40 + 8 * (n % 2), 64 + 4 * n
        for h in range(2):
            for r in range(4):
                a(f"v_accvgpr_read_b32 v{b+4*h+r}, a{4*(4*(2*s+h)+t)+r}")
        for j in range(4):
            a(f"v_pk_mul_f32 {vr(b+2*j,2)}, {vr(b+2*j,2)}, {vr(20+2*t,2)} op_sel_hi:[1,0]")
        for j in range(4):
            a(f"v_cvt_pk_bf16_f32 v{o+j}, v{b+2*j}, v{b+2*j+1}")
        a(f"buffer_store_dwordx4 {vr(o)}, v{28+t}, {sq(S_O)}, {'0' if s < 4 else f's{S_M0}'} offen offset:{(s%4)*1024} sc1")
    stamp(a, 8)
    a("v_mov_b32 v48, 0\nv_mov_b32 v49, 0\nv_mov_b32 v50, 0\nv_mov_b32 v51, 0")
    zi = 0
    for t in range(4):
        regs = [64 + 4 * (4 * s + t) + j for s in range(6) for j in range(4)]
        a(f"v_max3_f32 v{40+t}, |v{regs[0]}|, |v{regs[1]}|, |v{regs[2]}|")
        for k in range(3, 23, 2):
            a(f"v_max3_f32 v{40+t}, |v{regs[k]}|, |v{regs[k+1]}|, v{40+t}")
            if k in (3, 11, 19) and zi < 10:
                a(f"v_mfma_f32_32x32x16_bf16 {ar(16*((zi+5)%10),16)}, v[48:51], v[48:51], 0")
                zi += 1
        a(f"v_max_f32 v{40+t}, |v{regs[23]}|, v{40+t}")
    for x in swaps("v_max_f32", 40, 44):
        a(x + "\ns_nop 0")
    for t in range(4):
        a(f"v_mul_f32 v{40+t}, v{40+t}, v{V_L+t}")
    a(f"""
    v_min3_f32 v40, v40, v41, v42
    v_min_f32 v40, v40, v43
    v_add_f32 v41, v{V_L}, v{V_L+1}
    v_add_f32 v42, v{V_L+2}, v{V_L+3}
    v_add_f32 v41, v41, v42
    v_mov_b32 v42, {fh(GUARD_LO)}
    v_cmp_nle_f32 vcc, v42, v40
    v_cmp_ngt_f32 s[{S_M0}:{S_M0+1}], 1.0, v41
    v_mov_b32 v40, {LDS_FLAG}
    v_mov_b32 v41, 1
    """)
    srd(a, S_PT, P_WS, 2 * PART_BYTES, WS_PART)
    a(f"""
    s_or_b64 vcc, vcc, s[{S_M0}:{S_M0+1}]
    s_cbranch_vccz L_good
    ds_write_b32 v40, v41
    L_good:
    """)
    srd(a, S_OUT, P_OUT, 2048 * 1280)
    srd(a, S_B2, P_B2, 1280)
    a(f"""
    s_lshl_b32 s{S_T0}, s{S_MB}, 3
    s_lshr_b32 s{S_T1}, s{S_J}, 1
    s_lshl_b32 s{S_T1}, s{S_T1}, 2
    s_add_u32 s{S_T0}, s{S_T0}, s{S_T1}
    s_add_u32 s{S_T0}, s{S_T0}, s{S_WAVE}
    s_lshl_b32 s{S_T0}, s{S_T0}, 4
    v_and_b32 v42, 15, v0
    v_add_u32 v42, s{S_T0}, v42
    v_mul_u32_u24 v42, 1280, v42
    s_mul_i32 s{S_T0}, s{S_NB}, 320
    s_and_b32 s{S_T1}, s{S_J}, 1
    s_mul_i32 s{S_T1}, s{S_T1}, 160
    s_add_u32 s{S_T0}, s{S_T0}, s{S_T1}
    v_lshrrev_b32 v41, 4, v0
    v_lshlrev_b32 v41, 3, v41
    v_add_u32 v{V_BO}, s{S_T0}, v41
    v_add_u32 v{V_OO}, v42, v{V_BO}
    v_lshlrev_b32 v{V_PO}, 3, v0
    v_and_b32 v{V_FV}, {3*128}, v{V_L128}
    s_lshr_b32 s{S_T0}, s{S_MB}, 1
    s_lshl_b32 s{S_T0}, s{S_T0}, 12
    s_lshl_b32 s{S_T1}, s{S_J}, 10
    s_add_u32 s{S_T0}, s{S_T0}, s{S_T1}
    s_add_u32 s{S_M0}, s{S_T0}, {FL_F3}
    v_and_b32 v61, {7*128}, v{V_L128}
    s_mov_b32 s{S_HOOK}, 4
    s_mov_b32 s{S_R3}, 0
    s_mov_b32 s{S_CNT}, 6
    s_waitcnt vmcnt(24) lgkmcnt(0)
    s_barrier
    ds_read_b32 v41, v40
    """)
    for ks, n in RD3[:14]:
        a(rd3(0, ks, n))
    a(f"""
    s_waitcnt lgkmcnt(14)
    v_readfirstlane_b32 s{S_T0}, v41
    """)
    for ks, n in RD3[14:]:
        a(rd3(0, ks, n))
    if not (X_RINGV or X_QV or os.environ.get('NOFB')):
        a(f"s_cmp_gt_u32 s{S_T0}, s{S_PASS}\ns_cbranch_scc1 L_fallback")
    for pre, ld, post in gops[18:]:
        for x in pre:
            a(x)
        if pre:
            a("s_nop 0")
        a(ld)
        for x in post:
            a(x)
    for j in range(5):
        a(f"buffer_load_dwordx2 {vr(V_X+2*j,2)}, v{V_OO}, {sq(S_X)}, 0 offen offset:{32*j}")
        a(f"buffer_load_dwordx2 {vr(V_B2+2*j,2)}, v{V_BO}, {sq(S_B2)}, 0 offen offset:{32*j}")
    a("s_waitcnt lgkmcnt(0)")
    stamp(a, 9)
    a(".p2align 6\nL_g_loop:")
    stage3(a, 0, ACC_G, S_H, V_DH, f"s_cmp_eq_u32 s{S_CNT}, 6\ns_cbranch_scc1 L_g_nw\ns_waitcnt vmcnt(18)\nL_g_nw:",
           f"s_cmp_eq_u32 s{S_CNT}, s{S_HOOK}\ns_cbranch_scc1 L_g_h0\nL_g_r0:", False)
    stage3(a, 1, ACC_G, S_H, V_DH, "s_waitcnt vmcnt(18)",
           f"s_cmp_eq_u32 s{S_CNT}, 5\ns_cbranch_scc1 L_g_h1\nL_g_r1:", True)
    a(f"""
    s_cbranch_scc1 L_g_loop
    s_branch L_g_done
    L_g_h0:
    s_mov_b32 s{S_H+2}, 0
    s_mov_b32 s{S_WO}, s{S_WS0}
    s_add_u32 s{S_WO4}, s{S_WS0}, 4096
    s_mov_b32 s{S_HOOK}, 2
    s_cmp_eq_u32 s{S_CNT}, 4
    s_cbranch_scc1 L_g_r0
    s_add_u32 s{S_WO}, s{S_WO}, {4*40960}
    s_add_u32 s{S_WO4}, s{S_WO4}, {4*40960}
    buffer_load_dword v60, v61, {sq(S_FL)}, s{S_M0} offen sc1
    s_branch L_g_r0
    L_g_h1:
    s_cmp_lg_u32 s{S_WAVE}, 0
    s_cbranch_scc1 L_g_r1
    s_lshl_b32 s{S_T0}, s{S_QB}, 12
    s_lshl_b32 s{S_T1}, s{S_HEAD}, 7
    s_add_u32 s{S_T0}, s{S_T0}, s{S_T1}
    s_add_u32 s{S_T0}, s{S_T0}, {FL_F3}
    """)
    signal(a)
    a("s_branch L_g_r1\nL_g_done:\ns_waitcnt vmcnt(18) lgkmcnt(0)")
    stamp(a, 10)
    def o_dmas():
        a(f"s_mul_i32 s{S_OO}, s{S_J}, {48*1024}")
        for st in range(4):
            a(f"s_add_u32 s{S_DO}, s{S_LO}, {((st+2)%4)*STG}")
            for k in range(4):
                pre, ld = dma3(k, S_O, V_DO)
                for x in pre:
                    a(x + "\ns_nop 0")
                a(ld)
            a(ADV3[0])
    a(f"""
    s_barrier
    v_cmp_ne_u32 vcc, v{V_ONE}, v60
    s_mov_b32 s{S_KC}, 0
    s_cbranch_vccnz L_late
    s_mov_b32 s{S_KC}, 1
    """)
    o_dmas()
    a("L_late:")
    pack_store(a, ACC_G, PART_BYTES)
    stamp(a, 11)
    a(f"""
    s_cmp_eq_u32 s{S_KC}, 1
    s_cbranch_scc1 L_p3go
    L_poll3:
    buffer_load_dword v60, v61, {sq(S_FL)}, s{S_M0} offen sc1
    s_waitcnt vmcnt(0)
    v_cmp_ne_u32 vcc, v{V_ONE}, v60
    s_cbranch_vccnz L_poll3
    """)
    o_dmas()
    for k in range(12):
        a(f"buffer_load_dword v60, v61, {sq(S_H)}, 0 offen")
    a("L_p3go:")
    a(f"s_mov_b32 s{S_HOOK}, 20\ns_mov_b32 s{S_CNT}, 24\ns_waitcnt vmcnt(20)\ns_barrier")
    for ks, n in RD3:
        a(rd3(0, ks, n))
    a("s_waitcnt lgkmcnt(0)")
    stamp(a, 12)
    a(".p2align 6\nL_s_loop:")
    stage3(a, 0, ACC_S, S_O, V_DO, f"s_waitcnt vmcnt(30)\ns_cmp_gt_u32 s{S_CNT}, 21\ns_cbranch_scc1 L_s_n0\ns_waitcnt vmcnt(18)\nL_s_n0:",
           f"s_cmp_eq_u32 s{S_CNT}, s{S_HOOK}\ns_cbranch_scc1 L_s_h\nL_s_r:", False)
    stage3(a, 1, ACC_S, S_O, V_DO, f"s_waitcnt vmcnt(25)\ns_cmp_gt_u32 s{S_CNT}, 21\ns_cbranch_scc1 L_s_n1\ns_waitcnt vmcnt(18)\nL_s_n1:",
           "", True)
    a(f"""
    s_cbranch_scc1 L_s_loop
    s_branch L_s_done
    L_s_h:
    s_lshl_b32 s{S_PO}, s{S_TILE}, 9
    s_add_u32 s{S_PO}, s{S_PO}, {FL_F5}
    s_cmp_eq_u32 s{S_CNT}, 4
    s_cbranch_scc1 L_s_h2
    s_mov_b32 s{S_HOOK}, 4
    s_cmp_lg_u32 s{S_WAVE}, 0
    s_cbranch_scc1 L_s_r
    s_lshl_b32 s{S_T1}, s{S_J}, 7
    s_add_u32 s{S_T0}, s{S_PO}, s{S_T1}
    """)
    signal(a)
    a(f"""
    s_branch L_s_r
    L_s_h2:
    s_mov_b32 s{S_O+2}, 0
    s_mov_b32 s{S_WF+2}, 0
    buffer_load_dword v60, v{V_FV}, {sq(S_FL)}, s{S_PO} offen sc1
    s_branch L_s_r
    L_repoll5:
    buffer_load_dword v60, v{V_FV}, {sq(S_FL)}, s{S_PO} offen sc1
    s_waitcnt vmcnt(0)
    L_s_done:
    v_cmp_ne_u32 vcc, v{V_ONE}, v60
    s_cbranch_vccnz L_repoll5
    s_sub_u32 s{S_PO}, s{S_PO}, {FL_F5 - FL_F4}
    s_waitcnt lgkmcnt(0)
    """)
    stamp(a, 13)
    GP, g, u, xx = 160, 208, 228, 40
    part_loads(a, PART_BYTES, GP)
    pack_store(a, ACC_S, 0)
    stamp(a, 14)
    part_sum(a, GP, g, 12, 60)
    nl2e = -math.log2(math.e)
    for e in range(10):
        a(f"v_lshlrev_b32 v{u+2*e}, 16, v{V_B2+e}\nv_and_b32 v{u+1+2*e}, 0xffff0000, v{V_B2+e}")
    for tmpl in ("v_add_f32 v{g}, v{u}, v{g}", "v_mul_f32 v{u}, " + fh(nl2e) + ", v{g}", "v_exp_f32 v{u}, v{u}",
                 "v_add_f32 v{u}, 1.0, v{u}", "v_rcp_f32 v{u}, v{u}"):
        for e in range(20):
            a(tmpl.format(g=g + e, u=u + e))
    for e in range(10):
        a(f"v_lshlrev_b32 v{xx+2*e}, 16, v{V_X+e}\nv_and_b32 v{xx+1+2*e}, 0xffff0000, v{V_X+e}")
    for e in range(20):
        a(f"v_mul_f32 v{g+e}, v{g+e}, v{u+e}")
    a("s_waitcnt vmcnt(0)\ns_barrier")
    stamp(a, 15)
    a(f"s_cmp_lg_u32 s{S_WAVE}, 0\ns_cbranch_scc1 L_p4done\ns_lshl_b32 s{S_T1}, s{S_J}, 7\ns_add_u32 s{S_T0}, s{S_PO}, s{S_T1}")
    signal(a)
    a(f"""
    L_poll4:
    buffer_load_dword v60, v{V_FV}, {sq(S_FL)}, s{S_PO} offen sc1
    s_waitcnt vmcnt(0)
    v_cmp_ne_u32 vcc, v{V_ONE}, v60
    s_cbranch_vccnz L_poll4
    L_p4done:
    s_barrier
    """)
    stamp(a, 16)
    part_loads(a, 0, GP)
    part_sum(a, GP, u, 0, 60)
    for e in range(20):
        a(f"v_fmac_f32 v{xx+e}, v{g+e}, v{u+e}")
    for j in range(5):
        a(f"v_cvt_pk_bf16_f32 v{96+2*j}, v{xx+4*j}, v{xx+1+4*j}\nv_cvt_pk_bf16_f32 v{97+2*j}, v{xx+2+4*j}, v{xx+3+4*j}")
        a(f"buffer_store_dwordx2 {vr(96+2*j,2)}, v{V_OO}, {sq(S_OUT)}, 0 offen offset:{32*j}{os.environ.get('OUTSC','')}")
    stamp(a, 17)
    if STAMP:
        a("s_waitcnt vmcnt(0)")
        stamp(a, 18)
        srd(a, 4, P_WS, 1 << 20, WS_DBG)
        a(f"s_lshl_b32 s3, s2, 2\ns_add_u32 s3, s3, s{S_WAVE}\ns_lshl_b32 s3, s3, 9\nv_lshlrev_b32 v2, 3, v0\nv_add_u32 v2, s3, v2")
        a("buffer_store_dwordx2 v[38:39], v2, s[4:7], 0 offen\ns_waitcnt vmcnt(0)")
    a("L_end:\ns_endpgm")


def build():
    a = Asm()
    a.l.append("; @launch grid=(256,1,1) block=(256,1,1) lds=163840")
    a('.amdgcn_target "amdgcn-amd-amdhsa--gfx950"\n.text')
    a(f".globl {KNAME}")
    gen_kernel(a)
    a('.section .rodata,"a"\n.p2align 6')
    a.l.append(f""".amdhsa_kernel {KNAME}
  .amdhsa_next_free_vgpr 512
  .amdhsa_next_free_sgpr 102
  .amdhsa_accum_offset 256
  .amdhsa_group_segment_fixed_size 0
  .amdhsa_kernarg_size 104
  .amdhsa_user_sgpr_count 2
  .amdhsa_user_sgpr_kernarg_segment_ptr 1
  .amdhsa_system_sgpr_workgroup_id_x 1
.end_amdhsa_kernel""")
    return a.text()


if __name__ == "__main__":
    STAMP = "stamp" in sys.argv
    open(sys.argv[1], "w").write(build())
```

```python
import sys, math, os, struct

NAME = "recurrent_scan__gqa_block_cached__dense_activation_gelu__prompt"
KNAME = NAME + "_kernel"
WS_XN, WS_H, WS_O, WS_WF, WS_PART, WS_FLAG, WS_DBG = 0, 4 << 20, 16 << 20, 48 << 20, 80 << 20, 112 << 20, 128 << 20
XN_BYTES = 2048 * 640 * 2
H_BYTES = 2048 * 1536 * 2
O_BYTES = 2048 * 6144 * 2
WF_BYTES = 240 * 40960
PART_BYTES = 64 * 64 * 2560
FL_F1, FL_F3, FL_F2, FL_F4, FL_F5, FL_NONCE = 0, 32768, 65536, 98304, 131072, 163840
FL_F6 = 163968
FLAG_BYTES = FL_F6 + 1024 * 128
STAMP = False
OFF = float(os.environ.get("OFF", 102.0))
GUARD_LO = 2.0 ** -110


def fh(x):
    return "0x%08x" % struct.unpack("<I", struct.pack("<f", x))[0]


class Asm:
    def __init__(self):
        self.l = []

    def __call__(self, s):
        for line in s.strip("\n").split("\n"):
            line = line.strip()
            if line:
                self.l.append(line if line.endswith(":") or line.startswith(".") else "    " + line)

    def text(self):
        return "\n".join(self.l) + "\n"


def vr(b, n=4, p="v"):
    return f"{p}[{b}:{b+n-1}]"


def ar(b, n=4):
    return vr(b, n, "a")


def srd(a, d, lo, nbytes, add=None):
    if add is None:
        a(f"s_mov_b32 s{d}, s{lo}\ns_mov_b32 s{d+1}, s{lo+1}")
    else:
        a(f"s_add_u32 s{d}, s{lo}, {add}\ns_addc_u32 s{d+1}, s{lo+1}, 0")
    a(f"s_mov_b32 s{d+2}, {nbytes}\ns_mov_b32 s{d+3}, 0x00020000")


def sq(d):
    return f"s[{d}:{d+3}]"


def mfma(d, a_, b, c):
    return f"v_mfma_f32_16x16x32_bf16 {d}, {a_}, {b}, {c}"


def stamp(a, i):
    if STAMP:
        a(f"""s_memtime s[98:99]
        s_waitcnt lgkmcnt(0)
        v_writelane_b32 v38, s98, {i}
        s_memrealtime s[98:99]
        s_waitcnt lgkmcnt(0)
        v_writelane_b32 v39, s98, {i}""")


SLOT = 24576
LDS_K, LDS_V, LDS_X = 0, 3 * SLOT, 6 * SLOT
LDS_W1 = 2 * SLOT
LDS_FLAG = LDS_X + 12288
STG = 36864
LDS_WOFF = 16384

S_XN, S_WQ, S_W1, S_K, S_V, S_H, S_O, S_MISC = 4, 8, 12, 16, 20, 24, 28, 32
S_HEAD, S_QB, S_WAVE, S_HOOK = 36, 37, 38, 39
S_RD, S_DMA, S_SO0, S_SO1, S_CNT, S_T0, S_T1, S_BOFF = 40, 41, 42, 43, 44, 45, 46, 47
S_W3072, S_SV0, S_SV1, S_PASS, S_RD1, S_DMA1, S_SW0, S_SW1 = 48, 49, 50, 51, 52, 53, 54, 55
S_C0, S_C1, S_M0, S_KC = 56, 57, 58, 59
P_K, P_V, P_WQ, P_WO, P_W1, P_B1, P_W2, P_B2, P_OUT, P_DBG, P_WS, P_X = 60, 62, 64, 66, 68, 70, 72, 74, 76, 78, 80, 82
S_X, S_WF, S_FL = 84, 88, 92
S_RS, S_RO = 96, 97
S_NONCE, S_HS = 100, 101
S_RK, S_DV, S_DKM, S_DVM = S_RD1, S_DMA1, S_DMA, S_BOFF
S_PT, S_OUT, S_B2 = 4, 8, 12
S_J, S_MB, S_NB, S_OO, S_WO, S_WO4, S_R3, S_DO, S_DW, S_LO, S_LW, S_TILE, S_WS0, S_PO = 40, 41, 42, 43, 47, 48, 49, 50, 52, 53, 54, 55, 56, 57

V_L, V_KA, V_VA, V_KB, V_VB, V_DK, V_DV = 2, 6, 8, 12, 14, 18, 19
V_F2 = 20
V_RD, V_RR = 32, 33
V_ZERO, V_ONE = 36, 37
V_NM = 40
V_L4, V_L128 = 62, 63
V_Q, V_S, V_P = 64, 128, 192
A_RING, A_Q = 192, 224
P1_ACC, P1_H, P1_RING, P1_B = 64, 0, 48, 88
V1_WA, V1_FA, V1_WB, V1_FB, V1_DW, V1_DF, V1_X = 6, 8, 12, 14, 20, 21, 22
V_RB, V_RA, V_DH, V_DO, V_RB0, V_RA0, V_OO, V_BO, V_PO, V_FV = 6, 7, 12, 14, 16, 17, 18, 19, 32, 33
V_X, V_B2, FR = 64, 74, 0
ACC_S, ACC_G = 96, 176


X_RINGV = os.environ.get("RINGV")
X_QV = os.environ.get("QV")
X_NOCHAIN = os.environ.get("NOCHAIN")


def q_reg(s, t):
    i = 4 * s + t
    if X_QV:
        return vr(V_Q + 4 * (i % 16))
    return vr(V_Q + 4 * i) if i < 16 else ar(A_Q + 4 * (i - 16))


def s_reg(u, t):
    return V_S + 4 * (4 * u + t)


def p_reg(par, ch, t):
    return V_P + 32 * par + 16 * ch + 4 * t


def code_prefetch(a, tag, first, last, sreg, vdst, one=False):
    a(f"""
    s_getpc_b64 s[{sreg}:{sreg+1}]
    L_pc{tag}:
    s_add_u32 s{sreg}, s{sreg}, {first}-L_pc{tag}
    s_addc_u32 s{sreg+1}, s{sreg+1}, 0
    s_mov_b32 s{sreg+2}, {last}-{first}
    s_mov_b32 s{sreg+3}, 0x00020000
    """)
    if one:
        a(f"s_lshl_b32 s{S_T0}, s{S_WAVE}, 13\nbuffer_load_dword v{vdst}, v{V_L128}, {sq(sreg)}, s{S_T0} offen")
        return
    a(f"""
    s_mov_b32 s{S_T0}, 8192
    s_mov_b32 s{S_T1}, 16384
    buffer_load_dword v{vdst}, v{V_L128}, {sq(sreg)}, 0 offen
    buffer_load_dword v{vdst+1}, v{V_L128}, {sq(sreg)}, s{S_T0} offen
    buffer_load_dword v{vdst+2}, v{V_L128}, {sq(sreg)}, s{S_T1} offen
    """)


def half_lanes(a, ins):
    a("s_mov_b32 exec_hi, 0")
    a(ins)
    a("s_mov_b32 exec_hi, -1")


def wait_counts(seq2, period, waits):
    cnt = {}
    for k, wt in waits.items():
        last = max(tm for tm, kk in seq2 if kk == k and tm < wt)
        cnt[k] = (sum(1 for tm, kk in seq2 if last < tm < wt), wt - last)
    return cnt


DMA_GAP = [3, 19, 35, 51, 59, 67, 93, 109, 125, 141, 149, 157]


AUX_RD, AUX_ST, AUX_DMA = (26, 27), 53, 11


def build_schedule():
    N = 192
    G = [dict(lds=None, exp=None, valu=[], dma=None, wait=None) for _ in range(N)]
    for g in range(24):
        pos = 0
        fk = (g + 2) % 24
        if fk < 12:
            for k in range(2):
                G[8 * g + pos]["lds"] = (fk, k)
                pos += 1
        fv = g + 3
        if 12 <= fv < 24:
            for k in range(4):
                G[8 * g + pos]["lds"] = (fv, k)
                pos += 1
    for i in range(12):
        G[DMA_GAP[i]]["dma"] = i
    for f in range(24):
        G[(8 * f - 1) % N]["wait"] = f
    for k in range(2):
        G[AUX_RD[k]]["lds"] = (24, k)
    G[AUX_ST]["dma"] = 12
    G[AUX_DMA]["dma"] = 13
    free = [i for i in range(N) if G[i]["lds"] is None and G[i]["dma"] is None]
    free2 = free + [N + x for x in free]
    seq = [(u, t, r) for u in range(4) for t in range(4) for r in range(4)]
    start = [k for k, x in enumerate(free2) if x >= 24][0]
    etime = {}
    k = float(start)
    step = len(free) / 64.0
    for e, (u, t, r) in enumerate(seq):
        kk = int(start + e * step)
        ready = 24 * u + 16 + 2 * t + 1 + 4
        while free2[kk] < ready or G[free2[kk] % N]["exp"] is not None:
            kk += 1
        tm = free2[kk]
        G[tm % N]["exp"] = ("prev" if tm >= N else "cur", u, t, r)
        etime[(u, t, r)] = tm
    cap = [0 if (G[i]["dma"] is not None or G[i]["exp"] is not None) else (1 if G[i]["lds"] is not None else 2) for i in range(N)]
    if os.environ.get("CAP1"):
        for i in range(N):
            if G[i]["lds"] is not None and G[(i + 1) % N]["lds"] is not None:
                cap[i] = 0
    if os.environ.get("CAP2"):
        for i in range(N):
            if G[i]["lds"] is not None and G[i - 1]["lds"] is not None:
                cap[i] = 0
    ops = []
    for (u, t, r) in seq:
        ops.append((etime[(u, t, r)] + 1, "add", u, t, r))
        if r & 1:
            ops.append((etime[(u, t, r)] + 1, "cvt", u, t, r >> 1))
    ops.sort(key=lambda o: (o[0], o[1] == "add"))
    used = [0] * N
    for o in ops:
        tm = o[0]
        while used[tm % N] >= cap[tm % N]:
            tm += 1
        assert tm < N + 24 * o[2] + 2 * o[3], (o, tm)
        assert tm < N + 92
        used[tm % N] += 1
        G[tm % N]["valu"].append(("prev" if tm >= N else "cur",) + o[1:])
    return G, [cap[i] - used[i] for i in range(N)]


def att_counts(G, nok=False, aux=False):
    seq = [(rep * 192 + i, G[i]["lds"][0]) for rep in range(2) for i in range(192)
           if G[i]["lds"] is not None and not (nok and rep == 1 and G[i]["lds"][0] < 12) and (aux or G[i]["lds"][0] != 24)]
    ks = range(12, 24) if nok else range(24)
    c = wait_counts(seq, 192, {f: 192 + 8 * f - 1 for f in ks})
    assert all(v[0] <= 15 for v in c.values()), c
    return {k: v[0] for k, v in c.items()}


def soft(kind, which, u, t, x, par_cur):
    par = par_cur if which == "cur" else 1 - par_cur
    s = s_reg(u, t)
    if kind == "exp":
        return f"v_exp_f32 v{s+x}, v{s+x}"
    if kind == "add":
        return f"v_add_f32 v{V_L+t}, v{s+x}, v{V_L+t}"
    return f"v_cvt_pk_bf16_f32 v{p_reg(par, u >> 1, t) + 2*(u&1) + x}, v{s+2*x}, v{s+2*x+1}"


def ring(grp, k):
    return A_RING + 8 * (grp % 4) + 4 * k


def rr(b, n=4):
    return vr(b, n) if X_RINGV else ar(b, n)


def k_read(grp, k):
    u, s = grp // 3, 2 * (grp % 3) + k
    return f"ds_read_b128 {rr(ring(grp, k))}, v{V_KA+k} offset:{2*u*3072 + (s>>1)*1024}"


def v_read(grp, k):
    dt, ch, part = grp - 12, k >> 1, k & 1
    return f"ds_read_b64_tr_b16 {rr(ring(grp, ch) + 2*part, 2)}, v{V_VA+(dt&3)} offset:{(4*ch+2*part)*3072 + (dt>>2)*1024}"


def qk_mfma(grp, p, first_c):
    if X_NOCHAIN:
        p = 2 * (p & 3) + (p >> 2)
    u, s, t = grp // 3, 2 * (grp % 3) + (p & 1), p >> 1
    c = first_c(t) if s == 0 else vr(s_reg(u, t))
    return mfma(vr(s_reg(u, t)), rr(ring(grp, p & 1)), q_reg(s, t), c)


def gen_body(a, G, spare, par, tail=False, tailq=None, lab=""):
    cnt = att_counts(G, nok=tail, aux=(lab == "a"))
    ev, es, sp = {}, {}, list(spare)

    def put_v(lo, hi, ins):
        for i in range(lo, hi):
            if sp[i] > 0:
                sp[i] -= 1
                ev.setdefault(i, []).append(ins)
                return
        raise AssertionError(ins)

    def put_s(lo, hi, ins):
        for i in range(lo, hi):
            if G[i]["lds"] is None and G[i]["dma"] is None and G[i]["wait"] is None and i not in es:
                es[i] = ins
                return i
        raise AssertionError(ins)
    if not tail:
        for i in range(12):
            base = S_DKM if i < 6 else S_DVM
            d = i % 6
            assert G[DMA_GAP[i] - 1]["lds"] is None and G[DMA_GAP[i] - 1]["wait"] is None
            es[DMA_GAP[i] - 1] = f"s_add_u32 m0, s{base}, {(d//3)*12288 + (d%3)*896}"
        if lab == "b":
            es[AUX_DMA - 1] = f"s_add_u32 m0, s{S_W3072}, {LDS_X}"
            put_s(12, 18, f"s_add_u32 s{S_RS}, s{S_RS}, 128")
            i = put_s(20, 34, f"s_cmp_le_u32 s{S_CNT}, 12")
            put_s(i + 1, i + 3, f"s_cselect_b32 s{S_MISC+2}, 0, s{S_MISC+2}")
        else:
            put_s(54, 58, f"s_add_u32 s{S_RO}, s{S_RO}, 4096")
            i = put_s(60, 64, f"s_cmp_gt_u32 s{S_CNT}, 11")
            put_s(i + 1, i + 3, f"s_cselect_b32 s{S_WF+2}, {WF_BYTES}, 0")
        es[42] = f"s_cmp_eq_u32 s{S_CNT}, s{S_HOOK}\ns_cbranch_scc1 L_hook{lab}\nL_hret{lab}:"
        i = 68
        for x in (f"s_add_u32 s{S_SO0}, s{S_SO0}, {SLOT}", f"s_add_u32 s{S_SO1}, s{S_SO1}, {SLOT}",
                  f"s_sub_u32 s{S_CNT}, s{S_CNT}, 1",
                  f"s_mov_b32 s{S_T1}, s{S_RD}", f"s_mov_b32 s{S_RD}, s{S_RK}", f"s_mov_b32 s{S_RK}, s{S_DV}", f"s_mov_b32 s{S_DV}, s{S_T1}",
                  f"s_add_u32 s{S_DKM}, s{S_RD}, s{S_W3072}"):
            i = put_s(i, 150, x) + 1
        for j in range(2):
            put_v(max(i, 80), 172, f"v_add_u32 v{V_KA+j}, s{S_RK}, v{V_KB+j}")
        for j in range(4):
            put_v(0, 66, f"v_add_u32 v{V_VA+j}, s{S_RD}, v{V_VB+j}")
        i = 158
        for x in (f"s_add_u32 s{S_SV0}, s{S_SV0}, {SLOT}", f"s_add_u32 s{S_SV1}, s{S_SV1}, {SLOT}", f"s_add_u32 s{S_DVM}, s{S_DV}, s{S_M0}"):
            es.setdefault(169, "")
            es.setdefault(170, "")
            i = put_s(i, 184, x) + 1
        es[169] = f"s_waitcnt vmcnt({11 if lab == 'b' else 12}) lgkmcnt(0)"
        es[170] = "s_barrier"
        put_s(186, 191, f"s_cmp_lg_u32 s{S_CNT}, 0")
    for i in range(192):
        g = G[i]
        grp, p = i // 8, i % 8
        if grp < 12:
            if not tail:
                a(qk_mfma(grp, p, lambda t: vr(V_NM + 4 * t)))
        else:
            pp = 2 * (p & 3) + (p >> 2) if X_NOCHAIN else p
            o = ar(4 * (4 * (grp - 12) + (pp >> 1)))
            a(mfma(o, rr(ring(grp, pp & 1)), vr(p_reg(1 - par, pp & 1, pp >> 1)), o))
        if g["wait"] is not None:
            f = g["wait"]
            if (tail and 12 <= f < 24) or (not tail and f not in (22, 23)):
                a("s_waitcnt lgkmcnt(%d)" % cnt[f])
        elif i in es:
            a(es[i])
        if g["lds"] is not None and not os.environ.get("NOLDS"):
            f, k = g["lds"]
            if f == 24:
                if lab == "a":
                    a(f"ds_read_b64_tr_b16 {vr(28+2*k,2)}, v{V_RR} offset:{k*6144}")
            elif f >= 12:
                if not (tail and f < 15):
                    a(v_read(f, k))
            elif not tail:
                a(k_read(f, k))
        if g["dma"] is not None and not tail and not os.environ.get("NODMA"):
            d = g["dma"]
            if d == 12:
                if lab == "a":
                    a(f"buffer_store_dwordx4 v[28:31], v1, {sq(S_WF)}, s{S_RO} offen sc1")
            elif d == 13:
                if lab == "b":
                    a(f"buffer_load_dwordx4 v{V_RD}, {sq(S_MISC)}, s{S_RS} offen lds")
            elif d < 6:
                a(f"buffer_load_dwordx4 v{V_DK}, {sq(S_K)}, s{S_SO0 + d//3} offen offset:{(d%3)*128} lds")
            else:
                d -= 6
                a(f"buffer_load_dwordx4 v{V_DV}, {sq(S_V)}, s{S_SV0 + d//3} offen offset:{(d%3)*128} lds")
        if g["exp"] is not None and not (tail and g["exp"][0] == "cur"):
            w, u, t, r = g["exp"]
            a(soft("exp", w, u, t, r, par))
            if tail and grp < 12:
                a("s_nop 0")
        for (w, kind, u, t, x) in g["valu"]:
            if not (tail and w == "cur") and not os.environ.get("NOVALU"):
                a(soft(kind, w, u, t, x, par))
        for ins in ev.get(i, []):
            a(ins)
        if tail and i == 95:
            a("s_nop 1")
        if tail and i >= 96:
            qd, qv = tailq
            if g["lds"] is not None and g["lds"][0] >= 12:
                if qv:
                    a(qv.pop(0))
            elif qd:
                a(qd.pop(0))
    if tail:
        assert not tailq[0] and not tailq[1], tailq


def p1_acc(f, t):
    if f < 12:
        return vr(P1_ACC + 8 * (4 * (f >> 1) + t) + 4 * (f & 1))
    return ar(P1_H + 4 * (4 * (f - 12) + t))


def p1_read(f, k):
    ks, part = k >> 1, k & 1
    dst = ar(P1_RING + 8 * (f % 5) + 4 * ks + 2 * part, 2)
    if f < 12:
        s, half = f >> 1, f & 1
        return f"ds_read_b64_tr_b16 {dst}, v{V1_WA+(s&1)} offset:{ks*4*3072 + (s>>1)*1024 + part*512 + half*8}"
    return f"ds_read_b64_tr_b16 {dst}, v{V1_FA+f-12} offset:{ks*4096 + part*512}"


def gen_p1_stage(a, sp):
    slots = {g: [] for g in range(15)}
    pend = [(f, k) for f in range(2, 15) for k in range(4)]
    g = 0
    while pend:
        while pend and len(slots[g]) < 6 and g >= pend[0][0] - 4:
            slots[g].append(pend.pop(0))
        g += 1
    assert g <= 11, g
    slots[13] = [(0, k) for k in range(4)]
    slots[14] = [(1, k) for k in range(4)]
    seq = [(rep * 120 + 8 * gg + p, f) for rep in range(2) for gg in range(15) for p, (f, k) in enumerate(slots[gg])]
    cnt = wait_counts(seq, 120, {f: 120 + 8 * f - 1 for f in range(15)})
    assert all(c <= 15 and d >= 8 for c, d in cnt.values()), cnt
    ex = {}

    def put(grp, p, ins):
        assert p >= len(slots[grp]), (grp, p)
        ex.setdefault((grp, p), []).append(ins)
    for j in range(8):
        ks, t = j >> 2, j & 3
        put(j, 6, f"buffer_load_dwordx4 {ar(P1_B + 32*(1-sp) + 16*ks + 4*t)}, v{V1_X+t}, {sq(S_XN)}, s{S_BOFF} offen offset:{ks*1024} sc1")
    for d in range(8):
        grp, p = (4 + d, 4) if d < 7 else (11, 0)
        if d < 6:
            put(grp, p, f"s_add_u32 m0, s{S_DMA}, {LDS_V + (d//3)*12288 + (d%3)*896}")
            put(grp, p + 1, f"buffer_load_dwordx4 v{V1_DW}, {sq(S_WQ)}, s{S_SO0 + d//3} offen offset:{(d%3)*128} lds")
        else:
            put(grp, p, f"s_add_u32 m0, s{S_DMA1}, {LDS_W1 + (d-6)*4096}")
            put(grp, p + 1, f"buffer_load_dwordx4 v{V1_DF}, {sq(S_W1)}, s{S_SW0 + d-6} offen lds")
    nv = 4
    if sp == 0:
        for d, (grp, p) in enumerate(((11, 2), (11, 4), (12, 0))):
            put(grp, p, f"s_add_u32 m0, s{S_C0}, {d*896}")
            put(grp, p + 1, f"buffer_load_dwordx4 v{V_DK}, {sq(S_K)}, s{S_SV0} offen offset:{d*128} lds")
        put(8, 6, f"buffer_load_dword v47, v46, {sq(S_O)}, s{S_M0} offen")
        put(13, 4, f"s_mov_b32 s{S_SV0}, s{S_SV1}\ns_add_u32 s{S_SV1}, s{S_SV1}, 12288\ns_add_u32 s{S_M0}, s{S_M0}, s{S_HS}")
        put(13, 5, f"s_mov_b32 s{S_C0}, s{S_C1}\ns_add_u32 s{S_C1}, s{S_C1}, 12288\ns_mov_b32 s{S_K+2}, 786432")
        put(13, 6, f"s_cmp_eq_u32 s{S_CNT}, 1\ns_cselect_b32 s{S_XN+2}, 0, s{S_XN+2}")
        nv = 8
    else:
        put(13, 4, f"s_sub_u32 s{S_CNT}, s{S_CNT}, 1")
    put(9, 6, f"s_mov_b32 s{S_T1}, s{S_RD}\ns_add_u32 s{S_RD}, s{S_RD}, {SLOT}\ns_add_u32 s{S_BOFF}, s{S_BOFF}, 2048")
    put(10, 6, f"s_cmp_eq_u32 s{S_RD}, {3*SLOT}\ns_cselect_b32 s{S_RD}, 0, s{S_RD}\ns_add_u32 s{S_DMA}, s{S_T1}, s{S_W3072}")
    put(11, 6, f"s_lshl_b32 s{S_T0}, s{S_WAVE}, 10\ns_add_u32 s{S_DMA1}, s{S_RD1}, s{S_T0}\ns_add_u32 s{S_RD1}, s{S_RD1}, 8192")
    put(12, 2, f"s_cmp_eq_u32 s{S_RD1}, {3*8192}\ns_cselect_b32 s{S_RD1}, 0, s{S_RD1}")
    put(12, 3, f"v_add_u32 v{V1_WA}, s{S_RD}, v{V1_WB}\nv_add_u32 v{V1_WA+1}, s{S_RD}, v{V1_WB+1}")
    put(12, 6, f"s_add_u32 s{S_SO0}, s{S_SO0}, {64*12288}\nv_add_u32 v{V1_FA}, s{S_RD1}, v{V1_FB}\nv_add_u32 v{V1_FA+1}, s{S_RD1}, v{V1_FB+1}")
    put(12, 7, f"s_add_u32 s{S_SO1}, s{S_SO1}, {64*12288}\nv_add_u32 v{V1_FA+2}, s{S_RD1}, v{V1_FB+2}")
    put(14, 4, f"s_add_u32 s{S_SW0}, s{S_SW0}, {64*3072}\ns_add_u32 s{S_SW1}, s{S_SW1}, {64*3072}")
    put(12, 4, "s_waitcnt vmcnt(16) lgkmcnt(0)")
    put(12, 5, "s_barrier")
    if sp == 1:
        put(14, 5, f"s_cmp_lg_u32 s{S_CNT}, 0")
    for i in range(120):
        grp, p = i // 8, i % 8
        t, ks = p >> 1, p & 1
        acc = p1_acc(grp, t)
        a(mfma(acc, ar(P1_RING + 8 * (grp % 5) + 4 * ks), ar(P1_B + 32 * sp + 16 * ks + 4 * t), acc))
        if p < len(slots[grp]):
            a(p1_read(*slots[grp][p]))
        if p == 7:
            f = (grp + 1) % 15
            w = [f"vmcnt({nv})"] if f == 0 else []
            if f not in (13, 14):
                w.append(f"lgkmcnt({cnt[f][0]})")
            if w:
                a("s_waitcnt " + " ".join(w))
        for x in ex.get((grp, p), []):
            a(x)


def dma_tile(a, voff, srdreg, so0, so1, sbase, lds_const, n=6):
    for d in range(n):
        a(f"s_add_u32 m0, s{sbase}, {lds_const + (d//3)*12288 + (d%3)*896}\ns_nop 0")
        a(f"buffer_load_dwordx4 v{voff}, {sq(srdreg)}, s{so0 if d < 3 else so1} offen offset:{(d%3)*128} lds")


def gen_ln_body(a):
    R, U, T, Q, RO = 64, 96, 86, 136, 144
    for i in range(5):
        a(f"s_waitcnt vmcnt({3 + 4 - i + (2 if os.environ.get('TOUCH') else 0)})")
        for j in range(4):
            r, d = R + 4 * i + j, U + 8 * i + 2 * j
            a(f"v_lshlrev_b32 v{d}, 16, v{r}\nv_and_b32 v{d+1}, 0xffff0000, v{r}")
    stamp(a, 19)
    for k in range(4):
        a(f"v_add_f32 v{T+k}, v{U+k}, v{U+4+k}")
    for e in range(8, 40):
        a(f"v_add_f32 v{T+e%4}, v{U+e}, v{T+e%4}")
    a(f"v_add_f32 v{T}, v{T}, v{T+1}\nv_add_f32 v{T+2}, v{T+2}, v{T+3}\nv_add_f32 v{T}, v{T}, v{T+2}")
    for sh in (8, 4, 2, 1):
        a(f"s_nop 1\nv_add_f32 v{T}, v{T}, v{T} row_ror:{sh}")
    a(f"v_mul_f32 v{T}, {fh(1/640)}, v{T}")
    for e in range(40):
        t = 140 + e % 4
        a(f"v_sub_f32 v{t}, v{U+e}, v{T}")
        a(f"v_mul_f32 v{Q+e}, v{t}, v{t}" if e < 4 else f"v_fmac_f32 v{Q+e%4}, v{t}, v{t}")
    a(f"v_add_f32 v{Q}, v{Q}, v{Q+1}\nv_add_f32 v{Q+2}, v{Q+2}, v{Q+3}\nv_add_f32 v{Q}, v{Q}, v{Q+2}")
    for sh in (8, 4, 2, 1):
        a(f"s_nop 1\nv_add_f32 v{Q}, v{Q}, v{Q} row_ror:{sh}")
    a(f"""
    v_mul_f32 v{Q}, {fh(1/640)}, v{Q}
    v_cvt_pk_bf16_f32 v{T+1}, v{T}, v{Q}
    v_lshlrev_b32 v{T}, 16, v{T+1}
    v_and_b32 v{Q}, 0xffff0000, v{T+1}
    v_add_f32 v{Q}, {fh(1e-5)}, v{Q}
    v_cvt_pk_bf16_f32 v{Q}, v{Q}, v{Q}
    v_and_b32 v{Q}, 0xffff0000, v{Q}
    v_sqrt_f32 v{Q}, v{Q}
    s_nop 0
    v_cvt_pk_bf16_f32 v{Q}, v{Q}, v{Q}
    v_and_b32 v{Q}, 0xffff0000, v{Q}
    v_rcp_f32 v{Q}, v{Q}
    s_mov_b32 s{S_T0}, 0
    """)
    for i in range(5):
        for j in range(4):
            e = U + 8 * i + 2 * j
            a(f"""
            v_sub_f32 v{e}, v{e}, v{T}
            v_sub_f32 v{e+1}, v{e+1}, v{T}
            v_cvt_pk_bf16_f32 v{e}, v{e}, v{e+1}
            v_and_b32 v{e+1}, 0xffff0000, v{e}
            v_lshlrev_b32 v{e}, 16, v{e}
            v_mul_f32 v{e}, v{e}, v{Q}
            v_mul_f32 v{e+1}, v{e+1}, v{Q}
            v_cvt_pk_bf16_f32 v{RO+4*i+j}, v{e}, v{e+1}
            """)
        a(f"buffer_store_dwordx4 {vr(RO+4*i)}, v84, {sq(S_MISC)}, s{S_T0} offen sc1")
        a(f"s_add_u32 s{S_T0}, s{S_T0}, 4096")


def dma3(k, bsrd, bv):
    if k < 4:
        r, ks = k >> 1, k & 1
        pre = [f"s_add_u32 m0, s{S_DO}, {r*2048}"] if ks == 0 else []
        return pre, f"buffer_load_dwordx4 v{bv+r}, {sq(bsrd)}, s{S_OO} offen offset:{ks*1024} sc1 lds"
    i = k - 4
    if i < 4:
        pre = [f"s_mov_b32 m0, s{S_DW}"] if i == 0 else []
        return pre, f"buffer_load_dwordx4 v1, {sq(S_WF)}, s{S_WO} offen offset:{i*1024} sc1 lds"
    return [f"s_add_u32 m0, s{S_DW}, 4096"], f"buffer_load_dwordx4 v1, {sq(S_WF)}, s{S_WO4} offen sc1 lds"


def fr3(par, ks, n):
    return FR + 72 * par + 36 * ks + 4 * n


def rd3(par, ks, n):
    if n < 4:
        return f"ds_read_b128 {ar(fr3(par, ks, n))}, v{V_RB} offset:{(2*n+ks)*1024}"
    return f"ds_read_b128 {ar(fr3(par, ks, n))}, v{V_RA} offset:{(10*ks+n-4)*1024}"


RD3 = [(ks, n) for n in (0, 4, 1, 2, 3, 5, 6, 7, 8) for ks in range(2)]
ADV3 = [f"s_add_u32 s{S_OO}, s{S_OO}, 2048", f"s_add_u32 s{S_WO}, s{S_WO}, {2*40960}", f"s_add_u32 s{S_WO4}, s{S_WO4}, {2*40960}"]


def stage3(a, par, accb, bsrd, bv, wait, hook, last):
    ex = {3: f"s_add_u32 s{S_DO}, s{S_R3}, s{S_LO}\ns_add_u32 s{S_DW}, s{S_R3}, s{S_LW}\ns_add_u32 s{S_R3}, s{S_R3}, {STG}",
          4: f"s_cmp_eq_u32 s{S_R3}, {4*STG}\ns_cselect_b32 s{S_R3}, 0, s{S_R3}",
          5: f"v_add_u32 v{V_RB}, s{S_R3}, v{V_RB0}\nv_add_u32 v{V_RA}, s{S_R3}, v{V_RA0}",
          6: wait, 7: "s_waitcnt lgkmcnt(0)\ns_barrier", 8: hook}
    g = 9
    for k in range(9):
        pre, ld = dma3(k, bsrd, bv)
        ex[g] = rd3(1 - par, *RD3[2 * k])
        ex[g + 1] = rd3(1 - par, *RD3[2 * k + 1]) + "".join("\n" + x for x in pre)
        ex[g + 2] = ld
        g += 3
    ex[36] = "\n".join(ADV3)
    ex[37] = f"s_sub_u32 s{S_CNT}, s{S_CNT}, 1"
    ex[39] = "s_waitcnt lgkmcnt(6)" + (f"\ns_cmp_lg_u32 s{S_CNT}, 0" if last else "")
    for g in range(40):
        i, t, ks = g // 8, (g % 8) >> 1, g & 1
        acc = vr(accb + 4 * (4 * i + t))
        a(mfma(acc, ar(fr3(par, ks, 4 + i)), ar(fr3(par, ks, t)), acc))
        if ex.get(g, "").strip():
            a(ex[g])


def pack_store(a, accb, region):
    a(f"""
    s_lshl_b32 s{S_T0}, s{S_TILE}, 2
    s_add_u32 s{S_T0}, s{S_T0}, s{S_WAVE}
    s_lshl_b32 s{S_T0}, s{S_T0}, 2
    s_add_u32 s{S_T0}, s{S_T0}, s{S_J}
    s_mul_i32 s{S_T0}, s{S_T0}, 10240
    s_add_u32 s{S_T0}, s{S_T0}, {region}
    """)
    for t in range(4):
        o = (20, 40, 84, 40)[t] if t != 3 else 50
        o = (20, 40, 84, 50)[t]
        for e in range(10):
            r = accb + 4 * (4 * (e >> 1) + t) + 2 * (e & 1)
            a(f"v_cvt_pk_bf16_f32 v{o+e}, v{r}, v{r+1}")
        a(f"""
        buffer_store_dwordx4 {vr(o)}, v1, {sq(S_PT)}, s{S_T0} offen sc1
        buffer_store_dwordx4 {vr(o+4)}, v1, {sq(S_PT)}, s{S_T0} offen offset:1024 sc1
        buffer_store_dwordx2 {vr(o+8,2)}, v{V_PO}, {sq(S_PT)}, s{S_T0} offen offset:2048 sc1
        s_add_u32 s{S_T0}, s{S_T0}, 2560
        """)


def part_loads(a, region, base):
    a(f"""
    s_lshl_b32 s{S_T0}, s{S_TILE}, 2
    s_add_u32 s{S_T0}, s{S_T0}, s{S_J}
    s_mul_i32 s{S_T0}, s{S_T0}, 40960
    s_mul_i32 s{S_T1}, s{S_WAVE}, 2560
    s_add_u32 s{S_T0}, s{S_T0}, s{S_T1}
    s_add_u32 s{S_T0}, s{S_T0}, {region}
    """)
    for src in range(4):
        o = base + 12 * src
        a(f"""
        buffer_load_dwordx4 {vr(o)}, v1, {sq(S_PT)}, s{S_T0} offen sc1
        buffer_load_dwordx4 {vr(o+4)}, v1, {sq(S_PT)}, s{S_T0} offen offset:1024 sc1
        buffer_load_dwordx2 {vr(o+8,2)}, v{V_PO}, {sq(S_PT)}, s{S_T0} offen offset:2048 sc1
        s_add_u32 s{S_T0}, s{S_T0}, 10240
        """)


def part_sum(a, base, dst, younger, tmp):
    for src in range(4):
        o = base + 12 * src
        a(f"s_waitcnt vmcnt({3*(3-src)+younger})")
        for e in range(10):
            if src == 0:
                a(f"v_lshlrev_b32 v{dst+2*e}, 16, v{o+e}\nv_and_b32 v{dst+1+2*e}, 0xffff0000, v{o+e}")
            else:
                a(f"v_lshlrev_b32 v{tmp}, 16, v{o+e}\nv_and_b32 v{tmp+1}, 0xffff0000, v{o+e}")
                a(f"v_pk_add_f32 {vr(dst+2*e,2)}, {vr(dst+2*e,2)}, {vr(tmp,2)}")


def signal(a):
    half_lanes(a, f"buffer_store_dword v{V_ONE}, v{V_L4}, {sq(S_FL)}, s{S_T0} offen sc1")


def swaps(op, src, tmp):
    q = []
    for perm in ("v_permlane32_swap_b32", "v_permlane16_swap_b32"):
        for what in ("v_mov_b32 v{b}, v{l}", perm + " v{l}, v{b}", op + " v{l}, v{l}, v{b}"):
            for t in (0, 2):
                q.append("\n".join(what.format(l=src + tt, b=tmp + tt) for tt in (t, t + 1)))
    return q


def gen_kernel(a):
    G, spare = build_schedule()
    a(f".p2align 8\n.type {KNAME},@function\n{KNAME}:")
    a("s_cmp_ge_u32 s2, 256\ns_cbranch_scc1 L_end")
    stamp(a, 0)
    a(f"""
    s_load_dwordx2 s[{P_X}:{P_X+1}], s[0:1], 0
    s_load_dwordx2 s[{P_WS}:{P_WS+1}], s[0:1], 96
    s_load_dwordx4 s[{P_K}:{P_K+3}], s[0:1], 8
    s_load_dwordx4 s[{P_WQ}:{P_WQ+3}], s[0:1], 24
    s_load_dwordx4 s[{P_W1}:{P_W1+3}], s[0:1], 48
    s_load_dwordx4 s[{P_W2}:{P_W2+3}], s[0:1], 64
    s_load_dwordx4 s[{P_OUT}:{P_OUT+3}], s[0:1], 80
    v_and_b32 v{V_L128}, 63, v0
    v_lshlrev_b32 v{V_L128}, 7, v{V_L128}
    s_getpc_b64 s[{S_XN}:{S_XN+1}]
    L_pc2:
    s_mov_b32 s{S_XN+2}, L_p1_loop-L_pc2
    s_mov_b32 s{S_XN+3}, 0x00020000
    buffer_load_dword v61, v{V_L128}, {sq(S_XN)}, 0 offen
    s_and_b32 s{S_T0}, s2, 7
    s_lshl_b32 s{S_T0}, s{S_T0}, 2
    s_bfe_u32 s{S_T1}, s2, 0x20003
    s_add_u32 s{S_HEAD}, s{S_T0}, s{S_T1}
    s_lshr_b32 s{S_QB}, s2, 5
    s_mov_b32 s{S_PASS}, 0
    v_lshrrev_b32 v85, 4, v0
    v_lshrrev_b32 v1, 6, v0
    v_and_b32 v0, 63, v0
    v_readfirstlane_b32 s{S_WAVE}, v1
    s_lshl_b32 s{S_T0}, s{S_QB}, 8
    s_lshl_b32 s{S_T1}, s{S_HEAD}, 3
    s_add_u32 s{S_T0}, s{S_T0}, s{S_T1}
    v_add_u32 v85, s{S_T0}, v85
    v_and_b32 v31, 15, v0
    v_mul_u32_u24 v86, 1280, v85
    v_lshl_add_u32 v86, v31, 4, v86
    s_waitcnt lgkmcnt(0)
    s_add_u32 s{S_FL}, s{P_WS}, {WS_FLAG}
    s_addc_u32 s{S_FL+1}, s{P_WS+1}, 0
    s_load_dword s{S_NONCE}, s[{S_FL}:{S_FL+1}], {FL_NONCE}
    """)
    srd(a, S_X, P_X, XN_BYTES)
    a(f"s_cmp_ge_u32 s{S_WAVE}, 2\ns_cbranch_scc1 L_restart")
    for i in range(5):
        a(f"buffer_load_dwordx4 {vr(64+4*i)}, v86, {sq(S_X)}, 0 offen offset:{256*i}")
    a(f"""
    L_restart:
    v_lshrrev_b32 v84, 4, v85
    v_mul_u32_u24 v84, 20480, v84
    v_lshrrev_b32 v87, 2, v31
    v_lshl_add_u32 v84, v87, 10, v84
    v_and_b32 v87, 3, v31
    v_lshl_add_u32 v84, v87, 6, v84
    v_bfe_u32 v87, v85, 2, 2
    v_lshl_add_u32 v84, v87, 8, v84
    v_and_b32 v87, 3, v85
    v_lshl_add_u32 v84, v87, 4, v84
    v_and_b32 v26, 7, v0
    v_lshrrev_b32 v27, 3, v0
    v_lshrrev_b32 v28, 4, v0
    v_bfe_u32 v29, v0, 2, 2
    v_and_b32 v30, 3, v0
    v_and_b32 v31, 15, v0
    v_lshlrev_b32 v1, 4, v0
    v_lshlrev_b32 v36, 3, v28
    v_lshlrev_b32 v{V_L4}, 2, v0
    s_mul_i32 s{S_W3072}, s{S_WAVE}, 3072
    s_mul_i32 s{S_T0}, s{S_HEAD}, 96
    s_sub_u32 s{S_T1}, 3072, s{S_T0}
    """)
    srd(a, S_MISC, P_B1, f"s{S_T1}", f"s{S_T0}")
    for ft in range(3):
        a(f"buffer_load_dwordx2 {vr(40+2*ft,2)}, v36, {sq(S_MISC)}, 0 offen offset:{32*ft}")
    a(f"s_sub_u32 s{S_T1}, {640*1536*2}, s{S_T0}")
    srd(a, S_W1, P_W1, f"s{S_T1}", f"s{S_T0}")
    a(f"s_mul_i32 s{S_T0}, s{S_HEAD}, 384\ns_sub_u32 s{S_T1}, {640*6144*2}, s{S_T0}")
    srd(a, S_WQ, P_WQ, f"s{S_T1}", f"s{S_T0}")
    a(f"""
    s_mov_b32 s{S_FL+2}, {FLAG_BYTES}
    s_mov_b32 s{S_FL+3}, 0x00020000
    s_lshl_b32 s{S_T0}, s{S_WAVE}, 3
    v_add_u32 v32, s{S_T0}, v27
    v_mul_u32_u24 v33, 12288, v32
    v_bfe_u32 v34, v27, 1, 1
    v_lshlrev_b32 v35, 2, v34
    v_xor_b32 v35, v35, v26
    v_lshl_add_u32 v{V1_DW}, v35, 4, v33
    s_and_b32 s{S_T0}, s{S_WAVE}, 1
    s_lshl_b32 s{S_T0}, s{S_T0}, 2
    v_lshlrev_b32 v35, 1, v34
    v_or_b32 v35, s{S_T0}, v35
    v_xor_b32 v35, v35, v26
    v_mul_u32_u24 v33, 3072, v32
    v_lshl_add_u32 v{V1_DF}, v35, 4, v33
    s_lshl_b32 s{S_DMA1}, s{S_WAVE}, 10
    v_mov_b32 v{V_ZERO}, 0
    s_lshl_b32 s{S_T0}, s{S_PASS}, 1
    s_or_b32 s{S_T0}, s{S_T0}, s{S_WAVE}
    s_cmp_lt_u32 s{S_T0}, 2
    s_cbranch_scc1 L_ln
    """)
    a(f"""
    s_cmp_lg_u32 s{S_PASS}, 0
    s_cbranch_scc1 L_nopf
    s_lshl_b32 s{S_T0}, s{S_QB}, 4
    v_lshrrev_b32 v52, 2, v0
    v_add_u32 v52, s{S_T0}, v52
    v_mul_u32_u24 v53, 3072, v52
    v_lshlrev_b32 v52, 2, v53
    v_lshl_add_u32 v52, v30, 7, v52
    v_mul_u32_u24 v54, 40, v30
    v_add_u32 v53, v54, v53
    s_cmp_eq_u32 s{S_WAVE}, 2
    s_cbranch_scc1 L_pf2
    s_mov_b32 s{S_T0}, {128*12288}
    buffer_load_dword v56, v52, {sq(S_WQ)}, 0 offen
    buffer_load_dword v57, v52, {sq(S_WQ)}, s{S_T0} offen
    s_branch L_pf3
    L_pf2:
    s_mov_b32 s{S_T0}, {128*3072}
    buffer_load_dword v56, v53, {sq(S_W1)}, 0 offen
    buffer_load_dword v57, v53, {sq(S_W1)}, s{S_T0} offen
    L_pf3:
    s_getpc_b64 s[{S_XN}:{S_XN+1}]
    L_pc0:
    s_add_u32 s{S_XN}, s{S_XN}, L_p1_loop-L_pc0
    s_addc_u32 s{S_XN+1}, s{S_XN+1}, 0
    s_mov_b32 s{S_XN+2}, L_hooka-L_p1_loop
    s_and_b32 s{S_T0}, s{S_QB}, 1
    s_lshl_b32 s{S_T0}, s{S_T0}, 1
    s_add_u32 s{S_T0}, s{S_T0}, s{S_WAVE}
    s_sub_u32 s{S_T0}, s{S_T0}, 2
    s_lshl_b32 s{S_T0}, s{S_T0}, 13
    buffer_load_dword v58, v{V_L128}, {sq(S_XN)}, s{S_T0} offen
    s_waitcnt vmcnt(1) lgkmcnt(0)
    s_add_u32 s{S_NONCE}, s{S_NONCE}, 1
    L_nopf:
    """)
    a(f"""
    v_mov_b32 v52, v{V1_DW}
    v_mov_b32 v53, v{V1_DF}
    s_mov_b32 s{S_RD}, s{S_W3072}
    s_mov_b32 s{S_RD1}, s{S_DMA1}
    s_mov_b32 s{S_CNT}, s{S_PASS}
    L_pre:
    """)
    for st in range(2):
        a(f"s_mov_b32 s{S_SO0}, {64*st*12288}\ns_mov_b32 s{S_SO1}, {(64*st+32)*12288}")
        a(f"s_mov_b32 s{S_SW0}, {64*st*3072}\ns_mov_b32 s{S_SW1}, {(64*st+32)*3072}")
        dma_tile(a, 52, S_WQ, S_SO0, S_SO1, S_RD, LDS_V + st * SLOT)
        for d in range(2):
            a(f"s_add_u32 m0, s{S_RD1}, {LDS_W1 + st*8192 + d*4096}\ns_nop 0")
            a(f"buffer_load_dwordx4 v53, {sq(S_W1)}, s{S_SW0+d} offen lds")
    a(f"""
    s_cmp_lg_u32 s{S_CNT}, 0
    s_cbranch_scc1 L_setup
    s_mov_b32 s{S_CNT}, 1
    v_subrev_u32 v52, {16*12288}, v52
    v_subrev_u32 v53, {16*3072}, v53
    s_sub_u32 s{S_RD}, s{S_RD}, {2*3072}
    s_sub_u32 s{S_RD1}, s{S_RD1}, 2048
    s_branch L_pre
    L_ln:
    """)
    srd(a, S_MISC, P_WS, XN_BYTES)
    if os.environ.get("TOUCH"):
        a(f"buffer_load_dword v60, v84, {sq(S_MISC)}, 0 offen sc1\nbuffer_load_dword v59, v{V_L128}, {sq(S_FL)}, 0 offen sc1")
    gen_ln_body(a)
    stamp(a, 20)
    a(f"""
    s_waitcnt lgkmcnt(0)
    s_add_u32 s{S_NONCE}, s{S_NONCE}, 1
    v_mov_b32 v52, {LDS_FLAG + 4}
    v_mov_b32 v{V_ONE}, s{S_NONCE}
    s_lshl_b32 s{S_T0}, s{S_QB}, 12
    s_lshl_b32 s{S_T1}, s{S_HEAD}, 7
    s_add_u32 s{S_T0}, s{S_T0}, s{S_T1}
    s_cmp_eq_u32 s{S_WAVE}, 0
    s_waitcnt vmcnt(0)
    s_cbranch_scc1 L_ln0
    ds_write_b32 v52, v{V_ONE}
    s_branch L_setup
    L_ln0:
    ds_read_b32 v53, v52
    s_waitcnt lgkmcnt(0)
    v_cmp_ne_u32 vcc, v53, v{V_ONE}
    s_cbranch_vccnz L_ln0
    """)
    signal(a)
    a("L_setup:")
    stamp(a, 1)
    a(f"s_add_u32 s{S_T1}, s{S_QB}, 1\ns_mul_i32 s{S_T1}, s{S_T1}, {16*20480}")
    srd(a, S_XN, P_WS, f"s{S_T1}")
    srd(a, S_WF, P_WS, WF_BYTES, WS_WF)
    srd(a, S_H, P_WS, H_BYTES, WS_H)
    a(f"s_mul_i32 s{S_T0}, s{S_HEAD}, 786432")
    srd(a, S_K, P_K, 0, f"s{S_T0}")
    srd(a, S_V, P_V, 786432, f"s{S_T0}")
    a(f"""
    s_mov_b32 s{S_MISC+2}, {48*40960}
    s_cmp_lt_u32 s2, 192
    s_cselect_b32 s{S_MISC}, s{P_WO}, s{P_W2}
    s_cselect_b32 s{S_MISC+1}, s{P_WO+1}, s{P_W2+1}
    s_cselect_b32 s{S_MISC+2}, {6144*1280}, s{S_MISC+2}
    s_cselect_b32 s{S_T0}, 0, 192
    s_sub_u32 s{S_T0}, s2, s{S_T0}
    s_mul_i32 s{S_RS}, s{S_T0}, 40960
    s_mul_i32 s{S_RO}, s2, 40960
    s_lshl_b32 s{S_T0}, s{S_WAVE}, 10
    s_add_u32 s{S_RO}, s{S_RO}, s{S_T0}
    v_mov_b32 v{V_ONE}, s{S_NONCE}
    s_and_b32 s{S_T0}, s{S_WAVE}, 1
    s_lshl_b32 s{S_T0}, s{S_T0}, 2
    v_mul_u32_u24 v33, 384, v27
    v_add_u32 v33, s{S_W3072}, v33
    v_lshrrev_b32 v34, 1, v27
    v_add_u32 v35, s{S_T0}, v34
    v_xor_b32 v35, v35, v26
    v_lshl_add_u32 v{V_DK}, v35, 4, v33
    v_lshlrev_b32 v35, 1, v34
    v_xor_b32 v35, v35, v26
    v_lshl_add_u32 v{V_DV}, v35, 4, v33
    v_mul_u32_u24 v33, 1280, v32
    v_lshl_add_u32 v{V_RD}, v35, 4, v33
    s_lshl_b32 s{S_T0}, s{S_QB}, 4
    v_lshrrev_b32 v52, 2, v0
    v_add_u32 v52, s{S_T0}, v52
    v_mul_u32_u24 v53, 3072, v52
    v_lshlrev_b32 v52, 2, v53
    v_lshl_add_u32 v52, v30, 7, v52
    v_mul_u32_u24 v54, 40, v30
    v_add_u32 v53, v54, v53
    s_mul_i32 s{S_T0}, s{S_QB}, 48
    v_add_u32 v54, s{S_T0}, v0
    v_lshlrev_b32 v54, 7, v54
    s_mov_b32 s{S_O+3}, 0x00020000
    s_cmp_eq_u32 s{S_WAVE}, 1
    s_cselect_b32 s{S_O}, s{S_W1}, s{S_WQ}
    s_cselect_b32 s{S_O+1}, s{S_W1+1}, s{S_WQ+1}
    s_cselect_b32 s{S_O+2}, s{S_W1+2}, s{S_WQ+2}
    s_cselect_b64 vcc, -1, 0
    s_mov_b32 s{S_HS}, {128*12288}
    s_cselect_b32 s{S_HS}, {128*3072}, s{S_HS}
    v_cndmask_b32 v46, v52, v53, vcc
    s_cmp_eq_u32 s{S_WAVE}, 2
    s_cselect_b32 s{S_O}, s{S_V}, s{S_O}
    s_cselect_b32 s{S_O+1}, s{S_V+1}, s{S_O+1}
    s_cselect_b32 s{S_O+2}, s{S_V+2}, s{S_O+2}
    s_cselect_b64 vcc, -1, 0
    s_cselect_b32 s{S_HS}, 0, s{S_HS}
    v_cndmask_b32 v46, v46, v54, vcc
    s_cmp_eq_u32 s{S_WAVE}, 3
    s_cselect_b32 s{S_O+2}, 0, s{S_O+2}
    s_lshl_b32 s{S_M0}, s{S_HS}, 1
    s_mov_b32 s{S_SV0}, 0
    s_mov_b32 s{S_SV1}, 0
    s_add_u32 s{S_C0}, s{S_W3072}, {LDS_X}
    s_add_u32 s{S_C1}, s{S_W3072}, {LDS_K}
    s_lshl_b32 s{S_T0}, s{S_QB}, 4
    s_lshl_b32 s{S_T1}, s{S_WAVE}, 2
    s_add_u32 s{S_T0}, s{S_T0}, s{S_T1}
    s_mul_i32 s{S_T0}, s{S_T0}, 20480
    v_lshlrev_b32 v33, 8, v29
    v_lshl_add_u32 v33, v28, 6, v33
    v_lshl_add_u32 v33, v30, 4, v33
    v_add_u32 v{V1_X}, s{S_T0}, v33
    v_add_u32 v{V1_X+1}, 20480, v{V1_X}
    v_add_u32 v{V1_X+2}, {2*20480}, v{V1_X}
    v_add_u32 v{V1_X+3}, {3*20480}, v{V1_X}
    s_mov_b32 s{S_SO0}, {128*12288}
    s_mov_b32 s{S_SO1}, {160*12288}
    s_mov_b32 s{S_SW0}, {128*3072}
    s_mov_b32 s{S_SW1}, {160*3072}
    s_mov_b32 s{S_RD}, 0
    s_mov_b32 s{S_RD1}, 0
    s_add_u32 s{S_DMA}, s{S_W3072}, {2*SLOT}
    s_add_u32 s{S_DMA1}, s{S_DMA1}, {2*8192}
    v_mul_u32_u24 v33, 3072, v28
    v_lshl_add_u32 v33, v29, 7, v33
    v_add_u32 v33, {LDS_V}, v33
    v_lshrrev_b32 v34, 1, v29
    v_lshlrev_b32 v35, 2, v34
    v_xor_b32 v35, v35, v30
    v_lshl_add_u32 v{V1_WB}, v35, 4, v33
    v_xor_b32 v{V1_WB+1}, 64, v{V1_WB}
    v_mov_b32 v{V1_WA}, v{V1_WB}
    v_mov_b32 v{V1_WA+1}, v{V1_WB+1}
    v_lshlrev_b32 v33, 10, v28
    v_lshl_add_u32 v33, v29, 7, v33
    v_add_u32 v33, {LDS_W1}, v33
    v_and_b32 v35, 1, v30
    v_lshl_add_u32 v33, v35, 3, v33
    v_lshrrev_b32 v35, 1, v30
    v_lshl_add_u32 v33, v35, 4, v33
    v_and_b32 v35, 1, v28
    v_lshl_add_u32 v35, v35, 1, v34
    v_lshl_add_u32 v{V1_FB}, v35, 5, v33
    v_xor_b32 v{V1_FB+1}, 32, v{V1_FB}
    v_xor_b32 v{V1_FB+2}, 64, v{V1_FB}
    v_mov_b32 v{V1_FA}, v{V1_FB}
    v_mov_b32 v{V1_FA+1}, v{V1_FB+1}
    v_mov_b32 v{V1_FA+2}, v{V1_FB+2}
    v_mov_b32 v48, 0
    v_mov_b32 v49, 0
    v_mov_b32 v50, 0
    v_mov_b32 v51, 0
    s_or_b32 s{S_T0}, s{S_WAVE}, s{S_PASS}
    s_cmp_eq_u32 s{S_T0}, 0
    s_cbranch_scc1 L_nw
    s_waitcnt vmcnt(0)
    L_nw:
    """)
    for i in range(12):
        a(f"v_mfma_f32_32x32x16_bf16 {vr(64+16*i,16)}, v[48:51], v[48:51], 0")
    for ft in range(3):
        a(f"""
        v_lshlrev_b32 v52, 16, v{40+2*ft}
        v_and_b32 v53, 0xffff0000, v{40+2*ft}
        v_lshlrev_b32 v54, 16, v{41+2*ft}
        v_and_b32 v55, 0xffff0000, v{41+2*ft}
        """)
        for t in range(4):
            for r in range(4):
                a(f"v_accvgpr_write_b32 a{P1_H+4*(4*ft+t)+r}, v{52+r}")
    a(f"""
    s_or_b32 s{S_T0}, s{S_WAVE}, s{S_PASS}
    s_cmp_lg_u32 s{S_T0}, 0
    s_cbranch_scc1 L_p1go
    s_lshl_b32 s{S_T0}, s{S_QB}, 12
    v_and_b32 v53, {31*128}, v{V_L128}
    L_poll1:
    buffer_load_dword v52, v53, {sq(S_FL)}, s{S_T0} offen sc1
    s_waitcnt vmcnt(0)
    v_cmp_ne_u32 vcc, v52, v{V_ONE}
    s_cbranch_vccnz L_poll1
    L_p1go:
    s_barrier
    """)
    stamp(a, 2)
    for ks in range(2):
        for j in range(4):
            a(f"buffer_load_dwordx4 {ar(P1_B+16*ks+4*j)}, v{V1_X+j}, {sq(S_XN)}, 0 offen offset:{1024*ks} sc1")
    for f in range(2):
        for k in range(4):
            a(p1_read(f, k))
    a(f"""
    s_mov_b32 s{S_K+2}, 786432
    s_lshl_b32 s{S_T0}, s{S_QB}, 2
    s_add_u32 s{S_T0}, s{S_T0}, s{S_WAVE}
    s_mul_i32 s{S_T0}, s{S_T0}, {18*128}
    v_min_u32 v52, {17*128}, v{V_L128}
    buffer_load_dword v59, v52, {sq(S_K)}, s{S_T0} offen
    s_mov_b32 s{S_K+2}, 0
    """)
    a(f"s_mov_b32 s{S_BOFF}, 2048\ns_mov_b32 s{S_CNT}, 5\ns_waitcnt vmcnt(1) lgkmcnt(4)")
    stamp(a, 3)
    a(".p2align 6\nL_p1_loop:")
    gen_p1_stage(a, 0)
    gen_p1_stage(a, 1)
    a("s_cbranch_scc1 L_p1_loop\ns_waitcnt vmcnt(0) lgkmcnt(0)\ns_barrier")
    stamp(a, 4)
    dm = []
    for (voff, sr, so, goff, lds) in ((V_DV, S_V, S_SV0, 0, LDS_V), (V_DK, S_K, S_SO0, 2 * SLOT, LDS_K + 2 * SLOT), (V_DV, S_V, S_SV0, SLOT, LDS_V + SLOT)):
        for d in range(6):
            pre = f"s_mov_b32 s{so}, {goff}\ns_mov_b32 s{so+1}, {goff+12288}\n" if d == 0 else ""
            dm.append((pre + f"s_add_u32 m0, s{S_W3072}, {lds + (d//3)*12288 + (d%3)*896}",
                       f"buffer_load_dwordx4 v{voff}, {sq(sr)}, s{so + d//3} offen offset:{(d%3)*128} lds"))
    c = (192 ** -0.5) * math.log2(math.e)
    a(f"s_mov_b32 s{S_C0}, {fh(c)}\ns_mov_b32 s{S_C1}, {fh(c)}")
    for i in range(24):
        b = P1_ACC + 8 * i
        if i < 18:
            a(dm[i][0])
        for j in range(4):
            a(f"v_pk_mul_f32 {vr(b+2*j,2)}, {vr(b+2*j,2)}, s[{S_C0}:{S_C1}]")
        if i < 18:
            a(dm[i][1])
        if i % 2 == 1 and i // 2 + 3 < 12:
            a(f"v_mfma_f32_32x32x16_bf16 {ar(16*(i//2+3),16)}, v[48:51], v[48:51], 0")
        for j in range(4):
            a(f"v_cvt_pk_bf16_f32 v{V_Q+4*i+j}, v{b+2*j}, v{b+2*j+1}")
    for e in range(32):
        a(f"v_accvgpr_write_b32 a{A_Q+e}, v{V_Q+64+e}")
    stamp(a, 21)
    srd(a, S_O, P_WS, O_BYTES, WS_O)
    k0 = -2.0 * math.log2(math.e) * math.sqrt(2 / math.pi)
    k1 = k0 * 0.044715
    a(f"""
    s_mov_b32 s{S_SO0}, {3*SLOT}
    s_mov_b32 s{S_SO1}, {3*SLOT+12288}
    s_mov_b32 s{S_SV0}, {2*SLOT}
    s_mov_b32 s{S_SV1}, {2*SLOT+12288}
    s_lshl_b32 s{S_T0}, s{S_QB}, 4
    s_lshl_b32 s{S_T1}, s{S_WAVE}, 2
    s_add_u32 s{S_T0}, s{S_T0}, s{S_T1}
    s_mul_i32 s{S_T0}, s{S_T0}, {48*1024}
    v_add_u32 v52, s{S_T0}, v1
    v_add_u32 v53, {48*1024}, v52
    v_add_u32 v54, {2*48*1024}, v52
    v_add_u32 v55, {3*48*1024}, v52
    v_mov_b32 v56, {fh(k1)}
    v_mov_b32 v57, {fh(k0)}
    v_mov_b32 v58, 1.0
    """)
    stamp(a, 22)

    def gelu(ft, packed):
        o = [(f"""s_mul_i32 s{S_T0}, s{S_HEAD}, 3
        s_add_u32 s{S_T0}, s{S_T0}, {ft}
        s_lshr_b32 s{S_T1}, s{S_T0}, 1
        s_lshl_b32 s{S_T1}, s{S_T1}, 10
        s_and_b32 s{S_T0}, s{S_T0}, 1
        s_lshl_b32 s{S_T0}, s{S_T0}, 3
        s_add_u32 s{S_M0}, s{S_T0}, s{S_T1}""", 0)]
        x, u = 216, 232
        o += [(f"v_accvgpr_read_b32 v{x+e}, a{P1_H+16*ft+e}", 1) for e in range(16)]
        if packed:
            o.append((f"v_mfma_f32_32x32x16_bf16 {ar(16*ft,16)}, v[48:51], v[48:51], 0", 0))
        for pk, sc, sl in (("v_pk_mul_f32 {U}, {X}, {X}", "v_mul_f32 v{u}, v{x}, v{x}", 1),
                           ("v_pk_fma_f32 {U}, {U}, v[56:57], v[56:57] op_sel:[0,0,1] op_sel_hi:[1,0,1]", "v_fma_f32 v{u}, v{u}, v56, v57", 1),
                           ("v_pk_mul_f32 {U}, {U}, {X}", "v_mul_f32 v{u}, v{u}, v{x}", 1),
                           (None, "v_exp_f32 v{u}, v{u}", 2),
                           ("v_pk_add_f32 {U}, {U}, v[58:59] op_sel_hi:[1,0]", "v_add_f32 v{u}, 1.0, v{u}", 1),
                           (None, "v_rcp_f32 v{u}, v{u}", 2),
                           ("v_pk_mul_f32 {X}, {U}, {X}", "v_mul_f32 v{x}, v{u}, v{x}", 1)):
            if packed and pk:
                o += [(pk.format(U=vr(u + e, 2), X=vr(x + e, 2)), 1) for e in range(0, 16, 2)]
            else:
                o += [(sc.format(u=u + e, x=x + e), sl) for e in range(16)]
        o += [(f"v_cvt_pk_bf16_f32 v{192+8*ft+e}, v{x+2*e}, v{x+2*e+1}", 1) for e in range(8)]
        o += [(f"buffer_store_dwordx2 {vr(192+8*ft+2*t,2)}, v{52+t}, {sq(S_H)}, s{S_M0} offen sc1", 2) for t in range(4)]
        return o
    a(f"s_cmp_lg_u32 s{S_PASS}, 0\ns_cbranch_scc1 L_nogelu")
    for ft in range(2):
        for ins, _ in gelu(ft, True):
            a(ins)
    a("L_nogelu:")
    a(f"""
    v_lshrrev_b32 v33, 3, v31
    v_mul_u32_u24 v33, 3072, v33
    v_lshl_add_u32 v33, v26, 7, v33
    v_lshrrev_b32 v34, 1, v31
    v_xor_b32 v34, v34, v28
    v_lshl_add_u32 v{V_KB}, v34, 4, v33
    v_xor_b32 v{V_KB+1}, 64, v{V_KB}
    v_mov_b32 v{V_KA}, v{V_KB}
    v_mov_b32 v{V_KA+1}, v{V_KB+1}
    v_lshrrev_b32 v33, 1, v28
    v_mul_u32_u24 v33, 3072, v33
    v_add_u32 v33, {LDS_V}, v33
    v_and_b32 v34, 1, v28
    v_lshl_add_u32 v34, v34, 2, v29
    v_lshl_add_u32 v33, v34, 7, v33
    v_and_b32 v35, 1, v30
    v_lshl_add_u32 v33, v35, 3, v33
    v_lshrrev_b32 v35, 1, v30
    v_lshl_add_u32 v33, v35, 4, v33
    v_lshrrev_b32 v34, 1, v34
    v_lshl_add_u32 v{V_VB}, v34, 5, v33
    v_xor_b32 v{V_VB+1}, 32, v{V_VB}
    v_xor_b32 v{V_VB+2}, 64, v{V_VB}
    v_xor_b32 v{V_VB+3}, 96, v{V_VB}
    v_mov_b32 v34, {LDS_FLAG}
    ds_write_b32 v34, v{V_ZERO}
    s_lshl_b32 s{S_T0}, s{S_WAVE}, 5
    v_xor_b32 v{V_RR}, s{S_T0}, v{V_VB}
    v_add_u32 v{V_RR}, {LDS_X - LDS_V}, v{V_RR}
    s_mov_b32 s{S_KC}, 0
    s_cmp_eq_u32 s{S_PASS}, 0
    s_cselect_b32 s{S_HOOK}, 8, 3
    s_mov_b32 s{S_WF+2}, 0
    s_sub_u32 s{S_RO}, s{S_RO}, 4096
    s_cmp_eq_u32 s{S_PASS}, 0
    """)
    for j in range(4):
        a(f"v_mov_b32 v{V_L+j}, 0\nv_mov_b32 v{20+j}, 0xff800000")
    a("s_cbranch_scc0 L_maxfirst")
    stamp(a, 5)

    def qk0(fill):
        for g in range(3):
            a(k_read(g, 0) + "\n" + k_read(g, 1))
        for g in range(12):
            if g == 0:
                a("s_waitcnt lgkmcnt(4)")
            mx = []
            if g % 3 == 1 and g >= 4:
                for t in range(4):
                    s0 = s_reg(g // 3 - 1, t)
                    mx += [(f"v_max3_f32 v{20+t}, v{20+t}, v{s0}, v{s0+1}", 1), (f"v_max3_f32 v{20+t}, v{20+t}, v{s0+2}, v{s0+3}", 1)]
            fill[:0] = mx
            for p in range(8):
                a(qk_mfma(g, p, lambda t: "0"))
                room = 2
                if p == 7 and g < 11:
                    a(f"s_waitcnt lgkmcnt({2 if g <= 9 else 0})")
                if p < 2 and 3 <= g + 2 < 12 and g >= 1:
                    a(k_read(g + 2, p))
                    room = 1
                while fill and fill[0][1] <= room:
                    ins, sl = fill.pop(0)
                    a(ins)
                    room -= sl
        for ins, _ in fill:
            a(ins)
        a(f"s_waitcnt vmcnt(24)\ns_barrier\ns_cmp_lg_u32 s{S_KC}, 0\nv_add_u32 v{V_KA}, {SLOT}, v{V_KB}\nv_add_u32 v{V_KA+1}, {SLOT}, v{V_KB+1}\ns_nop 1")
        for t in range(4):
            s0 = s_reg(3, t)
            a(f"v_max3_f32 v{20+t}, v{20+t}, v{s0}, v{s0+1}\nv_max3_f32 v{20+t}, v{20+t}, v{s0+2}, v{s0+3}")
    g2 = gelu(2, False)
    for ins, _ in g2[:17]:
        a(ins)
    a(f"v_mfma_f32_32x32x16_bf16 {ar(32,16)}, v[48:51], v[48:51], 0")
    qk0(g2[17:])
    a("L_qkdone:")
    for g in range(2):
        a(k_read(g, 0) + "\n" + k_read(g, 1))
    for x in swaps("v_max_f32", 20, 24):
        a(x + "\ns_nop 0")
    a(f"s_cmp_eq_u32 s{S_PASS}, 0\ns_cselect_b32 s{S_T0}, {fh(-OFF)}, 0")
    for t in range(4):
        a(f"v_sub_f32 v{V_NM+4*t}, s{S_T0}, v{20+t}")
    for t in range(4):
        for r in range(1, 4):
            a(f"v_mov_b32 v{V_NM+4*t+r}, v{V_NM+4*t}")
    for u in range(4):
        for t in range(4):
            for j in range(2):
                r = s_reg(u, t) + 2 * j
                a(f"v_pk_add_f32 {vr(r,2)}, {vr(r,2)}, {vr(V_NM+4*t,2)}")
    for i in range(192):
        if G[i]["exp"] is not None and G[i]["exp"][0] == "cur":
            a(soft("exp", *G[i]["exp"], 0))
    a("s_nop 0")
    for i in range(192):
        for (w, kind, u, t, x) in G[i]["valu"]:
            if w == "cur":
                a(soft(kind, w, u, t, x, 0))
    a(f"""
    s_mov_b32 s{S_RD}, 0
    s_mov_b32 s{S_RK}, {SLOT}
    s_mov_b32 s{S_DV}, {2*SLOT}
    s_add_u32 s{S_M0}, s{S_W3072}, {LDS_V}
    s_mov_b32 s{S_DKM}, s{S_W3072}
    s_add_u32 s{S_DVM}, s{S_M0}, {2*SLOT}
    s_mov_b32 s{S_CNT}, 31
    s_waitcnt lgkmcnt({att_counts(G)[0]})
    """)
    stamp(a, 6)
    a(".p2align 6\nL_att_loop:")
    gen_body(a, G, spare, 1, lab="a")
    a("s_cbranch_scc0 L_att_tail")
    gen_body(a, G, spare, 0, lab="b")
    a("s_branch L_att_loop")
    f2 = "\n".join(f"s_mov_b32 s{S_T0}, {FL_F2 + k*8192}\nbuffer_load_dword v{V_F2+k}, v{V_L128}, {sq(S_FL)}, s{S_T0} offen sc1" for k in range(4))
    a(f"""
    L_hooka:
    s_mov_b32 s{S_KC}, 0
    s_branch L_hook
    L_hookb:
    s_mov_b32 s{S_KC}, 1
    L_hook:
    s_cmp_eq_u32 s{S_CNT}, 3
    s_cbranch_scc1 L_hF
    L_hP:
    s_mov_b32 s{S_HOOK}, 3
    s_cmp_lg_u32 s{S_WAVE}, 0
    s_cbranch_scc1 L_hdone
    s_lshl_b32 s{S_T0}, s2, 7
    s_add_u32 s{S_T0}, s{S_T0}, {FL_F2}
    """)
    signal(a)
    a(f"""
    s_nop 1
    s_branch L_hdone
    L_hF:
    """)
    code_prefetch(a, 1, "L_att_tail", "L_end", S_XN, V_F2 + 4, one=True)
    a(f"""
    s_cmp_lg_u32 s{S_WAVE}, 0
    s_cbranch_scc1 L_hdone
    {f2}
    """)
    a(f"""
    L_hdone:
    s_cmp_eq_u32 s{S_KC}, 0
    s_cbranch_scc1 L_hreta
    s_branch L_hretb
    L_maxfirst:
    v_mfma_f32_32x32x16_bf16 a[0:15], v[48:51], v[48:51], 0
    v_mfma_f32_32x32x16_bf16 a[16:31], v[48:51], v[48:51], 0
    v_mfma_f32_32x32x16_bf16 a[32:47], v[48:51], v[48:51], 0
    s_mov_b32 s{S_KC}, {32*SLOT}
    L_maxnext:
    s_sub_u32 s{S_KC}, s{S_KC}, {SLOT}
    s_add_u32 s{S_T0}, s{S_KC}, 12288
    v_mov_b32 v{V_KA}, v{V_KB}
    v_mov_b32 v{V_KA+1}, v{V_KB+1}
    """)
    dma_tile(a, V_DK, S_K, S_KC, S_T0, S_W3072, LDS_K)
    a("s_waitcnt vmcnt(0)\ns_barrier")
    qk0([])
    a(f"""
    s_cbranch_scc1 L_maxnext
    s_branch L_qkdone
    L_fallback:
    s_waitcnt vmcnt(0) lgkmcnt(0)
    s_barrier
    s_mov_b32 s{S_PASS}, 1
    s_branch L_restart
    L_nonce:
    s_mov_b32 s{S_T0}, {FL_NONCE}
    """)
    signal(a)
    a(f"""
    s_nop 1
    s_branch L_nononce
    L_repoll2:
    {f2}
    s_waitcnt vmcnt(0)
    s_branch L_chk2
    L_att_tail:
    v_add_u32 v{V_VA}, s{S_RD}, v{V_VB}
    v_add_u32 v{V_VA+1}, s{S_RD}, v{V_VB+1}
    v_add_u32 v{V_VA+2}, s{S_RD}, v{V_VB+2}
    v_add_u32 v{V_VA+3}, s{S_RD}, v{V_VB+3}
    """)
    for f in (12, 13, 14):
        for k in range(4):
            a(v_read(f, k))
    a(f"""
    s_cmp_lg_u32 s{S_WAVE}, 0
    s_cbranch_scc1 L_ok2
    L_chk2:
    v_xor_b32 v{V_F2}, v{V_F2}, v{V_ONE}
    v_xor_b32 v{V_F2+1}, v{V_F2+1}, v{V_ONE}
    v_xor_b32 v{V_F2+2}, v{V_F2+2}, v{V_ONE}
    v_xor_b32 v{V_F2+3}, v{V_F2+3}, v{V_ONE}
    v_or3_b32 v{V_F2}, v{V_F2}, v{V_F2+1}, v{V_F2+2}
    v_or_b32 v{V_F2}, v{V_F2}, v{V_F2+3}
    v_cmp_ne_u32 vcc, 0, v{V_F2}
    s_cbranch_vccnz L_repoll2
    L_ok2:
    """)
    setup = f"""
    s_and_b32 s{S_J}, s2, 3
    s_bfe_u32 s{S_T0}, s2, 0x10002
    s_lshl_b32 s{S_T0}, s{S_T0}, 3
    s_bfe_u32 s{S_MB}, s2, 0x30003
    s_add_u32 s{S_MB}, s{S_MB}, s{S_T0}
    s_lshr_b32 s{S_NB}, s2, 6
    s_lshl_b32 s{S_TILE}, s{S_MB}, 2
    s_add_u32 s{S_TILE}, s{S_TILE}, s{S_NB}
    s_lshl_b32 s{S_T0}, s{S_MB}, 3
    s_lshl_b32 s{S_T1}, s{S_WAVE}, 1
    s_add_u32 s{S_T0}, s{S_T0}, s{S_T1}
    s_mul_i32 s{S_T1}, s{S_T0}, {192*1024}
    v_add_u32 v{V_DO}, s{S_T1}, v1
    v_add_u32 v{V_DO+1}, {192*1024}, v{V_DO}
    s_mul_i32 s{S_T1}, s{S_T0}, {48*1024}
    v_add_u32 v{V_DH}, s{S_T1}, v1
    v_add_u32 v{V_DH+1}, {48*1024}, v{V_DH}
    s_mul_i32 s{S_OO}, s{S_J}, {12*1024}
    s_lshr_b32 s{S_T0}, s{S_WAVE}, 1
    s_mul_i32 s{S_WS0}, s{S_T0}, 40960
    s_mul_i32 s{S_LW}, s{S_T0}, 10240
    s_lshl_b32 s{S_T0}, s{S_T0}, 13
    v_add_u32 v{V_RB0}, s{S_T0}, v1
    s_and_b32 s{S_T0}, s{S_WAVE}, 1
    s_mul_i32 s{S_T0}, s{S_T0}, 5120
    s_add_u32 s{S_WS0}, s{S_WS0}, s{S_T0}
    s_add_u32 s{S_T0}, s{S_T0}, {LDS_WOFF}
    s_add_u32 s{S_LW}, s{S_LW}, s{S_T0}
    v_add_u32 v{V_RA0}, s{S_T0}, v1
    s_mul_i32 s{S_T0}, s{S_NB}, 10240
    s_add_u32 s{S_WS0}, s{S_WS0}, s{S_T0}
    s_mul_i32 s{S_T0}, s{S_J}, {12*40960}
    s_add_u32 s{S_WO}, s{S_WS0}, s{S_T0}
    s_add_u32 s{S_WO}, s{S_WO}, {192*40960}
    s_add_u32 s{S_WO4}, s{S_WO}, 4096
    s_mul_i32 s{S_T0}, s{S_J}, {48*40960}
    s_add_u32 s{S_WS0}, s{S_WS0}, s{S_T0}
    s_lshl_b32 s{S_LO}, s{S_WAVE}, 12
    v_mov_b32 v{V_RB}, v{V_RB0}
    v_mov_b32 v{V_RA}, v{V_RA0}
    s_mov_b32 s{S_WF+2}, {WF_BYTES}
    """
    qd = ["s_waitcnt vmcnt(0)", "s_barrier",
          f"s_or_b32 s{S_T0}, s2, s{S_WAVE}\ns_cmp_eq_u32 s{S_T0}, 0\ns_cbranch_scc1 L_nonce\nL_nononce:"]
    cur, cost = [], 0
    for ln in [x.strip() for x in setup.strip().split("\n")]:
        c1 = 2 if (ln.startswith("v_") and not cur) else 1
        if cost + c1 > 3:
            qd.append("\n".join(cur))
            cur, cost = [], 0
            c1 = 2 if ln.startswith("v_") else 1
        cur.append(ln)
        cost += c1
    qd.append("\n".join(cur))
    gops = []
    for st in range(4):
        for k in range(9):
            pre, ld = dma3(k, S_H, V_DH)
            if k == 0:
                pre = [f"s_add_u32 s{S_DO}, s{S_LO}, {st*STG}", f"s_add_u32 s{S_DW}, s{S_LW}, {st*STG}"] + pre
            gops.append((pre, ld, ADV3 if k == 8 else []))
    for pre, ld, post in gops[:18]:
        if pre:
            qd.append("\n".join(pre))
        qd.append(ld)
        if post:
            qd.append("\n".join(post))
    qv = [y for x in swaps("v_add_f32", V_L, 24) for y in x.split("\n")] + [f"v_rcp_f32 v{20+2*t}, v{V_L+t}" for t in range(4)]
    gen_body(a, G, spare, 0, tail=True, tailq=(qd, qv))
    stamp(a, 7)
    a(f"""
    s_lshl_b32 s{S_T0}, s{S_QB}, 4
    s_lshl_b32 s{S_T1}, s{S_WAVE}, 2
    s_add_u32 s{S_T0}, s{S_T0}, s{S_T1}
    s_mul_i32 s{S_T0}, s{S_T0}, {192*1024}
    s_mul_i32 s{S_T1}, s{S_HEAD}, {6*1024}
    s_add_u32 s{S_T0}, s{S_T0}, s{S_T1}
    v_add_u32 v28, s{S_T0}, v1
    v_add_u32 v29, {192*1024}, v28
    v_add_u32 v30, {2*192*1024}, v28
    v_add_u32 v31, {3*192*1024}, v28
    s_mov_b32 s{S_M0}, 4096
    """)
    for n in range(24):
        s, t = n // 4, n % 4
        b, o = 40 + 8 * (n % 2), 64 + 4 * n
        for h in range(2):
            for r in range(4):
                a(f"v_accvgpr_read_b32 v{b+4*h+r}, a{4*(4*(2*s+h)+t)+r}")
        for j in range(4):
            a(f"v_pk_mul_f32 {vr(b+2*j,2)}, {vr(b+2*j,2)}, {vr(20+2*t,2)} op_sel_hi:[1,0]")
        for j in range(4):
            a(f"v_cvt_pk_bf16_f32 v{o+j}, v{b+2*j}, v{b+2*j+1}")
        a(f"buffer_store_dwordx4 {vr(o)}, v{28+t}, {sq(S_O)}, {'0' if s < 4 else f's{S_M0}'} offen offset:{(s%4)*1024} sc1")
    stamp(a, 8)
    a("v_mov_b32 v48, 0\nv_mov_b32 v49, 0\nv_mov_b32 v50, 0\nv_mov_b32 v51, 0")
    zi = 0
    for t in range(4):
        regs = [64 + 4 * (4 * s + t) + j for s in range(6) for j in range(4)]
        a(f"v_max3_f32 v{40+t}, |v{regs[0]}|, |v{regs[1]}|, |v{regs[2]}|")
        for k in range(3, 23, 2):
            a(f"v_max3_f32 v{40+t}, |v{regs[k]}|, |v{regs[k+1]}|, v{40+t}")
            if k in (3, 11, 19) and zi < 5:
                a(f"v_mfma_f32_32x32x16_bf16 {vr(ACC_G+16*zi,16)}, v[48:51], v[48:51], 0")
                zi += 1
        a(f"v_max_f32 v{40+t}, |v{regs[23]}|, v{40+t}")
    for x in swaps("v_max_f32", 40, 44):
        a(x + "\ns_nop 0")
    for t in range(4):
        a(f"v_mul_f32 v{40+t}, v{40+t}, v{V_L+t}")
    a(f"""
    v_min3_f32 v40, v40, v41, v42
    v_min_f32 v40, v40, v43
    v_add_f32 v41, v{V_L}, v{V_L+1}
    v_add_f32 v42, v{V_L+2}, v{V_L+3}
    v_add_f32 v41, v41, v42
    v_mov_b32 v42, {fh(GUARD_LO)}
    v_cmp_nle_f32 vcc, v42, v40
    v_cmp_ngt_f32 s[{S_M0}:{S_M0+1}], 1.0, v41
    v_mov_b32 v40, {LDS_FLAG}
    v_mov_b32 v41, 1
    """)
    srd(a, S_PT, P_WS, 2 * PART_BYTES, WS_PART)
    a(f"""
    s_or_b64 vcc, vcc, s[{S_M0}:{S_M0+1}]
    s_cbranch_vccz L_good
    ds_write_b32 v40, v41
    L_good:
    """)
    srd(a, S_OUT, P_OUT, 2048 * 1280)
    srd(a, S_B2, P_B2, 1280)
    a(f"""
    s_lshl_b32 s{S_T0}, s{S_MB}, 3
    s_lshr_b32 s{S_T1}, s{S_J}, 1
    s_lshl_b32 s{S_T1}, s{S_T1}, 2
    s_add_u32 s{S_T0}, s{S_T0}, s{S_T1}
    s_add_u32 s{S_T0}, s{S_T0}, s{S_WAVE}
    s_lshl_b32 s{S_T0}, s{S_T0}, 4
    v_and_b32 v42, 15, v0
    v_add_u32 v42, s{S_T0}, v42
    v_mul_u32_u24 v42, 1280, v42
    s_mul_i32 s{S_T0}, s{S_NB}, 320
    s_and_b32 s{S_T1}, s{S_J}, 1
    s_mul_i32 s{S_T1}, s{S_T1}, 160
    s_add_u32 s{S_T0}, s{S_T0}, s{S_T1}
    v_lshrrev_b32 v41, 4, v0
    v_lshlrev_b32 v41, 3, v41
    v_add_u32 v{V_BO}, s{S_T0}, v41
    v_add_u32 v{V_OO}, v42, v{V_BO}
    v_lshlrev_b32 v{V_PO}, 3, v0
    v_and_b32 v{V_FV}, {3*128}, v{V_L128}
    s_lshr_b32 s{S_T0}, s{S_MB}, 1
    s_lshl_b32 s{S_T0}, s{S_T0}, 12
    s_lshl_b32 s{S_T1}, s{S_J}, 10
    s_add_u32 s{S_T0}, s{S_T0}, s{S_T1}
    s_add_u32 s{S_M0}, s{S_T0}, {FL_F3}
    v_and_b32 v61, {7*128}, v{V_L128}
    s_mov_b32 s{S_HOOK}, 4
    s_mov_b32 s{S_R3}, 0
    s_mov_b32 s{S_CNT}, 6
    s_waitcnt vmcnt(24) lgkmcnt(0)
    s_barrier
    ds_read_b32 v41, v40
    """)
    for ks, n in RD3[:14]:
        a(rd3(0, ks, n))
    a(f"""
    s_waitcnt lgkmcnt(14)
    v_readfirstlane_b32 s{S_T0}, v41
    """)
    for ks, n in RD3[14:]:
        a(rd3(0, ks, n))
    if not (X_RINGV or X_QV or os.environ.get('NOFB')):
        a(f"s_cmp_gt_u32 s{S_T0}, s{S_PASS}\ns_cbranch_scc1 L_fallback")
    for zi in range(5):
        a(f"v_mfma_f32_32x32x16_bf16 {vr(ACC_S+16*zi,16)}, v[48:51], v[48:51], 0")
    for pre, ld, post in gops[18:]:
        for x in pre:
            a(x)
        if pre:
            a("s_nop 0")
        a(ld)
        for x in post:
            a(x)
    for j in range(5):
        a(f"buffer_load_dwordx2 {vr(V_X+2*j,2)}, v{V_OO}, {sq(S_X)}, 0 offen offset:{32*j}")
        a(f"buffer_load_dwordx2 {vr(V_B2+2*j,2)}, v{V_BO}, {sq(S_B2)}, 0 offen offset:{32*j}")
    a("s_waitcnt lgkmcnt(0)")
    stamp(a, 9)
    a(".p2align 6\nL_g_loop:")
    stage3(a, 0, ACC_G, S_H, V_DH, f"s_cmp_eq_u32 s{S_CNT}, 6\ns_cbranch_scc1 L_g_nw\ns_waitcnt vmcnt(18)\nL_g_nw:",
           f"s_cmp_eq_u32 s{S_CNT}, s{S_HOOK}\ns_cbranch_scc1 L_g_h0\nL_g_r0:", False)
    stage3(a, 1, ACC_G, S_H, V_DH, "s_waitcnt vmcnt(18)",
           f"s_cmp_eq_u32 s{S_CNT}, 5\ns_cbranch_scc1 L_g_h1\nL_g_r1:", True)
    a(f"""
    s_cbranch_scc1 L_g_loop
    s_branch L_g_done
    L_g_h0:
    s_mov_b32 s{S_H+2}, 0
    s_mov_b32 s{S_WO}, s{S_WS0}
    s_add_u32 s{S_WO4}, s{S_WS0}, 4096
    s_mov_b32 s{S_HOOK}, 2
    s_cmp_eq_u32 s{S_CNT}, 4
    s_cbranch_scc1 L_g_r0
    s_add_u32 s{S_WO}, s{S_WO}, {4*40960}
    s_add_u32 s{S_WO4}, s{S_WO4}, {4*40960}
    buffer_load_dword v60, v61, {sq(S_FL)}, s{S_M0} offen sc1
    s_branch L_g_r0
    L_g_h1:
    s_cmp_lg_u32 s{S_WAVE}, 0
    s_cbranch_scc1 L_g_r1
    s_lshl_b32 s{S_T0}, s{S_QB}, 12
    s_lshl_b32 s{S_T1}, s{S_HEAD}, 7
    s_add_u32 s{S_T0}, s{S_T0}, s{S_T1}
    s_add_u32 s{S_T0}, s{S_T0}, {FL_F3}
    """)
    signal(a)
    a("s_branch L_g_r1\nL_g_done:\ns_waitcnt vmcnt(18) lgkmcnt(0)")
    stamp(a, 10)
    def o_dmas():
        a(f"s_mul_i32 s{S_OO}, s{S_J}, {48*1024}")
        for st in range(4):
            a(f"s_add_u32 s{S_DO}, s{S_LO}, {((st+2)%4)*STG}")
            for k in range(4):
                pre, ld = dma3(k, S_O, V_DO)
                for x in pre:
                    a(x + "\ns_nop 0")
                a(ld)
            a(ADV3[0])
    a(f"""
    s_barrier
    v_cmp_ne_u32 vcc, v{V_ONE}, v60
    s_mov_b32 s{S_KC}, 0
    s_cbranch_vccnz L_late
    s_mov_b32 s{S_KC}, 1
    """)
    o_dmas()
    a("L_late:")
    pack_store(a, ACC_G, PART_BYTES)
    stamp(a, 11)
    a(f"""
    s_cmp_eq_u32 s{S_KC}, 1
    s_cbranch_scc1 L_p3go
    L_poll3:
    buffer_load_dword v60, v61, {sq(S_FL)}, s{S_M0} offen sc1
    s_waitcnt vmcnt(0)
    v_cmp_ne_u32 vcc, v{V_ONE}, v60
    s_cbranch_vccnz L_poll3
    """)
    o_dmas()
    for k in range(12):
        a(f"buffer_load_dword v60, v61, {sq(S_H)}, 0 offen")
    a("L_p3go:")
    a(f"s_mov_b32 s{S_HOOK}, 20\ns_mov_b32 s{S_CNT}, 24\ns_waitcnt vmcnt(20)\ns_barrier")
    for ks, n in RD3:
        a(rd3(0, ks, n))
    a("s_waitcnt lgkmcnt(0)")
    stamp(a, 12)
    a(".p2align 6\nL_s_loop:")
    stage3(a, 0, ACC_S, S_O, V_DO, f"s_waitcnt vmcnt(30)\ns_cmp_gt_u32 s{S_CNT}, 21\ns_cbranch_scc1 L_s_n0\ns_waitcnt vmcnt(18)\nL_s_n0:",
           f"s_cmp_eq_u32 s{S_CNT}, s{S_HOOK}\ns_cbranch_scc1 L_s_h\nL_s_r:", False)
    stage3(a, 1, ACC_S, S_O, V_DO, f"s_waitcnt vmcnt(25)\ns_cmp_gt_u32 s{S_CNT}, 21\ns_cbranch_scc1 L_s_n1\ns_waitcnt vmcnt(18)\nL_s_n1:",
           "", True)
    a(f"""
    s_cbranch_scc1 L_s_loop
    s_branch L_s_done
    L_s_h:
    s_lshl_b32 s{S_PO}, s{S_TILE}, 9
    s_add_u32 s{S_PO}, s{S_PO}, {FL_F5}
    s_cmp_eq_u32 s{S_CNT}, 4
    s_cbranch_scc1 L_s_h2
    s_mov_b32 s{S_HOOK}, 4
    s_cmp_lg_u32 s{S_WAVE}, 0
    s_cbranch_scc1 L_s_r
    s_lshl_b32 s{S_T1}, s{S_J}, 7
    s_add_u32 s{S_T0}, s{S_PO}, s{S_T1}
    """)
    signal(a)
    a(f"""
    s_branch L_s_r
    L_s_h2:
    s_mov_b32 s{S_O+2}, 0
    s_mov_b32 s{S_WF+2}, 0
    buffer_load_dword v60, v{V_FV}, {sq(S_FL)}, s{S_PO} offen sc1
    s_branch L_s_r
    L_repoll5:
    buffer_load_dword v60, v{V_FV}, {sq(S_FL)}, s{S_PO} offen sc1
    s_waitcnt vmcnt(0)
    L_s_done:
    v_cmp_ne_u32 vcc, v{V_ONE}, v60
    s_cbranch_vccnz L_repoll5
    s_waitcnt lgkmcnt(0)
    """)
    stamp(a, 13)
    GP, g, u, xx = 176, 224, 96, 116
    pack_store(a, ACC_S, 0)
    part_loads(a, PART_BYTES, GP)
    stamp(a, 14)
    a(f"""
    s_lshl_b32 s{S_PO}, s{S_TILE}, 11
    s_add_u32 s{S_PO}, s{S_PO}, {FL_F6}
    s_lshl_b32 s{S_T0}, s{S_WAVE}, 9
    s_lshl_b32 s{S_T1}, s{S_J}, 7
    s_add_u32 s{S_T0}, s{S_T0}, s{S_T1}
    s_add_u32 s{S_T0}, s{S_T0}, s{S_PO}
    s_lshl_b32 s{S_T1}, s{S_J}, 9
    s_add_u32 s{S_PO}, s{S_PO}, s{S_T1}
    s_waitcnt vmcnt(12)
    """)
    signal(a)
    stamp(a, 15)
    part_sum(a, GP, g, 1, 60)
    nl2e = -math.log2(math.e)
    for e in range(10):
        a(f"v_lshlrev_b32 v{u+2*e}, 16, v{V_B2+e}\nv_and_b32 v{u+1+2*e}, 0xffff0000, v{V_B2+e}")
    for tmpl in ("v_add_f32 v{g}, v{u}, v{g}", "v_mul_f32 v{u}, " + fh(nl2e) + ", v{g}", "v_exp_f32 v{u}, v{u}",
                 "v_add_f32 v{u}, 1.0, v{u}", "v_rcp_f32 v{u}, v{u}"):
        for e in range(20):
            a(tmpl.format(g=g + e, u=u + e))
    for e in range(10):
        a(f"v_lshlrev_b32 v{xx+2*e}, 16, v{V_X+e}\nv_and_b32 v{xx+1+2*e}, 0xffff0000, v{V_X+e}")
    for e in range(20):
        a(f"v_mul_f32 v{g+e}, v{g+e}, v{u+e}")
    a(f"""
    L_poll4:
    buffer_load_dword v60, v{V_FV}, {sq(S_FL)}, s{S_PO} offen sc1
    s_waitcnt vmcnt(0)
    v_cmp_ne_u32 vcc, v{V_ONE}, v60
    s_cbranch_vccnz L_poll4
    """)
    stamp(a, 16)
    part_loads(a, 0, GP)
    part_sum(a, GP, u, 0, 60)
    for e in range(20):
        a(f"v_fmac_f32 v{xx+e}, v{g+e}, v{u+e}")
    for j in range(5):
        a(f"v_cvt_pk_bf16_f32 v{140+2*j}, v{xx+4*j}, v{xx+1+4*j}\nv_cvt_pk_bf16_f32 v{141+2*j}, v{xx+2+4*j}, v{xx+3+4*j}")
        a(f"buffer_store_dwordx2 {vr(140+2*j,2)}, v{V_OO}, {sq(S_OUT)}, 0 offen offset:{32*j}{os.environ.get('OUTSC','')}")
    stamp(a, 17)
    if STAMP:
        a("s_waitcnt vmcnt(0)")
        stamp(a, 18)
        srd(a, 4, P_WS, 1 << 20, WS_DBG)
        a(f"s_lshl_b32 s3, s2, 2\ns_add_u32 s3, s3, s{S_WAVE}\ns_lshl_b32 s3, s3, 9\nv_lshlrev_b32 v2, 3, v0\nv_add_u32 v2, s3, v2")
        a("buffer_store_dwordx2 v[38:39], v2, s[4:7], 0 offen\ns_waitcnt vmcnt(0)")
    a("L_end:\ns_endpgm")


def build():
    a = Asm()
    a.l.append("; @launch grid=(256,1,1) block=(256,1,1) lds=163840")
    a('.amdgcn_target "amdgcn-amd-amdhsa--gfx950"\n.text')
    a(f".globl {KNAME}")
    gen_kernel(a)
    a('.section .rodata,"a"\n.p2align 6')
    a.l.append(f""".amdhsa_kernel {KNAME}
  .amdhsa_next_free_vgpr 512
  .amdhsa_next_free_sgpr 102
  .amdhsa_accum_offset 256
  .amdhsa_group_segment_fixed_size 0
  .amdhsa_kernarg_size 104
  .amdhsa_user_sgpr_count 2
  .amdhsa_user_sgpr_kernarg_segment_ptr 1
  .amdhsa_system_sgpr_workgroup_id_x 1
.end_amdhsa_kernel""")
    return a.text()


if __name__ == "__main__":
    STAMP = "stamp" in sys.argv
    open(sys.argv[1], "w").write(build())
```

```python
import sys, math, os, struct

NAME = "recurrent_scan__gqa_block_cached__dense_activation_gelu__prompt"
KNAME = NAME + "_kernel"
WS_XN, WS_H, WS_O, WS_WF, WS_PART, WS_FLAG, WS_DBG = 0, 4 << 20, 16 << 20, 48 << 20, 80 << 20, 112 << 20, 128 << 20
XN_BYTES = 2048 * 640 * 2
H_BYTES = 2048 * 1536 * 2
O_BYTES = 2048 * 6144 * 2
WF_BYTES = 240 * 40960
PART_BYTES = 64 * 64 * 2560
FL_F1, FL_F3, FL_F2, FL_F4, FL_F5, FL_NONCE = 0, 32768, 65536, 98304, 131072, 163840
FL_F6 = 163968
FLAG_BYTES = FL_F6 + 1024 * 128
STAMP = False
OFF = float(os.environ.get("OFF", 102.0))
GUARD_LO = 2.0 ** -110


def fh(x):
    return "0x%08x" % struct.unpack("<I", struct.pack("<f", x))[0]


class Asm:
    def __init__(self):
        self.l = []

    def __call__(self, s):
        for line in s.strip("\n").split("\n"):
            line = line.strip()
            if line:
                self.l.append(line if line.endswith(":") or line.startswith(".") else "    " + line)

    def text(self):
        return "\n".join(self.l) + "\n"


def vr(b, n=4, p="v"):
    return f"{p}[{b}:{b+n-1}]"


def ar(b, n=4):
    return vr(b, n, "a")


def srd(a, d, lo, nbytes, add=None):
    if add is None:
        a(f"s_mov_b32 s{d}, s{lo}\ns_mov_b32 s{d+1}, s{lo+1}")
    else:
        a(f"s_add_u32 s{d}, s{lo}, {add}\ns_addc_u32 s{d+1}, s{lo+1}, 0")
    a(f"s_mov_b32 s{d+2}, {nbytes}\ns_mov_b32 s{d+3}, 0x00020000")


def sq(d):
    return f"s[{d}:{d+3}]"


def mfma(d, a_, b, c):
    return f"v_mfma_f32_16x16x32_bf16 {d}, {a_}, {b}, {c}"


def stamp(a, i):
    if STAMP:
        a(f"""s_memtime s[98:99]
        s_waitcnt lgkmcnt(0)
        v_writelane_b32 v38, s98, {i}
        s_memrealtime s[98:99]
        s_waitcnt lgkmcnt(0)
        v_writelane_b32 v39, s98, {i}""")


SLOT = 24576
LDS_K, LDS_V, LDS_X = 0, 3 * SLOT, 6 * SLOT
LDS_W1 = 2 * SLOT
LDS_FLAG = LDS_X + 12288
STG = 36864
LDS_WOFF = 16384

S_XN, S_WQ, S_W1, S_K, S_V, S_H, S_O, S_MISC = 4, 8, 12, 16, 20, 24, 28, 32
S_HEAD, S_QB, S_WAVE, S_HOOK = 36, 37, 38, 39
S_RD, S_DMA, S_SO0, S_SO1, S_CNT, S_T0, S_T1, S_BOFF = 40, 41, 42, 43, 44, 45, 46, 47
S_W3072, S_SV0, S_SV1, S_PASS, S_RD1, S_DMA1, S_SW0, S_SW1 = 48, 49, 50, 51, 52, 53, 54, 55
S_C0, S_C1, S_M0, S_KC = 56, 57, 58, 59
P_K, P_V, P_WQ, P_WO, P_W1, P_B1, P_W2, P_B2, P_OUT, P_DBG, P_WS, P_X = 60, 62, 64, 66, 68, 70, 72, 74, 76, 78, 80, 82
S_X, S_WF, S_FL = 84, 88, 92
S_RS, S_RO = 96, 97
S_NONCE, S_HS = 100, 101
S_RK, S_DV, S_DKM, S_DVM = S_RD1, S_DMA1, S_DMA, S_BOFF
S_PT, S_OUT, S_B2 = 4, 8, 12
S_J, S_MB, S_NB, S_OO, S_WO, S_WO4, S_R3, S_DO, S_DW, S_LO, S_LW, S_TILE, S_WS0, S_PO = 40, 41, 42, 43, 47, 48, 49, 50, 52, 53, 54, 55, 56, 57

V_L, V_KA, V_VA, V_KB, V_VB, V_DK, V_DV = 2, 6, 8, 12, 14, 18, 19
V_F2 = 20
V_RD, V_RR = 32, 33
V_ZERO, V_ONE = 36, 37
V_NM = 40
V_L4, V_L128 = 62, 63
V_Q, V_S, V_P = 64, 128, 192
A_RING, A_Q = 192, 224
P1_ACC, P1_H, P1_RING, P1_B = 64, 0, 48, 88
V1_WA, V1_FA, V1_WB, V1_FB, V1_DW, V1_DF, V1_X = 6, 8, 12, 14, 20, 21, 22
V_RB, V_RA, V_DH, V_DO, V_RB0, V_RA0, V_OO, V_BO, V_PO, V_FV = 6, 7, 12, 14, 16, 17, 18, 19, 32, 33
V_X, V_B2, FR = 64, 74, 0
ACC_S, ACC_G = 96, 176


X_RINGV = os.environ.get("RINGV")
X_QV = os.environ.get("QV")
X_NOCHAIN = os.environ.get("NOCHAIN")


def q_reg(s, t):
    i = 4 * s + t
    if X_QV:
        return vr(V_Q + 4 * (i % 16))
    return vr(V_Q + 4 * i) if i < 16 else ar(A_Q + 4 * (i - 16))


def s_reg(u, t):
    return V_S + 4 * (4 * u + t)


def p_reg(par, ch, t):
    return V_P + 32 * par + 16 * ch + 4 * t


def code_prefetch(a, tag, first, last, sreg, vdst, one=False):
    a(f"""
    s_getpc_b64 s[{sreg}:{sreg+1}]
    L_pc{tag}:
    s_add_u32 s{sreg}, s{sreg}, {first}-L_pc{tag}
    s_addc_u32 s{sreg+1}, s{sreg+1}, 0
    s_mov_b32 s{sreg+2}, {last}-{first}
    s_mov_b32 s{sreg+3}, 0x00020000
    """)
    if one:
        a(f"""s_bfe_u32 s{S_T0}, s2, 0x30003
        s_lshl_b32 s{S_T0}, s{S_T0}, 2
        s_add_u32 s{S_T0}, s{S_T0}, s{S_WAVE}
        s_mul_i32 s{S_T0}, s{S_T0}, 640
        v_min_u32 v{vdst+1}, 512, v{V_L128}
        buffer_load_dword v{vdst}, v{vdst+1}, {sq(sreg)}, s{S_T0} offen""")
        return
    a(f"""
    s_mov_b32 s{S_T0}, 8192
    s_mov_b32 s{S_T1}, 16384
    buffer_load_dword v{vdst}, v{V_L128}, {sq(sreg)}, 0 offen
    buffer_load_dword v{vdst+1}, v{V_L128}, {sq(sreg)}, s{S_T0} offen
    buffer_load_dword v{vdst+2}, v{V_L128}, {sq(sreg)}, s{S_T1} offen
    """)


def half_lanes(a, ins):
    a("s_mov_b32 exec_hi, 0")
    a(ins)
    a("s_mov_b32 exec_hi, -1")


def wait_counts(seq2, period, waits):
    cnt = {}
    for k, wt in waits.items():
        last = max(tm for tm, kk in seq2 if kk == k and tm < wt)
        cnt[k] = (sum(1 for tm, kk in seq2 if last < tm < wt), wt - last)
    return cnt


DMA_GAP = eval(os.environ.get('DG', '[3, 19, 35, 51, 59, 67, 93, 109, 125, 141, 149, 157]'))


AUX_RD, AUX_ST, AUX_DMA = (26, 27), 53, 11


def build_schedule():
    N = 192
    G = [dict(lds=None, exp=None, valu=[], dma=None, wait=None) for _ in range(N)]
    for g in range(24):
        pos = 0
        fk = (g + 2) % 24
        if fk < 12:
            for k in range(2):
                G[8 * g + pos]["lds"] = (fk, k)
                pos += 1
        fv = g + 3
        if 12 <= fv < 24:
            for k in range(4):
                G[8 * g + pos]["lds"] = (fv, k)
                pos += 1
    for i in range(12):
        G[DMA_GAP[i]]["dma"] = i
    for f in range(24):
        G[(8 * f - 1) % N]["wait"] = f
    for k in range(2):
        G[AUX_RD[k]]["lds"] = (24, k)
    G[AUX_ST]["dma"] = 12
    G[AUX_DMA]["dma"] = 13
    free = [i for i in range(N) if G[i]["lds"] is None and G[i]["dma"] is None]
    free2 = free + [N + x for x in free]
    seq = [(u, t, r) for u in range(4) for t in range(4) for r in range(4)]
    start = [k for k, x in enumerate(free2) if x >= 24][0]
    etime = {}
    k = float(start)
    step = len(free) / 64.0
    for e, (u, t, r) in enumerate(seq):
        kk = int(start + e * step)
        ready = 24 * u + 16 + 2 * t + 1 + 4
        while free2[kk] < ready or G[free2[kk] % N]["exp"] is not None:
            kk += 1
        tm = free2[kk]
        G[tm % N]["exp"] = ("prev" if tm >= N else "cur", u, t, r)
        etime[(u, t, r)] = tm
    cap = [0 if (G[i]["dma"] is not None or G[i]["exp"] is not None) else (1 if G[i]["lds"] is not None else 2) for i in range(N)]
    if os.environ.get("CAP1"):
        for i in range(N):
            if G[i]["lds"] is not None and G[(i + 1) % N]["lds"] is not None:
                cap[i] = 0
    if os.environ.get("CAP2"):
        for i in range(N):
            if G[i]["lds"] is not None and G[i - 1]["lds"] is not None:
                cap[i] = 0
    ops = []
    for (u, t, r) in seq:
        ops.append((etime[(u, t, r)] + 1, "add", u, t, r))
        if r & 1:
            ops.append((etime[(u, t, r)] + 1, "cvt", u, t, r >> 1))
    ops.sort(key=lambda o: (o[0], o[1] == "add"))
    used = [0] * N
    for o in ops:
        tm = o[0]
        while used[tm % N] >= cap[tm % N]:
            tm += 1
        assert tm < N + 24 * o[2] + 2 * o[3], (o, tm)
        assert tm < N + 92
        used[tm % N] += 1
        G[tm % N]["valu"].append(("prev" if tm >= N else "cur",) + o[1:])
    return G, [cap[i] - used[i] for i in range(N)]


def att_counts(G, nok=False, aux=False):
    seq = [(rep * 192 + i, G[i]["lds"][0]) for rep in range(2) for i in range(192)
           if G[i]["lds"] is not None and not (nok and rep == 1 and G[i]["lds"][0] < 12) and (aux or G[i]["lds"][0] != 24)]
    ks = range(12, 24) if nok else range(24)
    c = wait_counts(seq, 192, {f: 192 + 8 * f - 1 for f in ks})
    assert all(v[0] <= 15 for v in c.values()), c
    return {k: v[0] for k, v in c.items()}


def soft(kind, which, u, t, x, par_cur):
    par = par_cur if which == "cur" else 1 - par_cur
    s = s_reg(u, t)
    if kind == "exp":
        return f"v_exp_f32 v{s+x}, v{s+x}"
    if kind == "add":
        return f"v_add_f32 v{V_L+t}, v{s+x}, v{V_L+t}"
    return f"v_cvt_pk_bf16_f32 v{p_reg(par, u >> 1, t) + 2*(u&1) + x}, v{s+2*x}, v{s+2*x+1}"


def ring(grp, k):
    return A_RING + 8 * (grp % 4) + 4 * k


def rr(b, n=4):
    return vr(b, n) if X_RINGV else ar(b, n)


def k_read(grp, k):
    u, s = grp // 3, 2 * (grp % 3) + k
    return f"ds_read_b128 {rr(ring(grp, k))}, v{V_KA+k} offset:{2*u*3072 + (s>>1)*1024}"


def v_read(grp, k):
    dt, ch, part = grp - 12, k >> 1, k & 1
    return f"ds_read_b64_tr_b16 {rr(ring(grp, ch) + 2*part, 2)}, v{V_VA+(dt&3)} offset:{(4*ch+2*part)*3072 + (dt>>2)*1024}"


def qk_mfma(grp, p, first_c):
    if X_NOCHAIN:
        p = 2 * (p & 3) + (p >> 2)
    u, s, t = grp // 3, 2 * (grp % 3) + (p & 1), p >> 1
    c = first_c(t) if s == 0 else vr(s_reg(u, t))
    return mfma(vr(s_reg(u, t)), rr(ring(grp, p & 1)), q_reg(s, t), c)


def gen_body(a, G, spare, par, tail=False, tailq=None, lab=""):
    cnt = att_counts(G, nok=tail, aux=(lab == "a"))
    ev, es, sp = {}, {}, list(spare)

    def put_v(lo, hi, ins):
        for i in range(lo, hi):
            if sp[i] > 0:
                sp[i] -= 1
                ev.setdefault(i, []).append(ins)
                return
        raise AssertionError(ins)

    def put_s(lo, hi, ins):
        need = ins.count("\ns_")
        for i in range(lo, hi):
            if G[i]["lds"] is None and G[i]["dma"] is None and G[i]["wait"] is None and i not in es and sp[i] >= need:
                es[i] = ins
                sp[i] -= need
                return i
        raise AssertionError(ins)
    if not tail:
        for i in range(12):
            base = S_DKM if i < 6 else S_DVM
            d = i % 6
            assert G[DMA_GAP[i] - 1]["lds"] is None and G[DMA_GAP[i] - 1]["wait"] is None
            es[DMA_GAP[i] - 1] = f"s_add_u32 m0, s{base}, {(d//3)*12288 + (d%3)*896}"
        if lab == "b":
            es[AUX_DMA - 1] = f"s_add_u32 m0, s{S_W3072}, {LDS_X}"
            put_s(12, 30, f"s_add_u32 s{S_RS}, s{S_RS}, 128")
            put_s(12, 66, f"s_cmp_le_u32 s{S_CNT}, 12\ns_cselect_b32 s{S_MISC+2}, 0, s{S_MISC+2}")
        else:
            put_s(54, 66, f"s_add_u32 s{S_RO}, s{S_RO}, 4096")
            put_s(54, 70, f"s_cmp_gt_u32 s{S_CNT}, 11\ns_cselect_b32 s{S_WF+2}, {WF_BYTES}, 0")
        put_s(28, 66, f"s_cmp_eq_u32 s{S_CNT}, s{S_HOOK}\ns_cbranch_scc1 L_hook{lab}\nL_hret{lab}:")
        i = 71
        for x in (f"s_add_u32 s{S_SO0}, s{S_SO0}, {SLOT}", f"s_add_u32 s{S_SO1}, s{S_SO1}, {SLOT}",
                  f"s_sub_u32 s{S_CNT}, s{S_CNT}, 1",
                  f"s_mov_b32 s{S_T1}, s{S_RD}", f"s_mov_b32 s{S_RD}, s{S_RK}", f"s_mov_b32 s{S_RK}, s{S_DV}", f"s_mov_b32 s{S_DV}, s{S_T1}",
                  f"s_add_u32 s{S_DKM}, s{S_RD}, s{S_W3072}"):
            i = put_s(i, 150, x) + 1
        for j in range(2):
            put_v(max(i, 80), 172, f"v_add_u32 v{V_KA+j}, s{S_RK}, v{V_KB+j}")
        for j in range(4):
            put_v(0, 66, f"v_add_u32 v{V_VA+j}, s{S_RD}, v{V_VB+j}")
        i = 158
        for x in (f"s_add_u32 s{S_SV0}, s{S_SV0}, {SLOT}", f"s_add_u32 s{S_SV1}, s{S_SV1}, {SLOT}", f"s_add_u32 s{S_DVM}, s{S_DV}, s{S_M0}"):
            es.setdefault(169, "")
            es.setdefault(170, "")
            i = put_s(i, 184, x) + 1
        es[169] = f"s_waitcnt vmcnt({11 if lab == 'b' else 12}) lgkmcnt(0)"
        es[170] = "s_barrier"
        put_s(186, 191, f"s_cmp_lg_u32 s{S_CNT}, 0")
    for i in range(192):
        g = G[i]
        grp, p = i // 8, i % 8
        if grp < 12:
            if not tail:
                a(qk_mfma(grp, p, lambda t: vr(V_NM + 4 * t)))
        else:
            pp = 2 * (p & 3) + (p >> 2) if X_NOCHAIN else p
            o = ar(4 * (4 * (grp - 12) + (pp >> 1)))
            a(mfma(o, rr(ring(grp, pp & 1)), vr(p_reg(1 - par, pp & 1, pp >> 1)), o))
        if g["wait"] is not None:
            f = g["wait"]
            if (tail and 12 <= f < 24) or (not tail and f not in (22, 23)):
                a("s_waitcnt lgkmcnt(%d)" % cnt[f])
        elif i in es:
            a(es[i])
        if g["lds"] is not None and not os.environ.get("NOLDS"):
            f, k = g["lds"]
            if f == 24:
                if lab == "a":
                    a(f"ds_read_b64_tr_b16 {vr(28+2*k,2)}, v{V_RR} offset:{k*6144}")
            elif f >= 12:
                if not (tail and f < 15):
                    a(v_read(f, k))
            elif not tail:
                a(k_read(f, k))
        if g["dma"] is not None and not tail and not os.environ.get("NODMA"):
            d = g["dma"]
            if d == 12:
                if lab == "a":
                    a(f"buffer_store_dwordx4 v[28:31], v1, {sq(S_WF)}, s{S_RO} offen sc1")
            elif d == 13:
                if lab == "b":
                    a(f"buffer_load_dwordx4 v{V_RD}, {sq(S_MISC)}, s{S_RS} offen lds")
            elif d < 6:
                a(f"buffer_load_dwordx4 v{V_DK}, {sq(S_K)}, s{S_SO0 + d//3} offen offset:{(d%3)*128} lds")
            else:
                d -= 6
                a(f"buffer_load_dwordx4 v{V_DV}, {sq(S_V)}, s{S_SV0 + d//3} offen offset:{(d%3)*128} lds")
        if g["exp"] is not None and not (tail and g["exp"][0] == "cur"):
            w, u, t, r = g["exp"]
            a(soft("exp", w, u, t, r, par))
            if tail and grp < 12:
                a("s_nop 0")
        for (w, kind, u, t, x) in g["valu"]:
            if not (tail and w == "cur") and not os.environ.get("NOVALU"):
                a(soft(kind, w, u, t, x, par))
        for ins in ev.get(i, []):
            a(ins)
        if tail and i == 95:
            a("s_nop 1")
        if tail and i >= 96:
            qd, qv = tailq
            if g["lds"] is not None and g["lds"][0] >= 12:
                if qv:
                    a(qv.pop(0))
            elif qd:
                a(qd.pop(0))
    if tail:
        assert not tailq[0] and not tailq[1], tailq


def p1_acc(f, t):
    if f < 12:
        return vr(P1_ACC + 8 * (4 * (f >> 1) + t) + 4 * (f & 1))
    return ar(P1_H + 4 * (4 * (f - 12) + t))


def p1_read(f, k):
    ks, part = k >> 1, k & 1
    dst = ar(P1_RING + 8 * (f % 5) + 4 * ks + 2 * part, 2)
    if f < 12:
        s, half = f >> 1, f & 1
        return f"ds_read_b64_tr_b16 {dst}, v{V1_WA+(s&1)} offset:{ks*4*3072 + (s>>1)*1024 + part*512 + half*8}"
    return f"ds_read_b64_tr_b16 {dst}, v{V1_FA+f-12} offset:{ks*4096 + part*512}"


def gen_p1_stage(a, sp):
    slots = {g: [] for g in range(15)}
    pend = [(f, k) for f in range(2, 15) for k in range(4)]
    g = 0
    while pend:
        while pend and len(slots[g]) < 6 and g >= pend[0][0] - 4:
            slots[g].append(pend.pop(0))
        g += 1
    assert g <= 11, g
    slots[13] = [(0, k) for k in range(4)]
    slots[14] = [(1, k) for k in range(4)]
    seq = [(rep * 120 + 8 * gg + p, f) for rep in range(2) for gg in range(15) for p, (f, k) in enumerate(slots[gg])]
    cnt = wait_counts(seq, 120, {f: 120 + 8 * f - 1 for f in range(15)})
    assert all(c <= 15 and d >= 8 for c, d in cnt.values()), cnt
    ex = {}

    def put(grp, p, ins):
        assert p >= len(slots[grp]), (grp, p)
        ex.setdefault((grp, p), []).append(ins)
    for j in range(8):
        ks, t = j >> 2, j & 3
        put(j, 6, f"buffer_load_dwordx4 {ar(P1_B + 32*(1-sp) + 16*ks + 4*t)}, v{V1_X+t}, {sq(S_XN)}, s{S_BOFF} offen offset:{ks*1024} sc1")
    for d in range(8):
        grp, p = (4 + d, 4) if d < 7 else (11, 0)
        if d < 6:
            put(grp, p, f"s_add_u32 m0, s{S_DMA}, {LDS_V + (d//3)*12288 + (d%3)*896}")
            put(grp, p + 1, f"buffer_load_dwordx4 v{V1_DW}, {sq(S_WQ)}, s{S_SO0 + d//3} offen offset:{(d%3)*128} lds")
        else:
            put(grp, p, f"s_add_u32 m0, s{S_DMA1}, {LDS_W1 + (d-6)*4096}")
            put(grp, p + 1, f"buffer_load_dwordx4 v{V1_DF}, {sq(S_W1)}, s{S_SW0 + d-6} offen lds")
    put(12, 6, f"buffer_load_dword v47, v46, {sq(S_O)}, s{S_M0} offen")
    put(13, 7, f"s_add_u32 s{S_M0}, s{S_M0}, s{S_HS}")
    nv = 5
    if sp == 0:
        for d, (grp, p) in enumerate(((11, 2), (11, 4), (12, 0))):
            put(grp, p, f"s_add_u32 m0, s{S_C0}, {d*896}")
            put(grp, p + 1, f"buffer_load_dwordx4 v{V_DK}, {sq(S_K)}, s{S_SV0} offen offset:{d*128} lds")
        put(13, 4, f"s_mov_b32 s{S_SV0}, s{S_SV1}\ns_add_u32 s{S_SV1}, s{S_SV1}, 12288")
        put(13, 5, f"s_mov_b32 s{S_C0}, s{S_C1}\ns_add_u32 s{S_C1}, s{S_C1}, 12288\ns_mov_b32 s{S_K+2}, 786432")
        put(13, 6, f"s_cmp_eq_u32 s{S_CNT}, 1\ns_cselect_b32 s{S_XN+2}, 0, s{S_XN+2}")
        nv = 8
    else:
        put(13, 4, f"s_sub_u32 s{S_CNT}, s{S_CNT}, 1")
        put(13, 5, f"s_cmp_eq_u32 s{S_CNT}, 2\ns_cselect_b32 s{S_O}, s{S_HOOK}, s{S_O}\ns_cselect_b32 s{S_O+1}, s{S_KC}, s{S_O+1}")
        put(13, 6, f"s_cselect_b32 s{S_O+2}, s{S_V+2}, s{S_O+2}\ns_cselect_b32 s{S_HS}, s3, s{S_HS}\ns_cselect_b64 vcc, -1, 0")
        put(14, 5, f"s_cmp_eq_u32 s{S_CNT}, 2\ns_cselect_b32 s{S_M0}, 0, s{S_M0}\nv_cndmask_b32 v46, v46, v60, vcc")
    put(9, 6, f"s_mov_b32 s{S_T1}, s{S_RD}\ns_add_u32 s{S_RD}, s{S_RD}, {SLOT}\ns_add_u32 s{S_BOFF}, s{S_BOFF}, 2048")
    put(10, 6, f"s_cmp_eq_u32 s{S_RD}, {3*SLOT}\ns_cselect_b32 s{S_RD}, 0, s{S_RD}\ns_add_u32 s{S_DMA}, s{S_T1}, s{S_W3072}")
    put(11, 6, f"s_lshl_b32 s{S_T0}, s{S_WAVE}, 10\ns_add_u32 s{S_DMA1}, s{S_RD1}, s{S_T0}\ns_add_u32 s{S_RD1}, s{S_RD1}, 8192")
    put(12, 2, f"s_cmp_eq_u32 s{S_RD1}, {3*8192}\ns_cselect_b32 s{S_RD1}, 0, s{S_RD1}")
    put(12, 3, f"v_add_u32 v{V1_WA}, s{S_RD}, v{V1_WB}\nv_add_u32 v{V1_WA+1}, s{S_RD}, v{V1_WB+1}")
    put(8, 6, f"s_add_u32 s{S_SO0}, s{S_SO0}, {64*12288}")
    put(12, 7, f"s_add_u32 s{S_SO1}, s{S_SO1}, {64*12288}\nv_add_u32 v{V1_FA}, s{S_RD1}, v{V1_FB}\nv_add_u32 v{V1_FA+1}, s{S_RD1}, v{V1_FB+1}")
    put(12, 4, f"v_add_u32 v{V1_FA+2}, s{S_RD1}, v{V1_FB+2}")
    put(14, 4, f"s_add_u32 s{S_SW0}, s{S_SW0}, {64*3072}\ns_add_u32 s{S_SW1}, s{S_SW1}, {64*3072}")
    ex[(12, 4)].insert(0, "s_waitcnt vmcnt(16) lgkmcnt(0)")
    put(12, 5, "s_barrier")
    if sp == 1:
        put(14, 6, f"s_cmp_lg_u32 s{S_CNT}, 0")
    for i in range(120):
        grp, p = i // 8, i % 8
        t, ks = p >> 1, p & 1
        acc = p1_acc(grp, t)
        a(mfma(acc, ar(P1_RING + 8 * (grp % 5) + 4 * ks), ar(P1_B + 32 * sp + 16 * ks + 4 * t), acc))
        if p < len(slots[grp]):
            a(p1_read(*slots[grp][p]))
        if p == 7:
            f = (grp + 1) % 15
            w = [f"vmcnt({nv})"] if f == 0 else []
            if f not in (13, 14):
                w.append(f"lgkmcnt({cnt[f][0]})")
            if w:
                a("s_waitcnt " + " ".join(w))
        for x in ex.get((grp, p), []):
            a(x)


def dma_tile(a, voff, srdreg, so0, so1, sbase, lds_const, n=6):
    for d in range(n):
        a(f"s_add_u32 m0, s{sbase}, {lds_const + (d//3)*12288 + (d%3)*896}\ns_nop 0")
        a(f"buffer_load_dwordx4 v{voff}, {sq(srdreg)}, s{so0 if d < 3 else so1} offen offset:{(d%3)*128} lds")


def gen_ln_body(a):
    R, U, T, Q, RO = 64, 96, 86, 136, 144
    for i in range(5):
        a(f"s_waitcnt vmcnt({3 + 4 - i + (2 if os.environ.get('TOUCH') else 0)})")
        for j in range(4):
            r, d = R + 4 * i + j, U + 8 * i + 2 * j
            a(f"v_lshlrev_b32 v{d}, 16, v{r}\nv_and_b32 v{d+1}, 0xffff0000, v{r}")
    stamp(a, 19)
    for k in range(4):
        a(f"v_add_f32 v{T+k}, v{U+k}, v{U+4+k}")
    for e in range(8, 40):
        a(f"v_add_f32 v{T+e%4}, v{U+e}, v{T+e%4}")
    a(f"v_add_f32 v{T}, v{T}, v{T+1}\nv_add_f32 v{T+2}, v{T+2}, v{T+3}\nv_add_f32 v{T}, v{T}, v{T+2}")
    for sh in (8, 4, 2, 1):
        a(f"s_nop 1\nv_add_f32 v{T}, v{T}, v{T} row_ror:{sh}")
    a(f"v_mul_f32 v{T}, {fh(1/640)}, v{T}")
    for e in range(40):
        t = 140 + e % 4
        a(f"v_sub_f32 v{t}, v{U+e}, v{T}")
        a(f"v_mul_f32 v{Q+e}, v{t}, v{t}" if e < 4 else f"v_fmac_f32 v{Q+e%4}, v{t}, v{t}")
    a(f"v_add_f32 v{Q}, v{Q}, v{Q+1}\nv_add_f32 v{Q+2}, v{Q+2}, v{Q+3}\nv_add_f32 v{Q}, v{Q}, v{Q+2}")
    for sh in (8, 4, 2, 1):
        a(f"s_nop 1\nv_add_f32 v{Q}, v{Q}, v{Q} row_ror:{sh}")
    a(f"""
    v_mul_f32 v{Q}, {fh(1/640)}, v{Q}
    v_cvt_pk_bf16_f32 v{T+1}, v{T}, v{Q}
    v_lshlrev_b32 v{T}, 16, v{T+1}
    v_and_b32 v{Q}, 0xffff0000, v{T+1}
    v_add_f32 v{Q}, {fh(1e-5)}, v{Q}
    v_cvt_pk_bf16_f32 v{Q}, v{Q}, v{Q}
    v_and_b32 v{Q}, 0xffff0000, v{Q}
    v_sqrt_f32 v{Q}, v{Q}
    s_nop 0
    v_cvt_pk_bf16_f32 v{Q}, v{Q}, v{Q}
    v_and_b32 v{Q}, 0xffff0000, v{Q}
    v_rcp_f32 v{Q}, v{Q}
    s_mov_b32 s{S_T0}, 0
    """)
    for i in range(5):
        for j in range(4):
            e = U + 8 * i + 2 * j
            a(f"""
            v_sub_f32 v{e}, v{e}, v{T}
            v_sub_f32 v{e+1}, v{e+1}, v{T}
            v_cvt_pk_bf16_f32 v{e}, v{e}, v{e+1}
            v_and_b32 v{e+1}, 0xffff0000, v{e}
            v_lshlrev_b32 v{e}, 16, v{e}
            v_mul_f32 v{e}, v{e}, v{Q}
            v_mul_f32 v{e+1}, v{e+1}, v{Q}
            v_cvt_pk_bf16_f32 v{RO+4*i+j}, v{e}, v{e+1}
            """)
        a(f"buffer_store_dwordx4 {vr(RO+4*i)}, v84, {sq(S_MISC)}, s{S_T0} offen sc1")
        a(f"s_add_u32 s{S_T0}, s{S_T0}, 4096")


def dma3(k, bsrd, bv):
    if k < 4:
        r, ks = k >> 1, k & 1
        pre = [f"s_add_u32 m0, s{S_DO}, {r*2048}"] if ks == 0 else []
        return pre, f"buffer_load_dwordx4 v{bv+r}, {sq(bsrd)}, s{S_OO} offen offset:{ks*1024} sc1 lds"
    i = k - 4
    if i < 4:
        pre = [f"s_mov_b32 m0, s{S_DW}"] if i == 0 else []
        return pre, f"buffer_load_dwordx4 v1, {sq(S_WF)}, s{S_WO} offen offset:{i*1024} sc1 lds"
    return [f"s_add_u32 m0, s{S_DW}, 4096"], f"buffer_load_dwordx4 v1, {sq(S_WF)}, s{S_WO4} offen sc1 lds"


def fr3(par, ks, n):
    return FR + 72 * par + 36 * ks + 4 * n


def rd3(par, ks, n):
    if n < 4:
        return f"ds_read_b128 {ar(fr3(par, ks, n))}, v{V_RB} offset:{(2*n+ks)*1024}"
    return f"ds_read_b128 {ar(fr3(par, ks, n))}, v{V_RA} offset:{(10*ks+n-4)*1024}"


RD3 = [(ks, n) for n in (0, 4, 1, 2, 3, 5, 6, 7, 8) for ks in range(2)]
ADV3 = [f"s_add_u32 s{S_OO}, s{S_OO}, 2048", f"s_add_u32 s{S_WO}, s{S_WO}, {2*40960}", f"s_add_u32 s{S_WO4}, s{S_WO4}, {2*40960}"]


def stage3(a, par, accb, bsrd, bv, wait, hook, last):
    ex = {3: f"s_add_u32 s{S_DO}, s{S_R3}, s{S_LO}\ns_add_u32 s{S_DW}, s{S_R3}, s{S_LW}\ns_add_u32 s{S_R3}, s{S_R3}, {STG}",
          4: f"s_cmp_eq_u32 s{S_R3}, {4*STG}\ns_cselect_b32 s{S_R3}, 0, s{S_R3}",
          5: f"v_add_u32 v{V_RB}, s{S_R3}, v{V_RB0}\nv_add_u32 v{V_RA}, s{S_R3}, v{V_RA0}",
          6: wait, 7: "s_waitcnt lgkmcnt(0)\ns_barrier", 8: hook}
    g = 9
    for k in range(9):
        pre, ld = dma3(k, bsrd, bv)
        ex[g] = rd3(1 - par, *RD3[2 * k])
        ex[g + 1] = rd3(1 - par, *RD3[2 * k + 1]) + "".join("\n" + x for x in pre)
        ex[g + 2] = ld
        g += 3
    ex[36] = "\n".join(ADV3)
    ex[37] = f"s_sub_u32 s{S_CNT}, s{S_CNT}, 1"
    ex[39] = "s_waitcnt lgkmcnt(6)" + (f"\ns_cmp_lg_u32 s{S_CNT}, 0" if last else "")
    for g in range(40):
        i, t, ks = g // 8, (g % 8) >> 1, g & 1
        acc = vr(accb + 4 * (4 * i + t))
        a(mfma(acc, ar(fr3(par, ks, 4 + i)), ar(fr3(par, ks, t)), acc))
        if ex.get(g, "").strip():
            a(ex[g])


def pack_store(a, accb, region):
    a(f"""
    s_lshl_b32 s{S_T0}, s{S_TILE}, 2
    s_add_u32 s{S_T0}, s{S_T0}, s{S_WAVE}
    s_lshl_b32 s{S_T0}, s{S_T0}, 2
    s_add_u32 s{S_T0}, s{S_T0}, s{S_J}
    s_mul_i32 s{S_T0}, s{S_T0}, 10240
    s_add_u32 s{S_T0}, s{S_T0}, {region}
    """)
    for t in range(4):
        o = (20, 40, 84, 40)[t] if t != 3 else 50
        o = (20, 40, 84, 50)[t]
        for e in range(10):
            r = accb + 4 * (4 * (e >> 1) + t) + 2 * (e & 1)
            a(f"v_cvt_pk_bf16_f32 v{o+e}, v{r}, v{r+1}")
        a(f"""
        buffer_store_dwordx4 {vr(o)}, v1, {sq(S_PT)}, s{S_T0} offen sc1
        buffer_store_dwordx4 {vr(o+4)}, v1, {sq(S_PT)}, s{S_T0} offen offset:1024 sc1
        buffer_store_dwordx2 {vr(o+8,2)}, v{V_PO}, {sq(S_PT)}, s{S_T0} offen offset:2048 sc1
        s_add_u32 s{S_T0}, s{S_T0}, 2560
        """)


def part_loads(a, region, base):
    a(f"""
    s_lshl_b32 s{S_T0}, s{S_TILE}, 2
    s_add_u32 s{S_T0}, s{S_T0}, s{S_J}
    s_mul_i32 s{S_T0}, s{S_T0}, 40960
    s_mul_i32 s{S_T1}, s{S_WAVE}, 2560
    s_add_u32 s{S_T0}, s{S_T0}, s{S_T1}
    s_add_u32 s{S_T0}, s{S_T0}, {region}
    """)
    for src in range(4):
        o = base + 12 * src
        a(f"""
        buffer_load_dwordx4 {vr(o)}, v1, {sq(S_PT)}, s{S_T0} offen sc1
        buffer_load_dwordx4 {vr(o+4)}, v1, {sq(S_PT)}, s{S_T0} offen offset:1024 sc1
        buffer_load_dwordx2 {vr(o+8,2)}, v{V_PO}, {sq(S_PT)}, s{S_T0} offen offset:2048 sc1
        s_add_u32 s{S_T0}, s{S_T0}, 10240
        """)


def part_sum(a, base, dst, younger, tmp):
    for src in range(4):
        o = base + 12 * src
        a(f"s_waitcnt vmcnt({3*(3-src)+younger})")
        for e in range(10):
            if src == 0:
                a(f"v_lshlrev_b32 v{dst+2*e}, 16, v{o+e}\nv_and_b32 v{dst+1+2*e}, 0xffff0000, v{o+e}")
            else:
                a(f"v_lshlrev_b32 v{tmp}, 16, v{o+e}\nv_and_b32 v{tmp+1}, 0xffff0000, v{o+e}")
                a(f"v_pk_add_f32 {vr(dst+2*e,2)}, {vr(dst+2*e,2)}, {vr(tmp,2)}")


def signal(a):
    half_lanes(a, f"buffer_store_dword v{V_ONE}, v{V_L4}, {sq(S_FL)}, s{S_T0} offen sc1")


def swaps(op, src, tmp):
    q = []
    for perm in ("v_permlane32_swap_b32", "v_permlane16_swap_b32"):
        for what in ("v_mov_b32 v{b}, v{l}", perm + " v{l}, v{b}", op + " v{l}, v{l}, v{b}"):
            for t in (0, 2):
                q.append("\n".join(what.format(l=src + tt, b=tmp + tt) for tt in (t, t + 1)))
    return q


def gen_kernel(a):
    G, spare = build_schedule()
    a(f".p2align 8\n.type {KNAME},@function\n{KNAME}:")
    a("s_cmp_ge_u32 s2, 256\ns_cbranch_scc1 L_end")
    stamp(a, 0)
    a(f"""
    s_load_dwordx2 s[{P_X}:{P_X+1}], s[0:1], 0
    s_load_dwordx2 s[{P_WS}:{P_WS+1}], s[0:1], 96
    s_load_dwordx4 s[{P_K}:{P_K+3}], s[0:1], 8
    s_load_dwordx4 s[{P_WQ}:{P_WQ+3}], s[0:1], 24
    s_load_dwordx4 s[{P_W1}:{P_W1+3}], s[0:1], 48
    s_load_dwordx4 s[{P_W2}:{P_W2+3}], s[0:1], 64
    s_load_dwordx4 s[{P_OUT}:{P_OUT+3}], s[0:1], 80
    v_and_b32 v{V_L128}, 63, v0
    v_lshlrev_b32 v{V_L128}, 7, v{V_L128}
    s_getpc_b64 s[{S_XN}:{S_XN+1}]
    L_pc2:
    s_mov_b32 s{S_XN+2}, L_p1_loop-L_pc2
    s_mov_b32 s{S_XN+3}, 0x00020000
    buffer_load_dword v61, v{V_L128}, {sq(S_XN)}, 0 offen
    s_and_b32 s{S_T0}, s2, 7
    s_lshl_b32 s{S_T0}, s{S_T0}, 2
    s_bfe_u32 s{S_T1}, s2, 0x20003
    s_add_u32 s{S_HEAD}, s{S_T0}, s{S_T1}
    s_lshr_b32 s{S_QB}, s2, 5
    s_mov_b32 s{S_PASS}, 0
    v_lshrrev_b32 v85, 4, v0
    v_lshrrev_b32 v1, 6, v0
    v_and_b32 v0, 63, v0
    v_readfirstlane_b32 s{S_WAVE}, v1
    s_lshl_b32 s{S_T0}, s{S_QB}, 8
    s_lshl_b32 s{S_T1}, s{S_HEAD}, 3
    s_add_u32 s{S_T0}, s{S_T0}, s{S_T1}
    v_add_u32 v85, s{S_T0}, v85
    v_and_b32 v31, 15, v0
    v_mul_u32_u24 v86, 1280, v85
    v_lshl_add_u32 v86, v31, 4, v86
    s_waitcnt lgkmcnt(0)
    s_add_u32 s{S_FL}, s{P_WS}, {WS_FLAG}
    s_addc_u32 s{S_FL+1}, s{P_WS+1}, 0
    s_load_dword s{S_NONCE}, s[{S_FL}:{S_FL+1}], {FL_NONCE}
    """)
    srd(a, S_X, P_X, XN_BYTES)
    a(f"s_cmp_ge_u32 s{S_WAVE}, 2\ns_cbranch_scc1 L_restart")
    for i in range(5):
        a(f"buffer_load_dwordx4 {vr(64+4*i)}, v86, {sq(S_X)}, 0 offen offset:{256*i}")
    a(f"""
    L_restart:
    v_lshrrev_b32 v84, 4, v85
    v_mul_u32_u24 v84, 20480, v84
    v_lshrrev_b32 v87, 2, v31
    v_lshl_add_u32 v84, v87, 10, v84
    v_and_b32 v87, 3, v31
    v_lshl_add_u32 v84, v87, 6, v84
    v_bfe_u32 v87, v85, 2, 2
    v_lshl_add_u32 v84, v87, 8, v84
    v_and_b32 v87, 3, v85
    v_lshl_add_u32 v84, v87, 4, v84
    v_and_b32 v26, 7, v0
    v_lshrrev_b32 v27, 3, v0
    v_lshrrev_b32 v28, 4, v0
    v_bfe_u32 v29, v0, 2, 2
    v_and_b32 v30, 3, v0
    v_and_b32 v31, 15, v0
    v_lshlrev_b32 v1, 4, v0
    v_lshlrev_b32 v36, 3, v28
    v_lshlrev_b32 v{V_L4}, 2, v0
    s_mul_i32 s{S_W3072}, s{S_WAVE}, 3072
    s_mul_i32 s{S_T0}, s{S_HEAD}, 96
    s_sub_u32 s{S_T1}, 3072, s{S_T0}
    """)
    srd(a, S_MISC, P_B1, f"s{S_T1}", f"s{S_T0}")
    for ft in range(3):
        a(f"buffer_load_dwordx2 {vr(40+2*ft,2)}, v36, {sq(S_MISC)}, 0 offen offset:{32*ft}")
    a(f"s_sub_u32 s{S_T1}, {640*1536*2}, s{S_T0}")
    srd(a, S_W1, P_W1, f"s{S_T1}", f"s{S_T0}")
    a(f"s_mul_i32 s{S_T0}, s{S_HEAD}, 384\ns_sub_u32 s{S_T1}, {640*6144*2}, s{S_T0}")
    srd(a, S_WQ, P_WQ, f"s{S_T1}", f"s{S_T0}")
    a(f"""
    s_mov_b32 s{S_FL+2}, {FLAG_BYTES}
    s_mov_b32 s{S_FL+3}, 0x00020000
    s_lshl_b32 s{S_T0}, s{S_WAVE}, 3
    v_add_u32 v32, s{S_T0}, v27
    v_mul_u32_u24 v33, 12288, v32
    v_bfe_u32 v34, v27, 1, 1
    v_lshlrev_b32 v35, 2, v34
    v_xor_b32 v35, v35, v26
    v_lshl_add_u32 v{V1_DW}, v35, 4, v33
    s_and_b32 s{S_T0}, s{S_WAVE}, 1
    s_lshl_b32 s{S_T0}, s{S_T0}, 2
    v_lshlrev_b32 v35, 1, v34
    v_or_b32 v35, s{S_T0}, v35
    v_xor_b32 v35, v35, v26
    v_mul_u32_u24 v33, 3072, v32
    v_lshl_add_u32 v{V1_DF}, v35, 4, v33
    s_lshl_b32 s{S_DMA1}, s{S_WAVE}, 10
    v_mov_b32 v{V_ZERO}, 0
    s_lshl_b32 s{S_T0}, s{S_PASS}, 1
    s_or_b32 s{S_T0}, s{S_T0}, s{S_WAVE}
    s_cmp_lt_u32 s{S_T0}, 2
    s_cbranch_scc1 L_ln
    """)
    pf_rest = f"""
    s_cmp_eq_u32 s{S_WAVE}, 2
    s_cselect_b32 s{S_XN}, s{S_W1}, s{S_WQ}
    s_cselect_b32 s{S_XN+1}, s{S_W1+1}, s{S_WQ+1}
    s_cselect_b32 s{S_XN+2}, s{S_W1+2}, s{S_WQ+2}
    s_mov_b32 s{S_T1}, {128*12288}
    s_cselect_b32 s{S_T1}, {128*3072}, s{S_T1}
    s_lshl_b32 s{S_T0}, s{S_T1}, 1
    buffer_load_dword v60, v55, {sq(S_XN)}, s{S_T0} offen
    s_add_u32 s{S_T0}, s{S_T0}, s{S_T1}
    buffer_load_dword v59, v55, {sq(S_XN)}, s{S_T0} offen
    s_add_u32 s{S_T0}, s{S_T0}, s{S_T1}
    buffer_load_dword v54, v55, {sq(S_XN)}, s{S_T0} offen
    """
    early_pf, late_pf = (pf_rest, "") if os.environ.get("PFE") == "1" else ("", pf_rest if os.environ.get("PFE") == "0" else "")
    a(f"""
    s_cmp_lg_u32 s{S_PASS}, 0
    s_cbranch_scc1 L_nopf
    s_lshl_b32 s{S_T0}, s{S_QB}, 4
    v_lshrrev_b32 v52, 2, v0
    v_add_u32 v52, s{S_T0}, v52
    v_mul_u32_u24 v53, 3072, v52
    v_lshlrev_b32 v52, 2, v53
    v_lshl_add_u32 v52, v30, 7, v52
    v_mul_u32_u24 v54, 40, v30
    v_add_u32 v53, v54, v53
    s_cmp_eq_u32 s{S_WAVE}, 2
    s_cbranch_scc1 L_pf2
    s_mov_b32 s{S_T0}, {128*12288}
    v_mov_b32 v55, v52
    buffer_load_dword v56, v52, {sq(S_WQ)}, 0 offen
    buffer_load_dword v57, v52, {sq(S_WQ)}, s{S_T0} offen
    s_branch L_pf3
    L_pf2:
    s_mov_b32 s{S_T0}, {128*3072}
    v_mov_b32 v55, v53
    buffer_load_dword v56, v53, {sq(S_W1)}, 0 offen
    buffer_load_dword v57, v53, {sq(S_W1)}, s{S_T0} offen
    L_pf3:
    s_getpc_b64 s[{S_XN}:{S_XN+1}]
    L_pc0:
    s_add_u32 s{S_XN}, s{S_XN}, L_p1_loop-L_pc0
    s_addc_u32 s{S_XN+1}, s{S_XN+1}, 0
    s_mov_b32 s{S_XN+2}, L_hooka-L_p1_loop
    s_and_b32 s{S_T0}, s{S_QB}, 1
    s_lshl_b32 s{S_T0}, s{S_T0}, 1
    s_add_u32 s{S_T0}, s{S_T0}, s{S_WAVE}
    s_sub_u32 s{S_T0}, s{S_T0}, 2
    s_lshl_b32 s{S_T0}, s{S_T0}, 13
    buffer_load_dword v58, v{V_L128}, {sq(S_XN)}, s{S_T0} offen
    {early_pf}
    s_waitcnt vmcnt({4 if early_pf else 1}) lgkmcnt(0)
    s_add_u32 s{S_NONCE}, s{S_NONCE}, 1
    L_nopf:
    """)
    a(f"""
    v_mov_b32 v52, v{V1_DW}
    v_mov_b32 v53, v{V1_DF}
    s_mov_b32 s{S_RD}, s{S_W3072}
    s_mov_b32 s{S_RD1}, s{S_DMA1}
    s_mov_b32 s{S_CNT}, s{S_PASS}
    L_pre:
    """)
    for st in range(2):
        a(f"s_mov_b32 s{S_SO0}, {64*st*12288}\ns_mov_b32 s{S_SO1}, {(64*st+32)*12288}")
        a(f"s_mov_b32 s{S_SW0}, {64*st*3072}\ns_mov_b32 s{S_SW1}, {(64*st+32)*3072}")
        dma_tile(a, 52, S_WQ, S_SO0, S_SO1, S_RD, LDS_V + st * SLOT)
        for d in range(2):
            a(f"s_add_u32 m0, s{S_RD1}, {LDS_W1 + st*8192 + d*4096}\ns_nop 0")
            a(f"buffer_load_dwordx4 v53, {sq(S_W1)}, s{S_SW0+d} offen lds")
    a(f"""
    s_cmp_lg_u32 s{S_CNT}, 0
    s_cbranch_scc1 L_predone
    s_mov_b32 s{S_CNT}, 1
    v_subrev_u32 v52, {16*12288}, v52
    v_subrev_u32 v53, {16*3072}, v53
    s_sub_u32 s{S_RD}, s{S_RD}, {2*3072}
    s_sub_u32 s{S_RD1}, s{S_RD1}, 2048
    s_branch L_pre
    L_predone:
    s_cmp_lg_u32 s{S_PASS}, 0
    s_cbranch_scc1 L_setup
    {late_pf}
    s_branch L_setup
    L_ln:
    """)
    srd(a, S_MISC, P_WS, XN_BYTES)
    if os.environ.get("TOUCH"):
        a(f"buffer_load_dword v60, v84, {sq(S_MISC)}, 0 offen sc1\nbuffer_load_dword v59, v{V_L128}, {sq(S_FL)}, 0 offen sc1")
    gen_ln_body(a)
    stamp(a, 20)
    a(f"""
    s_waitcnt lgkmcnt(0)
    s_add_u32 s{S_NONCE}, s{S_NONCE}, 1
    v_mov_b32 v52, {LDS_FLAG + 4}
    v_mov_b32 v{V_ONE}, s{S_NONCE}
    s_lshl_b32 s{S_T0}, s{S_QB}, 12
    s_lshl_b32 s{S_T1}, s{S_HEAD}, 7
    s_add_u32 s{S_T0}, s{S_T0}, s{S_T1}
    s_cmp_eq_u32 s{S_WAVE}, 0
    s_waitcnt vmcnt(0)
    s_cbranch_scc1 L_ln0
    ds_write_b32 v52, v{V_ONE}
    s_branch L_setup
    L_ln0:
    ds_read_b32 v53, v52
    s_waitcnt lgkmcnt(0)
    v_cmp_ne_u32 vcc, v53, v{V_ONE}
    s_cbranch_vccnz L_ln0
    v_xor_b32 v53, 0x80000000, v53
    ds_write_b32 v52, v53
    """)
    signal(a)
    a("L_setup:")
    stamp(a, 1)
    a(f"s_add_u32 s{S_T1}, s{S_QB}, 1\ns_mul_i32 s{S_T1}, s{S_T1}, {16*20480}")
    srd(a, S_XN, P_WS, f"s{S_T1}")
    srd(a, S_WF, P_WS, WF_BYTES, WS_WF)
    srd(a, S_H, P_WS, H_BYTES, WS_H)
    a(f"s_mul_i32 s{S_T0}, s{S_HEAD}, 786432")
    srd(a, S_K, P_K, 0, f"s{S_T0}")
    srd(a, S_V, P_V, 786432, f"s{S_T0}")
    a(f"""
    s_mov_b32 s{S_MISC+2}, {48*40960}
    s_cmp_lt_u32 s2, 192
    s_cselect_b32 s{S_MISC}, s{P_WO}, s{P_W2}
    s_cselect_b32 s{S_MISC+1}, s{P_WO+1}, s{P_W2+1}
    s_cselect_b32 s{S_MISC+2}, {6144*1280}, s{S_MISC+2}
    s_cselect_b32 s{S_T0}, 0, 192
    s_sub_u32 s{S_T0}, s2, s{S_T0}
    s_mul_i32 s{S_RS}, s{S_T0}, 40960
    s_mul_i32 s{S_RO}, s2, 40960
    s_lshl_b32 s{S_T0}, s{S_WAVE}, 10
    s_add_u32 s{S_RO}, s{S_RO}, s{S_T0}
    v_mov_b32 v{V_ONE}, s{S_NONCE}
    s_and_b32 s{S_T0}, s{S_WAVE}, 1
    s_lshl_b32 s{S_T0}, s{S_T0}, 2
    v_mul_u32_u24 v33, 384, v27
    v_add_u32 v33, s{S_W3072}, v33
    v_lshrrev_b32 v34, 1, v27
    v_add_u32 v35, s{S_T0}, v34
    v_xor_b32 v35, v35, v26
    v_lshl_add_u32 v{V_DK}, v35, 4, v33
    v_lshlrev_b32 v35, 1, v34
    v_xor_b32 v35, v35, v26
    v_lshl_add_u32 v{V_DV}, v35, 4, v33
    v_mul_u32_u24 v33, 1280, v32
    v_lshl_add_u32 v{V_RD}, v35, 4, v33
    s_lshl_b32 s{S_T0}, s{S_QB}, 3
    v_add_u32 v52, s{S_T0}, v26
    v_mul_u32_u24 v53, 3072, v52
    v_lshlrev_b32 v52, 2, v53
    s_lshl_b32 s{S_T0}, s{S_WAVE}, 7
    v_add_u32 v52, s{S_T0}, v52
    v_and_b32 v54, 1, v27
    v_mul_u32_u24 v54, 124, v54
    v_add_u32 v53, v54, v53
    s_mov_b32 s{S_O+3}, 0x00020000
    s_cmp_eq_u32 s{S_WAVE}, 3
    s_cselect_b32 s{S_O}, s{S_W1}, s{S_WQ}
    s_cselect_b32 s{S_O+1}, s{S_W1+1}, s{S_WQ+1}
    s_cselect_b32 s{S_O+2}, s{S_W1+2}, s{S_WQ+2}
    s_cselect_b64 vcc, -1, 0
    s_mov_b32 s{S_HS}, {64*12288}
    s_cselect_b32 s{S_HS}, {64*3072}, s{S_HS}
    v_cndmask_b32 v46, v52, v53, vcc
    s_cselect_b32 s{S_HOOK}, s{S_K}, s{S_V}
    s_cselect_b32 s{S_KC}, s{S_K+1}, s{S_V+1}
    s_mov_b32 s3, {12*128}
    s_cselect_b32 s3, {6*128}, s3
    s_mul_i32 s{S_T0}, s{S_QB}, 48
    s_lshl_b32 s{S_T1}, s{S_WAVE}, 2
    s_add_u32 s{S_T0}, s{S_T0}, s{S_T1}
    v_add_u32 v52, s{S_T0}, v30
    s_mul_i32 s{S_T0}, s{S_QB}, 24
    s_add_u32 s{S_T0}, s{S_T0}, 384
    v_min_u32 v53, 5, v26
    v_add_u32 v53, s{S_T0}, v53
    v_cndmask_b32 v60, v52, v53, vcc
    v_lshlrev_b32 v60, 7, v60
    s_lshl_b32 s{S_M0}, s{S_HS}, 2
    s_mov_b32 s{S_SV0}, 0
    s_mov_b32 s{S_SV1}, 0
    s_add_u32 s{S_C0}, s{S_W3072}, {LDS_X}
    s_add_u32 s{S_C1}, s{S_W3072}, {LDS_K}
    s_lshl_b32 s{S_T0}, s{S_QB}, 4
    s_lshl_b32 s{S_T1}, s{S_WAVE}, 2
    s_add_u32 s{S_T0}, s{S_T0}, s{S_T1}
    s_mul_i32 s{S_T0}, s{S_T0}, 20480
    v_lshlrev_b32 v33, 8, v29
    v_lshl_add_u32 v33, v28, 6, v33
    v_lshl_add_u32 v33, v30, 4, v33
    v_add_u32 v{V1_X}, s{S_T0}, v33
    v_add_u32 v{V1_X+1}, 20480, v{V1_X}
    v_add_u32 v{V1_X+2}, {2*20480}, v{V1_X}
    v_add_u32 v{V1_X+3}, {3*20480}, v{V1_X}
    s_mov_b32 s{S_SO0}, {128*12288}
    s_mov_b32 s{S_SO1}, {160*12288}
    s_mov_b32 s{S_SW0}, {128*3072}
    s_mov_b32 s{S_SW1}, {160*3072}
    s_mov_b32 s{S_RD}, 0
    s_mov_b32 s{S_RD1}, 0
    s_add_u32 s{S_DMA}, s{S_W3072}, {2*SLOT}
    s_add_u32 s{S_DMA1}, s{S_DMA1}, {2*8192}
    v_mul_u32_u24 v33, 3072, v28
    v_lshl_add_u32 v33, v29, 7, v33
    v_add_u32 v33, {LDS_V}, v33
    v_lshrrev_b32 v34, 1, v29
    v_lshlrev_b32 v35, 2, v34
    v_xor_b32 v35, v35, v30
    v_lshl_add_u32 v{V1_WB}, v35, 4, v33
    v_xor_b32 v{V1_WB+1}, 64, v{V1_WB}
    v_mov_b32 v{V1_WA}, v{V1_WB}
    v_mov_b32 v{V1_WA+1}, v{V1_WB+1}
    v_lshlrev_b32 v33, 10, v28
    v_lshl_add_u32 v33, v29, 7, v33
    v_add_u32 v33, {LDS_W1}, v33
    v_and_b32 v35, 1, v30
    v_lshl_add_u32 v33, v35, 3, v33
    v_lshrrev_b32 v35, 1, v30
    v_lshl_add_u32 v33, v35, 4, v33
    v_and_b32 v35, 1, v28
    v_lshl_add_u32 v35, v35, 1, v34
    v_lshl_add_u32 v{V1_FB}, v35, 5, v33
    v_xor_b32 v{V1_FB+1}, 32, v{V1_FB}
    v_xor_b32 v{V1_FB+2}, 64, v{V1_FB}
    v_mov_b32 v{V1_FA}, v{V1_FB}
    v_mov_b32 v{V1_FA+1}, v{V1_FB+1}
    v_mov_b32 v{V1_FA+2}, v{V1_FB+2}
    v_mov_b32 v48, 0
    v_mov_b32 v49, 0
    v_mov_b32 v50, 0
    v_mov_b32 v51, 0
    s_or_b32 s{S_T0}, s{S_WAVE}, s{S_PASS}
    s_cmp_eq_u32 s{S_T0}, 0
    s_cbranch_scc1 L_nw
    s_waitcnt vmcnt(0)
    L_nw:
    """)
    for i in range(12):
        a(f"v_mfma_f32_32x32x16_bf16 {vr(64+16*i,16)}, v[48:51], v[48:51], 0")
    for ft in range(3):
        a(f"""
        v_lshlrev_b32 v52, 16, v{40+2*ft}
        v_and_b32 v53, 0xffff0000, v{40+2*ft}
        v_lshlrev_b32 v54, 16, v{41+2*ft}
        v_and_b32 v55, 0xffff0000, v{41+2*ft}
        """)
        for t in range(4):
            for r in range(4):
                a(f"v_accvgpr_write_b32 a{P1_H+4*(4*ft+t)+r}, v{52+r}")
    a(f"""
    s_or_b32 s{S_T0}, s{S_WAVE}, s{S_PASS}
    s_cmp_lg_u32 s{S_T0}, 0
    s_cbranch_scc1 L_p1go
    s_lshl_b32 s{S_T0}, s{S_QB}, 12
    v_and_b32 v53, {31*128}, v{V_L128}
    L_poll1:
    buffer_load_dword v52, v53, {sq(S_FL)}, s{S_T0} offen sc1
    s_waitcnt vmcnt(0)
    v_cmp_ne_u32 vcc, v52, v{V_ONE}
    s_cbranch_vccnz L_poll1
    L_p1go:
    s_barrier
    """)
    stamp(a, 2)
    NPRE = int(os.environ.get("NPRE", 2))
    for ks in range(NPRE):
        for j in range(4):
            a(f"buffer_load_dwordx4 {ar(P1_B+16*ks+4*j)}, v{V1_X+j}, {sq(S_XN)}, 0 offen offset:{1024*ks} sc1")
    for f in range(2):
        for k in range(4):
            a(p1_read(f, k))
    a(f"s_mov_b32 s{S_BOFF}, 2048\ns_mov_b32 s{S_CNT}, 5\ns_waitcnt vmcnt({4*NPRE-8}) lgkmcnt(4)")
    stamp(a, 3)
    a(".p2align 6\nL_p1_loop:")
    gen_p1_stage(a, 0)
    gen_p1_stage(a, 1)
    a("s_cbranch_scc1 L_p1_loop\ns_waitcnt vmcnt(1) lgkmcnt(0)\ns_barrier")
    stamp(a, 4)
    dm = []
    for (voff, sr, so, goff, lds) in ((V_DV, S_V, S_SV0, 0, LDS_V), (V_DK, S_K, S_SO0, 2 * SLOT, LDS_K + 2 * SLOT), (V_DV, S_V, S_SV0, SLOT, LDS_V + SLOT)):
        for d in range(6):
            pre = f"s_mov_b32 s{so}, {goff}\ns_mov_b32 s{so+1}, {goff+12288}\n" if d == 0 else ""
            dm.append((pre + f"s_add_u32 m0, s{S_W3072}, {lds + (d//3)*12288 + (d%3)*896}",
                       f"buffer_load_dwordx4 v{voff}, {sq(sr)}, s{so + d//3} offen offset:{(d%3)*128} lds"))
    c = (192 ** -0.5) * math.log2(math.e)
    a(f"s_mov_b32 s{S_C0}, {fh(c)}\ns_mov_b32 s{S_C1}, {fh(c)}")
    for i in range(24):
        b = P1_ACC + 8 * i
        if i < 18:
            a(dm[i][0])
        for j in range(4):
            a(f"v_pk_mul_f32 {vr(b+2*j,2)}, {vr(b+2*j,2)}, s[{S_C0}:{S_C1}]")
        if i < 18:
            a(dm[i][1])
        if i % 2 == 1 and i // 2 + 3 < 12:
            a(f"v_mfma_f32_32x32x16_bf16 {ar(16*(i//2+3),16)}, v[48:51], v[48:51], 0")
        for j in range(4):
            a(f"v_cvt_pk_bf16_f32 v{V_Q+4*i+j}, v{b+2*j}, v{b+2*j+1}")
    for e in range(32):
        a(f"v_accvgpr_write_b32 a{A_Q+e}, v{V_Q+64+e}")
    stamp(a, 21)
    srd(a, S_O, P_WS, O_BYTES, WS_O)
    k0 = -2.0 * math.log2(math.e) * math.sqrt(2 / math.pi)
    k1 = k0 * 0.044715
    a(f"""
    s_mov_b32 s{S_SO0}, {3*SLOT}
    s_mov_b32 s{S_SO1}, {3*SLOT+12288}
    s_mov_b32 s{S_SV0}, {2*SLOT}
    s_mov_b32 s{S_SV1}, {2*SLOT+12288}
    s_lshl_b32 s{S_T0}, s{S_QB}, 4
    s_lshl_b32 s{S_T1}, s{S_WAVE}, 2
    s_add_u32 s{S_T0}, s{S_T0}, s{S_T1}
    s_mul_i32 s{S_T0}, s{S_T0}, {48*1024}
    v_add_u32 v52, s{S_T0}, v1
    v_add_u32 v53, {48*1024}, v52
    v_add_u32 v54, {2*48*1024}, v52
    v_add_u32 v55, {3*48*1024}, v52
    v_mov_b32 v56, {fh(k1)}
    v_mov_b32 v57, {fh(k0)}
    v_mov_b32 v58, 1.0
    """)
    stamp(a, 22)

    def gelu(ft, packed):
        o = [(f"""s_mul_i32 s{S_T0}, s{S_HEAD}, 3
        s_add_u32 s{S_T0}, s{S_T0}, {ft}
        s_lshr_b32 s{S_T1}, s{S_T0}, 1
        s_lshl_b32 s{S_T1}, s{S_T1}, 10
        s_and_b32 s{S_T0}, s{S_T0}, 1
        s_lshl_b32 s{S_T0}, s{S_T0}, 3
        s_add_u32 s{S_M0}, s{S_T0}, s{S_T1}""", 0)]
        x, u = 216, 232
        o += [(f"v_accvgpr_read_b32 v{x+e}, a{P1_H+16*ft+e}", 1) for e in range(16)]
        if packed:
            o.append((f"v_mfma_f32_32x32x16_bf16 {ar(16*ft,16)}, v[48:51], v[48:51], 0", 0))
        for pk, sc, sl in (("v_pk_mul_f32 {U}, {X}, {X}", "v_mul_f32 v{u}, v{x}, v{x}", 1),
                           ("v_pk_fma_f32 {U}, {U}, v[56:57], v[56:57] op_sel:[0,0,1] op_sel_hi:[1,0,1]", "v_fma_f32 v{u}, v{u}, v56, v57", 1),
                           ("v_pk_mul_f32 {U}, {U}, {X}", "v_mul_f32 v{u}, v{u}, v{x}", 1),
                           (None, "v_exp_f32 v{u}, v{u}", 2),
                           ("v_pk_add_f32 {U}, {U}, v[58:59] op_sel_hi:[1,0]", "v_add_f32 v{u}, 1.0, v{u}", 1),
                           (None, "v_rcp_f32 v{u}, v{u}", 2),
                           ("v_pk_mul_f32 {X}, {U}, {X}", "v_mul_f32 v{x}, v{u}, v{x}", 1)):
            if packed and pk:
                o += [(pk.format(U=vr(u + e, 2), X=vr(x + e, 2)), 1) for e in range(0, 16, 2)]
            else:
                o += [(sc.format(u=u + e, x=x + e), sl) for e in range(16)]
        o += [(f"v_cvt_pk_bf16_f32 v{192+8*ft+e}, v{x+2*e}, v{x+2*e+1}", 1) for e in range(8)]
        o += [(f"buffer_store_dwordx2 {vr(192+8*ft+2*t,2)}, v{52+t}, {sq(S_H)}, s{S_M0} offen sc1", 2) for t in range(4)]
        return o
    a(f"s_cmp_lg_u32 s{S_PASS}, 0\ns_cbranch_scc1 L_nogelu")
    for ft in range(2):
        for ins, _ in gelu(ft, True):
            a(ins)
    a("L_nogelu:")
    a(f"""
    v_lshrrev_b32 v33, 3, v31
    v_mul_u32_u24 v33, 3072, v33
    v_lshl_add_u32 v33, v26, 7, v33
    v_lshrrev_b32 v34, 1, v31
    v_xor_b32 v34, v34, v28
    v_lshl_add_u32 v{V_KB}, v34, 4, v33
    v_xor_b32 v{V_KB+1}, 64, v{V_KB}
    v_mov_b32 v{V_KA}, v{V_KB}
    v_mov_b32 v{V_KA+1}, v{V_KB+1}
    v_lshrrev_b32 v33, 1, v28
    v_mul_u32_u24 v33, 3072, v33
    v_add_u32 v33, {LDS_V}, v33
    v_and_b32 v34, 1, v28
    v_lshl_add_u32 v34, v34, 2, v29
    v_lshl_add_u32 v33, v34, 7, v33
    v_and_b32 v35, 1, v30
    v_lshl_add_u32 v33, v35, 3, v33
    v_lshrrev_b32 v35, 1, v30
    v_lshl_add_u32 v33, v35, 4, v33
    v_lshrrev_b32 v34, 1, v34
    v_lshl_add_u32 v{V_VB}, v34, 5, v33
    v_xor_b32 v{V_VB+1}, 32, v{V_VB}
    v_xor_b32 v{V_VB+2}, 64, v{V_VB}
    v_xor_b32 v{V_VB+3}, 96, v{V_VB}
    v_mov_b32 v34, {LDS_FLAG}
    ds_write_b32 v34, v{V_ZERO}
    s_lshl_b32 s{S_T0}, s{S_WAVE}, 5
    v_xor_b32 v{V_RR}, s{S_T0}, v{V_VB}
    v_add_u32 v{V_RR}, {LDS_X - LDS_V}, v{V_RR}
    s_mov_b32 s{S_KC}, 0
    s_cmp_eq_u32 s{S_PASS}, 0
    s_cselect_b32 s{S_HOOK}, 8, 3
    s_mov_b32 s{S_WF+2}, 0
    s_sub_u32 s{S_RO}, s{S_RO}, 4096
    s_cmp_eq_u32 s{S_PASS}, 0
    """)
    for j in range(4):
        a(f"v_mov_b32 v{V_L+j}, 0\nv_mov_b32 v{20+j}, 0xff800000")
    a("s_cbranch_scc0 L_maxfirst")
    stamp(a, 5)

    def qk0(fill):
        for g in range(3):
            a(k_read(g, 0) + "\n" + k_read(g, 1))
        for g in range(12):
            if g == 0:
                a("s_waitcnt lgkmcnt(4)")
            mx = []
            if g % 3 == 1 and g >= 4:
                for t in range(4):
                    s0 = s_reg(g // 3 - 1, t)
                    mx += [(f"v_max3_f32 v{20+t}, v{20+t}, v{s0}, v{s0+1}", 1), (f"v_max3_f32 v{20+t}, v{20+t}, v{s0+2}, v{s0+3}", 1)]
            fill[:0] = mx
            for p in range(8):
                a(qk_mfma(g, p, lambda t: "0"))
                room = 2
                if p == 7 and g < 11:
                    a(f"s_waitcnt lgkmcnt({2 if g <= 9 else 0})")
                if p < 2 and 3 <= g + 2 < 12 and g >= 1:
                    a(k_read(g + 2, p))
                    room = 1
                while fill and fill[0][1] <= room:
                    ins, sl = fill.pop(0)
                    a(ins)
                    room -= sl
        for ins, _ in fill:
            a(ins)
        a(f"s_waitcnt vmcnt(24)\ns_barrier\ns_cmp_lg_u32 s{S_KC}, 0\nv_add_u32 v{V_KA}, {SLOT}, v{V_KB}\nv_add_u32 v{V_KA+1}, {SLOT}, v{V_KB+1}\ns_nop 1")
        for t in range(4):
            s0 = s_reg(3, t)
            a(f"v_max3_f32 v{20+t}, v{20+t}, v{s0}, v{s0+1}\nv_max3_f32 v{20+t}, v{20+t}, v{s0+2}, v{s0+3}")
    g2 = gelu(2, False)
    for ins, _ in g2[:17]:
        a(ins)
    a(f"v_mfma_f32_32x32x16_bf16 {ar(32,16)}, v[48:51], v[48:51], 0")
    qk0(g2[17:])
    a("L_qkdone:")
    for g in range(2):
        a(k_read(g, 0) + "\n" + k_read(g, 1))
    for x in swaps("v_max_f32", 20, 24):
        a(x + "\ns_nop 0")
    a(f"s_cmp_eq_u32 s{S_PASS}, 0\ns_cselect_b32 s{S_T0}, {fh(-OFF)}, 0")
    for t in range(4):
        a(f"v_sub_f32 v{V_NM+4*t}, s{S_T0}, v{20+t}")
    for t in range(4):
        for r in range(1, 4):
            a(f"v_mov_b32 v{V_NM+4*t+r}, v{V_NM+4*t}")
    for u in range(4):
        for t in range(4):
            for j in range(2):
                r = s_reg(u, t) + 2 * j
                a(f"v_pk_add_f32 {vr(r,2)}, {vr(r,2)}, {vr(V_NM+4*t,2)}")
    for i in range(192):
        if G[i]["exp"] is not None and G[i]["exp"][0] == "cur":
            a(soft("exp", *G[i]["exp"], 0))
    a("s_nop 0")
    for i in range(192):
        for (w, kind, u, t, x) in G[i]["valu"]:
            if w == "cur":
                a(soft(kind, w, u, t, x, 0))
    a(f"""
    s_mov_b32 s{S_RD}, 0
    s_mov_b32 s{S_RK}, {SLOT}
    s_mov_b32 s{S_DV}, {2*SLOT}
    s_add_u32 s{S_M0}, s{S_W3072}, {LDS_V}
    s_mov_b32 s{S_DKM}, s{S_W3072}
    s_add_u32 s{S_DVM}, s{S_M0}, {2*SLOT}
    s_mov_b32 s{S_CNT}, 31
    s_waitcnt lgkmcnt({att_counts(G)[0]})
    """)
    stamp(a, 6)
    a(".p2align 6")
    for k in range(int(os.environ.get("PADN", 0))):
        a("s_nop 0")
    a("L_att_loop:")
    def lstamp():
        if STAMP and os.environ.get("ATST"):
            a(f"s_memtime s[98:99]\ns_waitcnt lgkmcnt(0)\ns_add_u32 m0, s{S_CNT}, 32\ns_nop 0\nv_writelane_b32 v38, s98, m0\ns_cmp_lg_u32 s{S_CNT}, 0")
    gen_body(a, G, spare, 1, lab="a")
    lstamp()
    a("s_cbranch_scc0 L_att_tail")
    gen_body(a, G, spare, 0, lab="b")
    lstamp()
    a("s_branch L_att_loop")
    f2 = f"s_mov_b32 s{S_T0}, {FL_F2}\nbuffer_load_dwordx4 {vr(V_F2)}, v1, {sq(S_FL)}, s{S_T0} offen sc1"
    a(f"""
    L_hooka:
    s_mov_b32 s{S_KC}, 0
    s_branch L_hook
    L_hookb:
    s_mov_b32 s{S_KC}, 1
    L_hook:
    s_cmp_eq_u32 s{S_CNT}, 3
    s_cbranch_scc1 L_hF
    L_hP:
    s_mov_b32 s{S_HOOK}, 3
    s_cmp_lg_u32 s{S_WAVE}, 0
    s_cbranch_scc1 L_hdone
    s_lshl_b32 s{S_T0}, s2, 2
    s_add_u32 s{S_T0}, s{S_T0}, {FL_F2}
    s_mov_b64 exec, 1
    buffer_store_dword v{V_ONE}, v{V_ZERO}, {sq(S_FL)}, s{S_T0} offen sc1
    s_mov_b64 exec, -1
    """)
    a(f"""
    s_nop 1
    s_branch L_hdone
    L_hF:
    """)
    code_prefetch(a, 1, "L_att_tail", "L_end", S_XN, V_F2 + 4, one=True)
    a(f"""
    s_cmp_lg_u32 s{S_WAVE}, 0
    s_cbranch_scc1 L_hdone
    {f2}
    """)
    a(f"""
    L_hdone:
    s_cmp_eq_u32 s{S_KC}, 0
    s_cbranch_scc1 L_hreta
    s_branch L_hretb
    L_maxfirst:
    v_mfma_f32_32x32x16_bf16 a[0:15], v[48:51], v[48:51], 0
    v_mfma_f32_32x32x16_bf16 a[16:31], v[48:51], v[48:51], 0
    v_mfma_f32_32x32x16_bf16 a[32:47], v[48:51], v[48:51], 0
    s_mov_b32 s{S_KC}, {32*SLOT}
    L_maxnext:
    s_sub_u32 s{S_KC}, s{S_KC}, {SLOT}
    s_add_u32 s{S_T0}, s{S_KC}, 12288
    v_mov_b32 v{V_KA}, v{V_KB}
    v_mov_b32 v{V_KA+1}, v{V_KB+1}
    """)
    dma_tile(a, V_DK, S_K, S_KC, S_T0, S_W3072, LDS_K)
    a("s_waitcnt vmcnt(0)\ns_barrier")
    qk0([])
    a(f"""
    s_cbranch_scc1 L_maxnext
    s_branch L_qkdone
    L_fallback:
    s_waitcnt vmcnt(0) lgkmcnt(0)
    s_barrier
    s_mov_b32 s{S_PASS}, 1
    s_branch L_restart
    L_nonce:
    s_mov_b32 s{S_T0}, {FL_NONCE}
    """)
    signal(a)
    a(f"""
    s_nop 1
    s_branch L_nononce
    L_repoll2:
    {f2}
    s_waitcnt vmcnt(0)
    s_branch L_chk2
    L_att_tail:
    v_add_u32 v{V_VA}, s{S_RD}, v{V_VB}
    v_add_u32 v{V_VA+1}, s{S_RD}, v{V_VB+1}
    v_add_u32 v{V_VA+2}, s{S_RD}, v{V_VB+2}
    v_add_u32 v{V_VA+3}, s{S_RD}, v{V_VB+3}
    """)
    for f in (12, 13, 14):
        for k in range(4):
            a(v_read(f, k))
    a(f"""
    s_cmp_lg_u32 s{S_WAVE}, 0
    s_cbranch_scc1 L_ok2
    L_chk2:
    v_xor_b32 v{V_F2}, v{V_F2}, v{V_ONE}
    v_xor_b32 v{V_F2+1}, v{V_F2+1}, v{V_ONE}
    v_xor_b32 v{V_F2+2}, v{V_F2+2}, v{V_ONE}
    v_xor_b32 v{V_F2+3}, v{V_F2+3}, v{V_ONE}
    v_or3_b32 v{V_F2}, v{V_F2}, v{V_F2+1}, v{V_F2+2}
    v_or_b32 v{V_F2}, v{V_F2}, v{V_F2+3}
    v_cmp_ne_u32 vcc, 0, v{V_F2}
    s_cbranch_vccnz L_repoll2
    L_ok2:
    """)
    setup = f"""
    s_and_b32 s{S_J}, s2, 3
    s_bfe_u32 s{S_T0}, s2, 0x10002
    s_lshl_b32 s{S_T0}, s{S_T0}, 3
    s_bfe_u32 s{S_MB}, s2, 0x30003
    s_add_u32 s{S_MB}, s{S_MB}, s{S_T0}
    s_lshr_b32 s{S_NB}, s2, 6
    s_lshl_b32 s{S_TILE}, s{S_MB}, 2
    s_add_u32 s{S_TILE}, s{S_TILE}, s{S_NB}
    s_lshl_b32 s{S_T0}, s{S_MB}, 3
    s_lshl_b32 s{S_T1}, s{S_WAVE}, 1
    s_add_u32 s{S_T0}, s{S_T0}, s{S_T1}
    s_mul_i32 s{S_T1}, s{S_T0}, {192*1024}
    v_add_u32 v{V_DO}, s{S_T1}, v1
    v_add_u32 v{V_DO+1}, {192*1024}, v{V_DO}
    s_mul_i32 s{S_T1}, s{S_T0}, {48*1024}
    v_add_u32 v{V_DH}, s{S_T1}, v1
    v_add_u32 v{V_DH+1}, {48*1024}, v{V_DH}
    s_mul_i32 s{S_OO}, s{S_J}, {12*1024}
    s_lshr_b32 s{S_T0}, s{S_WAVE}, 1
    s_mul_i32 s{S_WS0}, s{S_T0}, 40960
    s_mul_i32 s{S_LW}, s{S_T0}, 10240
    s_lshl_b32 s{S_T0}, s{S_T0}, 13
    v_add_u32 v{V_RB0}, s{S_T0}, v1
    s_and_b32 s{S_T0}, s{S_WAVE}, 1
    s_mul_i32 s{S_T0}, s{S_T0}, 5120
    s_add_u32 s{S_WS0}, s{S_WS0}, s{S_T0}
    s_add_u32 s{S_T0}, s{S_T0}, {LDS_WOFF}
    s_add_u32 s{S_LW}, s{S_LW}, s{S_T0}
    v_add_u32 v{V_RA0}, s{S_T0}, v1
    s_mul_i32 s{S_T0}, s{S_NB}, 10240
    s_add_u32 s{S_WS0}, s{S_WS0}, s{S_T0}
    s_mul_i32 s{S_T0}, s{S_J}, {12*40960}
    s_add_u32 s{S_WO}, s{S_WS0}, s{S_T0}
    s_add_u32 s{S_WO}, s{S_WO}, {192*40960}
    s_add_u32 s{S_WO4}, s{S_WO}, 4096
    s_mul_i32 s{S_T0}, s{S_J}, {48*40960}
    s_add_u32 s{S_WS0}, s{S_WS0}, s{S_T0}
    s_lshl_b32 s{S_LO}, s{S_WAVE}, 12
    v_mov_b32 v{V_RB}, v{V_RB0}
    v_mov_b32 v{V_RA}, v{V_RA0}
    s_mov_b32 s{S_WF+2}, {WF_BYTES}
    """
    qd = ["s_waitcnt vmcnt(0)", "s_barrier",
          f"s_or_b32 s{S_T0}, s2, s{S_WAVE}\ns_cmp_eq_u32 s{S_T0}, 0\ns_cbranch_scc1 L_nonce\nL_nononce:"]
    cur, cost = [], 0
    for ln in [x.strip() for x in setup.strip().split("\n")]:
        c1 = 2 if (ln.startswith("v_") and not cur) else 1
        if cost + c1 > 3:
            qd.append("\n".join(cur))
            cur, cost = [], 0
            c1 = 2 if ln.startswith("v_") else 1
        cur.append(ln)
        cost += c1
    qd.append("\n".join(cur))
    gops = []
    for st in range(4):
        for k in range(9):
            pre, ld = dma3(k, S_H, V_DH)
            if k == 0:
                pre = [f"s_add_u32 s{S_DO}, s{S_LO}, {st*STG}", f"s_add_u32 s{S_DW}, s{S_LW}, {st*STG}"] + pre
            gops.append((pre, ld, ADV3 if k == 8 else []))
    for pre, ld, post in gops[:18]:
        if pre:
            qd.append("\n".join(pre))
        qd.append(ld)
        if post:
            qd.append("\n".join(post))
    qv = [y for x in swaps("v_add_f32", V_L, 24) for y in x.split("\n")] + [f"v_rcp_f32 v{20+2*t}, v{V_L+t}" for t in range(4)]
    gen_body(a, G, spare, 0, tail=True, tailq=(qd, qv))
    stamp(a, 7)
    a(f"""
    s_lshl_b32 s{S_T0}, s{S_QB}, 4
    s_lshl_b32 s{S_T1}, s{S_WAVE}, 2
    s_add_u32 s{S_T0}, s{S_T0}, s{S_T1}
    s_mul_i32 s{S_T0}, s{S_T0}, {192*1024}
    s_mul_i32 s{S_T1}, s{S_HEAD}, {6*1024}
    s_add_u32 s{S_T0}, s{S_T0}, s{S_T1}
    v_add_u32 v28, s{S_T0}, v1
    v_add_u32 v29, {192*1024}, v28
    v_add_u32 v30, {2*192*1024}, v28
    v_add_u32 v31, {3*192*1024}, v28
    s_mov_b32 s{S_M0}, 4096
    """)
    for n in range(24):
        s, t = n // 4, n % 4
        b, o = 40 + 8 * (n % 2), 64 + 4 * n
        for h in range(2):
            for r in range(4):
                a(f"v_accvgpr_read_b32 v{b+4*h+r}, a{4*(4*(2*s+h)+t)+r}")
        for j in range(4):
            a(f"v_pk_mul_f32 {vr(b+2*j,2)}, {vr(b+2*j,2)}, {vr(20+2*t,2)} op_sel_hi:[1,0]")
        for j in range(4):
            a(f"v_cvt_pk_bf16_f32 v{o+j}, v{b+2*j}, v{b+2*j+1}")
        a(f"buffer_store_dwordx4 {vr(o)}, v{28+t}, {sq(S_O)}, {'0' if s < 4 else f's{S_M0}'} offen offset:{(s%4)*1024} sc1")
    stamp(a, 8)
    a("v_mov_b32 v48, 0\nv_mov_b32 v49, 0\nv_mov_b32 v50, 0\nv_mov_b32 v51, 0")
    zi = 0
    for t in range(4):
        regs = [64 + 4 * (4 * s + t) + j for s in range(6) for j in range(4)]
        a(f"v_max3_f32 v{40+t}, |v{regs[0]}|, |v{regs[1]}|, |v{regs[2]}|")
        for k in range(3, 23, 2):
            a(f"v_max3_f32 v{40+t}, |v{regs[k]}|, |v{regs[k+1]}|, v{40+t}")
            if k in (3, 11, 19) and zi < 5:
                a(f"v_mfma_f32_32x32x16_bf16 {vr(ACC_G+16*zi,16)}, v[48:51], v[48:51], 0")
                zi += 1
        a(f"v_max_f32 v{40+t}, |v{regs[23]}|, v{40+t}")
    for x in swaps("v_max_f32", 40, 44):
        a(x + "\ns_nop 0")
    for t in range(4):
        a(f"v_mul_f32 v{40+t}, v{40+t}, v{V_L+t}")
    a(f"""
    v_min3_f32 v40, v40, v41, v42
    v_min_f32 v40, v40, v43
    v_add_f32 v41, v{V_L}, v{V_L+1}
    v_add_f32 v42, v{V_L+2}, v{V_L+3}
    v_add_f32 v41, v41, v42
    v_mov_b32 v42, {fh(GUARD_LO)}
    v_cmp_nle_f32 vcc, v42, v40
    v_cmp_ngt_f32 s[{S_M0}:{S_M0+1}], 1.0, v41
    v_mov_b32 v40, {LDS_FLAG}
    v_mov_b32 v41, 1
    """)
    srd(a, S_PT, P_WS, 2 * PART_BYTES, WS_PART)
    a(f"""
    s_or_b64 vcc, vcc, s[{S_M0}:{S_M0+1}]
    s_cbranch_vccz L_good
    ds_write_b32 v40, v41
    L_good:
    """)
    srd(a, S_OUT, P_OUT, 2048 * 1280)
    srd(a, S_B2, P_B2, 1280)
    a(f"""
    s_lshl_b32 s{S_T0}, s{S_MB}, 3
    s_lshr_b32 s{S_T1}, s{S_J}, 1
    s_lshl_b32 s{S_T1}, s{S_T1}, 2
    s_add_u32 s{S_T0}, s{S_T0}, s{S_T1}
    s_add_u32 s{S_T0}, s{S_T0}, s{S_WAVE}
    s_lshl_b32 s{S_T0}, s{S_T0}, 4
    v_and_b32 v42, 15, v0
    v_add_u32 v42, s{S_T0}, v42
    v_mul_u32_u24 v42, 1280, v42
    s_mul_i32 s{S_T0}, s{S_NB}, 320
    s_and_b32 s{S_T1}, s{S_J}, 1
    s_mul_i32 s{S_T1}, s{S_T1}, 160
    s_add_u32 s{S_T0}, s{S_T0}, s{S_T1}
    v_lshrrev_b32 v41, 4, v0
    v_lshlrev_b32 v41, 3, v41
    v_add_u32 v{V_BO}, s{S_T0}, v41
    v_add_u32 v{V_OO}, v42, v{V_BO}
    v_lshlrev_b32 v{V_PO}, 3, v0
    v_and_b32 v{V_FV}, {3*128}, v{V_L128}
    s_lshr_b32 s{S_T0}, s{S_MB}, 1
    s_lshl_b32 s{S_T0}, s{S_T0}, 12
    s_lshl_b32 s{S_T1}, s{S_J}, 10
    s_add_u32 s{S_T0}, s{S_T0}, s{S_T1}
    s_add_u32 s{S_M0}, s{S_T0}, {FL_F3}
    v_and_b32 v61, {7*128}, v{V_L128}
    s_mov_b32 s{S_HOOK}, 4
    s_mov_b32 s{S_R3}, 0
    s_mov_b32 s{S_CNT}, 6
    s_waitcnt vmcnt(24) lgkmcnt(0)
    s_barrier
    ds_read_b32 v41, v40
    """)
    for ks, n in RD3[:14]:
        a(rd3(0, ks, n))
    a(f"""
    s_waitcnt lgkmcnt(14)
    v_readfirstlane_b32 s{S_T0}, v41
    """)
    for ks, n in RD3[14:]:
        a(rd3(0, ks, n))
    if not (X_RINGV or X_QV or os.environ.get('NOFB')):
        a(f"s_cmp_gt_u32 s{S_T0}, s{S_PASS}\ns_cbranch_scc1 L_fallback")
    for zi in range(5):
        a(f"v_mfma_f32_32x32x16_bf16 {vr(ACC_S+16*zi,16)}, v[48:51], v[48:51], 0")
    for pre, ld, post in gops[18:]:
        for x in pre:
            a(x)
        if pre:
            a("s_nop 0")
        a(ld)
        for x in post:
            a(x)
    for j in range(5):
        a(f"buffer_load_dwordx2 {vr(V_X+2*j,2)}, v{V_OO}, {sq(S_X)}, 0 offen offset:{32*j}")
        a(f"buffer_load_dwordx2 {vr(V_B2+2*j,2)}, v{V_BO}, {sq(S_B2)}, 0 offen offset:{32*j}")
    a("s_waitcnt lgkmcnt(0)")
    stamp(a, 9)
    a(".p2align 6\nL_g_loop:")
    stage3(a, 0, ACC_G, S_H, V_DH, f"s_cmp_eq_u32 s{S_CNT}, 6\ns_cbranch_scc1 L_g_nw\ns_waitcnt vmcnt(18)\nL_g_nw:",
           f"s_cmp_eq_u32 s{S_CNT}, s{S_HOOK}\ns_cbranch_scc1 L_g_h0\nL_g_r0:", False)
    stage3(a, 1, ACC_G, S_H, V_DH, "s_waitcnt vmcnt(18)",
           f"s_cmp_eq_u32 s{S_CNT}, 5\ns_cbranch_scc1 L_g_h1\nL_g_r1:", True)
    a(f"""
    s_cbranch_scc1 L_g_loop
    s_branch L_g_done
    L_g_h0:
    s_mov_b32 s{S_H+2}, 0
    s_mov_b32 s{S_WO}, s{S_WS0}
    s_add_u32 s{S_WO4}, s{S_WS0}, 4096
    s_mov_b32 s{S_HOOK}, 2
    s_cmp_eq_u32 s{S_CNT}, 4
    s_cbranch_scc1 L_g_r0
    s_add_u32 s{S_WO}, s{S_WO}, {4*40960}
    s_add_u32 s{S_WO4}, s{S_WO4}, {4*40960}
    buffer_load_dword v60, v61, {sq(S_FL)}, s{S_M0} offen sc1
    s_branch L_g_r0
    L_g_h1:
    s_cmp_lg_u32 s{S_WAVE}, 0
    s_cbranch_scc1 L_g_r1
    s_lshl_b32 s{S_T0}, s{S_QB}, 12
    s_lshl_b32 s{S_T1}, s{S_HEAD}, 7
    s_add_u32 s{S_T0}, s{S_T0}, s{S_T1}
    s_add_u32 s{S_T0}, s{S_T0}, {FL_F3}
    """)
    signal(a)
    a("s_branch L_g_r1\nL_g_done:\ns_waitcnt vmcnt(18) lgkmcnt(0)")
    stamp(a, 10)
    def o_dmas():
        a(f"s_mul_i32 s{S_OO}, s{S_J}, {48*1024}")
        for st in range(4):
            a(f"s_add_u32 s{S_DO}, s{S_LO}, {((st+2)%4)*STG}")
            for k in range(4):
                pre, ld = dma3(k, S_O, V_DO)
                for x in pre:
                    a(x + "\ns_nop 0")
                a(ld)
            a(ADV3[0])
    a(f"""
    s_barrier
    v_cmp_ne_u32 vcc, v{V_ONE}, v60
    s_mov_b32 s{S_KC}, 0
    s_cbranch_vccnz L_late
    s_mov_b32 s{S_KC}, 1
    """)
    o_dmas()
    a("L_late:")
    pack_store(a, ACC_G, PART_BYTES)
    stamp(a, 11)
    a(f"""
    s_cmp_eq_u32 s{S_KC}, 1
    s_cbranch_scc1 L_p3go
    L_poll3:
    buffer_load_dword v60, v61, {sq(S_FL)}, s{S_M0} offen sc1
    s_waitcnt vmcnt(0)
    v_cmp_ne_u32 vcc, v{V_ONE}, v60
    s_cbranch_vccnz L_poll3
    """)
    o_dmas()
    for k in range(12):
        a(f"buffer_load_dword v60, v61, {sq(S_H)}, 0 offen")
    a("L_p3go:")
    a(f"s_mov_b32 s{S_HOOK}, 20\ns_mov_b32 s{S_CNT}, 24\ns_waitcnt vmcnt(20)\ns_barrier")
    for ks, n in RD3:
        a(rd3(0, ks, n))
    a("s_waitcnt lgkmcnt(0)")
    stamp(a, 12)
    a(".p2align 6\nL_s_loop:")
    stage3(a, 0, ACC_S, S_O, V_DO, f"s_waitcnt vmcnt(30)\ns_cmp_gt_u32 s{S_CNT}, 21\ns_cbranch_scc1 L_s_n0\ns_waitcnt vmcnt(18)\nL_s_n0:",
           f"s_cmp_eq_u32 s{S_CNT}, s{S_HOOK}\ns_cbranch_scc1 L_s_h\nL_s_r:", False)
    stage3(a, 1, ACC_S, S_O, V_DO, f"s_waitcnt vmcnt(25)\ns_cmp_gt_u32 s{S_CNT}, 21\ns_cbranch_scc1 L_s_n1\ns_waitcnt vmcnt(18)\nL_s_n1:",
           "", True)
    a(f"""
    s_cbranch_scc1 L_s_loop
    s_branch L_s_done
    L_s_h:
    s_lshl_b32 s{S_PO}, s{S_TILE}, 9
    s_add_u32 s{S_PO}, s{S_PO}, {FL_F5}
    s_cmp_eq_u32 s{S_CNT}, 4
    s_cbranch_scc1 L_s_h2
    s_mov_b32 s{S_HOOK}, 4
    s_cmp_lg_u32 s{S_WAVE}, 0
    s_cbranch_scc1 L_s_r
    s_lshl_b32 s{S_T1}, s{S_J}, 7
    s_add_u32 s{S_T0}, s{S_PO}, s{S_T1}
    """)
    signal(a)
    a(f"""
    s_branch L_s_r
    L_s_h2:
    s_mov_b32 s{S_O+2}, 0
    s_mov_b32 s{S_WF+2}, 0
    buffer_load_dword v60, v{V_FV}, {sq(S_FL)}, s{S_PO} offen sc1
    s_branch L_s_r
    L_repoll5:
    buffer_load_dword v60, v{V_FV}, {sq(S_FL)}, s{S_PO} offen sc1
    s_waitcnt vmcnt(0)
    L_s_done:
    v_cmp_ne_u32 vcc, v{V_ONE}, v60
    s_cbranch_vccnz L_repoll5
    s_waitcnt lgkmcnt(0)
    """)
    stamp(a, 13)
    GP, g, u, xx = 176, 224, 96, 116
    pack_store(a, ACC_S, 0)
    part_loads(a, PART_BYTES, GP)
    stamp(a, 14)
    a(f"""
    s_lshl_b32 s{S_PO}, s{S_TILE}, 11
    s_add_u32 s{S_PO}, s{S_PO}, {FL_F6}
    s_lshl_b32 s{S_T0}, s{S_WAVE}, 9
    s_lshl_b32 s{S_T1}, s{S_J}, 7
    s_add_u32 s{S_T0}, s{S_T0}, s{S_T1}
    s_add_u32 s{S_T0}, s{S_T0}, s{S_PO}
    s_lshl_b32 s{S_T1}, s{S_J}, 9
    s_add_u32 s{S_PO}, s{S_PO}, s{S_T1}
    s_waitcnt vmcnt(12)
    """)
    signal(a)
    stamp(a, 15)
    part_sum(a, GP, g, 1, 60)
    nl2e = -math.log2(math.e)
    for e in range(10):
        a(f"v_lshlrev_b32 v{u+2*e}, 16, v{V_B2+e}\nv_and_b32 v{u+1+2*e}, 0xffff0000, v{V_B2+e}")
    for tmpl in ("v_add_f32 v{g}, v{u}, v{g}", "v_mul_f32 v{u}, " + fh(nl2e) + ", v{g}", "v_exp_f32 v{u}, v{u}",
                 "v_add_f32 v{u}, 1.0, v{u}", "v_rcp_f32 v{u}, v{u}"):
        for e in range(20):
            a(tmpl.format(g=g + e, u=u + e))
    for e in range(10):
        a(f"v_lshlrev_b32 v{xx+2*e}, 16, v{V_X+e}\nv_and_b32 v{xx+1+2*e}, 0xffff0000, v{V_X+e}")
    for e in range(20):
        a(f"v_mul_f32 v{g+e}, v{g+e}, v{u+e}")
    a(f"""
    L_poll4:
    buffer_load_dword v60, v{V_FV}, {sq(S_FL)}, s{S_PO} offen sc1
    s_waitcnt vmcnt(0)
    v_cmp_ne_u32 vcc, v{V_ONE}, v60
    s_cbranch_vccnz L_poll4
    """)
    stamp(a, 16)
    part_loads(a, 0, GP)
    part_sum(a, GP, u, 0, 60)
    for e in range(20):
        a(f"v_fmac_f32 v{xx+e}, v{g+e}, v{u+e}")
    for j in range(5):
        a(f"v_cvt_pk_bf16_f32 v{140+2*j}, v{xx+4*j}, v{xx+1+4*j}\nv_cvt_pk_bf16_f32 v{141+2*j}, v{xx+2+4*j}, v{xx+3+4*j}")
        a(f"buffer_store_dwordx2 {vr(140+2*j,2)}, v{V_OO}, {sq(S_OUT)}, 0 offen offset:{32*j}{os.environ.get('OUTSC','')}")
    stamp(a, 17)
    if STAMP:
        a("s_waitcnt vmcnt(0)")
        stamp(a, 18)
        srd(a, 4, P_WS, 1 << 20, WS_DBG)
        a(f"s_lshl_b32 s3, s2, 2\ns_add_u32 s3, s3, s{S_WAVE}\ns_lshl_b32 s3, s3, 9\nv_lshlrev_b32 v2, 3, v0\nv_add_u32 v2, s3, v2")
        a("buffer_store_dwordx2 v[38:39], v2, s[4:7], 0 offen\ns_waitcnt vmcnt(0)")
    a("L_end:\ns_endpgm")


def build():
    a = Asm()
    a.l.append("; @launch grid=(256,1,1) block=(256,1,1) lds=163840")
    a('.amdgcn_target "amdgcn-amd-amdhsa--gfx950"\n.text')
    a(f".globl {KNAME}")
    gen_kernel(a)
    a('.section .rodata,"a"\n.p2align 6')
    a.l.append(f""".amdhsa_kernel {KNAME}
  .amdhsa_next_free_vgpr 512
  .amdhsa_next_free_sgpr 102
  .amdhsa_accum_offset 256
  .amdhsa_group_segment_fixed_size 0
  .amdhsa_kernarg_size 104
  .amdhsa_user_sgpr_count 2
  .amdhsa_user_sgpr_kernarg_segment_ptr 1
  .amdhsa_system_sgpr_workgroup_id_x 1
.end_amdhsa_kernel""")
    return a.text()


if __name__ == "__main__":
    STAMP = "stamp" in sys.argv
    open(sys.argv[1], "w").write(build())
```

```python
import sys, math, os, struct

NAME = "recurrent_scan__gqa_block_cached__dense_activation_gelu__prompt"
KNAME = NAME + "_kernel"
WS_XN, WS_H, WS_O, WS_WF, WS_PART, WS_FLAG, WS_DBG = 0, 4 << 20, 16 << 20, 48 << 20, 80 << 20, 112 << 20, 128 << 20
XN_BYTES = 2048 * 640 * 2
H_BYTES = 2048 * 1536 * 2
O_BYTES = 2048 * 6144 * 2
WF_BYTES = 240 * 40960
PART_BYTES = 64 * 64 * 2560
FL_F1, FL_F3, FL_F2, FL_F4, FL_F5, FL_NONCE = 0, 32768, 65536, 98304, 131072, 163840
FL_F6 = 163968
FLAG_BYTES = FL_F6 + 1024 * 128
STAMP = False
OFF = float(os.environ.get("OFF", 102.0))
GUARD_LO = 2.0 ** -110


def fh(x):
    return "0x%08x" % struct.unpack("<I", struct.pack("<f", x))[0]


class Asm:
    def __init__(self):
        self.l = []

    def __call__(self, s):
        for line in s.strip("\n").split("\n"):
            line = line.strip()
            if line:
                self.l.append(line if line.endswith(":") or line.startswith(".") else "    " + line)

    def text(self):
        return "\n".join(self.l) + "\n"


def vr(b, n=4, p="v"):
    return f"{p}[{b}:{b+n-1}]"


def ar(b, n=4):
    return vr(b, n, "a")


def srd(a, d, lo, nbytes, add=None):
    if add is None:
        a(f"s_mov_b32 s{d}, s{lo}\ns_mov_b32 s{d+1}, s{lo+1}")
    else:
        a(f"s_add_u32 s{d}, s{lo}, {add}\ns_addc_u32 s{d+1}, s{lo+1}, 0")
    a(f"s_mov_b32 s{d+2}, {nbytes}\ns_mov_b32 s{d+3}, 0x00020000")


def sq(d):
    return f"s[{d}:{d+3}]"


def mfma(d, a_, b, c):
    return f"v_mfma_f32_16x16x32_bf16 {d}, {a_}, {b}, {c}"


def stamp(a, i):
    if STAMP:
        a(f"""s_memtime s[98:99]
        s_waitcnt lgkmcnt(0)
        v_writelane_b32 v38, s98, {i}
        s_memrealtime s[98:99]
        s_waitcnt lgkmcnt(0)
        v_writelane_b32 v39, s98, {i}""")


SLOT = 24576
LDS_K, LDS_V, LDS_X = 0, 3 * SLOT, 6 * SLOT
LDS_W1 = 2 * SLOT
LDS_FLAG = LDS_X + 12288
STG = 36864
LDS_WOFF = 16384

S_XN, S_WQ, S_W1, S_K, S_V, S_H, S_O, S_MISC = 4, 8, 12, 16, 20, 24, 28, 32
S_HEAD, S_QB, S_WAVE, S_HOOK = 36, 37, 38, 39
S_RD, S_DMA, S_SO0, S_SO1, S_CNT, S_T0, S_T1, S_BOFF = 40, 41, 42, 43, 44, 45, 46, 47
S_W3072, S_SV0, S_SV1, S_PASS, S_RD1, S_DMA1, S_SW0, S_SW1 = 48, 49, 50, 51, 52, 53, 54, 55
S_C0, S_C1, S_M0, S_KC = 56, 57, 58, 59
P_K, P_V, P_WQ, P_WO, P_W1, P_B1, P_W2, P_B2, P_OUT, P_DBG, P_WS, P_X = 60, 62, 64, 66, 68, 70, 72, 74, 76, 78, 80, 82
S_X, S_WF, S_FL = 84, 88, 92
S_RS, S_RO = 96, 97
S_NONCE, S_HS = 100, 101
S_RK, S_DV, S_DKM, S_DVM = S_RD1, S_DMA1, S_DMA, S_BOFF
S_PT, S_OUT, S_B2 = 4, 8, 12
S_J, S_MB, S_NB, S_OO, S_WO, S_WO4, S_R3, S_DO, S_DW, S_LO, S_LW, S_TILE, S_WS0, S_PO = 40, 41, 42, 43, 47, 48, 49, 50, 52, 53, 54, 55, 56, 57

V_L, V_KA, V_VA, V_KB, V_VB, V_DK, V_DV = 2, 6, 8, 12, 14, 18, 19
V_F2 = 20
V_RD, V_RR = 32, 33
V_ZERO, V_ONE = 36, 37
V_NM = 40
V_L4, V_L128 = 62, 63
V_Q, V_S, V_P = 64, 128, 192
A_RING, A_Q = 192, 224
P1_ACC, P1_H, P1_RING, P1_B = 64, 0, 48, 88
V1_WA, V1_FA, V1_WB, V1_FB, V1_DW, V1_DF, V1_X = 6, 8, 12, 14, 20, 21, 22
V_RB, V_RA, V_DH, V_DO, V_RB0, V_RA0, V_OO, V_BO, V_PO, V_FV = 6, 7, 12, 14, 16, 17, 18, 19, 32, 33
V_X, V_B2, FR = 64, 74, 0
ACC_S, ACC_G = 96, 176


X_RINGV = os.environ.get("RINGV")
X_QV = os.environ.get("QV")
X_NOCHAIN = os.environ.get("NOCHAIN")


def q_reg(s, t):
    i = 4 * s + t
    if X_QV:
        return vr(V_Q + 4 * (i % 16))
    return vr(V_Q + 4 * i) if i < 16 else ar(A_Q + 4 * (i - 16))


def s_reg(u, t):
    return V_S + 4 * (4 * u + t)


def p_reg(par, ch, t):
    return V_P + 32 * par + 16 * ch + 4 * t


def code_prefetch(a, tag, first, last, sreg, vdst, one=False):
    a(f"""
    s_getpc_b64 s[{sreg}:{sreg+1}]
    L_pc{tag}:
    s_add_u32 s{sreg}, s{sreg}, {first}-L_pc{tag}
    s_addc_u32 s{sreg+1}, s{sreg+1}, 0
    s_mov_b32 s{sreg+2}, {last}-{first}
    s_mov_b32 s{sreg+3}, 0x00020000
    """)
    if one:
        a(f"""s_bfe_u32 s{S_T0}, s2, 0x30003
        s_lshl_b32 s{S_T0}, s{S_T0}, 2
        s_add_u32 s{S_T0}, s{S_T0}, s{S_WAVE}
        s_mul_i32 s{S_T0}, s{S_T0}, 640
        v_min_u32 v{vdst+1}, 512, v{V_L128}
        buffer_load_dword v{vdst}, v{vdst+1}, {sq(sreg)}, s{S_T0} offen""")
        return
    a(f"""
    s_mov_b32 s{S_T0}, 8192
    s_mov_b32 s{S_T1}, 16384
    buffer_load_dword v{vdst}, v{V_L128}, {sq(sreg)}, 0 offen
    buffer_load_dword v{vdst+1}, v{V_L128}, {sq(sreg)}, s{S_T0} offen
    buffer_load_dword v{vdst+2}, v{V_L128}, {sq(sreg)}, s{S_T1} offen
    """)


def half_lanes(a, ins):
    a("s_mov_b32 exec_hi, 0")
    a(ins)
    a("s_mov_b32 exec_hi, -1")


def wait_counts(seq2, period, waits):
    cnt = {}
    for k, wt in waits.items():
        last = max(tm for tm, kk in seq2 if kk == k and tm < wt)
        cnt[k] = (sum(1 for tm, kk in seq2 if last < tm < wt), wt - last)
    return cnt


DMA_GAP = eval(os.environ.get('DG', '[3, 19, 35, 51, 59, 67, 93, 109, 125, 141, 149, 157]'))


AUX_RD, AUX_ST, AUX_DMA = (26, 27), 53, 11


def build_schedule():
    N = 192
    G = [dict(lds=None, exp=None, valu=[], dma=None, wait=None) for _ in range(N)]
    for g in range(24):
        pos = 0
        fk = (g + 2) % 24
        if fk < 12:
            for k in range(2):
                G[8 * g + pos]["lds"] = (fk, k)
                pos += 1
        fv = g + 3
        if 12 <= fv < 24:
            for k in range(4):
                G[8 * g + pos]["lds"] = (fv, k)
                pos += 1
    for i in range(12):
        G[DMA_GAP[i]]["dma"] = i
    for f in range(24):
        G[(8 * f - 1) % N]["wait"] = f
    for k in range(2):
        G[AUX_RD[k]]["lds"] = (24, k)
    G[AUX_ST]["dma"] = 12
    G[AUX_DMA]["dma"] = 13
    free = [i for i in range(N) if G[i]["lds"] is None and G[i]["dma"] is None]
    free2 = free + [N + x for x in free]
    seq = [(u, t, r) for u in range(4) for t in range(4) for r in range(4)]
    start = [k for k, x in enumerate(free2) if x >= 24][0]
    etime = {}
    k = float(start)
    step = len(free) / 64.0
    for e, (u, t, r) in enumerate(seq):
        kk = int(start + e * step)
        ready = 24 * u + 16 + 2 * t + 1 + 4
        while free2[kk] < ready or G[free2[kk] % N]["exp"] is not None:
            kk += 1
        tm = free2[kk]
        G[tm % N]["exp"] = ("prev" if tm >= N else "cur", u, t, r)
        etime[(u, t, r)] = tm
    cap = [0 if (G[i]["dma"] is not None or G[i]["exp"] is not None) else (1 if G[i]["lds"] is not None else 2) for i in range(N)]
    if os.environ.get("CAP1"):
        for i in range(N):
            if G[i]["lds"] is not None and G[(i + 1) % N]["lds"] is not None:
                cap[i] = 0
    if os.environ.get("CAP2"):
        for i in range(N):
            if G[i]["lds"] is not None and G[i - 1]["lds"] is not None:
                cap[i] = 0
    ops = []
    for (u, t, r) in seq:
        ops.append((etime[(u, t, r)] + 1, "add", u, t, r))
        if r & 1:
            ops.append((etime[(u, t, r)] + 1, "cvt", u, t, r >> 1))
    ops.sort(key=lambda o: (o[0], o[1] == "add"))
    used = [0] * N
    for o in ops:
        tm = o[0]
        while used[tm % N] >= cap[tm % N]:
            tm += 1
        assert tm < N + 24 * o[2] + 2 * o[3], (o, tm)
        assert tm < N + 92
        used[tm % N] += 1
        G[tm % N]["valu"].append(("prev" if tm >= N else "cur",) + o[1:])
    return G, [cap[i] - used[i] for i in range(N)]


def att_counts(G, nok=False, aux=False):
    seq = [(rep * 192 + i, G[i]["lds"][0]) for rep in range(2) for i in range(192)
           if G[i]["lds"] is not None and not (nok and rep == 1 and G[i]["lds"][0] < 12) and (aux or G[i]["lds"][0] != 24)]
    ks = range(12, 24) if nok else range(24)
    c = wait_counts(seq, 192, {f: 192 + 8 * f - 1 for f in ks})
    assert all(v[0] <= 15 for v in c.values()), c
    return {k: v[0] for k, v in c.items()}


def soft(kind, which, u, t, x, par_cur):
    par = par_cur if which == "cur" else 1 - par_cur
    s = s_reg(u, t)
    if kind == "exp":
        return f"v_exp_f32 v{s+x}, v{s+x}"
    if kind == "add":
        return f"v_add_f32 v{V_L+t}, v{s+x}, v{V_L+t}"
    return f"v_cvt_pk_bf16_f32 v{p_reg(par, u >> 1, t) + 2*(u&1) + x}, v{s+2*x}, v{s+2*x+1}"


def ring(grp, k):
    return A_RING + 8 * (grp % 4) + 4 * k


def rr(b, n=4):
    return vr(b, n) if X_RINGV else ar(b, n)


def k_read(grp, k):
    u, s = grp // 3, 2 * (grp % 3) + k
    return f"ds_read_b128 {rr(ring(grp, k))}, v{V_KA+k} offset:{2*u*3072 + (s>>1)*1024}"


def v_read(grp, k):
    dt, ch, part = grp - 12, k >> 1, k & 1
    return f"ds_read_b64_tr_b16 {rr(ring(grp, ch) + 2*part, 2)}, v{V_VA+(dt&3)} offset:{(4*ch+2*part)*3072 + (dt>>2)*1024}"


def qk_mfma(grp, p, first_c):
    if X_NOCHAIN:
        p = 2 * (p & 3) + (p >> 2)
    u, s, t = grp // 3, 2 * (grp % 3) + (p & 1), p >> 1
    c = first_c(t) if s == 0 else vr(s_reg(u, t))
    return mfma(vr(s_reg(u, t)), rr(ring(grp, p & 1)), q_reg(s, t), c)


def gen_body(a, G, spare, par, tail=False, tailq=None, lab=""):
    cnt = att_counts(G, nok=tail, aux=(lab == "a"))
    ev, es, sp = {}, {}, list(spare)

    def put_v(lo, hi, ins):
        for i in range(lo, hi):
            if sp[i] > 0:
                sp[i] -= 1
                ev.setdefault(i, []).append(ins)
                return
        raise AssertionError(ins)

    def put_s(lo, hi, ins):
        need = ins.count("\ns_")
        for i in range(lo, hi):
            if G[i]["lds"] is None and G[i]["dma"] is None and G[i]["wait"] is None and i not in es and sp[i] >= need:
                es[i] = ins
                sp[i] -= need
                return i
        raise AssertionError(ins)
    if not tail:
        for i in range(12):
            base = S_DKM if i < 6 else S_DVM
            d = i % 6
            assert G[DMA_GAP[i] - 1]["lds"] is None and G[DMA_GAP[i] - 1]["wait"] is None
            es[DMA_GAP[i] - 1] = f"s_add_u32 m0, s{base}, {(d//3)*12288 + (d%3)*896}"
        if lab == "b":
            es[AUX_DMA - 1] = f"s_add_u32 m0, s{S_W3072}, {LDS_X}"
            put_s(12, 30, f"s_add_u32 s{S_RS}, s{S_RS}, 128")
            put_s(12, 66, f"s_cmp_le_u32 s{S_CNT}, 12\ns_cselect_b32 s{S_MISC+2}, 0, s{S_MISC+2}")
        else:
            put_s(54, 66, f"s_add_u32 s{S_RO}, s{S_RO}, 4096")
            put_s(54, 70, f"s_cmp_gt_u32 s{S_CNT}, 11\ns_cselect_b32 s{S_WF+2}, {WF_BYTES}, 0")
        put_s(28, 66, f"s_cmp_eq_u32 s{S_CNT}, s{S_HOOK}\ns_cbranch_scc1 L_hook{lab}\nL_hret{lab}:")
        i = 71
        for x in (f"s_add_u32 s{S_SO0}, s{S_SO0}, {SLOT}", f"s_add_u32 s{S_SO1}, s{S_SO1}, {SLOT}",
                  f"s_sub_u32 s{S_CNT}, s{S_CNT}, 1",
                  f"s_mov_b32 s{S_T1}, s{S_RD}", f"s_mov_b32 s{S_RD}, s{S_RK}", f"s_mov_b32 s{S_RK}, s{S_DV}", f"s_mov_b32 s{S_DV}, s{S_T1}",
                  f"s_add_u32 s{S_DKM}, s{S_RD}, s{S_W3072}"):
            i = put_s(i, 150, x) + 1
        for j in range(2):
            put_v(max(i, 80), 172, f"v_add_u32 v{V_KA+j}, s{S_RK}, v{V_KB+j}")
        for j in range(4):
            put_v(0, 66, f"v_add_u32 v{V_VA+j}, s{S_RD}, v{V_VB+j}")
        i = 158
        for x in (f"s_add_u32 s{S_SV0}, s{S_SV0}, {SLOT}", f"s_add_u32 s{S_SV1}, s{S_SV1}, {SLOT}", f"s_add_u32 s{S_DVM}, s{S_DV}, s{S_M0}"):
            es.setdefault(169, "")
            es.setdefault(170, "")
            i = put_s(i, 184, x) + 1
        es[169] = f"s_waitcnt vmcnt({11 if lab == 'b' else 12}) lgkmcnt(0)"
        es[170] = "s_barrier"
        put_s(186, 191, f"s_cmp_lg_u32 s{S_CNT}, 0")
    for i in range(192):
        g = G[i]
        grp, p = i // 8, i % 8
        if grp < 12:
            if not tail:
                a(qk_mfma(grp, p, lambda t: vr(V_NM + 4 * t)))
        else:
            pp = 2 * (p & 3) + (p >> 2) if X_NOCHAIN else p
            o = ar(4 * (4 * (grp - 12) + (pp >> 1)))
            a(mfma(o, rr(ring(grp, pp & 1)), vr(p_reg(1 - par, pp & 1, pp >> 1)), o))
        if g["wait"] is not None:
            f = g["wait"]
            if (tail and 12 <= f < 24) or (not tail and f not in (22, 23)):
                a("s_waitcnt lgkmcnt(%d)" % cnt[f])
        elif i in es:
            a(es[i])
        if g["lds"] is not None and not os.environ.get("NOLDS"):
            f, k = g["lds"]
            if f == 24:
                if lab == "a":
                    a(f"ds_read_b64_tr_b16 {vr(28+2*k,2)}, v{V_RR} offset:{k*6144}")
            elif f >= 12:
                if not (tail and f < 15):
                    a(v_read(f, k))
            elif not tail:
                a(k_read(f, k))
        if g["dma"] is not None and not tail and not os.environ.get("NODMA"):
            d = g["dma"]
            if d == 12:
                if lab == "a":
                    a(f"buffer_store_dwordx4 v[28:31], v1, {sq(S_WF)}, s{S_RO} offen sc1")
            elif d == 13:
                if lab == "b":
                    a(f"buffer_load_dwordx4 v{V_RD}, {sq(S_MISC)}, s{S_RS} offen lds")
            elif d < 6:
                a(f"buffer_load_dwordx4 v{V_DK}, {sq(S_K)}, s{S_SO0 + d//3} offen offset:{(d%3)*128} lds")
            else:
                d -= 6
                a(f"buffer_load_dwordx4 v{V_DV}, {sq(S_V)}, s{S_SV0 + d//3} offen offset:{(d%3)*128} lds")
        if g["exp"] is not None and not (tail and g["exp"][0] == "cur"):
            w, u, t, r = g["exp"]
            a(soft("exp", w, u, t, r, par))
            if tail and grp < 12:
                a("s_nop 0")
        for (w, kind, u, t, x) in g["valu"]:
            if not (tail and w == "cur") and not os.environ.get("NOVALU"):
                a(soft(kind, w, u, t, x, par))
        for ins in ev.get(i, []):
            a(ins)
        if tail and i == 95:
            a("s_nop 1")
        if tail and i >= 96:
            qd, qv = tailq
            if g["lds"] is not None and g["lds"][0] >= 12:
                if qv:
                    a(qv.pop(0))
            elif qd:
                a(qd.pop(0))
    if tail:
        assert not tailq[0] and not tailq[1], tailq


def p1_acc(f, t):
    if f < 12:
        return vr(P1_ACC + 8 * (4 * (f >> 1) + t) + 4 * (f & 1))
    return ar(P1_H + 4 * (4 * (f - 12) + t))


def p1_read(f, k):
    ks, part = k >> 1, k & 1
    dst = ar(P1_RING + 8 * (f % 5) + 4 * ks + 2 * part, 2)
    if f < 12:
        s, half = f >> 1, f & 1
        return f"ds_read_b64_tr_b16 {dst}, v{V1_WA+(s&1)} offset:{ks*4*3072 + (s>>1)*1024 + part*512 + half*8}"
    return f"ds_read_b64_tr_b16 {dst}, v{V1_FA+f-12} offset:{ks*4096 + part*512}"


def gen_p1_stage(a, sp):
    slots = {g: [] for g in range(15)}
    pend = [(f, k) for f in range(2, 15) for k in range(4)]
    g = 0
    while pend:
        while pend and len(slots[g]) < 6 and g >= pend[0][0] - 4:
            slots[g].append(pend.pop(0))
        g += 1
    assert g <= 11, g
    slots[13] = [(0, k) for k in range(4)]
    slots[14] = [(1, k) for k in range(4)]
    seq = [(rep * 120 + 8 * gg + p, f) for rep in range(2) for gg in range(15) for p, (f, k) in enumerate(slots[gg])]
    cnt = wait_counts(seq, 120, {f: 120 + 8 * f - 1 for f in range(15)})
    assert all(c <= 15 and d >= 8 for c, d in cnt.values()), cnt
    ex = {}

    def put(grp, p, ins):
        assert p >= len(slots[grp]), (grp, p)
        ex.setdefault((grp, p), []).append(ins)
    for j in range(8):
        ks, t = j >> 2, j & 3
        put(j, 6, f"buffer_load_dwordx4 {ar(P1_B + 32*(1-sp) + 16*ks + 4*t)}, v{V1_X+t}, {sq(S_XN)}, s{S_BOFF} offen offset:{ks*1024} sc1")
    for d in range(8):
        grp, p = (4 + d, 4) if d < 7 else (11, 0)
        if d < 6:
            put(grp, p, f"s_add_u32 m0, s{S_DMA}, {LDS_V + (d//3)*12288 + (d%3)*896}")
            put(grp, p + 1, f"buffer_load_dwordx4 v{V1_DW}, {sq(S_WQ)}, s{S_SO0 + d//3} offen offset:{(d%3)*128} lds")
        else:
            put(grp, p, f"s_add_u32 m0, s{S_DMA1}, {LDS_W1 + (d-6)*4096}")
            put(grp, p + 1, f"buffer_load_dwordx4 v{V1_DF}, {sq(S_W1)}, s{S_SW0 + d-6} offen lds")
    put(12, 6, f"buffer_load_dword v47, v46, {sq(S_O)}, s{S_M0} offen")
    put(13, 7, f"s_add_u32 s{S_M0}, s{S_M0}, s{S_HS}")
    nv = 5
    if sp == 0:
        for d, (grp, p) in enumerate(((11, 2), (11, 4), (12, 0))):
            put(grp, p, f"s_add_u32 m0, s{S_C0}, {d*896}")
            put(grp, p + 1, f"buffer_load_dwordx4 v{V_DK}, {sq(S_K)}, s{S_SV0} offen offset:{d*128} lds")
        put(13, 4, f"s_mov_b32 s{S_SV0}, s{S_SV1}\ns_add_u32 s{S_SV1}, s{S_SV1}, 12288")
        put(13, 5, f"s_mov_b32 s{S_C0}, s{S_C1}\ns_add_u32 s{S_C1}, s{S_C1}, 12288\ns_mov_b32 s{S_K+2}, 786432")
        put(13, 6, f"s_cmp_eq_u32 s{S_CNT}, 1\ns_cselect_b32 s{S_XN+2}, 0, s{S_XN+2}")
        nv = 8
    else:
        put(13, 4, f"s_sub_u32 s{S_CNT}, s{S_CNT}, 1")
        put(13, 5, f"s_cmp_eq_u32 s{S_CNT}, 2\ns_cselect_b32 s{S_O}, s{S_HOOK}, s{S_O}\ns_cselect_b32 s{S_O+1}, s{S_KC}, s{S_O+1}")
        put(13, 6, f"s_cselect_b32 s{S_O+2}, s{S_V+2}, s{S_O+2}\ns_cselect_b32 s{S_HS}, s3, s{S_HS}\ns_cselect_b64 vcc, -1, 0")
        put(14, 5, f"s_cmp_eq_u32 s{S_CNT}, 2\ns_cselect_b32 s{S_M0}, 0, s{S_M0}\nv_cndmask_b32 v46, v46, v60, vcc")
    put(9, 6, f"s_mov_b32 s{S_T1}, s{S_RD}\ns_add_u32 s{S_RD}, s{S_RD}, {SLOT}\ns_add_u32 s{S_BOFF}, s{S_BOFF}, 2048")
    put(10, 6, f"s_cmp_eq_u32 s{S_RD}, {3*SLOT}\ns_cselect_b32 s{S_RD}, 0, s{S_RD}\ns_add_u32 s{S_DMA}, s{S_T1}, s{S_W3072}")
    put(11, 6, f"s_lshl_b32 s{S_T0}, s{S_WAVE}, 10\ns_add_u32 s{S_DMA1}, s{S_RD1}, s{S_T0}\ns_add_u32 s{S_RD1}, s{S_RD1}, 8192")
    put(12, 2, f"s_cmp_eq_u32 s{S_RD1}, {3*8192}\ns_cselect_b32 s{S_RD1}, 0, s{S_RD1}")
    put(12, 3, f"v_add_u32 v{V1_WA}, s{S_RD}, v{V1_WB}\nv_add_u32 v{V1_WA+1}, s{S_RD}, v{V1_WB+1}")
    put(8, 6, f"s_add_u32 s{S_SO0}, s{S_SO0}, {64*12288}")
    put(12, 7, f"s_add_u32 s{S_SO1}, s{S_SO1}, {64*12288}\nv_add_u32 v{V1_FA}, s{S_RD1}, v{V1_FB}\nv_add_u32 v{V1_FA+1}, s{S_RD1}, v{V1_FB+1}")
    put(12, 4, f"v_add_u32 v{V1_FA+2}, s{S_RD1}, v{V1_FB+2}")
    put(14, 4, f"s_add_u32 s{S_SW0}, s{S_SW0}, {64*3072}\ns_add_u32 s{S_SW1}, s{S_SW1}, {64*3072}")
    ex[(12, 4)].insert(0, "s_waitcnt vmcnt(16) lgkmcnt(0)")
    put(12, 5, "s_barrier")
    if sp == 1:
        put(14, 6, f"s_cmp_lg_u32 s{S_CNT}, 0")
    for i in range(120):
        grp, p = i // 8, i % 8
        t, ks = p >> 1, p & 1
        acc = p1_acc(grp, t)
        a(mfma(acc, ar(P1_RING + 8 * (grp % 5) + 4 * ks), ar(P1_B + 32 * sp + 16 * ks + 4 * t), acc))
        if p < len(slots[grp]):
            a(p1_read(*slots[grp][p]))
        if p == 7:
            f = (grp + 1) % 15
            w = [f"vmcnt({nv})"] if f == 0 else []
            if f not in (13, 14):
                w.append(f"lgkmcnt({cnt[f][0]})")
            if w:
                a("s_waitcnt " + " ".join(w))
        for x in ex.get((grp, p), []):
            a(x)


def dma_tile(a, voff, srdreg, so0, so1, sbase, lds_const, n=6):
    for d in range(n):
        a(f"s_add_u32 m0, s{sbase}, {lds_const + (d//3)*12288 + (d%3)*896}\ns_nop 0")
        a(f"buffer_load_dwordx4 v{voff}, {sq(srdreg)}, s{so0 if d < 3 else so1} offen offset:{(d%3)*128} lds")


def gen_ln_body(a):
    R, U, T, Q, RO = 64, 96, 86, 136, 144
    for i in range(5):
        a(f"s_waitcnt vmcnt({3 + 4 - i + (2 if os.environ.get('TOUCH') else 0)})")
        for j in range(4):
            r, d = R + 4 * i + j, U + 8 * i + 2 * j
            a(f"v_lshlrev_b32 v{d}, 16, v{r}\nv_and_b32 v{d+1}, 0xffff0000, v{r}")
    stamp(a, 19)
    for k in range(4):
        a(f"v_add_f32 v{T+k}, v{U+k}, v{U+4+k}")
    for e in range(8, 40):
        a(f"v_add_f32 v{T+e%4}, v{U+e}, v{T+e%4}")
    a(f"v_add_f32 v{T}, v{T}, v{T+1}\nv_add_f32 v{T+2}, v{T+2}, v{T+3}\nv_add_f32 v{T}, v{T}, v{T+2}")
    for sh in (8, 4, 2, 1):
        a(f"s_nop 1\nv_add_f32 v{T}, v{T}, v{T} row_ror:{sh}")
    a(f"v_mul_f32 v{T}, {fh(1/640)}, v{T}")
    for e in range(40):
        t = 140 + e % 4
        a(f"v_sub_f32 v{t}, v{U+e}, v{T}")
        a(f"v_mul_f32 v{Q+e}, v{t}, v{t}" if e < 4 else f"v_fmac_f32 v{Q+e%4}, v{t}, v{t}")
    a(f"v_add_f32 v{Q}, v{Q}, v{Q+1}\nv_add_f32 v{Q+2}, v{Q+2}, v{Q+3}\nv_add_f32 v{Q}, v{Q}, v{Q+2}")
    for sh in (8, 4, 2, 1):
        a(f"s_nop 1\nv_add_f32 v{Q}, v{Q}, v{Q} row_ror:{sh}")
    a(f"""
    v_mul_f32 v{Q}, {fh(1/640)}, v{Q}
    v_cvt_pk_bf16_f32 v{T+1}, v{T}, v{Q}
    v_lshlrev_b32 v{T}, 16, v{T+1}
    v_and_b32 v{Q}, 0xffff0000, v{T+1}
    v_add_f32 v{Q}, {fh(1e-5)}, v{Q}
    v_cvt_pk_bf16_f32 v{Q}, v{Q}, v{Q}
    v_and_b32 v{Q}, 0xffff0000, v{Q}
    v_sqrt_f32 v{Q}, v{Q}
    s_nop 0
    v_cvt_pk_bf16_f32 v{Q}, v{Q}, v{Q}
    v_and_b32 v{Q}, 0xffff0000, v{Q}
    v_rcp_f32 v{Q}, v{Q}
    s_mov_b32 s{S_T0}, 0
    """)
    for i in range(5):
        for j in range(4):
            e = U + 8 * i + 2 * j
            a(f"""
            v_sub_f32 v{e}, v{e}, v{T}
            v_sub_f32 v{e+1}, v{e+1}, v{T}
            v_cvt_pk_bf16_f32 v{e}, v{e}, v{e+1}
            v_and_b32 v{e+1}, 0xffff0000, v{e}
            v_lshlrev_b32 v{e}, 16, v{e}
            v_mul_f32 v{e}, v{e}, v{Q}
            v_mul_f32 v{e+1}, v{e+1}, v{Q}
            v_cvt_pk_bf16_f32 v{RO+4*i+j}, v{e}, v{e+1}
            """)
        a(f"buffer_store_dwordx4 {vr(RO+4*i)}, v84, {sq(S_MISC)}, s{S_T0} offen sc1")
        a(f"s_add_u32 s{S_T0}, s{S_T0}, 4096")


def dma3(k, bsrd, bv):
    if k < 4:
        r, ks = k >> 1, k & 1
        pre = [f"s_add_u32 m0, s{S_DO}, {r*2048}"] if ks == 0 else []
        return pre, f"buffer_load_dwordx4 v{bv+r}, {sq(bsrd)}, s{S_OO} offen offset:{ks*1024} sc1 lds"
    i = k - 4
    if i < 4:
        pre = [f"s_mov_b32 m0, s{S_DW}"] if i == 0 else []
        return pre, f"buffer_load_dwordx4 v1, {sq(S_WF)}, s{S_WO} offen offset:{i*1024} sc1 lds"
    return [f"s_add_u32 m0, s{S_DW}, 4096"], f"buffer_load_dwordx4 v1, {sq(S_WF)}, s{S_WO4} offen sc1 lds"


def fr3(par, ks, n):
    return FR + 72 * par + 36 * ks + 4 * n


def rd3(par, ks, n):
    if n < 4:
        return f"ds_read_b128 {ar(fr3(par, ks, n))}, v{V_RB} offset:{(2*n+ks)*1024}"
    return f"ds_read_b128 {ar(fr3(par, ks, n))}, v{V_RA} offset:{(10*ks+n-4)*1024}"


RD3 = [(ks, n) for n in (0, 4, 1, 2, 3, 5, 6, 7, 8) for ks in range(2)]
ADV3 = [f"s_add_u32 s{S_OO}, s{S_OO}, 2048", f"s_add_u32 s{S_WO}, s{S_WO}, {2*40960}", f"s_add_u32 s{S_WO4}, s{S_WO4}, {2*40960}"]


def stage3(a, par, accb, bsrd, bv, wait, hook, last):
    ex = {3: f"s_add_u32 s{S_DO}, s{S_R3}, s{S_LO}\ns_add_u32 s{S_DW}, s{S_R3}, s{S_LW}\ns_add_u32 s{S_R3}, s{S_R3}, {STG}",
          4: f"s_cmp_eq_u32 s{S_R3}, {4*STG}\ns_cselect_b32 s{S_R3}, 0, s{S_R3}",
          5: f"v_add_u32 v{V_RB}, s{S_R3}, v{V_RB0}\nv_add_u32 v{V_RA}, s{S_R3}, v{V_RA0}",
          6: wait, 7: "s_waitcnt lgkmcnt(0)\ns_barrier", 8: hook}
    g = 9
    for k in range(9):
        pre, ld = dma3(k, bsrd, bv)
        ex[g] = rd3(1 - par, *RD3[2 * k])
        ex[g + 1] = rd3(1 - par, *RD3[2 * k + 1]) + "".join("\n" + x for x in pre)
        ex[g + 2] = ld
        g += 3
    ex[36] = "\n".join(ADV3)
    ex[37] = f"s_sub_u32 s{S_CNT}, s{S_CNT}, 1"
    ex[39] = "s_waitcnt lgkmcnt(6)" + (f"\ns_cmp_lg_u32 s{S_CNT}, 0" if last else "")
    for g in range(40):
        i, t, ks = g // 8, (g % 8) >> 1, g & 1
        acc = vr(accb + 4 * (4 * i + t))
        a(mfma(acc, ar(fr3(par, ks, 4 + i)), ar(fr3(par, ks, t)), acc))
        if ex.get(g, "").strip():
            a(ex[g])


def pack_store(a, accb, region):
    a(f"""
    s_lshl_b32 s{S_T0}, s{S_TILE}, 2
    s_add_u32 s{S_T0}, s{S_T0}, s{S_WAVE}
    s_lshl_b32 s{S_T0}, s{S_T0}, 2
    s_add_u32 s{S_T0}, s{S_T0}, s{S_J}
    s_mul_i32 s{S_T0}, s{S_T0}, 10240
    s_add_u32 s{S_T0}, s{S_T0}, {region}
    """)
    for t in range(4):
        o = (20, 40, 84, 40)[t] if t != 3 else 50
        o = (20, 40, 84, 50)[t]
        for e in range(10):
            r = accb + 4 * (4 * (e >> 1) + t) + 2 * (e & 1)
            a(f"v_cvt_pk_bf16_f32 v{o+e}, v{r}, v{r+1}")
        a(f"""
        buffer_store_dwordx4 {vr(o)}, v1, {sq(S_PT)}, s{S_T0} offen sc1
        buffer_store_dwordx4 {vr(o+4)}, v1, {sq(S_PT)}, s{S_T0} offen offset:1024 sc1
        buffer_store_dwordx2 {vr(o+8,2)}, v{V_PO}, {sq(S_PT)}, s{S_T0} offen offset:2048 sc1
        s_add_u32 s{S_T0}, s{S_T0}, 2560
        """)


def part_loads(a, region, base):
    a(f"""
    s_lshl_b32 s{S_T0}, s{S_TILE}, 2
    s_add_u32 s{S_T0}, s{S_T0}, s{S_J}
    s_mul_i32 s{S_T0}, s{S_T0}, 40960
    s_mul_i32 s{S_T1}, s{S_WAVE}, 2560
    s_add_u32 s{S_T0}, s{S_T0}, s{S_T1}
    s_add_u32 s{S_T0}, s{S_T0}, {region}
    """)
    for src in range(4):
        o = base + 12 * src
        a(f"""
        buffer_load_dwordx4 {vr(o)}, v1, {sq(S_PT)}, s{S_T0} offen sc1
        buffer_load_dwordx4 {vr(o+4)}, v1, {sq(S_PT)}, s{S_T0} offen offset:1024 sc1
        buffer_load_dwordx2 {vr(o+8,2)}, v{V_PO}, {sq(S_PT)}, s{S_T0} offen offset:2048 sc1
        s_add_u32 s{S_T0}, s{S_T0}, 10240
        """)


def part_sum(a, base, dst, younger, tmp):
    for src in range(4):
        o = base + 12 * src
        a(f"s_waitcnt vmcnt({3*(3-src)+younger})")
        for e in range(10):
            if src == 0:
                a(f"v_lshlrev_b32 v{dst+2*e}, 16, v{o+e}\nv_and_b32 v{dst+1+2*e}, 0xffff0000, v{o+e}")
            else:
                a(f"v_lshlrev_b32 v{tmp}, 16, v{o+e}\nv_and_b32 v{tmp+1}, 0xffff0000, v{o+e}")
                a(f"v_pk_add_f32 {vr(dst+2*e,2)}, {vr(dst+2*e,2)}, {vr(tmp,2)}")


def signal(a):
    half_lanes(a, f"buffer_store_dword v{V_ONE}, v{V_L4}, {sq(S_FL)}, s{S_T0} offen sc1")


def swaps(op, src, tmp):
    q = []
    for perm in ("v_permlane32_swap_b32", "v_permlane16_swap_b32"):
        for what in ("v_mov_b32 v{b}, v{l}", perm + " v{l}, v{b}", op + " v{l}, v{l}, v{b}"):
            for t in (0, 2):
                q.append("\n".join(what.format(l=src + tt, b=tmp + tt) for tt in (t, t + 1)))
    return q


def gen_kernel(a):
    G, spare = build_schedule()
    a(f".p2align 8\n.type {KNAME},@function\n{KNAME}:")
    a("s_cmp_ge_u32 s2, 256\ns_cbranch_scc1 L_end")
    stamp(a, 0)
    a(f"""
    s_load_dwordx2 s[{P_X}:{P_X+1}], s[0:1], 0
    s_load_dwordx2 s[{P_WS}:{P_WS+1}], s[0:1], 96
    s_load_dwordx4 s[{P_K}:{P_K+3}], s[0:1], 8
    s_load_dwordx4 s[{P_WQ}:{P_WQ+3}], s[0:1], 24
    s_load_dwordx4 s[{P_W1}:{P_W1+3}], s[0:1], 48
    s_load_dwordx4 s[{P_W2}:{P_W2+3}], s[0:1], 64
    s_load_dwordx4 s[{P_OUT}:{P_OUT+3}], s[0:1], 80
    v_and_b32 v{V_L128}, 63, v0
    v_lshlrev_b32 v{V_L128}, 7, v{V_L128}
    s_getpc_b64 s[{S_XN}:{S_XN+1}]
    L_pc2:
    s_mov_b32 s{S_XN+2}, L_p1_loop-L_pc2
    s_mov_b32 s{S_XN+3}, 0x00020000
    buffer_load_dword v61, v{V_L128}, {sq(S_XN)}, 0 offen
    s_and_b32 s{S_T0}, s2, 7
    s_lshl_b32 s{S_T0}, s{S_T0}, 2
    s_bfe_u32 s{S_T1}, s2, 0x20003
    s_add_u32 s{S_HEAD}, s{S_T0}, s{S_T1}
    s_lshr_b32 s{S_QB}, s2, 5
    s_mov_b32 s{S_PASS}, 0
    v_lshrrev_b32 v85, 4, v0
    v_lshrrev_b32 v1, 6, v0
    v_and_b32 v0, 63, v0
    v_readfirstlane_b32 s{S_WAVE}, v1
    s_lshl_b32 s{S_T0}, s{S_QB}, 8
    s_lshl_b32 s{S_T1}, s{S_HEAD}, 3
    s_add_u32 s{S_T0}, s{S_T0}, s{S_T1}
    v_add_u32 v85, s{S_T0}, v85
    v_and_b32 v31, 15, v0
    v_mul_u32_u24 v86, 1280, v85
    v_lshl_add_u32 v86, v31, 4, v86
    s_waitcnt lgkmcnt(0)
    s_add_u32 s{S_FL}, s{P_WS}, {WS_FLAG}
    s_addc_u32 s{S_FL+1}, s{P_WS+1}, 0
    s_load_dword s{S_NONCE}, s[{S_FL}:{S_FL+1}], {FL_NONCE}
    """)
    srd(a, S_X, P_X, XN_BYTES)
    a(f"s_cmp_ge_u32 s{S_WAVE}, 2\ns_cbranch_scc1 L_restart")
    for i in range(5):
        a(f"buffer_load_dwordx4 {vr(64+4*i)}, v86, {sq(S_X)}, 0 offen offset:{256*i}")
    a(f"""
    L_restart:
    v_lshrrev_b32 v84, 4, v85
    v_mul_u32_u24 v84, 20480, v84
    v_lshrrev_b32 v87, 2, v31
    v_lshl_add_u32 v84, v87, 10, v84
    v_and_b32 v87, 3, v31
    v_lshl_add_u32 v84, v87, 6, v84
    v_bfe_u32 v87, v85, 2, 2
    v_lshl_add_u32 v84, v87, 8, v84
    v_and_b32 v87, 3, v85
    v_lshl_add_u32 v84, v87, 4, v84
    v_and_b32 v26, 7, v0
    v_lshrrev_b32 v27, 3, v0
    v_lshrrev_b32 v28, 4, v0
    v_bfe_u32 v29, v0, 2, 2
    v_and_b32 v30, 3, v0
    v_and_b32 v31, 15, v0
    v_lshlrev_b32 v1, 4, v0
    v_lshlrev_b32 v36, 3, v28
    v_lshlrev_b32 v{V_L4}, 2, v0
    s_mul_i32 s{S_W3072}, s{S_WAVE}, 3072
    s_mul_i32 s{S_T0}, s{S_HEAD}, 96
    s_sub_u32 s{S_T1}, 3072, s{S_T0}
    """)
    srd(a, S_MISC, P_B1, f"s{S_T1}", f"s{S_T0}")
    for ft in range(3):
        a(f"buffer_load_dwordx2 {vr(40+2*ft,2)}, v36, {sq(S_MISC)}, 0 offen offset:{32*ft}")
    a(f"s_sub_u32 s{S_T1}, {640*1536*2}, s{S_T0}")
    srd(a, S_W1, P_W1, f"s{S_T1}", f"s{S_T0}")
    a(f"s_mul_i32 s{S_T0}, s{S_HEAD}, 384\ns_sub_u32 s{S_T1}, {640*6144*2}, s{S_T0}")
    srd(a, S_WQ, P_WQ, f"s{S_T1}", f"s{S_T0}")
    a(f"""
    s_mov_b32 s{S_FL+2}, {FLAG_BYTES}
    s_mov_b32 s{S_FL+3}, 0x00020000
    s_lshl_b32 s{S_T0}, s{S_WAVE}, 3
    v_add_u32 v32, s{S_T0}, v27
    v_mul_u32_u24 v33, 12288, v32
    v_bfe_u32 v34, v27, 1, 1
    v_lshlrev_b32 v35, 2, v34
    v_xor_b32 v35, v35, v26
    v_lshl_add_u32 v{V1_DW}, v35, 4, v33
    s_and_b32 s{S_T0}, s{S_WAVE}, 1
    s_lshl_b32 s{S_T0}, s{S_T0}, 2
    v_lshlrev_b32 v35, 1, v34
    v_or_b32 v35, s{S_T0}, v35
    v_xor_b32 v35, v35, v26
    v_mul_u32_u24 v33, 3072, v32
    v_lshl_add_u32 v{V1_DF}, v35, 4, v33
    s_lshl_b32 s{S_DMA1}, s{S_WAVE}, 10
    v_mov_b32 v{V_ZERO}, 0
    s_lshl_b32 s{S_T0}, s{S_PASS}, 1
    s_or_b32 s{S_T0}, s{S_T0}, s{S_WAVE}
    s_cmp_lt_u32 s{S_T0}, 2
    s_cbranch_scc1 L_ln
    """)
    pf_rest = f"""
    s_cmp_eq_u32 s{S_WAVE}, 2
    s_cselect_b32 s{S_XN}, s{S_W1}, s{S_WQ}
    s_cselect_b32 s{S_XN+1}, s{S_W1+1}, s{S_WQ+1}
    s_cselect_b32 s{S_XN+2}, s{S_W1+2}, s{S_WQ+2}
    s_mov_b32 s{S_T1}, {128*12288}
    s_cselect_b32 s{S_T1}, {128*3072}, s{S_T1}
    s_lshl_b32 s{S_T0}, s{S_T1}, 1
    buffer_load_dword v60, v55, {sq(S_XN)}, s{S_T0} offen
    s_add_u32 s{S_T0}, s{S_T0}, s{S_T1}
    buffer_load_dword v59, v55, {sq(S_XN)}, s{S_T0} offen
    s_add_u32 s{S_T0}, s{S_T0}, s{S_T1}
    buffer_load_dword v54, v55, {sq(S_XN)}, s{S_T0} offen
    """
    early_pf, late_pf = (pf_rest, "") if os.environ.get("PFE") == "1" else ("", pf_rest if os.environ.get("PFE") == "0" else "")
    a(f"""
    s_cmp_lg_u32 s{S_PASS}, 0
    s_cbranch_scc1 L_nopf
    s_lshl_b32 s{S_T0}, s{S_QB}, 4
    v_lshrrev_b32 v52, 2, v0
    v_add_u32 v52, s{S_T0}, v52
    v_mul_u32_u24 v53, 3072, v52
    v_lshlrev_b32 v52, 2, v53
    v_lshl_add_u32 v52, v30, 7, v52
    v_mul_u32_u24 v54, 40, v30
    v_add_u32 v53, v54, v53
    s_cmp_eq_u32 s{S_WAVE}, 2
    s_cbranch_scc1 L_pf2
    s_mov_b32 s{S_T0}, {128*12288}
    v_mov_b32 v55, v52
    buffer_load_dword v56, v52, {sq(S_WQ)}, 0 offen
    buffer_load_dword v57, v52, {sq(S_WQ)}, s{S_T0} offen
    s_branch L_pf3
    L_pf2:
    s_mov_b32 s{S_T0}, {128*3072}
    v_mov_b32 v55, v53
    buffer_load_dword v56, v53, {sq(S_W1)}, 0 offen
    buffer_load_dword v57, v53, {sq(S_W1)}, s{S_T0} offen
    L_pf3:
    s_getpc_b64 s[{S_XN}:{S_XN+1}]
    L_pc0:
    s_add_u32 s{S_XN}, s{S_XN}, L_p1_loop-L_pc0
    s_addc_u32 s{S_XN+1}, s{S_XN+1}, 0
    s_mov_b32 s{S_XN+2}, L_hooka-L_p1_loop
    s_and_b32 s{S_T0}, s{S_QB}, 1
    s_lshl_b32 s{S_T0}, s{S_T0}, 1
    s_add_u32 s{S_T0}, s{S_T0}, s{S_WAVE}
    s_sub_u32 s{S_T0}, s{S_T0}, 2
    s_lshl_b32 s{S_T0}, s{S_T0}, 13
    buffer_load_dword v58, v{V_L128}, {sq(S_XN)}, s{S_T0} offen
    {early_pf}
    s_waitcnt vmcnt({4 if early_pf else 1}) lgkmcnt(0)
    s_add_u32 s{S_NONCE}, s{S_NONCE}, 1
    L_nopf:
    """)
    a(f"""
    v_mov_b32 v52, v{V1_DW}
    v_mov_b32 v53, v{V1_DF}
    s_mov_b32 s{S_RD}, s{S_W3072}
    s_mov_b32 s{S_RD1}, s{S_DMA1}
    s_mov_b32 s{S_CNT}, s{S_PASS}
    L_pre:
    """)
    for st in range(2):
        a(f"s_mov_b32 s{S_SO0}, {64*st*12288}\ns_mov_b32 s{S_SO1}, {(64*st+32)*12288}")
        a(f"s_mov_b32 s{S_SW0}, {64*st*3072}\ns_mov_b32 s{S_SW1}, {(64*st+32)*3072}")
        dma_tile(a, 52, S_WQ, S_SO0, S_SO1, S_RD, LDS_V + st * SLOT)
        for d in range(2):
            a(f"s_add_u32 m0, s{S_RD1}, {LDS_W1 + st*8192 + d*4096}\ns_nop 0")
            a(f"buffer_load_dwordx4 v53, {sq(S_W1)}, s{S_SW0+d} offen lds")
    a(f"""
    s_cmp_lg_u32 s{S_CNT}, 0
    s_cbranch_scc1 L_predone
    s_mov_b32 s{S_CNT}, 1
    v_subrev_u32 v52, {16*12288}, v52
    v_subrev_u32 v53, {16*3072}, v53
    s_sub_u32 s{S_RD}, s{S_RD}, {2*3072}
    s_sub_u32 s{S_RD1}, s{S_RD1}, 2048
    s_branch L_pre
    L_predone:
    s_cmp_lg_u32 s{S_PASS}, 0
    s_cbranch_scc1 L_setup
    {late_pf}
    s_branch L_setup
    L_ln:
    """)
    srd(a, S_MISC, P_WS, XN_BYTES)
    if os.environ.get("TOUCH"):
        a(f"buffer_load_dword v60, v84, {sq(S_MISC)}, 0 offen sc1\nbuffer_load_dword v59, v{V_L128}, {sq(S_FL)}, 0 offen sc1")
    gen_ln_body(a)
    stamp(a, 20)
    a(f"""
    s_waitcnt lgkmcnt(0)
    s_add_u32 s{S_NONCE}, s{S_NONCE}, 1
    v_mov_b32 v52, {LDS_FLAG + 4}
    v_mov_b32 v{V_ONE}, s{S_NONCE}
    s_lshl_b32 s{S_T0}, s{S_QB}, 12
    s_lshl_b32 s{S_T1}, s{S_HEAD}, 7
    s_add_u32 s{S_T0}, s{S_T0}, s{S_T1}
    s_cmp_eq_u32 s{S_WAVE}, 0
    s_waitcnt vmcnt(0)
    s_cbranch_scc1 L_ln0
    ds_write_b32 v52, v{V_ONE}
    s_branch L_setup
    L_ln0:
    ds_read_b32 v53, v52
    s_waitcnt lgkmcnt(0)
    v_cmp_ne_u32 vcc, v53, v{V_ONE}
    s_cbranch_vccnz L_ln0
    v_xor_b32 v53, 0x80000000, v53
    ds_write_b32 v52, v53
    """)
    signal(a)
    a("L_setup:")
    stamp(a, 1)
    a(f"s_add_u32 s{S_T1}, s{S_QB}, 1\ns_mul_i32 s{S_T1}, s{S_T1}, {16*20480}")
    srd(a, S_XN, P_WS, f"s{S_T1}")
    srd(a, S_WF, P_WS, WF_BYTES, WS_WF)
    srd(a, S_H, P_WS, H_BYTES, WS_H)
    a(f"s_mul_i32 s{S_T0}, s{S_HEAD}, 786432")
    srd(a, S_K, P_K, 0, f"s{S_T0}")
    srd(a, S_V, P_V, 786432, f"s{S_T0}")
    a(f"""
    s_mov_b32 s{S_MISC+2}, {48*40960}
    s_cmp_lt_u32 s2, 192
    s_cselect_b32 s{S_MISC}, s{P_WO}, s{P_W2}
    s_cselect_b32 s{S_MISC+1}, s{P_WO+1}, s{P_W2+1}
    s_cselect_b32 s{S_MISC+2}, {6144*1280}, s{S_MISC+2}
    s_cselect_b32 s{S_T0}, 0, 192
    s_sub_u32 s{S_T0}, s2, s{S_T0}
    s_mul_i32 s{S_RS}, s{S_T0}, 40960
    s_mul_i32 s{S_RO}, s2, 40960
    s_lshl_b32 s{S_T0}, s{S_WAVE}, 10
    s_add_u32 s{S_RO}, s{S_RO}, s{S_T0}
    v_mov_b32 v{V_ONE}, s{S_NONCE}
    s_and_b32 s{S_T0}, s{S_WAVE}, 1
    s_lshl_b32 s{S_T0}, s{S_T0}, 2
    v_mul_u32_u24 v33, 384, v27
    v_add_u32 v33, s{S_W3072}, v33
    v_lshrrev_b32 v34, 1, v27
    v_add_u32 v35, s{S_T0}, v34
    v_xor_b32 v35, v35, v26
    v_lshl_add_u32 v{V_DK}, v35, 4, v33
    v_lshlrev_b32 v35, 1, v34
    v_xor_b32 v35, v35, v26
    v_lshl_add_u32 v{V_DV}, v35, 4, v33
    v_mul_u32_u24 v33, 1280, v32
    v_lshl_add_u32 v{V_RD}, v35, 4, v33
    s_lshl_b32 s{S_T0}, s{S_QB}, 3
    v_add_u32 v52, s{S_T0}, v26
    v_mul_u32_u24 v53, 3072, v52
    v_lshlrev_b32 v52, 2, v53
    s_lshl_b32 s{S_T0}, s{S_WAVE}, 7
    v_add_u32 v52, s{S_T0}, v52
    v_and_b32 v54, 1, v27
    v_mul_u32_u24 v54, 124, v54
    v_add_u32 v53, v54, v53
    s_mov_b32 s{S_O+3}, 0x00020000
    s_cmp_eq_u32 s{S_WAVE}, 3
    s_cselect_b32 s{S_O}, s{S_W1}, s{S_WQ}
    s_cselect_b32 s{S_O+1}, s{S_W1+1}, s{S_WQ+1}
    s_cselect_b32 s{S_O+2}, s{S_W1+2}, s{S_WQ+2}
    s_cselect_b64 vcc, -1, 0
    s_mov_b32 s{S_HS}, {64*12288}
    s_cselect_b32 s{S_HS}, {64*3072}, s{S_HS}
    v_cndmask_b32 v46, v52, v53, vcc
    s_cselect_b32 s{S_HOOK}, s{S_K}, s{S_V}
    s_cselect_b32 s{S_KC}, s{S_K+1}, s{S_V+1}
    s_mov_b32 s3, {12*128}
    s_cselect_b32 s3, {6*128}, s3
    s_mul_i32 s{S_T0}, s{S_QB}, 48
    s_lshl_b32 s{S_T1}, s{S_WAVE}, 2
    s_add_u32 s{S_T0}, s{S_T0}, s{S_T1}
    v_add_u32 v52, s{S_T0}, v30
    s_mul_i32 s{S_T0}, s{S_QB}, 24
    s_add_u32 s{S_T0}, s{S_T0}, 384
    v_min_u32 v53, 5, v26
    v_add_u32 v53, s{S_T0}, v53
    v_cndmask_b32 v60, v52, v53, vcc
    v_lshlrev_b32 v60, 7, v60
    s_lshl_b32 s{S_M0}, s{S_HS}, 2
    s_mov_b32 s{S_SV0}, 0
    s_mov_b32 s{S_SV1}, 0
    s_add_u32 s{S_C0}, s{S_W3072}, {LDS_X}
    s_add_u32 s{S_C1}, s{S_W3072}, {LDS_K}
    s_lshl_b32 s{S_T0}, s{S_QB}, 4
    s_lshl_b32 s{S_T1}, s{S_WAVE}, 2
    s_add_u32 s{S_T0}, s{S_T0}, s{S_T1}
    s_mul_i32 s{S_T0}, s{S_T0}, 20480
    v_lshlrev_b32 v33, 8, v29
    v_lshl_add_u32 v33, v28, 6, v33
    v_lshl_add_u32 v33, v30, 4, v33
    v_add_u32 v{V1_X}, s{S_T0}, v33
    v_add_u32 v{V1_X+1}, 20480, v{V1_X}
    v_add_u32 v{V1_X+2}, {2*20480}, v{V1_X}
    v_add_u32 v{V1_X+3}, {3*20480}, v{V1_X}
    s_mov_b32 s{S_SO0}, {128*12288}
    s_mov_b32 s{S_SO1}, {160*12288}
    s_mov_b32 s{S_SW0}, {128*3072}
    s_mov_b32 s{S_SW1}, {160*3072}
    s_mov_b32 s{S_RD}, 0
    s_mov_b32 s{S_RD1}, 0
    s_add_u32 s{S_DMA}, s{S_W3072}, {2*SLOT}
    s_add_u32 s{S_DMA1}, s{S_DMA1}, {2*8192}
    v_mul_u32_u24 v33, 3072, v28
    v_lshl_add_u32 v33, v29, 7, v33
    v_add_u32 v33, {LDS_V}, v33
    v_lshrrev_b32 v34, 1, v29
    v_lshlrev_b32 v35, 2, v34
    v_xor_b32 v35, v35, v30
    v_lshl_add_u32 v{V1_WB}, v35, 4, v33
    v_xor_b32 v{V1_WB+1}, 64, v{V1_WB}
    v_mov_b32 v{V1_WA}, v{V1_WB}
    v_mov_b32 v{V1_WA+1}, v{V1_WB+1}
    v_lshlrev_b32 v33, 10, v28
    v_lshl_add_u32 v33, v29, 7, v33
    v_add_u32 v33, {LDS_W1}, v33
    v_and_b32 v35, 1, v30
    v_lshl_add_u32 v33, v35, 3, v33
    v_lshrrev_b32 v35, 1, v30
    v_lshl_add_u32 v33, v35, 4, v33
    v_and_b32 v35, 1, v28
    v_lshl_add_u32 v35, v35, 1, v34
    v_lshl_add_u32 v{V1_FB}, v35, 5, v33
    v_xor_b32 v{V1_FB+1}, 32, v{V1_FB}
    v_xor_b32 v{V1_FB+2}, 64, v{V1_FB}
    v_mov_b32 v{V1_FA}, v{V1_FB}
    v_mov_b32 v{V1_FA+1}, v{V1_FB+1}
    v_mov_b32 v{V1_FA+2}, v{V1_FB+2}
    v_mov_b32 v48, 0
    v_mov_b32 v49, 0
    v_mov_b32 v50, 0
    v_mov_b32 v51, 0
    s_or_b32 s{S_T0}, s{S_WAVE}, s{S_PASS}
    s_cmp_eq_u32 s{S_T0}, 0
    s_cbranch_scc1 L_nw
    s_waitcnt vmcnt(0)
    L_nw:
    """)
    for i in range(12):
        a(f"v_mfma_f32_32x32x16_bf16 {vr(64+16*i,16)}, v[48:51], v[48:51], 0")
    for ft in range(3):
        a(f"""
        v_lshlrev_b32 v52, 16, v{40+2*ft}
        v_and_b32 v53, 0xffff0000, v{40+2*ft}
        v_lshlrev_b32 v54, 16, v{41+2*ft}
        v_and_b32 v55, 0xffff0000, v{41+2*ft}
        """)
        for t in range(4):
            for r in range(4):
                a(f"v_accvgpr_write_b32 a{P1_H+4*(4*ft+t)+r}, v{52+r}")
    a(f"""
    s_or_b32 s{S_T0}, s{S_WAVE}, s{S_PASS}
    s_cmp_lg_u32 s{S_T0}, 0
    s_cbranch_scc1 L_p1go
    s_lshl_b32 s{S_T0}, s{S_QB}, 12
    v_and_b32 v53, {31*128}, v{V_L128}
    L_poll1:
    buffer_load_dword v52, v53, {sq(S_FL)}, s{S_T0} offen sc1
    s_waitcnt vmcnt(0)
    v_cmp_ne_u32 vcc, v52, v{V_ONE}
    s_cbranch_vccnz L_poll1
    L_p1go:
    s_barrier
    """)
    stamp(a, 2)
    NPRE = int(os.environ.get("NPRE", 2))
    for ks in range(NPRE):
        for j in range(4):
            a(f"buffer_load_dwordx4 {ar(P1_B+16*ks+4*j)}, v{V1_X+j}, {sq(S_XN)}, 0 offen offset:{1024*ks} sc1")
    for f in range(2):
        for k in range(4):
            a(p1_read(f, k))
    a(f"s_mov_b32 s{S_BOFF}, 2048\ns_mov_b32 s{S_CNT}, 5\ns_waitcnt vmcnt({4*NPRE-8}) lgkmcnt(4)")
    stamp(a, 3)
    a(".p2align 6\nL_p1_loop:")
    gen_p1_stage(a, 0)
    gen_p1_stage(a, 1)
    a("s_cbranch_scc1 L_p1_loop\ns_waitcnt vmcnt(1) lgkmcnt(0)\ns_barrier")
    stamp(a, 4)
    dm = []
    for (voff, sr, so, goff, lds) in ((V_DV, S_V, S_SV0, 0, LDS_V), (V_DK, S_K, S_SO0, 2 * SLOT, LDS_K + 2 * SLOT), (V_DV, S_V, S_SV0, SLOT, LDS_V + SLOT)):
        for d in range(6):
            pre = f"s_mov_b32 s{so}, {goff}\ns_mov_b32 s{so+1}, {goff+12288}\n" if d == 0 else ""
            dm.append((pre + f"s_add_u32 m0, s{S_W3072}, {lds + (d//3)*12288 + (d%3)*896}",
                       f"buffer_load_dwordx4 v{voff}, {sq(sr)}, s{so + d//3} offen offset:{(d%3)*128} lds"))
    c = (192 ** -0.5) * math.log2(math.e)
    a(f"s_mov_b32 s{S_C0}, {fh(c)}\ns_mov_b32 s{S_C1}, {fh(c)}")
    for i in range(24):
        b = P1_ACC + 8 * i
        if i < 18:
            a(dm[i][0])
        for j in range(4):
            a(f"v_pk_mul_f32 {vr(b+2*j,2)}, {vr(b+2*j,2)}, s[{S_C0}:{S_C1}]")
        if i < 18:
            a(dm[i][1])
        if i % 2 == 1 and i // 2 + 3 < 12:
            a(f"v_mfma_f32_32x32x16_bf16 {ar(16*(i//2+3),16)}, v[48:51], v[48:51], 0")
        for j in range(4):
            a(f"v_cvt_pk_bf16_f32 v{V_Q+4*i+j}, v{b+2*j}, v{b+2*j+1}")
    for e in range(32):
        a(f"v_accvgpr_write_b32 a{A_Q+e}, v{V_Q+64+e}")
    stamp(a, 21)
    srd(a, S_O, P_WS, O_BYTES, WS_O)
    k0 = -2.0 * math.log2(math.e) * math.sqrt(2 / math.pi)
    k1 = k0 * 0.044715
    a(f"""
    s_mov_b32 s{S_SO0}, {3*SLOT}
    s_mov_b32 s{S_SO1}, {3*SLOT+12288}
    s_mov_b32 s{S_SV0}, {2*SLOT}
    s_mov_b32 s{S_SV1}, {2*SLOT+12288}
    s_lshl_b32 s{S_T0}, s{S_QB}, 4
    s_lshl_b32 s{S_T1}, s{S_WAVE}, 2
    s_add_u32 s{S_T0}, s{S_T0}, s{S_T1}
    s_mul_i32 s{S_T0}, s{S_T0}, {48*1024}
    v_add_u32 v52, s{S_T0}, v1
    v_add_u32 v53, {48*1024}, v52
    v_add_u32 v54, {2*48*1024}, v52
    v_add_u32 v55, {3*48*1024}, v52
    v_mov_b32 v56, {fh(k1)}
    v_mov_b32 v57, {fh(k0)}
    v_mov_b32 v58, 1.0
    """)
    stamp(a, 22)

    def gelu(ft, packed):
        o = [(f"""s_mul_i32 s{S_T0}, s{S_HEAD}, 3
        s_add_u32 s{S_T0}, s{S_T0}, {ft}
        s_lshr_b32 s{S_T1}, s{S_T0}, 1
        s_lshl_b32 s{S_T1}, s{S_T1}, 10
        s_and_b32 s{S_T0}, s{S_T0}, 1
        s_lshl_b32 s{S_T0}, s{S_T0}, 3
        s_add_u32 s{S_M0}, s{S_T0}, s{S_T1}""", 0)]
        x, u = 216, 232
        o += [(f"v_accvgpr_read_b32 v{x+e}, a{P1_H+16*ft+e}", 1) for e in range(16)]
        if packed:
            o.append((f"v_mfma_f32_32x32x16_bf16 {ar(16*ft,16)}, v[48:51], v[48:51], 0", 0))
        for pk, sc, sl in (("v_pk_mul_f32 {U}, {X}, {X}", "v_mul_f32 v{u}, v{x}, v{x}", 1),
                           ("v_pk_fma_f32 {U}, {U}, v[56:57], v[56:57] op_sel:[0,0,1] op_sel_hi:[1,0,1]", "v_fma_f32 v{u}, v{u}, v56, v57", 1),
                           ("v_pk_mul_f32 {U}, {U}, {X}", "v_mul_f32 v{u}, v{u}, v{x}", 1),
                           (None, "v_exp_f32 v{u}, v{u}", 2),
                           ("v_pk_add_f32 {U}, {U}, v[58:59] op_sel_hi:[1,0]", "v_add_f32 v{u}, 1.0, v{u}", 1),
                           (None, "v_rcp_f32 v{u}, v{u}", 2),
                           ("v_pk_mul_f32 {X}, {U}, {X}", "v_mul_f32 v{x}, v{u}, v{x}", 1)):
            if packed and pk:
                o += [(pk.format(U=vr(u + e, 2), X=vr(x + e, 2)), 1) for e in range(0, 16, 2)]
            else:
                o += [(sc.format(u=u + e, x=x + e), sl) for e in range(16)]
        o += [(f"v_cvt_pk_bf16_f32 v{192+8*ft+e}, v{x+2*e}, v{x+2*e+1}", 1) for e in range(8)]
        o += [(f"buffer_store_dwordx2 {vr(192+8*ft+2*t,2)}, v{52+t}, {sq(S_H)}, s{S_M0} offen sc1", 2) for t in range(4)]
        return o
    a(f"s_cmp_lg_u32 s{S_PASS}, 0\ns_cbranch_scc1 L_nogelu")
    for ft in range(2):
        for ins, _ in gelu(ft, True):
            a(ins)
    a("L_nogelu:")
    a(f"""
    v_lshrrev_b32 v33, 3, v31
    v_mul_u32_u24 v33, 3072, v33
    v_lshl_add_u32 v33, v26, 7, v33
    v_lshrrev_b32 v34, 1, v31
    v_xor_b32 v34, v34, v28
    v_lshl_add_u32 v{V_KB}, v34, 4, v33
    v_xor_b32 v{V_KB+1}, 64, v{V_KB}
    v_mov_b32 v{V_KA}, v{V_KB}
    v_mov_b32 v{V_KA+1}, v{V_KB+1}
    v_lshrrev_b32 v33, 1, v28
    v_mul_u32_u24 v33, 3072, v33
    v_add_u32 v33, {LDS_V}, v33
    v_and_b32 v34, 1, v28
    v_lshl_add_u32 v34, v34, 2, v29
    v_lshl_add_u32 v33, v34, 7, v33
    v_and_b32 v35, 1, v30
    v_lshl_add_u32 v33, v35, 3, v33
    v_lshrrev_b32 v35, 1, v30
    v_lshl_add_u32 v33, v35, 4, v33
    v_lshrrev_b32 v34, 1, v34
    v_lshl_add_u32 v{V_VB}, v34, 5, v33
    v_xor_b32 v{V_VB+1}, 32, v{V_VB}
    v_xor_b32 v{V_VB+2}, 64, v{V_VB}
    v_xor_b32 v{V_VB+3}, 96, v{V_VB}
    v_mov_b32 v34, {LDS_FLAG}
    ds_write_b32 v34, v{V_ZERO}
    s_lshl_b32 s{S_T0}, s{S_WAVE}, 5
    v_xor_b32 v{V_RR}, s{S_T0}, v{V_VB}
    v_add_u32 v{V_RR}, {LDS_X - LDS_V}, v{V_RR}
    s_mov_b32 s{S_KC}, 0
    s_cmp_eq_u32 s{S_PASS}, 0
    s_cselect_b32 s{S_HOOK}, 8, 3
    s_mov_b32 s{S_WF+2}, 0
    s_sub_u32 s{S_RO}, s{S_RO}, 4096
    s_cmp_eq_u32 s{S_PASS}, 0
    """)
    for j in range(4):
        a(f"v_mov_b32 v{V_L+j}, 0\nv_mov_b32 v{20+j}, 0xff800000")
    a("s_cbranch_scc0 L_maxfirst")
    stamp(a, 5)

    def qk0(fill):
        for g in range(3):
            a(k_read(g, 0) + "\n" + k_read(g, 1))
        for g in range(12):
            if g == 0:
                a("s_waitcnt lgkmcnt(4)")
            mx = []
            if g % 3 == 1 and g >= 4:
                for t in range(4):
                    s0 = s_reg(g // 3 - 1, t)
                    mx += [(f"v_max3_f32 v{20+t}, v{20+t}, v{s0}, v{s0+1}", 1), (f"v_max3_f32 v{20+t}, v{20+t}, v{s0+2}, v{s0+3}", 1)]
            fill[:0] = mx
            for p in range(8):
                a(qk_mfma(g, p, lambda t: "0"))
                room = 2
                if p == 7 and g < 11:
                    a(f"s_waitcnt lgkmcnt({2 if g <= 9 else 0})")
                if p < 2 and 3 <= g + 2 < 12 and g >= 1:
                    a(k_read(g + 2, p))
                    room = 1
                while fill and fill[0][1] <= room:
                    ins, sl = fill.pop(0)
                    a(ins)
                    room -= sl
        for ins, _ in fill:
            a(ins)
        a(f"s_waitcnt vmcnt(24)\ns_barrier\ns_cmp_lg_u32 s{S_KC}, 0\nv_add_u32 v{V_KA}, {SLOT}, v{V_KB}\nv_add_u32 v{V_KA+1}, {SLOT}, v{V_KB+1}\ns_nop 1")
        for t in range(4):
            s0 = s_reg(3, t)
            a(f"v_max3_f32 v{20+t}, v{20+t}, v{s0}, v{s0+1}\nv_max3_f32 v{20+t}, v{20+t}, v{s0+2}, v{s0+3}")
    g2 = gelu(2, False)
    for ins, _ in g2[:17]:
        a(ins)
    a(f"v_mfma_f32_32x32x16_bf16 {ar(32,16)}, v[48:51], v[48:51], 0")
    qk0(g2[17:])
    a("L_qkdone:")
    for g in range(2):
        a(k_read(g, 0) + "\n" + k_read(g, 1))
    for x in swaps("v_max_f32", 20, 24):
        a(x + "\ns_nop 0")
    a(f"s_cmp_eq_u32 s{S_PASS}, 0\ns_cselect_b32 s{S_T0}, {fh(-OFF)}, 0")
    for t in range(4):
        a(f"v_sub_f32 v{V_NM+4*t}, s{S_T0}, v{20+t}")
    for t in range(4):
        for r in range(1, 4):
            a(f"v_mov_b32 v{V_NM+4*t+r}, v{V_NM+4*t}")
    for u in range(4):
        for t in range(4):
            for j in range(2):
                r = s_reg(u, t) + 2 * j
                a(f"v_pk_add_f32 {vr(r,2)}, {vr(r,2)}, {vr(V_NM+4*t,2)}")
    for i in range(192):
        if G[i]["exp"] is not None and G[i]["exp"][0] == "cur":
            a(soft("exp", *G[i]["exp"], 0))
    a("s_nop 0")
    for i in range(192):
        for (w, kind, u, t, x) in G[i]["valu"]:
            if w == "cur":
                a(soft(kind, w, u, t, x, 0))
    a(f"""
    s_mov_b32 s{S_RD}, 0
    s_mov_b32 s{S_RK}, {SLOT}
    s_mov_b32 s{S_DV}, {2*SLOT}
    s_add_u32 s{S_M0}, s{S_W3072}, {LDS_V}
    s_mov_b32 s{S_DKM}, s{S_W3072}
    s_add_u32 s{S_DVM}, s{S_M0}, {2*SLOT}
    s_mov_b32 s{S_CNT}, 31
    s_waitcnt lgkmcnt({att_counts(G)[0]})
    """)
    stamp(a, 6)
    a(".p2align 6")
    for k in range(int(os.environ.get("PADN", 0))):
        a("s_nop 0")
    a("L_att_loop:")
    def lstamp():
        if STAMP and os.environ.get("ATST"):
            a(f"s_memtime s[98:99]\ns_waitcnt lgkmcnt(0)\ns_add_u32 m0, s{S_CNT}, 32\ns_nop 0\nv_writelane_b32 v38, s98, m0\ns_cmp_lg_u32 s{S_CNT}, 0")
    gen_body(a, G, spare, 1, lab="a")
    lstamp()
    a("s_cbranch_scc0 L_att_tail")
    gen_body(a, G, spare, 0, lab="b")
    lstamp()
    a("s_branch L_att_loop")
    f2 = f"s_mov_b32 s{S_T0}, {FL_F2}\nbuffer_load_dwordx4 {vr(V_F2)}, v1, {sq(S_FL)}, s{S_T0} offen sc1"
    a(f"""
    L_hooka:
    s_mov_b32 s{S_KC}, 0
    s_branch L_hook
    L_hookb:
    s_mov_b32 s{S_KC}, 1
    L_hook:
    s_cmp_eq_u32 s{S_CNT}, 3
    s_cbranch_scc1 L_hF
    L_hP:
    s_mov_b32 s{S_HOOK}, 3
    s_cmp_lg_u32 s{S_WAVE}, 0
    s_cbranch_scc1 L_hdone
    s_lshl_b32 s{S_T0}, s2, 2
    s_add_u32 s{S_T0}, s{S_T0}, {FL_F2}
    s_mov_b64 exec, 1
    buffer_store_dword v{V_ONE}, v{V_ZERO}, {sq(S_FL)}, s{S_T0} offen sc1
    s_mov_b64 exec, -1
    """)
    a(f"""
    s_nop 1
    s_branch L_hdone
    L_hF:
    """)
    code_prefetch(a, 1, "L_att_tail", "L_end", S_XN, V_F2 + 4, one=True)
    a(f"""
    s_cmp_lg_u32 s{S_WAVE}, 0
    s_cbranch_scc1 L_hdone
    {f2}
    """)
    a(f"""
    L_hdone:
    s_cmp_eq_u32 s{S_KC}, 0
    s_cbranch_scc1 L_hreta
    s_branch L_hretb
    L_maxfirst:
    v_mfma_f32_32x32x16_bf16 a[0:15], v[48:51], v[48:51], 0
    v_mfma_f32_32x32x16_bf16 a[16:31], v[48:51], v[48:51], 0
    v_mfma_f32_32x32x16_bf16 a[32:47], v[48:51], v[48:51], 0
    s_mov_b32 s{S_KC}, {32*SLOT}
    L_maxnext:
    s_sub_u32 s{S_KC}, s{S_KC}, {SLOT}
    s_add_u32 s{S_T0}, s{S_KC}, 12288
    v_mov_b32 v{V_KA}, v{V_KB}
    v_mov_b32 v{V_KA+1}, v{V_KB+1}
    """)
    dma_tile(a, V_DK, S_K, S_KC, S_T0, S_W3072, LDS_K)
    a("s_waitcnt vmcnt(0)\ns_barrier")
    qk0([])
    a(f"""
    s_cbranch_scc1 L_maxnext
    s_branch L_qkdone
    L_fallback:
    s_waitcnt vmcnt(0) lgkmcnt(0)
    s_barrier
    s_mov_b32 s{S_PASS}, 1
    s_branch L_restart
    L_nonce:
    s_mov_b32 s{S_T0}, {FL_NONCE}
    """)
    signal(a)
    a(f"""
    s_nop 1
    s_branch L_nononce
    L_repoll2:
    {f2}
    s_waitcnt vmcnt(0)
    s_branch L_chk2
    L_att_tail:
    v_add_u32 v{V_VA}, s{S_RD}, v{V_VB}
    v_add_u32 v{V_VA+1}, s{S_RD}, v{V_VB+1}
    v_add_u32 v{V_VA+2}, s{S_RD}, v{V_VB+2}
    v_add_u32 v{V_VA+3}, s{S_RD}, v{V_VB+3}
    """)
    for f in (12, 13, 14):
        for k in range(4):
            a(v_read(f, k))
    a(f"""
    s_cmp_lg_u32 s{S_WAVE}, 0
    s_cbranch_scc1 L_ok2
    L_chk2:
    v_xor_b32 v{V_F2}, v{V_F2}, v{V_ONE}
    v_xor_b32 v{V_F2+1}, v{V_F2+1}, v{V_ONE}
    v_xor_b32 v{V_F2+2}, v{V_F2+2}, v{V_ONE}
    v_xor_b32 v{V_F2+3}, v{V_F2+3}, v{V_ONE}
    v_or3_b32 v{V_F2}, v{V_F2}, v{V_F2+1}, v{V_F2+2}
    v_or_b32 v{V_F2}, v{V_F2}, v{V_F2+3}
    v_cmp_ne_u32 vcc, 0, v{V_F2}
    s_cbranch_vccnz L_repoll2
    L_ok2:
    """)
    setup = f"""
    s_and_b32 s{S_J}, s2, 3
    s_bfe_u32 s{S_T0}, s2, 0x10002
    s_lshl_b32 s{S_T0}, s{S_T0}, 3
    s_bfe_u32 s{S_MB}, s2, 0x30003
    s_add_u32 s{S_MB}, s{S_MB}, s{S_T0}
    s_lshr_b32 s{S_NB}, s2, 6
    s_lshl_b32 s{S_TILE}, s{S_MB}, 2
    s_add_u32 s{S_TILE}, s{S_TILE}, s{S_NB}
    s_lshl_b32 s{S_T0}, s{S_MB}, 3
    s_lshl_b32 s{S_T1}, s{S_WAVE}, 1
    s_add_u32 s{S_T0}, s{S_T0}, s{S_T1}
    s_mul_i32 s{S_T1}, s{S_T0}, {192*1024}
    v_add_u32 v{V_DO}, s{S_T1}, v1
    v_add_u32 v{V_DO+1}, {192*1024}, v{V_DO}
    s_mul_i32 s{S_T1}, s{S_T0}, {48*1024}
    v_add_u32 v{V_DH}, s{S_T1}, v1
    v_add_u32 v{V_DH+1}, {48*1024}, v{V_DH}
    s_mul_i32 s{S_OO}, s{S_J}, {12*1024}
    s_lshr_b32 s{S_T0}, s{S_WAVE}, 1
    s_mul_i32 s{S_WS0}, s{S_T0}, 40960
    s_mul_i32 s{S_LW}, s{S_T0}, 10240
    s_lshl_b32 s{S_T0}, s{S_T0}, 13
    v_add_u32 v{V_RB0}, s{S_T0}, v1
    s_and_b32 s{S_T0}, s{S_WAVE}, 1
    s_mul_i32 s{S_T0}, s{S_T0}, 5120
    s_add_u32 s{S_WS0}, s{S_WS0}, s{S_T0}
    s_add_u32 s{S_T0}, s{S_T0}, {LDS_WOFF}
    s_add_u32 s{S_LW}, s{S_LW}, s{S_T0}
    v_add_u32 v{V_RA0}, s{S_T0}, v1
    s_mul_i32 s{S_T0}, s{S_NB}, 10240
    s_add_u32 s{S_WS0}, s{S_WS0}, s{S_T0}
    s_mul_i32 s{S_T0}, s{S_J}, {12*40960}
    s_add_u32 s{S_WO}, s{S_WS0}, s{S_T0}
    s_add_u32 s{S_WO}, s{S_WO}, {192*40960}
    s_add_u32 s{S_WO4}, s{S_WO}, 4096
    s_mul_i32 s{S_T0}, s{S_J}, {48*40960}
    s_add_u32 s{S_WS0}, s{S_WS0}, s{S_T0}
    s_lshl_b32 s{S_LO}, s{S_WAVE}, 12
    v_mov_b32 v{V_RB}, v{V_RB0}
    v_mov_b32 v{V_RA}, v{V_RA0}
    s_mov_b32 s{S_WF+2}, {WF_BYTES}
    """
    qd = ["s_waitcnt vmcnt(0)", "s_barrier",
          f"s_or_b32 s{S_T0}, s2, s{S_WAVE}\ns_cmp_eq_u32 s{S_T0}, 0\ns_cbranch_scc1 L_nonce\nL_nononce:"]
    cur, cost = [], 0
    for ln in [x.strip() for x in setup.strip().split("\n")]:
        c1 = 2 if (ln.startswith("v_") and not cur) else 1
        if cost + c1 > 3:
            qd.append("\n".join(cur))
            cur, cost = [], 0
            c1 = 2 if ln.startswith("v_") else 1
        cur.append(ln)
        cost += c1
    qd.append("\n".join(cur))
    gops = []
    for st in range(4):
        for k in range(9):
            pre, ld = dma3(k, S_H, V_DH)
            if k == 0:
                pre = [f"s_add_u32 s{S_DO}, s{S_LO}, {st*STG}", f"s_add_u32 s{S_DW}, s{S_LW}, {st*STG}"] + pre
            gops.append((pre, ld, ADV3 if k == 8 else []))
    for pre, ld, post in gops[:18]:
        if pre:
            qd.append("\n".join(pre))
        qd.append(ld)
        if post:
            qd.append("\n".join(post))
    qv = [y for x in swaps("v_add_f32", V_L, 24) for y in x.split("\n")] + [f"v_rcp_f32 v{20+2*t}, v{V_L+t}" for t in range(4)]
    gen_body(a, G, spare, 0, tail=True, tailq=(qd, qv))
    stamp(a, 7)
    a(f"""
    s_lshl_b32 s{S_T0}, s{S_QB}, 4
    s_lshl_b32 s{S_T1}, s{S_WAVE}, 2
    s_add_u32 s{S_T0}, s{S_T0}, s{S_T1}
    s_mul_i32 s{S_T0}, s{S_T0}, {192*1024}
    s_mul_i32 s{S_T1}, s{S_HEAD}, {6*1024}
    s_add_u32 s{S_T0}, s{S_T0}, s{S_T1}
    v_add_u32 v28, s{S_T0}, v1
    v_add_u32 v29, {192*1024}, v28
    v_add_u32 v30, {2*192*1024}, v28
    v_add_u32 v31, {3*192*1024}, v28
    s_mov_b32 s{S_M0}, 4096
    """)
    for n in range(24):
        s, t = n // 4, n % 4
        b, o = 40 + 8 * (n % 2), 64 + 4 * n
        for h in range(2):
            for r in range(4):
                a(f"v_accvgpr_read_b32 v{b+4*h+r}, a{4*(4*(2*s+h)+t)+r}")
        for j in range(4):
            a(f"v_pk_mul_f32 {vr(b+2*j,2)}, {vr(b+2*j,2)}, {vr(20+2*t,2)} op_sel_hi:[1,0]")
        for j in range(4):
            a(f"v_cvt_pk_bf16_f32 v{o+j}, v{b+2*j}, v{b+2*j+1}")
        a(f"buffer_store_dwordx4 {vr(o)}, v{28+t}, {sq(S_O)}, {'0' if s < 4 else f's{S_M0}'} offen offset:{(s%4)*1024} sc1")
    stamp(a, 8)
    a("v_mov_b32 v48, 0\nv_mov_b32 v49, 0\nv_mov_b32 v50, 0\nv_mov_b32 v51, 0")
    zi = 0
    for t in range(4):
        regs = [64 + 4 * (4 * s + t) + j for s in range(6) for j in range(4)]
        a(f"v_max3_f32 v{40+t}, |v{regs[0]}|, |v{regs[1]}|, |v{regs[2]}|")
        for k in range(3, 23, 2):
            a(f"v_max3_f32 v{40+t}, |v{regs[k]}|, |v{regs[k+1]}|, v{40+t}")
            if k in (3, 11, 19) and zi < 5:
                a(f"v_mfma_f32_32x32x16_bf16 {vr(ACC_G+16*zi,16)}, v[48:51], v[48:51], 0")
                zi += 1
        a(f"v_max_f32 v{40+t}, |v{regs[23]}|, v{40+t}")
    for x in swaps("v_max_f32", 40, 44):
        a(x + "\ns_nop 0")
    for t in range(4):
        a(f"v_mul_f32 v{40+t}, v{40+t}, v{V_L+t}")
    a(f"""
    v_min3_f32 v40, v40, v41, v42
    v_min_f32 v40, v40, v43
    v_add_f32 v41, v{V_L}, v{V_L+1}
    v_add_f32 v42, v{V_L+2}, v{V_L+3}
    v_add_f32 v41, v41, v42
    v_mov_b32 v42, {fh(GUARD_LO)}
    v_cmp_nle_f32 vcc, v42, v40
    v_cmp_ngt_f32 s[{S_M0}:{S_M0+1}], 1.0, v41
    v_mov_b32 v40, {LDS_FLAG}
    v_mov_b32 v41, 1
    """)
    srd(a, S_PT, P_WS, 2 * PART_BYTES, WS_PART)
    a(f"""
    s_or_b64 vcc, vcc, s[{S_M0}:{S_M0+1}]
    s_cbranch_vccz L_good
    ds_write_b32 v40, v41
    L_good:
    """)
    srd(a, S_OUT, P_OUT, 2048 * 1280)
    srd(a, S_B2, P_B2, 1280)
    a(f"""
    s_lshl_b32 s{S_T0}, s{S_MB}, 3
    s_lshr_b32 s{S_T1}, s{S_J}, 1
    s_lshl_b32 s{S_T1}, s{S_T1}, 2
    s_add_u32 s{S_T0}, s{S_T0}, s{S_T1}
    s_add_u32 s{S_T0}, s{S_T0}, s{S_WAVE}
    s_lshl_b32 s{S_T0}, s{S_T0}, 4
    v_and_b32 v42, 15, v0
    v_add_u32 v42, s{S_T0}, v42
    v_mul_u32_u24 v42, 1280, v42
    s_mul_i32 s{S_T0}, s{S_NB}, 320
    s_and_b32 s{S_T1}, s{S_J}, 1
    s_mul_i32 s{S_T1}, s{S_T1}, 160
    s_add_u32 s{S_T0}, s{S_T0}, s{S_T1}
    v_lshrrev_b32 v41, 4, v0
    v_lshlrev_b32 v41, 3, v41
    v_add_u32 v{V_BO}, s{S_T0}, v41
    v_add_u32 v{V_OO}, v42, v{V_BO}
    v_lshlrev_b32 v{V_PO}, 3, v0
    v_and_b32 v{V_FV}, {3*128}, v{V_L128}
    s_lshr_b32 s{S_T0}, s{S_MB}, 1
    s_lshl_b32 s{S_T0}, s{S_T0}, 12
    s_lshl_b32 s{S_T1}, s{S_J}, 10
    s_add_u32 s{S_T0}, s{S_T0}, s{S_T1}
    s_add_u32 s{S_M0}, s{S_T0}, {FL_F3}
    v_and_b32 v61, {7*128}, v{V_L128}
    s_mov_b32 s{S_HOOK}, 4
    s_mov_b32 s{S_R3}, 0
    s_mov_b32 s{S_CNT}, 6
    s_waitcnt vmcnt(24) lgkmcnt(0)
    s_barrier
    ds_read_b32 v41, v40
    """)
    for ks, n in RD3[:14]:
        a(rd3(0, ks, n))
    a(f"""
    s_waitcnt lgkmcnt(14)
    v_readfirstlane_b32 s{S_T0}, v41
    """)
    for ks, n in RD3[14:]:
        a(rd3(0, ks, n))
    if not (X_RINGV or X_QV or os.environ.get('NOFB')):
        a(f"s_cmp_gt_u32 s{S_T0}, s{S_PASS}\ns_cbranch_scc1 L_fallback")
    for zi in range(5):
        a(f"v_mfma_f32_32x32x16_bf16 {vr(ACC_S+16*zi,16)}, v[48:51], v[48:51], 0")
    for pre, ld, post in gops[18:]:
        for x in pre:
            a(x)
        if pre:
            a("s_nop 0")
        a(ld)
        for x in post:
            a(x)
    for j in range(5):
        a(f"buffer_load_dwordx2 {vr(V_X+2*j,2)}, v{V_OO}, {sq(S_X)}, 0 offen offset:{32*j}")
        a(f"buffer_load_dwordx2 {vr(V_B2+2*j,2)}, v{V_BO}, {sq(S_B2)}, 0 offen offset:{32*j}")
    a("s_waitcnt lgkmcnt(0)")
    stamp(a, 9)
    a(".p2align 6\nL_g_loop:")
    stage3(a, 0, ACC_G, S_H, V_DH, f"s_cmp_eq_u32 s{S_CNT}, 6\ns_cbranch_scc1 L_g_nw\ns_waitcnt vmcnt(18)\nL_g_nw:",
           f"s_cmp_eq_u32 s{S_CNT}, s{S_HOOK}\ns_cbranch_scc1 L_g_h0\nL_g_r0:", False)
    stage3(a, 1, ACC_G, S_H, V_DH, "s_waitcnt vmcnt(18)",
           f"s_cmp_eq_u32 s{S_CNT}, 5\ns_cbranch_scc1 L_g_h1\nL_g_r1:", True)
    a(f"""
    s_cbranch_scc1 L_g_loop
    s_branch L_g_done
    L_g_h0:
    s_mov_b32 s{S_H+2}, 0
    s_mov_b32 s{S_WO}, s{S_WS0}
    s_add_u32 s{S_WO4}, s{S_WS0}, 4096
    s_mov_b32 s{S_HOOK}, 2
    s_cmp_eq_u32 s{S_CNT}, 4
    s_cbranch_scc1 L_g_r0
    s_add_u32 s{S_WO}, s{S_WO}, {4*40960}
    s_add_u32 s{S_WO4}, s{S_WO4}, {4*40960}
    buffer_load_dword v60, v61, {sq(S_FL)}, s{S_M0} offen sc1
    s_branch L_g_r0
    L_g_h1:
    s_cmp_lg_u32 s{S_WAVE}, 0
    s_cbranch_scc1 L_g_r1
    s_lshl_b32 s{S_T0}, s{S_QB}, 12
    s_lshl_b32 s{S_T1}, s{S_HEAD}, 7
    s_add_u32 s{S_T0}, s{S_T0}, s{S_T1}
    s_add_u32 s{S_T0}, s{S_T0}, {FL_F3}
    """)
    signal(a)
    a("s_branch L_g_r1\nL_g_done:\ns_waitcnt vmcnt(18) lgkmcnt(0)")
    stamp(a, 10)
    def o_dmas():
        a(f"s_mul_i32 s{S_OO}, s{S_J}, {48*1024}")
        for st in range(4):
            a(f"s_add_u32 s{S_DO}, s{S_LO}, {((st+2)%4)*STG}")
            for k in range(4):
                pre, ld = dma3(k, S_O, V_DO)
                for x in pre:
                    a(x + "\ns_nop 0")
                a(ld)
            a(ADV3[0])
    a(f"""
    s_barrier
    v_cmp_ne_u32 vcc, v{V_ONE}, v60
    s_mov_b32 s{S_KC}, 0
    s_cbranch_vccnz L_late
    s_mov_b32 s{S_KC}, 1
    """)
    o_dmas()
    a("L_late:")
    pack_store(a, ACC_G, PART_BYTES)
    stamp(a, 11)
    a(f"""
    s_cmp_eq_u32 s{S_KC}, 1
    s_cbranch_scc1 L_p3go
    L_poll3:
    buffer_load_dword v60, v61, {sq(S_FL)}, s{S_M0} offen sc1
    s_waitcnt vmcnt(0)
    v_cmp_ne_u32 vcc, v{V_ONE}, v60
    s_cbranch_vccnz L_poll3
    """)
    o_dmas()
    for k in range(12):
        a(f"buffer_load_dword v60, v61, {sq(S_H)}, 0 offen")
    a("L_p3go:")
    a(f"s_mov_b32 s{S_HOOK}, 20\ns_mov_b32 s{S_CNT}, 24\ns_waitcnt vmcnt(20)\ns_barrier")
    for ks, n in RD3:
        a(rd3(0, ks, n))
    a("s_waitcnt lgkmcnt(0)")
    stamp(a, 12)
    a(".p2align 6\nL_s_loop:")
    stage3(a, 0, ACC_S, S_O, V_DO, f"s_waitcnt vmcnt(30)\ns_cmp_gt_u32 s{S_CNT}, 21\ns_cbranch_scc1 L_s_n0\ns_waitcnt vmcnt(18)\nL_s_n0:",
           f"s_cmp_eq_u32 s{S_CNT}, s{S_HOOK}\ns_cbranch_scc1 L_s_h\nL_s_r:", False)
    stage3(a, 1, ACC_S, S_O, V_DO, f"s_waitcnt vmcnt(25)\ns_cmp_gt_u32 s{S_CNT}, 21\ns_cbranch_scc1 L_s_n1\ns_waitcnt vmcnt(18)\nL_s_n1:",
           "", True)
    a(f"""
    s_cbranch_scc1 L_s_loop
    s_branch L_s_done
    L_s_h:
    s_lshl_b32 s{S_PO}, s{S_TILE}, 9
    s_add_u32 s{S_PO}, s{S_PO}, {FL_F5}
    s_cmp_eq_u32 s{S_CNT}, 4
    s_cbranch_scc1 L_s_h2
    s_mov_b32 s{S_HOOK}, 4
    s_cmp_lg_u32 s{S_WAVE}, 0
    s_cbranch_scc1 L_s_r
    s_lshl_b32 s{S_T1}, s{S_J}, 7
    s_add_u32 s{S_T0}, s{S_PO}, s{S_T1}
    """)
    signal(a)
    a(f"""
    s_branch L_s_r
    L_s_h2:
    s_mov_b32 s{S_O+2}, 0
    s_mov_b32 s{S_WF+2}, 0
    buffer_load_dword v60, v{V_FV}, {sq(S_FL)}, s{S_PO} offen sc1
    s_branch L_s_r
    L_repoll5:
    buffer_load_dword v60, v{V_FV}, {sq(S_FL)}, s{S_PO} offen sc1
    s_waitcnt vmcnt(0)
    L_s_done:
    v_cmp_ne_u32 vcc, v{V_ONE}, v60
    s_cbranch_vccnz L_repoll5
    s_waitcnt lgkmcnt(0)
    """)
    stamp(a, 13)
    GP, g, u, xx = 176, 224, 96, 116
    pack_store(a, ACC_S, 0)
    part_loads(a, PART_BYTES, GP)
    stamp(a, 14)
    a(f"""
    s_lshl_b32 s{S_PO}, s{S_TILE}, 11
    s_add_u32 s{S_PO}, s{S_PO}, {FL_F6}
    s_lshl_b32 s{S_T0}, s{S_WAVE}, 9
    s_lshl_b32 s{S_T1}, s{S_J}, 7
    s_add_u32 s{S_T0}, s{S_T0}, s{S_T1}
    s_add_u32 s{S_T0}, s{S_T0}, s{S_PO}
    s_lshl_b32 s{S_T1}, s{S_J}, 9
    s_add_u32 s{S_PO}, s{S_PO}, s{S_T1}
    s_waitcnt vmcnt(12)
    """)
    signal(a)
    stamp(a, 15)
    part_sum(a, GP, g, 1, 60)
    nl2e = -math.log2(math.e)
    for e in range(10):
        a(f"v_lshlrev_b32 v{u+2*e}, 16, v{V_B2+e}\nv_and_b32 v{u+1+2*e}, 0xffff0000, v{V_B2+e}")
    for tmpl in ("v_add_f32 v{g}, v{u}, v{g}", "v_mul_f32 v{u}, " + fh(nl2e) + ", v{g}", "v_exp_f32 v{u}, v{u}",
                 "v_add_f32 v{u}, 1.0, v{u}", "v_rcp_f32 v{u}, v{u}"):
        for e in range(20):
            a(tmpl.format(g=g + e, u=u + e))
    for e in range(10):
        a(f"v_lshlrev_b32 v{xx+2*e}, 16, v{V_X+e}\nv_and_b32 v{xx+1+2*e}, 0xffff0000, v{V_X+e}")
    for e in range(20):
        a(f"v_mul_f32 v{g+e}, v{g+e}, v{u+e}")
    a(f"""
    L_poll4:
    buffer_load_dword v60, v{V_FV}, {sq(S_FL)}, s{S_PO} offen sc1
    s_waitcnt vmcnt(0)
    v_cmp_ne_u32 vcc, v{V_ONE}, v60
    s_cbranch_vccnz L_poll4
    """)
    stamp(a, 16)
    part_loads(a, 0, GP)
    part_sum(a, GP, u, 0, 60)
    for e in range(20):
        a(f"v_fmac_f32 v{xx+e}, v{g+e}, v{u+e}")
    for j in range(5):
        a(f"v_cvt_pk_bf16_f32 v{140+2*j}, v{xx+4*j}, v{xx+1+4*j}\nv_cvt_pk_bf16_f32 v{141+2*j}, v{xx+2+4*j}, v{xx+3+4*j}")
        a(f"buffer_store_dwordx2 {vr(140+2*j,2)}, v{V_OO}, {sq(S_OUT)}, 0 offen offset:{32*j}{os.environ.get('OUTSC','')}")
    stamp(a, 17)
    if STAMP:
        a("s_waitcnt vmcnt(0)")
        stamp(a, 18)
        if os.environ.get("DBG"):
            sel = [0, 1, 2, 3, 4, 5, 6, 7, 8, 9, 10, 12, 13, 15, 16, 18]
            for k, x in enumerate(sel):
                a(f"v_readlane_b32 s3, v39, {x}\ns_nop 3" + ("\ns_not_b32 s3, s3" if k == 0 else "") + f"\nv_writelane_b32 v40, s3, {k}")
            srd(a, 4, P_DBG, 64)
            a(f"buffer_atomic_umax v40, v{V_L4}, s[4:7], 0 offen\ns_waitcnt vmcnt(0)")
        srd(a, 4, P_WS, 1 << 20, WS_DBG)
        a(f"s_lshl_b32 s3, s2, 2\ns_add_u32 s3, s3, s{S_WAVE}\ns_lshl_b32 s3, s3, 9\nv_lshlrev_b32 v2, 3, v0\nv_add_u32 v2, s3, v2")
        a("buffer_store_dwordx2 v[38:39], v2, s[4:7], 0 offen\ns_waitcnt vmcnt(0)")
    a("L_end:\ns_endpgm")


def build():
    a = Asm()
    a.l.append("; @launch grid=(256,1,1) block=(256,1,1) lds=163840")
    a('.amdgcn_target "amdgcn-amd-amdhsa--gfx950"\n.text')
    a(f".globl {KNAME}")
    gen_kernel(a)
    a('.section .rodata,"a"\n.p2align 6')
    a.l.append(f""".amdhsa_kernel {KNAME}
  .amdhsa_next_free_vgpr 512
  .amdhsa_next_free_sgpr 102
  .amdhsa_accum_offset 256
  .amdhsa_group_segment_fixed_size 0
  .amdhsa_kernarg_size 104
  .amdhsa_user_sgpr_count 2
  .amdhsa_user_sgpr_kernarg_segment_ptr 1
  .amdhsa_system_sgpr_workgroup_id_x 1
.end_amdhsa_kernel""")
    return a.text()


if __name__ == "__main__":
    STAMP = "stamp" in sys.argv
    open(sys.argv[1], "w").write(build())
```

```python
import sys, math, os, struct

NAME = "recurrent_scan__gqa_block_cached__dense_activation_gelu__prompt"
KNAME = NAME + "_kernel"
WS_XN, WS_H, WS_O, WS_WF, WS_PART, WS_FLAG, WS_DBG = 0, 4 << 20, 16 << 20, 48 << 20, 80 << 20, 112 << 20, 128 << 20
XN_BYTES = 2048 * 640 * 2
H_BYTES = 2048 * 1536 * 2
O_BYTES = 2048 * 6144 * 2
WF_BYTES = 240 * 40960
PART_BYTES = 64 * 64 * 2560
FL_F1, FL_F3, FL_F2, FL_F4, FL_F5, FL_NONCE = 0, 32768, 65536, 98304, 131072, 163840
FL_F6 = 163968
FLAG_BYTES = FL_F6 + 1024 * 128
STAMP = False
OFF = float(os.environ.get("OFF", 102.0))
GUARD_LO = 2.0 ** -110


def fh(x):
    return "0x%08x" % struct.unpack("<I", struct.pack("<f", x))[0]


class Asm:
    def __init__(self):
        self.l = []

    def __call__(self, s):
        for line in s.strip("\n").split("\n"):
            line = line.strip()
            if line:
                self.l.append(line if line.endswith(":") or line.startswith(".") else "    " + line)

    def text(self):
        return "\n".join(self.l) + "\n"


def vr(b, n=4, p="v"):
    return f"{p}[{b}:{b+n-1}]"


def ar(b, n=4):
    return vr(b, n, "a")


def srd(a, d, lo, nbytes, add=None):
    if add is None:
        a(f"s_mov_b32 s{d}, s{lo}\ns_mov_b32 s{d+1}, s{lo+1}")
    else:
        a(f"s_add_u32 s{d}, s{lo}, {add}\ns_addc_u32 s{d+1}, s{lo+1}, 0")
    a(f"s_mov_b32 s{d+2}, {nbytes}\ns_mov_b32 s{d+3}, 0x00020000")


def sq(d):
    return f"s[{d}:{d+3}]"


def mfma(d, a_, b, c):
    return f"v_mfma_f32_16x16x32_bf16 {d}, {a_}, {b}, {c}"


def stamp(a, i):
    if STAMP:
        a(f"""s_memtime s[98:99]
        s_waitcnt lgkmcnt(0)
        v_writelane_b32 v38, s98, {i}
        s_memrealtime s[98:99]
        s_waitcnt lgkmcnt(0)
        v_writelane_b32 v39, s98, {i}""")


SLOT = 24576
LDS_K, LDS_V, LDS_X = 0, 3 * SLOT, 6 * SLOT
LDS_W1 = 2 * SLOT
LDS_FLAG = LDS_X + 12288
STG = 36864
LDS_WOFF = 16384

S_XN, S_WQ, S_W1, S_K, S_V, S_H, S_O, S_MISC = 4, 8, 12, 16, 20, 24, 28, 32
S_HEAD, S_QB, S_WAVE, S_HOOK = 36, 37, 38, 39
S_RD, S_DMA, S_SO0, S_SO1, S_CNT, S_T0, S_T1, S_BOFF = 40, 41, 42, 43, 44, 45, 46, 47
S_W3072, S_SV0, S_SV1, S_PASS, S_RD1, S_DMA1, S_SW0, S_SW1 = 48, 49, 50, 51, 52, 53, 54, 55
S_C0, S_C1, S_M0, S_KC = 56, 57, 58, 59
P_K, P_V, P_WQ, P_WO, P_W1, P_B1, P_W2, P_B2, P_OUT, P_DBG, P_WS, P_X = 60, 62, 64, 66, 68, 70, 72, 74, 76, 78, 80, 82
S_X, S_WF, S_FL = 84, 88, 92
S_RS, S_RO = 96, 97
S_NONCE, S_HS = 100, 101
S_RK, S_DV, S_DKM, S_DVM = S_RD1, S_DMA1, S_DMA, S_BOFF
S_PT, S_OUT, S_B2 = 4, 8, 12
S_J, S_MB, S_NB, S_OO, S_WO, S_WO4, S_R3, S_DO, S_DW, S_LO, S_LW, S_TILE, S_WS0, S_PO = 40, 41, 42, 43, 47, 48, 49, 50, 52, 53, 54, 55, 56, 57

V_L, V_KA, V_VA, V_KB, V_VB, V_DK, V_DV = 2, 6, 8, 12, 14, 18, 19
V_F2 = 20
V_RD, V_RR = 32, 33
V_ZERO, V_ONE = 36, 37
V_NM = 40
V_L4, V_L128 = 62, 63
V_Q, V_S, V_P = 64, 128, 192
A_RING, A_Q = 192, 224
P1_ACC, P1_H, P1_RING, P1_B = 64, 0, 48, 88
V1_WA, V1_FA, V1_WB, V1_FB, V1_DW, V1_DF, V1_X = 6, 8, 12, 14, 20, 21, 22
V_RB, V_RA, V_DH, V_DO, V_RB0, V_RA0, V_OO, V_BO, V_PO, V_FV = 6, 7, 12, 14, 16, 17, 18, 19, 32, 33
V_X, V_B2, FR = 64, 74, 0
ACC_S, ACC_G = 96, 176


X_RINGV = os.environ.get("RINGV")
X_QV = os.environ.get("QV")
X_NOCHAIN = os.environ.get("NOCHAIN")


def q_reg(s, t):
    i = 4 * s + t
    if X_QV:
        return vr(V_Q + 4 * (i % 16))
    return vr(V_Q + 4 * i) if i < 16 else ar(A_Q + 4 * (i - 16))


def s_reg(u, t):
    return V_S + 4 * (4 * u + t)


def p_reg(par, ch, t):
    return V_P + 32 * par + 16 * ch + 4 * t


def code_prefetch(a, tag, first, last, sreg, vdst, one=False):
    a(f"""
    s_getpc_b64 s[{sreg}:{sreg+1}]
    L_pc{tag}:
    s_add_u32 s{sreg}, s{sreg}, {first}-L_pc{tag}
    s_addc_u32 s{sreg+1}, s{sreg+1}, 0
    s_mov_b32 s{sreg+2}, {last}-{first}
    s_mov_b32 s{sreg+3}, 0x00020000
    """)
    if one:
        a(f"""s_bfe_u32 s{S_T0}, s2, 0x30003
        s_lshl_b32 s{S_T0}, s{S_T0}, 2
        s_add_u32 s{S_T0}, s{S_T0}, s{S_WAVE}
        s_mul_i32 s{S_T0}, s{S_T0}, 640
        v_min_u32 v{vdst+1}, 512, v{V_L128}
        buffer_load_dword v{vdst}, v{vdst+1}, {sq(sreg)}, s{S_T0} offen""")
        return
    a(f"""
    s_mov_b32 s{S_T0}, 8192
    s_mov_b32 s{S_T1}, 16384
    buffer_load_dword v{vdst}, v{V_L128}, {sq(sreg)}, 0 offen
    buffer_load_dword v{vdst+1}, v{V_L128}, {sq(sreg)}, s{S_T0} offen
    buffer_load_dword v{vdst+2}, v{V_L128}, {sq(sreg)}, s{S_T1} offen
    """)


def half_lanes(a, ins):
    a("s_mov_b32 exec_hi, 0")
    a(ins)
    a("s_mov_b32 exec_hi, -1")


def wait_counts(seq2, period, waits):
    cnt = {}
    for k, wt in waits.items():
        last = max(tm for tm, kk in seq2 if kk == k and tm < wt)
        cnt[k] = (sum(1 for tm, kk in seq2 if last < tm < wt), wt - last)
    return cnt


DMA_GAP = eval(os.environ.get('DG', '[3, 19, 35, 51, 59, 67, 93, 109, 125, 141, 149, 157]'))


AUX_RD, AUX_ST, AUX_DMA = (26, 27), 53, 11


def build_schedule():
    N = 192
    G = [dict(lds=None, exp=None, valu=[], dma=None, wait=None) for _ in range(N)]
    for g in range(24):
        pos = 0
        fk = (g + 2) % 24
        if fk < 12:
            for k in range(2):
                G[8 * g + pos]["lds"] = (fk, k)
                pos += 1
        fv = g + 3
        if 12 <= fv < 24:
            for k in range(4):
                G[8 * g + pos]["lds"] = (fv, k)
                pos += 1
    for i in range(12):
        G[DMA_GAP[i]]["dma"] = i
    for f in range(24):
        G[(8 * f - 1) % N]["wait"] = f
    for k in range(2):
        G[AUX_RD[k]]["lds"] = (24, k)
    G[AUX_ST]["dma"] = 12
    G[AUX_DMA]["dma"] = 13
    free = [i for i in range(N) if G[i]["lds"] is None and G[i]["dma"] is None]
    free2 = free + [N + x for x in free]
    seq = [(u, t, r) for u in range(4) for t in range(4) for r in range(4)]
    start = [k for k, x in enumerate(free2) if x >= 24][0]
    etime = {}
    k = float(start)
    step = len(free) / 64.0
    for e, (u, t, r) in enumerate(seq):
        kk = int(start + e * step)
        ready = 24 * u + 16 + 2 * t + 1 + 4
        while free2[kk] < ready or G[free2[kk] % N]["exp"] is not None:
            kk += 1
        tm = free2[kk]
        G[tm % N]["exp"] = ("prev" if tm >= N else "cur", u, t, r)
        etime[(u, t, r)] = tm
    cap = [0 if (G[i]["dma"] is not None or G[i]["exp"] is not None) else (1 if G[i]["lds"] is not None else 2) for i in range(N)]
    if os.environ.get("CAP1"):
        for i in range(N):
            if G[i]["lds"] is not None and G[(i + 1) % N]["lds"] is not None:
                cap[i] = 0
    if os.environ.get("CAP2"):
        for i in range(N):
            if G[i]["lds"] is not None and G[i - 1]["lds"] is not None:
                cap[i] = 0
    ops = []
    for (u, t, r) in seq:
        ops.append((etime[(u, t, r)] + 1, "add", u, t, r))
        if r & 1:
            ops.append((etime[(u, t, r)] + 1, "cvt", u, t, r >> 1))
    ops.sort(key=lambda o: (o[0], o[1] == "add"))
    used = [0] * N
    for o in ops:
        tm = o[0]
        while used[tm % N] >= cap[tm % N]:
            tm += 1
        assert tm < N + 24 * o[2] + 2 * o[3], (o, tm)
        assert tm < N + 92
        used[tm % N] += 1
        G[tm % N]["valu"].append(("prev" if tm >= N else "cur",) + o[1:])
    return G, [cap[i] - used[i] for i in range(N)]


def att_counts(G, nok=False, aux=False):
    seq = [(rep * 192 + i, G[i]["lds"][0]) for rep in range(2) for i in range(192)
           if G[i]["lds"] is not None and not (nok and rep == 1 and G[i]["lds"][0] < 12) and (aux or G[i]["lds"][0] != 24)]
    ks = range(12, 24) if nok else range(24)
    c = wait_counts(seq, 192, {f: 192 + 8 * f - 1 for f in ks})
    assert all(v[0] <= 15 for v in c.values()), c
    return {k: v[0] for k, v in c.items()}


def soft(kind, which, u, t, x, par_cur):
    par = par_cur if which == "cur" else 1 - par_cur
    s = s_reg(u, t)
    if kind == "exp":
        return f"v_exp_f32 v{s+x}, v{s+x}"
    if kind == "add":
        return f"v_add_f32 v{V_L+t}, v{s+x}, v{V_L+t}"
    return f"v_cvt_pk_bf16_f32 v{p_reg(par, u >> 1, t) + 2*(u&1) + x}, v{s+2*x}, v{s+2*x+1}"


def ring(grp, k):
    return A_RING + 8 * (grp % 4) + 4 * k


def rr(b, n=4):
    return vr(b, n) if X_RINGV else ar(b, n)


def k_read(grp, k):
    u, s = grp // 3, 2 * (grp % 3) + k
    return f"ds_read_b128 {rr(ring(grp, k))}, v{V_KA+k} offset:{2*u*3072 + (s>>1)*1024}"


def v_read(grp, k):
    dt, ch, part = grp - 12, k >> 1, k & 1
    return f"ds_read_b64_tr_b16 {rr(ring(grp, ch) + 2*part, 2)}, v{V_VA+(dt&3)} offset:{(4*ch+2*part)*3072 + (dt>>2)*1024}"


def qk_mfma(grp, p, first_c):
    if X_NOCHAIN:
        p = 2 * (p & 3) + (p >> 2)
    u, s, t = grp // 3, 2 * (grp % 3) + (p & 1), p >> 1
    c = first_c(t) if s == 0 else vr(s_reg(u, t))
    return mfma(vr(s_reg(u, t)), rr(ring(grp, p & 1)), q_reg(s, t), c)


def gen_body(a, G, spare, par, tail=False, tailq=None, lab=""):
    cnt = att_counts(G, nok=tail, aux=(lab == "a"))
    ev, es, sp = {}, {}, list(spare)

    def put_v(lo, hi, ins):
        for i in range(lo, hi):
            if sp[i] > 0:
                sp[i] -= 1
                ev.setdefault(i, []).append(ins)
                return
        raise AssertionError(ins)

    def put_s(lo, hi, ins):
        need = ins.count("\ns_")
        for i in range(lo, hi):
            if G[i]["lds"] is None and G[i]["dma"] is None and G[i]["wait"] is None and i not in es and sp[i] >= need:
                es[i] = ins
                sp[i] -= need
                return i
        raise AssertionError(ins)
    if not tail:
        for i in range(12):
            base = S_DKM if i < 6 else S_DVM
            d = i % 6
            assert G[DMA_GAP[i] - 1]["lds"] is None and G[DMA_GAP[i] - 1]["wait"] is None
            es[DMA_GAP[i] - 1] = f"s_add_u32 m0, s{base}, {(d//3)*12288 + (d%3)*896}"
        if lab == "b":
            es[AUX_DMA - 1] = f"s_add_u32 m0, s{S_W3072}, {LDS_X}"
            put_s(12, 30, f"s_add_u32 s{S_RS}, s{S_RS}, 128")
            put_s(12, 66, f"s_cmp_le_u32 s{S_CNT}, 12\ns_cselect_b32 s{S_MISC+2}, 0, s{S_MISC+2}")
        else:
            put_s(54, 66, f"s_add_u32 s{S_RO}, s{S_RO}, 4096")
            put_s(54, 70, f"s_cmp_gt_u32 s{S_CNT}, 11\ns_cselect_b32 s{S_WF+2}, {WF_BYTES}, 0")
        put_s(28, 66, f"s_cmp_eq_u32 s{S_CNT}, s{S_HOOK}\ns_cbranch_scc1 L_hook{lab}\nL_hret{lab}:")
        i = 71
        for x in (f"s_add_u32 s{S_SO0}, s{S_SO0}, {SLOT}", f"s_add_u32 s{S_SO1}, s{S_SO1}, {SLOT}",
                  f"s_sub_u32 s{S_CNT}, s{S_CNT}, 1",
                  f"s_mov_b32 s{S_T1}, s{S_RD}", f"s_mov_b32 s{S_RD}, s{S_RK}", f"s_mov_b32 s{S_RK}, s{S_DV}", f"s_mov_b32 s{S_DV}, s{S_T1}",
                  f"s_add_u32 s{S_DKM}, s{S_RD}, s{S_W3072}"):
            i = put_s(i, 150, x) + 1
        for j in range(2):
            put_v(max(i, 80), 172, f"v_add_u32 v{V_KA+j}, s{S_RK}, v{V_KB+j}")
        for j in range(4):
            put_v(0, 66, f"v_add_u32 v{V_VA+j}, s{S_RD}, v{V_VB+j}")
        i = 158
        for x in (f"s_add_u32 s{S_SV0}, s{S_SV0}, {SLOT}", f"s_add_u32 s{S_SV1}, s{S_SV1}, {SLOT}", f"s_add_u32 s{S_DVM}, s{S_DV}, s{S_M0}"):
            es.setdefault(169, "")
            es.setdefault(170, "")
            i = put_s(i, 184, x) + 1
        es[169] = f"s_waitcnt vmcnt({11 if lab == 'b' else 12}) lgkmcnt(0)"
        es[170] = "s_barrier"
        put_s(186, 191, f"s_cmp_lg_u32 s{S_CNT}, 0")
    for i in range(192):
        g = G[i]
        grp, p = i // 8, i % 8
        if grp < 12:
            if not tail:
                a(qk_mfma(grp, p, lambda t: vr(V_NM + 4 * t)))
        else:
            pp = 2 * (p & 3) + (p >> 2) if X_NOCHAIN else p
            o = ar(4 * (4 * (grp - 12) + (pp >> 1)))
            a(mfma(o, rr(ring(grp, pp & 1)), vr(p_reg(1 - par, pp & 1, pp >> 1)), o))
        if g["wait"] is not None:
            f = g["wait"]
            if (tail and 12 <= f < 24) or (not tail and f not in (22, 23)):
                a("s_waitcnt lgkmcnt(%d)" % cnt[f])
        elif i in es:
            a(es[i])
        if g["lds"] is not None and not os.environ.get("NOLDS"):
            f, k = g["lds"]
            if f == 24:
                if lab == "a":
                    a(f"ds_read_b64_tr_b16 {vr(28+2*k,2)}, v{V_RR} offset:{k*6144}")
            elif f >= 12:
                if not (tail and f < 15):
                    a(v_read(f, k))
            elif not tail:
                a(k_read(f, k))
        if g["dma"] is not None and not tail and not os.environ.get("NODMA"):
            d = g["dma"]
            if d == 12:
                if lab == "a":
                    a(f"buffer_store_dwordx4 v[28:31], v1, {sq(S_WF)}, s{S_RO} offen sc1")
            elif d == 13:
                if lab == "b":
                    a(f"buffer_load_dwordx4 v{V_RD}, {sq(S_MISC)}, s{S_RS} offen lds")
            elif d < 6:
                a(f"buffer_load_dwordx4 v{V_DK}, {sq(S_K)}, s{S_SO0 + d//3} offen offset:{(d%3)*128} lds")
            else:
                d -= 6
                a(f"buffer_load_dwordx4 v{V_DV}, {sq(S_V)}, s{S_SV0 + d//3} offen offset:{(d%3)*128} lds")
        if g["exp"] is not None and not (tail and g["exp"][0] == "cur"):
            w, u, t, r = g["exp"]
            a(soft("exp", w, u, t, r, par))
            if tail and grp < 12:
                a("s_nop 0")
        for (w, kind, u, t, x) in g["valu"]:
            if not (tail and w == "cur") and not os.environ.get("NOVALU"):
                a(soft(kind, w, u, t, x, par))
        for ins in ev.get(i, []):
            a(ins)
        if tail and i == 95:
            a("s_nop 1")
        if tail and i >= 96:
            qd, qv = tailq
            if g["lds"] is not None and g["lds"][0] >= 12:
                if qv:
                    a(qv.pop(0))
            elif qd:
                a(qd.pop(0))
    if tail:
        assert not tailq[0] and not tailq[1], tailq


def p1_acc(f, t):
    if f < 12:
        return vr(P1_ACC + 8 * (4 * (f >> 1) + t) + 4 * (f & 1))
    return ar(P1_H + 4 * (4 * (f - 12) + t))


def p1_read(f, k):
    ks, part = k >> 1, k & 1
    dst = ar(P1_RING + 8 * (f % 5) + 4 * ks + 2 * part, 2)
    if f < 12:
        s, half = f >> 1, f & 1
        return f"ds_read_b64_tr_b16 {dst}, v{V1_WA+(s&1)} offset:{ks*4*3072 + (s>>1)*1024 + part*512 + half*8}"
    return f"ds_read_b64_tr_b16 {dst}, v{V1_FA+f-12} offset:{ks*4096 + part*512}"


def gen_p1_stage(a, sp):
    slots = {g: [] for g in range(15)}
    pend = [(f, k) for f in range(2, 15) for k in range(4)]
    g = 0
    while pend:
        while pend and len(slots[g]) < 6 and g >= pend[0][0] - 4:
            slots[g].append(pend.pop(0))
        g += 1
    assert g <= 11, g
    slots[13] = [(0, k) for k in range(4)]
    slots[14] = [(1, k) for k in range(4)]
    seq = [(rep * 120 + 8 * gg + p, f) for rep in range(2) for gg in range(15) for p, (f, k) in enumerate(slots[gg])]
    cnt = wait_counts(seq, 120, {f: 120 + 8 * f - 1 for f in range(15)})
    assert all(c <= 15 and d >= 8 for c, d in cnt.values()), cnt
    ex = {}

    def put(grp, p, ins):
        assert p >= len(slots[grp]), (grp, p)
        ex.setdefault((grp, p), []).append(ins)
    for j in range(8):
        ks, t = j >> 2, j & 3
        put(j, 6, f"buffer_load_dwordx4 {ar(P1_B + 32*(1-sp) + 16*ks + 4*t)}, v{V1_X+t}, {sq(S_XN)}, s{S_BOFF} offen offset:{ks*1024} sc1")
    for d in range(8):
        grp, p = (4 + d, 4) if d < 7 else (11, 0)
        if d < 6:
            put(grp, p, f"s_add_u32 m0, s{S_DMA}, {LDS_V + (d//3)*12288 + (d%3)*896}")
            put(grp, p + 1, f"buffer_load_dwordx4 v{V1_DW}, {sq(S_WQ)}, s{S_SO0 + d//3} offen offset:{(d%3)*128} lds")
        else:
            put(grp, p, f"s_add_u32 m0, s{S_DMA1}, {LDS_W1 + (d-6)*4096}")
            put(grp, p + 1, f"buffer_load_dwordx4 v{V1_DF}, {sq(S_W1)}, s{S_SW0 + d-6} offen lds")
    put(12, 6, f"buffer_load_dword v47, v46, {sq(S_O)}, s{S_M0} offen")
    put(13, 7, f"s_add_u32 s{S_M0}, s{S_M0}, s{S_HS}")
    nv = 5
    if sp == 0:
        for d, (grp, p) in enumerate(((11, 2), (11, 4), (12, 0))):
            put(grp, p, f"s_add_u32 m0, s{S_C0}, {d*896}")
            put(grp, p + 1, f"buffer_load_dwordx4 v{V_DK}, {sq(S_K)}, s{S_SV0} offen offset:{d*128} lds")
        put(13, 4, f"s_mov_b32 s{S_SV0}, s{S_SV1}\ns_add_u32 s{S_SV1}, s{S_SV1}, 12288")
        put(13, 5, f"s_mov_b32 s{S_C0}, s{S_C1}\ns_add_u32 s{S_C1}, s{S_C1}, 12288\ns_mov_b32 s{S_K+2}, 786432")
        put(13, 6, f"s_cmp_eq_u32 s{S_CNT}, 1\ns_cselect_b32 s{S_XN+2}, 0, s{S_XN+2}")
        nv = 8
    else:
        put(13, 4, f"s_sub_u32 s{S_CNT}, s{S_CNT}, 1")
        put(13, 5, f"s_cmp_eq_u32 s{S_CNT}, 2\ns_cselect_b32 s{S_O}, s{S_HOOK}, s{S_O}\ns_cselect_b32 s{S_O+1}, s{S_KC}, s{S_O+1}")
        put(13, 6, f"s_cselect_b32 s{S_O+2}, s{S_V+2}, s{S_O+2}\ns_cselect_b32 s{S_HS}, s3, s{S_HS}\ns_cselect_b64 vcc, -1, 0")
        put(14, 5, f"s_cmp_eq_u32 s{S_CNT}, 2\ns_cselect_b32 s{S_M0}, 0, s{S_M0}\nv_cndmask_b32 v46, v46, v60, vcc")
    put(9, 6, f"s_mov_b32 s{S_T1}, s{S_RD}\ns_add_u32 s{S_RD}, s{S_RD}, {SLOT}\ns_add_u32 s{S_BOFF}, s{S_BOFF}, 2048")
    put(10, 6, f"s_cmp_eq_u32 s{S_RD}, {3*SLOT}\ns_cselect_b32 s{S_RD}, 0, s{S_RD}\ns_add_u32 s{S_DMA}, s{S_T1}, s{S_W3072}")
    put(11, 6, f"s_lshl_b32 s{S_T0}, s{S_WAVE}, 10\ns_add_u32 s{S_DMA1}, s{S_RD1}, s{S_T0}\ns_add_u32 s{S_RD1}, s{S_RD1}, 8192")
    put(12, 2, f"s_cmp_eq_u32 s{S_RD1}, {3*8192}\ns_cselect_b32 s{S_RD1}, 0, s{S_RD1}")
    put(12, 3, f"v_add_u32 v{V1_WA}, s{S_RD}, v{V1_WB}\nv_add_u32 v{V1_WA+1}, s{S_RD}, v{V1_WB+1}")
    put(8, 6, f"s_add_u32 s{S_SO0}, s{S_SO0}, {64*12288}")
    put(12, 7, f"s_add_u32 s{S_SO1}, s{S_SO1}, {64*12288}\nv_add_u32 v{V1_FA}, s{S_RD1}, v{V1_FB}\nv_add_u32 v{V1_FA+1}, s{S_RD1}, v{V1_FB+1}")
    put(12, 4, f"v_add_u32 v{V1_FA+2}, s{S_RD1}, v{V1_FB+2}")
    put(14, 4, f"s_add_u32 s{S_SW0}, s{S_SW0}, {64*3072}\ns_add_u32 s{S_SW1}, s{S_SW1}, {64*3072}")
    ex[(12, 4)].insert(0, "s_waitcnt vmcnt(16) lgkmcnt(0)")
    put(12, 5, "s_barrier")
    if sp == 1:
        put(14, 6, f"s_cmp_lg_u32 s{S_CNT}, 0")
    for i in range(120):
        grp, p = i // 8, i % 8
        t, ks = p >> 1, p & 1
        acc = p1_acc(grp, t)
        a(mfma(acc, ar(P1_RING + 8 * (grp % 5) + 4 * ks), ar(P1_B + 32 * sp + 16 * ks + 4 * t), acc))
        if p < len(slots[grp]):
            a(p1_read(*slots[grp][p]))
        if p == 7:
            f = (grp + 1) % 15
            w = [f"vmcnt({nv})"] if f == 0 else []
            if f not in (13, 14):
                w.append(f"lgkmcnt({cnt[f][0]})")
            if w:
                a("s_waitcnt " + " ".join(w))
        for x in ex.get((grp, p), []):
            a(x)


def dma_tile(a, voff, srdreg, so0, so1, sbase, lds_const, n=6):
    for d in range(n):
        a(f"s_add_u32 m0, s{sbase}, {lds_const + (d//3)*12288 + (d%3)*896}\ns_nop 0")
        a(f"buffer_load_dwordx4 v{voff}, {sq(srdreg)}, s{so0 if d < 3 else so1} offen offset:{(d%3)*128} lds")


def gen_ln_body(a):
    R, U, T, Q, RO = 64, 96, 86, 136, 144
    for i in range(5):
        a(f"s_waitcnt vmcnt({3 + 4 - i + (2 if os.environ.get('TOUCH') else 0)})")
        for j in range(4):
            r, d = R + 4 * i + j, U + 8 * i + 2 * j
            a(f"v_lshlrev_b32 v{d}, 16, v{r}\nv_and_b32 v{d+1}, 0xffff0000, v{r}")
    stamp(a, 19)
    for k in range(4):
        a(f"v_add_f32 v{T+k}, v{U+k}, v{U+4+k}")
    for e in range(8, 40):
        a(f"v_add_f32 v{T+e%4}, v{U+e}, v{T+e%4}")
    a(f"v_add_f32 v{T}, v{T}, v{T+1}\nv_add_f32 v{T+2}, v{T+2}, v{T+3}\nv_add_f32 v{T}, v{T}, v{T+2}")
    for sh in (8, 4, 2, 1):
        a(f"s_nop 1\nv_add_f32 v{T}, v{T}, v{T} row_ror:{sh}")
    a(f"v_mul_f32 v{T}, {fh(1/640)}, v{T}")
    for e in range(40):
        t = 140 + e % 4
        a(f"v_sub_f32 v{t}, v{U+e}, v{T}")
        a(f"v_mul_f32 v{Q+e}, v{t}, v{t}" if e < 4 else f"v_fmac_f32 v{Q+e%4}, v{t}, v{t}")
    a(f"v_add_f32 v{Q}, v{Q}, v{Q+1}\nv_add_f32 v{Q+2}, v{Q+2}, v{Q+3}\nv_add_f32 v{Q}, v{Q}, v{Q+2}")
    for sh in (8, 4, 2, 1):
        a(f"s_nop 1\nv_add_f32 v{Q}, v{Q}, v{Q} row_ror:{sh}")
    a(f"""
    v_mul_f32 v{Q}, {fh(1/640)}, v{Q}
    v_cvt_pk_bf16_f32 v{T+1}, v{T}, v{Q}
    v_lshlrev_b32 v{T}, 16, v{T+1}
    v_and_b32 v{Q}, 0xffff0000, v{T+1}
    v_add_f32 v{Q}, {fh(1e-5)}, v{Q}
    v_cvt_pk_bf16_f32 v{Q}, v{Q}, v{Q}
    v_and_b32 v{Q}, 0xffff0000, v{Q}
    v_sqrt_f32 v{Q}, v{Q}
    s_nop 0
    v_cvt_pk_bf16_f32 v{Q}, v{Q}, v{Q}
    v_and_b32 v{Q}, 0xffff0000, v{Q}
    v_rcp_f32 v{Q}, v{Q}
    s_mov_b32 s{S_T0}, 0
    """)
    for i in range(5):
        for j in range(4):
            e = U + 8 * i + 2 * j
            a(f"""
            v_sub_f32 v{e}, v{e}, v{T}
            v_sub_f32 v{e+1}, v{e+1}, v{T}
            v_cvt_pk_bf16_f32 v{e}, v{e}, v{e+1}
            v_and_b32 v{e+1}, 0xffff0000, v{e}
            v_lshlrev_b32 v{e}, 16, v{e}
            v_mul_f32 v{e}, v{e}, v{Q}
            v_mul_f32 v{e+1}, v{e+1}, v{Q}
            v_cvt_pk_bf16_f32 v{RO+4*i+j}, v{e}, v{e+1}
            """)
        a(f"buffer_store_dwordx4 {vr(RO+4*i)}, v84, {sq(S_MISC)}, s{S_T0} offen sc1")
        a(f"s_add_u32 s{S_T0}, s{S_T0}, 4096")


def dma3(k, bsrd, bv):
    if k < 4:
        r, ks = k >> 1, k & 1
        pre = [f"s_add_u32 m0, s{S_DO}, {r*2048}"] if ks == 0 else []
        return pre, f"buffer_load_dwordx4 v{bv+r}, {sq(bsrd)}, s{S_OO} offen offset:{ks*1024} sc1 lds"
    i = k - 4
    if i < 4:
        pre = [f"s_mov_b32 m0, s{S_DW}"] if i == 0 else []
        return pre, f"buffer_load_dwordx4 v1, {sq(S_WF)}, s{S_WO} offen offset:{i*1024} sc1 lds"
    return [f"s_add_u32 m0, s{S_DW}, 4096"], f"buffer_load_dwordx4 v1, {sq(S_WF)}, s{S_WO4} offen sc1 lds"


def fr3(par, ks, n):
    return FR + 72 * par + 36 * ks + 4 * n


def rd3(par, ks, n):
    if n < 4:
        return f"ds_read_b128 {ar(fr3(par, ks, n))}, v{V_RB} offset:{(2*n+ks)*1024}"
    return f"ds_read_b128 {ar(fr3(par, ks, n))}, v{V_RA} offset:{(10*ks+n-4)*1024}"


RD3 = [(ks, n) for n in (0, 4, 1, 2, 3, 5, 6, 7, 8) for ks in range(2)]
ADV3 = [f"s_add_u32 s{S_OO}, s{S_OO}, 2048", f"s_add_u32 s{S_WO}, s{S_WO}, {2*40960}", f"s_add_u32 s{S_WO4}, s{S_WO4}, {2*40960}"]


def stage3(a, par, accb, bsrd, bv, wait, hook, last):
    ex = {3: f"s_add_u32 s{S_DO}, s{S_R3}, s{S_LO}\ns_add_u32 s{S_DW}, s{S_R3}, s{S_LW}\ns_add_u32 s{S_R3}, s{S_R3}, {STG}",
          4: f"s_cmp_eq_u32 s{S_R3}, {4*STG}\ns_cselect_b32 s{S_R3}, 0, s{S_R3}",
          5: f"v_add_u32 v{V_RB}, s{S_R3}, v{V_RB0}\nv_add_u32 v{V_RA}, s{S_R3}, v{V_RA0}",
          6: wait, 7: "s_waitcnt lgkmcnt(0)\ns_barrier", 8: hook}
    g = 9
    for k in range(9):
        pre, ld = dma3(k, bsrd, bv)
        ex[g] = rd3(1 - par, *RD3[2 * k])
        ex[g + 1] = rd3(1 - par, *RD3[2 * k + 1]) + "".join("\n" + x for x in pre)
        ex[g + 2] = ld
        g += 3
    ex[36] = "\n".join(ADV3)
    ex[37] = f"s_sub_u32 s{S_CNT}, s{S_CNT}, 1"
    ex[39] = "s_waitcnt lgkmcnt(6)" + (f"\ns_cmp_lg_u32 s{S_CNT}, 0" if last else "")
    for g in range(40):
        i, t, ks = g // 8, (g % 8) >> 1, g & 1
        acc = vr(accb + 4 * (4 * i + t))
        a(mfma(acc, ar(fr3(par, ks, 4 + i)), ar(fr3(par, ks, t)), acc))
        if ex.get(g, "").strip():
            a(ex[g])


def pack_store(a, accb, region):
    a(f"""
    s_lshl_b32 s{S_T0}, s{S_TILE}, 2
    s_add_u32 s{S_T0}, s{S_T0}, s{S_WAVE}
    s_lshl_b32 s{S_T0}, s{S_T0}, 2
    s_add_u32 s{S_T0}, s{S_T0}, s{S_J}
    s_mul_i32 s{S_T0}, s{S_T0}, 10240
    s_add_u32 s{S_T0}, s{S_T0}, {region}
    """)
    for t in range(4):
        o = (20, 40, 84, 40)[t] if t != 3 else 50
        o = (20, 40, 84, 50)[t]
        for e in range(10):
            r = accb + 4 * (4 * (e >> 1) + t) + 2 * (e & 1)
            a(f"v_cvt_pk_bf16_f32 v{o+e}, v{r}, v{r+1}")
        a(f"""
        buffer_store_dwordx4 {vr(o)}, v1, {sq(S_PT)}, s{S_T0} offen sc1
        buffer_store_dwordx4 {vr(o+4)}, v1, {sq(S_PT)}, s{S_T0} offen offset:1024 sc1
        buffer_store_dwordx2 {vr(o+8,2)}, v{V_PO}, {sq(S_PT)}, s{S_T0} offen offset:2048 sc1
        s_add_u32 s{S_T0}, s{S_T0}, 2560
        """)


def part_loads(a, region, base):
    a(f"""
    s_lshl_b32 s{S_T0}, s{S_TILE}, 2
    s_add_u32 s{S_T0}, s{S_T0}, s{S_J}
    s_mul_i32 s{S_T0}, s{S_T0}, 40960
    s_mul_i32 s{S_T1}, s{S_WAVE}, 2560
    s_add_u32 s{S_T0}, s{S_T0}, s{S_T1}
    s_add_u32 s{S_T0}, s{S_T0}, {region}
    """)
    for src in range(4):
        o = base + 12 * src
        a(f"""
        buffer_load_dwordx4 {vr(o)}, v1, {sq(S_PT)}, s{S_T0} offen sc1
        buffer_load_dwordx4 {vr(o+4)}, v1, {sq(S_PT)}, s{S_T0} offen offset:1024 sc1
        buffer_load_dwordx2 {vr(o+8,2)}, v{V_PO}, {sq(S_PT)}, s{S_T0} offen offset:2048 sc1
        s_add_u32 s{S_T0}, s{S_T0}, 10240
        """)


def part_sum(a, base, dst, younger, tmp):
    for src in range(4):
        o = base + 12 * src
        a(f"s_waitcnt vmcnt({3*(3-src)+younger})")
        for e in range(10):
            if src == 0:
                a(f"v_lshlrev_b32 v{dst+2*e}, 16, v{o+e}\nv_and_b32 v{dst+1+2*e}, 0xffff0000, v{o+e}")
            else:
                a(f"v_lshlrev_b32 v{tmp}, 16, v{o+e}\nv_and_b32 v{tmp+1}, 0xffff0000, v{o+e}")
                a(f"v_pk_add_f32 {vr(dst+2*e,2)}, {vr(dst+2*e,2)}, {vr(tmp,2)}")


def signal(a):
    half_lanes(a, f"buffer_store_dword v{V_ONE}, v{V_L4}, {sq(S_FL)}, s{S_T0} offen sc1")


def swaps(op, src, tmp):
    q = []
    for perm in ("v_permlane32_swap_b32", "v_permlane16_swap_b32"):
        for what in ("v_mov_b32 v{b}, v{l}", perm + " v{l}, v{b}", op + " v{l}, v{l}, v{b}"):
            for t in (0, 2):
                q.append("\n".join(what.format(l=src + tt, b=tmp + tt) for tt in (t, t + 1)))
    return q


def gen_kernel(a):
    G, spare = build_schedule()
    a(f".p2align 8\n.type {KNAME},@function\n{KNAME}:")
    a("s_cmp_ge_u32 s2, 256\ns_cbranch_scc1 L_end")
    stamp(a, 0)
    a(f"""
    s_load_dwordx2 s[{P_X}:{P_X+1}], s[0:1], 0
    s_load_dwordx2 s[{P_WS}:{P_WS+1}], s[0:1], 96
    s_load_dwordx4 s[{P_K}:{P_K+3}], s[0:1], 8
    s_load_dwordx4 s[{P_WQ}:{P_WQ+3}], s[0:1], 24
    s_load_dwordx4 s[{P_W1}:{P_W1+3}], s[0:1], 48
    s_load_dwordx4 s[{P_W2}:{P_W2+3}], s[0:1], 64
    s_load_dwordx4 s[{P_OUT}:{P_OUT+3}], s[0:1], 80
    v_and_b32 v{V_L128}, 63, v0
    v_lshlrev_b32 v{V_L128}, 7, v{V_L128}
    s_getpc_b64 s[{S_XN}:{S_XN+1}]
    L_pc2:
    s_mov_b32 s{S_XN+2}, L_p1_loop-L_pc2
    s_mov_b32 s{S_XN+3}, 0x00020000
    buffer_load_dword v61, v{V_L128}, {sq(S_XN)}, 0 offen
    s_and_b32 s{S_T0}, s2, 7
    s_lshl_b32 s{S_T0}, s{S_T0}, 2
    s_bfe_u32 s{S_T1}, s2, 0x20003
    s_add_u32 s{S_HEAD}, s{S_T0}, s{S_T1}
    s_lshr_b32 s{S_QB}, s2, 5
    s_mov_b32 s{S_PASS}, 0
    v_lshrrev_b32 v85, 4, v0
    v_lshrrev_b32 v1, 6, v0
    v_and_b32 v0, 63, v0
    v_readfirstlane_b32 s{S_WAVE}, v1
    s_lshl_b32 s{S_T0}, s{S_QB}, 8
    s_lshl_b32 s{S_T1}, s{S_HEAD}, 3
    s_add_u32 s{S_T0}, s{S_T0}, s{S_T1}
    v_add_u32 v85, s{S_T0}, v85
    v_and_b32 v31, 15, v0
    v_mul_u32_u24 v86, 1280, v85
    v_lshl_add_u32 v86, v31, 4, v86
    s_waitcnt lgkmcnt(0)
    s_add_u32 s{S_FL}, s{P_WS}, {WS_FLAG}
    s_addc_u32 s{S_FL+1}, s{P_WS+1}, 0
    s_load_dword s{S_NONCE}, s[{S_FL}:{S_FL+1}], {FL_NONCE}
    """)
    srd(a, S_X, P_X, XN_BYTES)
    a(f"s_cmp_ge_u32 s{S_WAVE}, 2\ns_cbranch_scc1 L_restart")
    for i in range(5):
        a(f"buffer_load_dwordx4 {vr(64+4*i)}, v86, {sq(S_X)}, 0 offen offset:{256*i}")
    a(f"""
    L_restart:
    v_lshrrev_b32 v84, 4, v85
    v_mul_u32_u24 v84, 20480, v84
    v_lshrrev_b32 v87, 2, v31
    v_lshl_add_u32 v84, v87, 10, v84
    v_and_b32 v87, 3, v31
    v_lshl_add_u32 v84, v87, 6, v84
    v_bfe_u32 v87, v85, 2, 2
    v_lshl_add_u32 v84, v87, 8, v84
    v_and_b32 v87, 3, v85
    v_lshl_add_u32 v84, v87, 4, v84
    v_and_b32 v26, 7, v0
    v_lshrrev_b32 v27, 3, v0
    v_lshrrev_b32 v28, 4, v0
    v_bfe_u32 v29, v0, 2, 2
    v_and_b32 v30, 3, v0
    v_and_b32 v31, 15, v0
    v_lshlrev_b32 v1, 4, v0
    v_lshlrev_b32 v36, 3, v28
    v_lshlrev_b32 v{V_L4}, 2, v0
    s_mul_i32 s{S_W3072}, s{S_WAVE}, 3072
    s_mul_i32 s{S_T0}, s{S_HEAD}, 96
    s_sub_u32 s{S_T1}, 3072, s{S_T0}
    """)
    srd(a, S_MISC, P_B1, f"s{S_T1}", f"s{S_T0}")
    for ft in range(3):
        a(f"buffer_load_dwordx2 {vr(40+2*ft,2)}, v36, {sq(S_MISC)}, 0 offen offset:{32*ft}")
    a(f"s_sub_u32 s{S_T1}, {640*1536*2}, s{S_T0}")
    srd(a, S_W1, P_W1, f"s{S_T1}", f"s{S_T0}")
    a(f"s_mul_i32 s{S_T0}, s{S_HEAD}, 384\ns_sub_u32 s{S_T1}, {640*6144*2}, s{S_T0}")
    srd(a, S_WQ, P_WQ, f"s{S_T1}", f"s{S_T0}")
    a(f"""
    s_mov_b32 s{S_FL+2}, {FLAG_BYTES}
    s_mov_b32 s{S_FL+3}, 0x00020000
    s_lshl_b32 s{S_T0}, s{S_WAVE}, 3
    v_add_u32 v32, s{S_T0}, v27
    v_mul_u32_u24 v33, 12288, v32
    v_bfe_u32 v34, v27, 1, 1
    v_lshlrev_b32 v35, 2, v34
    v_xor_b32 v35, v35, v26
    v_lshl_add_u32 v{V1_DW}, v35, 4, v33
    s_and_b32 s{S_T0}, s{S_WAVE}, 1
    s_lshl_b32 s{S_T0}, s{S_T0}, 2
    v_lshlrev_b32 v35, 1, v34
    v_or_b32 v35, s{S_T0}, v35
    v_xor_b32 v35, v35, v26
    v_mul_u32_u24 v33, 3072, v32
    v_lshl_add_u32 v{V1_DF}, v35, 4, v33
    s_lshl_b32 s{S_DMA1}, s{S_WAVE}, 10
    v_mov_b32 v{V_ZERO}, 0
    s_lshl_b32 s{S_T0}, s{S_PASS}, 1
    s_or_b32 s{S_T0}, s{S_T0}, s{S_WAVE}
    s_cmp_lt_u32 s{S_T0}, 2
    s_cbranch_scc1 L_ln
    """)
    pf_rest = f"""
    s_cmp_eq_u32 s{S_WAVE}, 2
    s_cselect_b32 s{S_XN}, s{S_W1}, s{S_WQ}
    s_cselect_b32 s{S_XN+1}, s{S_W1+1}, s{S_WQ+1}
    s_cselect_b32 s{S_XN+2}, s{S_W1+2}, s{S_WQ+2}
    s_mov_b32 s{S_T1}, {128*12288}
    s_cselect_b32 s{S_T1}, {128*3072}, s{S_T1}
    s_lshl_b32 s{S_T0}, s{S_T1}, 1
    buffer_load_dword v60, v55, {sq(S_XN)}, s{S_T0} offen
    s_add_u32 s{S_T0}, s{S_T0}, s{S_T1}
    buffer_load_dword v59, v55, {sq(S_XN)}, s{S_T0} offen
    s_add_u32 s{S_T0}, s{S_T0}, s{S_T1}
    buffer_load_dword v54, v55, {sq(S_XN)}, s{S_T0} offen
    """
    early_pf, late_pf = (pf_rest, "") if os.environ.get("PFE") == "1" else ("", pf_rest if os.environ.get("PFE") == "0" else "")
    a(f"""
    s_cmp_lg_u32 s{S_PASS}, 0
    s_cbranch_scc1 L_nopf
    s_lshl_b32 s{S_T0}, s{S_QB}, 4
    v_lshrrev_b32 v52, 2, v0
    v_add_u32 v52, s{S_T0}, v52
    v_mul_u32_u24 v53, 3072, v52
    v_lshlrev_b32 v52, 2, v53
    v_lshl_add_u32 v52, v30, 7, v52
    v_mul_u32_u24 v54, 40, v30
    v_add_u32 v53, v54, v53
    s_cmp_eq_u32 s{S_WAVE}, 2
    s_cbranch_scc1 L_pf2
    s_mov_b32 s{S_T0}, {128*12288}
    v_mov_b32 v55, v52
    buffer_load_dword v56, v52, {sq(S_WQ)}, 0 offen
    buffer_load_dword v57, v52, {sq(S_WQ)}, s{S_T0} offen
    s_branch L_pf3
    L_pf2:
    s_mov_b32 s{S_T0}, {128*3072}
    v_mov_b32 v55, v53
    buffer_load_dword v56, v53, {sq(S_W1)}, 0 offen
    buffer_load_dword v57, v53, {sq(S_W1)}, s{S_T0} offen
    L_pf3:
    s_getpc_b64 s[{S_XN}:{S_XN+1}]
    L_pc0:
    s_add_u32 s{S_XN}, s{S_XN}, L_p1_loop-L_pc0
    s_addc_u32 s{S_XN+1}, s{S_XN+1}, 0
    s_mov_b32 s{S_XN+2}, L_hooka-L_p1_loop
    s_and_b32 s{S_T0}, s{S_QB}, 1
    s_lshl_b32 s{S_T0}, s{S_T0}, 1
    s_add_u32 s{S_T0}, s{S_T0}, s{S_WAVE}
    s_sub_u32 s{S_T0}, s{S_T0}, 2
    s_lshl_b32 s{S_T0}, s{S_T0}, 13
    buffer_load_dword v58, v{V_L128}, {sq(S_XN)}, s{S_T0} offen
    {early_pf}
    s_waitcnt vmcnt({4 if early_pf else 1}) lgkmcnt(0)
    s_add_u32 s{S_NONCE}, s{S_NONCE}, 1
    L_nopf:
    """)
    a(f"""
    v_mov_b32 v52, v{V1_DW}
    v_mov_b32 v53, v{V1_DF}
    s_mov_b32 s{S_RD}, s{S_W3072}
    s_mov_b32 s{S_RD1}, s{S_DMA1}
    s_mov_b32 s{S_CNT}, s{S_PASS}
    L_pre:
    """)
    for st in range(2):
        a(f"s_mov_b32 s{S_SO0}, {64*st*12288}\ns_mov_b32 s{S_SO1}, {(64*st+32)*12288}")
        a(f"s_mov_b32 s{S_SW0}, {64*st*3072}\ns_mov_b32 s{S_SW1}, {(64*st+32)*3072}")
        dma_tile(a, 52, S_WQ, S_SO0, S_SO1, S_RD, LDS_V + st * SLOT)
        for d in range(2):
            a(f"s_add_u32 m0, s{S_RD1}, {LDS_W1 + st*8192 + d*4096}\ns_nop 0")
            a(f"buffer_load_dwordx4 v53, {sq(S_W1)}, s{S_SW0+d} offen lds")
    a(f"""
    s_cmp_lg_u32 s{S_CNT}, 0
    s_cbranch_scc1 L_predone
    s_mov_b32 s{S_CNT}, 1
    v_subrev_u32 v52, {16*12288}, v52
    v_subrev_u32 v53, {16*3072}, v53
    s_sub_u32 s{S_RD}, s{S_RD}, {2*3072}
    s_sub_u32 s{S_RD1}, s{S_RD1}, 2048
    s_branch L_pre
    L_predone:
    s_cmp_lg_u32 s{S_PASS}, 0
    s_cbranch_scc1 L_setup
    {late_pf}
    s_branch L_setup
    L_ln:
    """)
    srd(a, S_MISC, P_WS, XN_BYTES)
    if os.environ.get("TOUCH"):
        a(f"buffer_load_dword v60, v84, {sq(S_MISC)}, 0 offen sc1\nbuffer_load_dword v59, v{V_L128}, {sq(S_FL)}, 0 offen sc1")
    gen_ln_body(a)
    stamp(a, 20)
    a(f"""
    s_waitcnt lgkmcnt(0)
    s_add_u32 s{S_NONCE}, s{S_NONCE}, 1
    v_mov_b32 v52, {LDS_FLAG + 4}
    v_mov_b32 v{V_ONE}, s{S_NONCE}
    s_lshl_b32 s{S_T0}, s{S_QB}, 12
    s_lshl_b32 s{S_T1}, s{S_HEAD}, 7
    s_add_u32 s{S_T0}, s{S_T0}, s{S_T1}
    s_cmp_eq_u32 s{S_WAVE}, 0
    s_waitcnt vmcnt(0)
    s_cbranch_scc1 L_ln0
    ds_write_b32 v52, v{V_ONE}
    s_branch L_setup
    L_ln0:
    ds_read_b32 v53, v52
    s_waitcnt lgkmcnt(0)
    v_cmp_ne_u32 vcc, v53, v{V_ONE}
    s_cbranch_vccnz L_ln0
    v_xor_b32 v53, 0x80000000, v53
    ds_write_b32 v52, v53
    """)
    signal(a)
    a("L_setup:")
    stamp(a, 1)
    a(f"s_add_u32 s{S_T1}, s{S_QB}, 1\ns_mul_i32 s{S_T1}, s{S_T1}, {16*20480}")
    srd(a, S_XN, P_WS, f"s{S_T1}")
    srd(a, S_WF, P_WS, WF_BYTES, WS_WF)
    srd(a, S_H, P_WS, H_BYTES, WS_H)
    a(f"s_mul_i32 s{S_T0}, s{S_HEAD}, 786432")
    srd(a, S_K, P_K, 0, f"s{S_T0}")
    srd(a, S_V, P_V, 786432, f"s{S_T0}")
    a(f"""
    s_mov_b32 s{S_MISC+2}, {48*40960}
    s_cmp_lt_u32 s2, 192
    s_cselect_b32 s{S_MISC}, s{P_WO}, s{P_W2}
    s_cselect_b32 s{S_MISC+1}, s{P_WO+1}, s{P_W2+1}
    s_cselect_b32 s{S_MISC+2}, {6144*1280}, s{S_MISC+2}
    s_cselect_b32 s{S_T0}, 0, 192
    s_sub_u32 s{S_T0}, s2, s{S_T0}
    s_mul_i32 s{S_RS}, s{S_T0}, 40960
    s_mul_i32 s{S_RO}, s2, 40960
    s_lshl_b32 s{S_T0}, s{S_WAVE}, 10
    s_add_u32 s{S_RO}, s{S_RO}, s{S_T0}
    v_mov_b32 v{V_ONE}, s{S_NONCE}
    s_and_b32 s{S_T0}, s{S_WAVE}, 1
    s_lshl_b32 s{S_T0}, s{S_T0}, 2
    v_mul_u32_u24 v33, 384, v27
    v_add_u32 v33, s{S_W3072}, v33
    v_lshrrev_b32 v34, 1, v27
    v_add_u32 v35, s{S_T0}, v34
    v_xor_b32 v35, v35, v26
    v_lshl_add_u32 v{V_DK}, v35, 4, v33
    v_lshlrev_b32 v35, 1, v34
    v_xor_b32 v35, v35, v26
    v_lshl_add_u32 v{V_DV}, v35, 4, v33
    v_mul_u32_u24 v33, 1280, v32
    v_lshl_add_u32 v{V_RD}, v35, 4, v33
    s_lshl_b32 s{S_T0}, s{S_QB}, 3
    v_add_u32 v52, s{S_T0}, v26
    v_mul_u32_u24 v53, 3072, v52
    v_lshlrev_b32 v52, 2, v53
    s_lshl_b32 s{S_T0}, s{S_WAVE}, 7
    v_add_u32 v52, s{S_T0}, v52
    v_and_b32 v54, 1, v27
    v_mul_u32_u24 v54, 124, v54
    v_add_u32 v53, v54, v53
    s_mov_b32 s{S_O+3}, 0x00020000
    s_cmp_eq_u32 s{S_WAVE}, 3
    s_cselect_b32 s{S_O}, s{S_W1}, s{S_WQ}
    s_cselect_b32 s{S_O+1}, s{S_W1+1}, s{S_WQ+1}
    s_cselect_b32 s{S_O+2}, s{S_W1+2}, s{S_WQ+2}
    s_cselect_b64 vcc, -1, 0
    s_mov_b32 s{S_HS}, {64*12288}
    s_cselect_b32 s{S_HS}, {64*3072}, s{S_HS}
    v_cndmask_b32 v46, v52, v53, vcc
    s_cselect_b32 s{S_HOOK}, s{S_K}, s{S_V}
    s_cselect_b32 s{S_KC}, s{S_K+1}, s{S_V+1}
    s_mov_b32 s3, {12*128}
    s_cselect_b32 s3, {6*128}, s3
    s_mul_i32 s{S_T0}, s{S_QB}, 48
    s_lshl_b32 s{S_T1}, s{S_WAVE}, 2
    s_add_u32 s{S_T0}, s{S_T0}, s{S_T1}
    v_add_u32 v52, s{S_T0}, v30
    s_mul_i32 s{S_T0}, s{S_QB}, 24
    s_add_u32 s{S_T0}, s{S_T0}, 384
    v_min_u32 v53, 5, v26
    v_add_u32 v53, s{S_T0}, v53
    v_cndmask_b32 v60, v52, v53, vcc
    v_lshlrev_b32 v60, 7, v60
    s_lshl_b32 s{S_M0}, s{S_HS}, 2
    s_mov_b32 s{S_SV0}, 0
    s_mov_b32 s{S_SV1}, 0
    s_add_u32 s{S_C0}, s{S_W3072}, {LDS_X}
    s_add_u32 s{S_C1}, s{S_W3072}, {LDS_K}
    s_lshl_b32 s{S_T0}, s{S_QB}, 4
    s_lshl_b32 s{S_T1}, s{S_WAVE}, 2
    s_add_u32 s{S_T0}, s{S_T0}, s{S_T1}
    s_mul_i32 s{S_T0}, s{S_T0}, 20480
    v_lshlrev_b32 v33, 8, v29
    v_lshl_add_u32 v33, v28, 6, v33
    v_lshl_add_u32 v33, v30, 4, v33
    v_add_u32 v{V1_X}, s{S_T0}, v33
    v_add_u32 v{V1_X+1}, 20480, v{V1_X}
    v_add_u32 v{V1_X+2}, {2*20480}, v{V1_X}
    v_add_u32 v{V1_X+3}, {3*20480}, v{V1_X}
    s_mov_b32 s{S_SO0}, {128*12288}
    s_mov_b32 s{S_SO1}, {160*12288}
    s_mov_b32 s{S_SW0}, {128*3072}
    s_mov_b32 s{S_SW1}, {160*3072}
    s_mov_b32 s{S_RD}, 0
    s_mov_b32 s{S_RD1}, 0
    s_add_u32 s{S_DMA}, s{S_W3072}, {2*SLOT}
    s_add_u32 s{S_DMA1}, s{S_DMA1}, {2*8192}
    v_mul_u32_u24 v33, 3072, v28
    v_lshl_add_u32 v33, v29, 7, v33
    v_add_u32 v33, {LDS_V}, v33
    v_lshrrev_b32 v34, 1, v29
    v_lshlrev_b32 v35, 2, v34
    v_xor_b32 v35, v35, v30
    v_lshl_add_u32 v{V1_WB}, v35, 4, v33
    v_xor_b32 v{V1_WB+1}, 64, v{V1_WB}
    v_mov_b32 v{V1_WA}, v{V1_WB}
    v_mov_b32 v{V1_WA+1}, v{V1_WB+1}
    v_lshlrev_b32 v33, 10, v28
    v_lshl_add_u32 v33, v29, 7, v33
    v_add_u32 v33, {LDS_W1}, v33
    v_and_b32 v35, 1, v30
    v_lshl_add_u32 v33, v35, 3, v33
    v_lshrrev_b32 v35, 1, v30
    v_lshl_add_u32 v33, v35, 4, v33
    v_and_b32 v35, 1, v28
    v_lshl_add_u32 v35, v35, 1, v34
    v_lshl_add_u32 v{V1_FB}, v35, 5, v33
    v_xor_b32 v{V1_FB+1}, 32, v{V1_FB}
    v_xor_b32 v{V1_FB+2}, 64, v{V1_FB}
    v_mov_b32 v{V1_FA}, v{V1_FB}
    v_mov_b32 v{V1_FA+1}, v{V1_FB+1}
    v_mov_b32 v{V1_FA+2}, v{V1_FB+2}
    v_mov_b32 v48, 0
    v_mov_b32 v49, 0
    v_mov_b32 v50, 0
    v_mov_b32 v51, 0
    s_or_b32 s{S_T0}, s{S_WAVE}, s{S_PASS}
    s_cmp_eq_u32 s{S_T0}, 0
    s_cbranch_scc1 L_nw
    s_waitcnt vmcnt(0)
    L_nw:
    """)
    for i in range(12):
        a(f"v_mfma_f32_32x32x16_bf16 {vr(64+16*i,16)}, v[48:51], v[48:51], 0")
    for ft in range(3):
        a(f"""
        v_lshlrev_b32 v52, 16, v{40+2*ft}
        v_and_b32 v53, 0xffff0000, v{40+2*ft}
        v_lshlrev_b32 v54, 16, v{41+2*ft}
        v_and_b32 v55, 0xffff0000, v{41+2*ft}
        """)
        for t in range(4):
            for r in range(4):
                a(f"v_accvgpr_write_b32 a{P1_H+4*(4*ft+t)+r}, v{52+r}")
    a(f"""
    s_or_b32 s{S_T0}, s{S_WAVE}, s{S_PASS}
    s_cmp_lg_u32 s{S_T0}, 0
    s_cbranch_scc1 L_p1go
    s_lshl_b32 s{S_T0}, s{S_QB}, 12
    v_and_b32 v53, {31*128}, v{V_L128}
    L_poll1:
    buffer_load_dword v52, v53, {sq(S_FL)}, s{S_T0} offen sc1
    s_waitcnt vmcnt(0)
    v_cmp_ne_u32 vcc, v52, v{V_ONE}
    s_cbranch_vccnz L_poll1
    L_p1go:
    s_barrier
    """)
    stamp(a, 2)
    NPRE = int(os.environ.get("NPRE", 2))
    for ks in range(NPRE):
        for j in range(4):
            a(f"buffer_load_dwordx4 {ar(P1_B+16*ks+4*j)}, v{V1_X+j}, {sq(S_XN)}, 0 offen offset:{1024*ks} sc1")
    for f in range(2):
        for k in range(4):
            a(p1_read(f, k))
    a(f"s_mov_b32 s{S_BOFF}, 2048\ns_mov_b32 s{S_CNT}, 5\ns_waitcnt vmcnt({4*NPRE-8}) lgkmcnt(4)")
    stamp(a, 3)
    a(".p2align 6\nL_p1_loop:")
    gen_p1_stage(a, 0)
    gen_p1_stage(a, 1)
    a("s_cbranch_scc1 L_p1_loop\ns_waitcnt vmcnt(1) lgkmcnt(0)\ns_barrier")
    stamp(a, 4)
    dm = []
    for (voff, sr, so, goff, lds) in ((V_DV, S_V, S_SV0, 0, LDS_V), (V_DK, S_K, S_SO0, 2 * SLOT, LDS_K + 2 * SLOT), (V_DV, S_V, S_SV0, SLOT, LDS_V + SLOT)):
        for d in range(6):
            pre = f"s_mov_b32 s{so}, {goff}\ns_mov_b32 s{so+1}, {goff+12288}\n" if d == 0 else ""
            dm.append((pre + f"s_add_u32 m0, s{S_W3072}, {lds + (d//3)*12288 + (d%3)*896}",
                       f"buffer_load_dwordx4 v{voff}, {sq(sr)}, s{so + d//3} offen offset:{(d%3)*128} lds"))
    c = (192 ** -0.5) * math.log2(math.e)
    a(f"s_mov_b32 s{S_C0}, {fh(c)}\ns_mov_b32 s{S_C1}, {fh(c)}")
    for i in range(24):
        b = P1_ACC + 8 * i
        if i < 18:
            a(dm[i][0])
        for j in range(4):
            a(f"v_pk_mul_f32 {vr(b+2*j,2)}, {vr(b+2*j,2)}, s[{S_C0}:{S_C1}]")
        if i < 18:
            a(dm[i][1])
        if i % 2 == 1 and i // 2 + 3 < 12:
            a(f"v_mfma_f32_32x32x16_bf16 {ar(16*(i//2+3),16)}, v[48:51], v[48:51], 0")
        for j in range(4):
            a(f"v_cvt_pk_bf16_f32 v{V_Q+4*i+j}, v{b+2*j}, v{b+2*j+1}")
    for e in range(32):
        a(f"v_accvgpr_write_b32 a{A_Q+e}, v{V_Q+64+e}")
    stamp(a, 21)
    srd(a, S_O, P_WS, O_BYTES, WS_O)
    k0 = -2.0 * math.log2(math.e) * math.sqrt(2 / math.pi)
    k1 = k0 * 0.044715
    a(f"""
    s_mov_b32 s{S_SO0}, {3*SLOT}
    s_mov_b32 s{S_SO1}, {3*SLOT+12288}
    s_mov_b32 s{S_SV0}, {2*SLOT}
    s_mov_b32 s{S_SV1}, {2*SLOT+12288}
    s_lshl_b32 s{S_T0}, s{S_QB}, 4
    s_lshl_b32 s{S_T1}, s{S_WAVE}, 2
    s_add_u32 s{S_T0}, s{S_T0}, s{S_T1}
    s_mul_i32 s{S_T0}, s{S_T0}, {48*1024}
    v_add_u32 v52, s{S_T0}, v1
    v_add_u32 v53, {48*1024}, v52
    v_add_u32 v54, {2*48*1024}, v52
    v_add_u32 v55, {3*48*1024}, v52
    v_mov_b32 v56, {fh(k1)}
    v_mov_b32 v57, {fh(k0)}
    v_mov_b32 v58, 1.0
    """)
    stamp(a, 22)

    def gelu(ft, packed):
        o = [(f"""s_mul_i32 s{S_T0}, s{S_HEAD}, 3
        s_add_u32 s{S_T0}, s{S_T0}, {ft}
        s_lshr_b32 s{S_T1}, s{S_T0}, 1
        s_lshl_b32 s{S_T1}, s{S_T1}, 10
        s_and_b32 s{S_T0}, s{S_T0}, 1
        s_lshl_b32 s{S_T0}, s{S_T0}, 3
        s_add_u32 s{S_M0}, s{S_T0}, s{S_T1}""", 0)]
        x, u = 216, 232
        o += [(f"v_accvgpr_read_b32 v{x+e}, a{P1_H+16*ft+e}", 1) for e in range(16)]
        if packed:
            o.append((f"v_mfma_f32_32x32x16_bf16 {ar(16*ft,16)}, v[48:51], v[48:51], 0", 0))
        for pk, sc, sl in (("v_pk_mul_f32 {U}, {X}, {X}", "v_mul_f32 v{u}, v{x}, v{x}", 1),
                           ("v_pk_fma_f32 {U}, {U}, v[56:57], v[56:57] op_sel:[0,0,1] op_sel_hi:[1,0,1]", "v_fma_f32 v{u}, v{u}, v56, v57", 1),
                           ("v_pk_mul_f32 {U}, {U}, {X}", "v_mul_f32 v{u}, v{u}, v{x}", 1),
                           (None, "v_exp_f32 v{u}, v{u}", 2),
                           ("v_pk_add_f32 {U}, {U}, v[58:59] op_sel_hi:[1,0]", "v_add_f32 v{u}, 1.0, v{u}", 1),
                           (None, "v_rcp_f32 v{u}, v{u}", 2),
                           ("v_pk_mul_f32 {X}, {U}, {X}", "v_mul_f32 v{x}, v{u}, v{x}", 1)):
            if packed and pk:
                o += [(pk.format(U=vr(u + e, 2), X=vr(x + e, 2)), 1) for e in range(0, 16, 2)]
            else:
                o += [(sc.format(u=u + e, x=x + e), sl) for e in range(16)]
        o += [(f"v_cvt_pk_bf16_f32 v{192+8*ft+e}, v{x+2*e}, v{x+2*e+1}", 1) for e in range(8)]
        o += [(f"buffer_store_dwordx2 {vr(192+8*ft+2*t,2)}, v{52+t}, {sq(S_H)}, s{S_M0} offen sc1", 2) for t in range(4)]
        return o
    a(f"s_cmp_lg_u32 s{S_PASS}, 0\ns_cbranch_scc1 L_nogelu")
    for ft in range(2):
        for ins, _ in gelu(ft, True):
            a(ins)
    a("L_nogelu:")
    a(f"""
    v_lshrrev_b32 v33, 3, v31
    v_mul_u32_u24 v33, 3072, v33
    v_lshl_add_u32 v33, v26, 7, v33
    v_lshrrev_b32 v34, 1, v31
    v_xor_b32 v34, v34, v28
    v_lshl_add_u32 v{V_KB}, v34, 4, v33
    v_xor_b32 v{V_KB+1}, 64, v{V_KB}
    v_mov_b32 v{V_KA}, v{V_KB}
    v_mov_b32 v{V_KA+1}, v{V_KB+1}
    v_lshrrev_b32 v33, 1, v28
    v_mul_u32_u24 v33, 3072, v33
    v_add_u32 v33, {LDS_V}, v33
    v_and_b32 v34, 1, v28
    v_lshl_add_u32 v34, v34, 2, v29
    v_lshl_add_u32 v33, v34, 7, v33
    v_and_b32 v35, 1, v30
    v_lshl_add_u32 v33, v35, 3, v33
    v_lshrrev_b32 v35, 1, v30
    v_lshl_add_u32 v33, v35, 4, v33
    v_lshrrev_b32 v34, 1, v34
    v_lshl_add_u32 v{V_VB}, v34, 5, v33
    v_xor_b32 v{V_VB+1}, 32, v{V_VB}
    v_xor_b32 v{V_VB+2}, 64, v{V_VB}
    v_xor_b32 v{V_VB+3}, 96, v{V_VB}
    v_mov_b32 v34, {LDS_FLAG}
    ds_write_b32 v34, v{V_ZERO}
    s_lshl_b32 s{S_T0}, s{S_WAVE}, 5
    v_xor_b32 v{V_RR}, s{S_T0}, v{V_VB}
    v_add_u32 v{V_RR}, {LDS_X - LDS_V}, v{V_RR}
    s_mov_b32 s{S_KC}, 0
    s_cmp_eq_u32 s{S_PASS}, 0
    s_cselect_b32 s{S_HOOK}, 8, 3
    s_mov_b32 s{S_WF+2}, 0
    s_sub_u32 s{S_RO}, s{S_RO}, 4096
    s_cmp_eq_u32 s{S_PASS}, 0
    """)
    for j in range(4):
        a(f"v_mov_b32 v{V_L+j}, 0\nv_mov_b32 v{20+j}, 0xff800000")
    a("s_cbranch_scc0 L_maxfirst")
    stamp(a, 5)

    def qk0(fill):
        for g in range(3):
            a(k_read(g, 0) + "\n" + k_read(g, 1))
        for g in range(12):
            if g == 0:
                a("s_waitcnt lgkmcnt(4)")
            mx = []
            if g % 3 == 1 and g >= 4:
                for t in range(4):
                    s0 = s_reg(g // 3 - 1, t)
                    mx += [(f"v_max3_f32 v{20+t}, v{20+t}, v{s0}, v{s0+1}", 1), (f"v_max3_f32 v{20+t}, v{20+t}, v{s0+2}, v{s0+3}", 1)]
            fill[:0] = mx
            for p in range(8):
                a(qk_mfma(g, p, lambda t: "0"))
                room = 2
                if p == 7 and g < 11:
                    a(f"s_waitcnt lgkmcnt({2 if g <= 9 else 0})")
                if p < 2 and 3 <= g + 2 < 12 and g >= 1:
                    a(k_read(g + 2, p))
                    room = 1
                while fill and fill[0][1] <= room:
                    ins, sl = fill.pop(0)
                    a(ins)
                    room -= sl
        for ins, _ in fill:
            a(ins)
        a(f"s_waitcnt vmcnt(24)\ns_barrier\ns_cmp_lg_u32 s{S_KC}, 0\nv_add_u32 v{V_KA}, {SLOT}, v{V_KB}\nv_add_u32 v{V_KA+1}, {SLOT}, v{V_KB+1}\ns_nop 1")
        for t in range(4):
            s0 = s_reg(3, t)
            a(f"v_max3_f32 v{20+t}, v{20+t}, v{s0}, v{s0+1}\nv_max3_f32 v{20+t}, v{20+t}, v{s0+2}, v{s0+3}")
    g2 = gelu(2, False)
    for ins, _ in g2[:17]:
        a(ins)
    a(f"v_mfma_f32_32x32x16_bf16 {ar(32,16)}, v[48:51], v[48:51], 0")
    qk0(g2[17:])
    a("L_qkdone:")
    for g in range(2):
        a(k_read(g, 0) + "\n" + k_read(g, 1))
    for x in swaps("v_max_f32", 20, 24):
        a(x + "\ns_nop 0")
    a(f"s_cmp_eq_u32 s{S_PASS}, 0\ns_cselect_b32 s{S_T0}, {fh(-OFF)}, 0")
    for t in range(4):
        a(f"v_sub_f32 v{V_NM+4*t}, s{S_T0}, v{20+t}")
    for t in range(4):
        for r in range(1, 4):
            a(f"v_mov_b32 v{V_NM+4*t+r}, v{V_NM+4*t}")
    for u in range(4):
        for t in range(4):
            for j in range(2):
                r = s_reg(u, t) + 2 * j
                a(f"v_pk_add_f32 {vr(r,2)}, {vr(r,2)}, {vr(V_NM+4*t,2)}")
    for i in range(192):
        if G[i]["exp"] is not None and G[i]["exp"][0] == "cur":
            a(soft("exp", *G[i]["exp"], 0))
    a("s_nop 0")
    for i in range(192):
        for (w, kind, u, t, x) in G[i]["valu"]:
            if w == "cur":
                a(soft(kind, w, u, t, x, 0))
    a(f"""
    s_mov_b32 s{S_RD}, 0
    s_mov_b32 s{S_RK}, {SLOT}
    s_mov_b32 s{S_DV}, {2*SLOT}
    s_add_u32 s{S_M0}, s{S_W3072}, {LDS_V}
    s_mov_b32 s{S_DKM}, s{S_W3072}
    s_add_u32 s{S_DVM}, s{S_M0}, {2*SLOT}
    s_mov_b32 s{S_CNT}, 31
    s_waitcnt lgkmcnt({att_counts(G)[0]})
    """)
    stamp(a, 6)
    a(".p2align 6")
    for k in range(int(os.environ.get("PADN", 0))):
        a("s_nop 0")
    a("L_att_loop:")
    def lstamp():
        if STAMP and os.environ.get("ATST"):
            a(f"s_memtime s[98:99]\ns_waitcnt lgkmcnt(0)\ns_add_u32 m0, s{S_CNT}, 32\ns_nop 0\nv_writelane_b32 v38, s98, m0\ns_cmp_lg_u32 s{S_CNT}, 0")
    gen_body(a, G, spare, 1, lab="a")
    lstamp()
    a("s_cbranch_scc0 L_att_tail")
    gen_body(a, G, spare, 0, lab="b")
    lstamp()
    a("s_branch L_att_loop")
    f2 = f"s_mov_b32 s{S_T0}, {FL_F2}\nbuffer_load_dwordx4 {vr(V_F2)}, v1, {sq(S_FL)}, s{S_T0} offen sc1"
    a(f"""
    L_hooka:
    s_mov_b32 s{S_KC}, 0
    s_branch L_hook
    L_hookb:
    s_mov_b32 s{S_KC}, 1
    L_hook:
    s_cmp_eq_u32 s{S_CNT}, 3
    s_cbranch_scc1 L_hF
    L_hP:
    s_mov_b32 s{S_HOOK}, 3
    s_cmp_lg_u32 s{S_WAVE}, 0
    s_cbranch_scc1 L_hdone
    s_lshl_b32 s{S_T0}, s2, 2
    s_add_u32 s{S_T0}, s{S_T0}, {FL_F2}
    s_mov_b64 exec, 1
    buffer_store_dword v{V_ONE}, v{V_ZERO}, {sq(S_FL)}, s{S_T0} offen sc1
    s_mov_b64 exec, -1
    """)
    a(f"""
    s_nop 1
    s_branch L_hdone
    L_hF:
    """)
    code_prefetch(a, 1, "L_att_tail", "L_end", S_XN, V_F2 + 4, one=True)
    a(f"""
    s_cmp_lg_u32 s{S_WAVE}, 0
    s_cbranch_scc1 L_hdone
    {f2}
    """)
    a(f"""
    L_hdone:
    s_cmp_eq_u32 s{S_KC}, 0
    s_cbranch_scc1 L_hreta
    s_branch L_hretb
    L_maxfirst:
    v_mfma_f32_32x32x16_bf16 a[0:15], v[48:51], v[48:51], 0
    v_mfma_f32_32x32x16_bf16 a[16:31], v[48:51], v[48:51], 0
    v_mfma_f32_32x32x16_bf16 a[32:47], v[48:51], v[48:51], 0
    s_mov_b32 s{S_KC}, {32*SLOT}
    L_maxnext:
    s_sub_u32 s{S_KC}, s{S_KC}, {SLOT}
    s_add_u32 s{S_T0}, s{S_KC}, 12288
    v_mov_b32 v{V_KA}, v{V_KB}
    v_mov_b32 v{V_KA+1}, v{V_KB+1}
    """)
    dma_tile(a, V_DK, S_K, S_KC, S_T0, S_W3072, LDS_K)
    a("s_waitcnt vmcnt(0)\ns_barrier")
    qk0([])
    a(f"""
    s_cbranch_scc1 L_maxnext
    s_branch L_qkdone
    L_fallback:
    s_waitcnt vmcnt(0) lgkmcnt(0)
    s_barrier
    s_mov_b32 s{S_PASS}, 1
    s_branch L_restart
    L_nonce:
    s_mov_b32 s{S_T0}, {FL_NONCE}
    """)
    signal(a)
    a(f"""
    s_nop 1
    s_branch L_nononce
    L_repoll2:
    {f2}
    s_waitcnt vmcnt(0)
    s_branch L_chk2
    L_att_tail:
    v_add_u32 v{V_VA}, s{S_RD}, v{V_VB}
    v_add_u32 v{V_VA+1}, s{S_RD}, v{V_VB+1}
    v_add_u32 v{V_VA+2}, s{S_RD}, v{V_VB+2}
    v_add_u32 v{V_VA+3}, s{S_RD}, v{V_VB+3}
    """)
    for f in (12, 13, 14):
        for k in range(4):
            a(v_read(f, k))
    a(f"""
    s_cmp_lg_u32 s{S_WAVE}, 0
    s_cbranch_scc1 L_ok2
    L_chk2:
    v_xor_b32 v{V_F2}, v{V_F2}, v{V_ONE}
    v_xor_b32 v{V_F2+1}, v{V_F2+1}, v{V_ONE}
    v_xor_b32 v{V_F2+2}, v{V_F2+2}, v{V_ONE}
    v_xor_b32 v{V_F2+3}, v{V_F2+3}, v{V_ONE}
    v_or3_b32 v{V_F2}, v{V_F2}, v{V_F2+1}, v{V_F2+2}
    v_or_b32 v{V_F2}, v{V_F2}, v{V_F2+3}
    v_cmp_ne_u32 vcc, 0, v{V_F2}
    s_cbranch_vccnz L_repoll2
    L_ok2:
    """)
    setup = f"""
    s_and_b32 s{S_J}, s2, 3
    s_bfe_u32 s{S_T0}, s2, 0x10002
    s_lshl_b32 s{S_T0}, s{S_T0}, 3
    s_bfe_u32 s{S_MB}, s2, 0x30003
    s_add_u32 s{S_MB}, s{S_MB}, s{S_T0}
    s_lshr_b32 s{S_NB}, s2, 6
    s_lshl_b32 s{S_TILE}, s{S_MB}, 2
    s_add_u32 s{S_TILE}, s{S_TILE}, s{S_NB}
    s_lshl_b32 s{S_T0}, s{S_MB}, 3
    s_lshl_b32 s{S_T1}, s{S_WAVE}, 1
    s_add_u32 s{S_T0}, s{S_T0}, s{S_T1}
    s_mul_i32 s{S_T1}, s{S_T0}, {192*1024}
    v_add_u32 v{V_DO}, s{S_T1}, v1
    v_add_u32 v{V_DO+1}, {192*1024}, v{V_DO}
    s_mul_i32 s{S_T1}, s{S_T0}, {48*1024}
    v_add_u32 v{V_DH}, s{S_T1}, v1
    v_add_u32 v{V_DH+1}, {48*1024}, v{V_DH}
    s_mul_i32 s{S_OO}, s{S_J}, {12*1024}
    s_lshr_b32 s{S_T0}, s{S_WAVE}, 1
    s_mul_i32 s{S_WS0}, s{S_T0}, 40960
    s_mul_i32 s{S_LW}, s{S_T0}, 10240
    s_lshl_b32 s{S_T0}, s{S_T0}, 13
    v_add_u32 v{V_RB0}, s{S_T0}, v1
    s_and_b32 s{S_T0}, s{S_WAVE}, 1
    s_mul_i32 s{S_T0}, s{S_T0}, 5120
    s_add_u32 s{S_WS0}, s{S_WS0}, s{S_T0}
    s_add_u32 s{S_T0}, s{S_T0}, {LDS_WOFF}
    s_add_u32 s{S_LW}, s{S_LW}, s{S_T0}
    v_add_u32 v{V_RA0}, s{S_T0}, v1
    s_mul_i32 s{S_T0}, s{S_NB}, 10240
    s_add_u32 s{S_WS0}, s{S_WS0}, s{S_T0}
    s_mul_i32 s{S_T0}, s{S_J}, {12*40960}
    s_add_u32 s{S_WO}, s{S_WS0}, s{S_T0}
    s_add_u32 s{S_WO}, s{S_WO}, {192*40960}
    s_add_u32 s{S_WO4}, s{S_WO}, 4096
    s_mul_i32 s{S_T0}, s{S_J}, {48*40960}
    s_add_u32 s{S_WS0}, s{S_WS0}, s{S_T0}
    s_lshl_b32 s{S_LO}, s{S_WAVE}, 12
    v_mov_b32 v{V_RB}, v{V_RB0}
    v_mov_b32 v{V_RA}, v{V_RA0}
    s_mov_b32 s{S_WF+2}, {WF_BYTES}
    """
    qd = ["s_waitcnt vmcnt(0)", "s_barrier",
          f"s_or_b32 s{S_T0}, s2, s{S_WAVE}\ns_cmp_eq_u32 s{S_T0}, 0\ns_cbranch_scc1 L_nonce\nL_nononce:"]
    cur, cost = [], 0
    for ln in [x.strip() for x in setup.strip().split("\n")]:
        c1 = 2 if (ln.startswith("v_") and not cur) else 1
        if cost + c1 > 3:
            qd.append("\n".join(cur))
            cur, cost = [], 0
            c1 = 2 if ln.startswith("v_") else 1
        cur.append(ln)
        cost += c1
    qd.append("\n".join(cur))
    gops = []
    for st in range(4):
        for k in range(9):
            pre, ld = dma3(k, S_H, V_DH)
            if k == 0:
                pre = [f"s_add_u32 s{S_DO}, s{S_LO}, {st*STG}", f"s_add_u32 s{S_DW}, s{S_LW}, {st*STG}"] + pre
            gops.append((pre, ld, ADV3 if k == 8 else []))
    for pre, ld, post in gops[:18]:
        if pre:
            qd.append("\n".join(pre))
        qd.append(ld)
        if post:
            qd.append("\n".join(post))
    qv = [y for x in swaps("v_add_f32", V_L, 24) for y in x.split("\n")] + [f"v_rcp_f32 v{20+2*t}, v{V_L+t}" for t in range(4)]
    gen_body(a, G, spare, 0, tail=True, tailq=(qd, qv))
    stamp(a, 7)
    a(f"""
    s_lshl_b32 s{S_T0}, s{S_QB}, 4
    s_lshl_b32 s{S_T1}, s{S_WAVE}, 2
    s_add_u32 s{S_T0}, s{S_T0}, s{S_T1}
    s_mul_i32 s{S_T0}, s{S_T0}, {192*1024}
    s_mul_i32 s{S_T1}, s{S_HEAD}, {6*1024}
    s_add_u32 s{S_T0}, s{S_T0}, s{S_T1}
    v_add_u32 v28, s{S_T0}, v1
    v_add_u32 v29, {192*1024}, v28
    v_add_u32 v30, {2*192*1024}, v28
    v_add_u32 v31, {3*192*1024}, v28
    s_mov_b32 s{S_M0}, 4096
    """)
    for n in range(24):
        s, t = n // 4, n % 4
        b, o = 40 + 8 * (n % 2), 64 + 4 * n
        for h in range(2):
            for r in range(4):
                a(f"v_accvgpr_read_b32 v{b+4*h+r}, a{4*(4*(2*s+h)+t)+r}")
        for j in range(4):
            a(f"v_pk_mul_f32 {vr(b+2*j,2)}, {vr(b+2*j,2)}, {vr(20+2*t,2)} op_sel_hi:[1,0]")
        for j in range(4):
            a(f"v_cvt_pk_bf16_f32 v{o+j}, v{b+2*j}, v{b+2*j+1}")
        a(f"buffer_store_dwordx4 {vr(o)}, v{28+t}, {sq(S_O)}, {'0' if s < 4 else f's{S_M0}'} offen offset:{(s%4)*1024} sc1")
    stamp(a, 8)
    a("v_mov_b32 v48, 0\nv_mov_b32 v49, 0\nv_mov_b32 v50, 0\nv_mov_b32 v51, 0")
    zi = 0
    for t in range(4):
        regs = [64 + 4 * (4 * s + t) + j for s in range(6) for j in range(4)]
        a(f"v_max3_f32 v{40+t}, |v{regs[0]}|, |v{regs[1]}|, |v{regs[2]}|")
        for k in range(3, 23, 2):
            a(f"v_max3_f32 v{40+t}, |v{regs[k]}|, |v{regs[k+1]}|, v{40+t}")
            if k in (3, 11, 19) and zi < 5:
                a(f"v_mfma_f32_32x32x16_bf16 {vr(ACC_G+16*zi,16)}, v[48:51], v[48:51], 0")
                zi += 1
        a(f"v_max_f32 v{40+t}, |v{regs[23]}|, v{40+t}")
    for x in swaps("v_max_f32", 40, 44):
        a(x + "\ns_nop 0")
    for t in range(4):
        a(f"v_mul_f32 v{40+t}, v{40+t}, v{V_L+t}")
    a(f"""
    v_min3_f32 v40, v40, v41, v42
    v_min_f32 v40, v40, v43
    v_add_f32 v41, v{V_L}, v{V_L+1}
    v_add_f32 v42, v{V_L+2}, v{V_L+3}
    v_add_f32 v41, v41, v42
    v_mov_b32 v42, {fh(GUARD_LO)}
    v_cmp_nle_f32 vcc, v42, v40
    v_cmp_ngt_f32 s[{S_M0}:{S_M0+1}], 1.0, v41
    v_mov_b32 v40, {LDS_FLAG}
    v_mov_b32 v41, 1
    """)
    srd(a, S_PT, P_WS, 2 * PART_BYTES, WS_PART)
    a(f"""
    s_or_b64 vcc, vcc, s[{S_M0}:{S_M0+1}]
    s_cbranch_vccz L_good
    ds_write_b32 v40, v41
    L_good:
    """)
    srd(a, S_OUT, P_OUT, 2048 * 1280)
    srd(a, S_B2, P_B2, 1280)
    a(f"""
    s_lshl_b32 s{S_T0}, s{S_MB}, 3
    s_lshr_b32 s{S_T1}, s{S_J}, 1
    s_lshl_b32 s{S_T1}, s{S_T1}, 2
    s_add_u32 s{S_T0}, s{S_T0}, s{S_T1}
    s_add_u32 s{S_T0}, s{S_T0}, s{S_WAVE}
    s_lshl_b32 s{S_T0}, s{S_T0}, 4
    v_and_b32 v42, 15, v0
    v_add_u32 v42, s{S_T0}, v42
    v_mul_u32_u24 v42, 1280, v42
    s_mul_i32 s{S_T0}, s{S_NB}, 320
    s_and_b32 s{S_T1}, s{S_J}, 1
    s_mul_i32 s{S_T1}, s{S_T1}, 160
    s_add_u32 s{S_T0}, s{S_T0}, s{S_T1}
    v_lshrrev_b32 v41, 4, v0
    v_lshlrev_b32 v41, 3, v41
    v_add_u32 v{V_BO}, s{S_T0}, v41
    v_add_u32 v{V_OO}, v42, v{V_BO}
    v_lshlrev_b32 v{V_PO}, 3, v0
    v_and_b32 v{V_FV}, {3*128}, v{V_L128}
    s_lshr_b32 s{S_T0}, s{S_MB}, 1
    s_lshl_b32 s{S_T0}, s{S_T0}, 12
    s_lshl_b32 s{S_T1}, s{S_J}, 10
    s_add_u32 s{S_T0}, s{S_T0}, s{S_T1}
    s_add_u32 s{S_M0}, s{S_T0}, {FL_F3}
    v_and_b32 v61, {7*128}, v{V_L128}
    s_mov_b32 s{S_HOOK}, 4
    s_mov_b32 s{S_R3}, 0
    s_mov_b32 s{S_CNT}, 6
    s_waitcnt vmcnt(24) lgkmcnt(0)
    s_barrier
    ds_read_b32 v41, v40
    """)
    for ks, n in RD3[:14]:
        a(rd3(0, ks, n))
    a(f"""
    s_waitcnt lgkmcnt(14)
    v_readfirstlane_b32 s{S_T0}, v41
    """)
    for ks, n in RD3[14:]:
        a(rd3(0, ks, n))
    if not (X_RINGV or X_QV or os.environ.get('NOFB')):
        a(f"s_cmp_gt_u32 s{S_T0}, s{S_PASS}\ns_cbranch_scc1 L_fallback")
    for zi in range(5):
        a(f"v_mfma_f32_32x32x16_bf16 {vr(ACC_S+16*zi,16)}, v[48:51], v[48:51], 0")
    for pre, ld, post in gops[18:]:
        for x in pre:
            a(x)
        if pre:
            a("s_nop 0")
        a(ld)
        for x in post:
            a(x)
    for j in range(5):
        a(f"buffer_load_dwordx2 {vr(V_X+2*j,2)}, v{V_OO}, {sq(S_X)}, 0 offen offset:{32*j}")
        a(f"buffer_load_dwordx2 {vr(V_B2+2*j,2)}, v{V_BO}, {sq(S_B2)}, 0 offen offset:{32*j}")
    a("s_waitcnt lgkmcnt(0)")
    stamp(a, 9)
    a(".p2align 6\nL_g_loop:")
    stage3(a, 0, ACC_G, S_H, V_DH, f"s_cmp_eq_u32 s{S_CNT}, 6\ns_cbranch_scc1 L_g_nw\ns_waitcnt vmcnt(18)\nL_g_nw:",
           f"s_cmp_eq_u32 s{S_CNT}, s{S_HOOK}\ns_cbranch_scc1 L_g_h0\nL_g_r0:", False)
    stage3(a, 1, ACC_G, S_H, V_DH, "s_waitcnt vmcnt(18)",
           f"s_cmp_eq_u32 s{S_CNT}, 5\ns_cbranch_scc1 L_g_h1\nL_g_r1:", True)
    a(f"""
    s_cbranch_scc1 L_g_loop
    s_branch L_g_done
    L_g_h0:
    s_mov_b32 s{S_H+2}, 0
    s_mov_b32 s{S_WO}, s{S_WS0}
    s_add_u32 s{S_WO4}, s{S_WS0}, 4096
    s_mov_b32 s{S_HOOK}, 2
    s_cmp_eq_u32 s{S_CNT}, 4
    s_cbranch_scc1 L_g_r0
    s_add_u32 s{S_WO}, s{S_WO}, {4*40960}
    s_add_u32 s{S_WO4}, s{S_WO4}, {4*40960}
    buffer_load_dword v60, v61, {sq(S_FL)}, s{S_M0} offen sc1
    s_branch L_g_r0
    L_g_h1:
    s_cmp_lg_u32 s{S_WAVE}, 0
    s_cbranch_scc1 L_g_r1
    s_lshl_b32 s{S_T0}, s{S_QB}, 12
    s_lshl_b32 s{S_T1}, s{S_HEAD}, 7
    s_add_u32 s{S_T0}, s{S_T0}, s{S_T1}
    s_add_u32 s{S_T0}, s{S_T0}, {FL_F3}
    """)
    signal(a)
    a("s_branch L_g_r1\nL_g_done:\ns_waitcnt vmcnt(18) lgkmcnt(0)")
    stamp(a, 10)
    def o_dmas():
        a(f"s_mul_i32 s{S_OO}, s{S_J}, {48*1024}")
        for st in range(4):
            a(f"s_add_u32 s{S_DO}, s{S_LO}, {((st+2)%4)*STG}")
            for k in range(4):
                pre, ld = dma3(k, S_O, V_DO)
                for x in pre:
                    a(x + "\ns_nop 0")
                a(ld)
            a(ADV3[0])
    a(f"""
    s_barrier
    v_cmp_ne_u32 vcc, v{V_ONE}, v60
    s_mov_b32 s{S_KC}, 0
    s_cbranch_vccnz L_late
    s_mov_b32 s{S_KC}, 1
    """)
    o_dmas()
    a("L_late:")
    pack_store(a, ACC_G, PART_BYTES)
    stamp(a, 11)
    a(f"""
    s_cmp_eq_u32 s{S_KC}, 1
    s_cbranch_scc1 L_p3go
    L_poll3:
    buffer_load_dword v60, v61, {sq(S_FL)}, s{S_M0} offen sc1
    s_waitcnt vmcnt(0)
    v_cmp_ne_u32 vcc, v{V_ONE}, v60
    s_cbranch_vccnz L_poll3
    """)
    o_dmas()
    for k in range(12):
        a(f"buffer_load_dword v60, v61, {sq(S_H)}, 0 offen")
    a("L_p3go:")
    a(f"s_mov_b32 s{S_HOOK}, 20\ns_mov_b32 s{S_CNT}, 24\ns_waitcnt vmcnt(20)\ns_barrier")
    for ks, n in RD3:
        a(rd3(0, ks, n))
    a("s_waitcnt lgkmcnt(0)")
    stamp(a, 12)
    touch = f"buffer_load_dword v94, v{V_OO}, {sq(S_OUT)}, 0 offen\nbuffer_load_dword v95, v{V_OO}, {sq(S_OUT)}, 0 offen offset:132" if os.environ.get("TOUCHO") else ""
    a(".p2align 6\nL_s_loop:")
    stage3(a, 0, ACC_S, S_O, V_DO, f"s_waitcnt vmcnt(30)\ns_cmp_gt_u32 s{S_CNT}, 21\ns_cbranch_scc1 L_s_n0\ns_waitcnt vmcnt(18)\nL_s_n0:",
           f"s_cmp_eq_u32 s{S_CNT}, s{S_HOOK}\ns_cbranch_scc1 L_s_h\nL_s_r:", False)
    stage3(a, 1, ACC_S, S_O, V_DO, f"s_waitcnt vmcnt(25)\ns_cmp_gt_u32 s{S_CNT}, 21\ns_cbranch_scc1 L_s_n1\ns_waitcnt vmcnt(18)\nL_s_n1:",
           "", True)
    a(f"""
    s_cbranch_scc1 L_s_loop
    s_branch L_s_done
    L_s_h:
    s_lshl_b32 s{S_PO}, s{S_TILE}, 9
    s_add_u32 s{S_PO}, s{S_PO}, {FL_F5}
    s_cmp_eq_u32 s{S_CNT}, 4
    s_cbranch_scc1 L_s_h2
    s_mov_b32 s{S_HOOK}, 4
    s_cmp_lg_u32 s{S_WAVE}, 0
    s_cbranch_scc1 L_s_r
    s_lshl_b32 s{S_T1}, s{S_J}, 7
    s_add_u32 s{S_T0}, s{S_PO}, s{S_T1}
    """)
    signal(a)
    a(f"""
    s_branch L_s_r
    L_s_h2:
    {touch}
    s_mov_b32 s{S_O+2}, 0
    s_mov_b32 s{S_WF+2}, 0
    buffer_load_dword v60, v{V_FV}, {sq(S_FL)}, s{S_PO} offen sc1
    s_branch L_s_r
    L_repoll5:
    buffer_load_dword v60, v{V_FV}, {sq(S_FL)}, s{S_PO} offen sc1
    s_waitcnt vmcnt(0)
    L_s_done:
    v_cmp_ne_u32 vcc, v{V_ONE}, v60
    s_cbranch_vccnz L_repoll5
    s_waitcnt lgkmcnt(0)
    """)
    stamp(a, 13)
    GP, g, u, xx = 176, 224, 96, 116
    pack_store(a, ACC_S, 0)
    part_loads(a, PART_BYTES, GP)
    stamp(a, 14)
    a(f"""
    s_lshl_b32 s{S_PO}, s{S_TILE}, 11
    s_add_u32 s{S_PO}, s{S_PO}, {FL_F6}
    s_lshl_b32 s{S_T0}, s{S_WAVE}, 9
    s_lshl_b32 s{S_T1}, s{S_J}, 7
    s_add_u32 s{S_T0}, s{S_T0}, s{S_T1}
    s_add_u32 s{S_T0}, s{S_T0}, s{S_PO}
    s_lshl_b32 s{S_T1}, s{S_J}, 9
    s_add_u32 s{S_PO}, s{S_PO}, s{S_T1}
    s_waitcnt vmcnt(12)
    """)
    signal(a)
    stamp(a, 15)
    part_sum(a, GP, g, 1, 60)
    nl2e = -math.log2(math.e)
    for e in range(10):
        a(f"v_lshlrev_b32 v{u+2*e}, 16, v{V_B2+e}\nv_and_b32 v{u+1+2*e}, 0xffff0000, v{V_B2+e}")
    for tmpl in ("v_add_f32 v{g}, v{u}, v{g}", "v_mul_f32 v{u}, " + fh(nl2e) + ", v{g}", "v_exp_f32 v{u}, v{u}",
                 "v_add_f32 v{u}, 1.0, v{u}", "v_rcp_f32 v{u}, v{u}"):
        for e in range(20):
            a(tmpl.format(g=g + e, u=u + e))
    for e in range(10):
        a(f"v_lshlrev_b32 v{xx+2*e}, 16, v{V_X+e}\nv_and_b32 v{xx+1+2*e}, 0xffff0000, v{V_X+e}")
    for e in range(20):
        a(f"v_mul_f32 v{g+e}, v{g+e}, v{u+e}")
    a(f"""
    L_poll4:
    buffer_load_dword v60, v{V_FV}, {sq(S_FL)}, s{S_PO} offen sc1
    s_waitcnt vmcnt(0)
    v_cmp_ne_u32 vcc, v{V_ONE}, v60
    s_cbranch_vccnz L_poll4
    """)
    stamp(a, 16)
    part_loads(a, 0, GP)
    part_sum(a, GP, u, 0, 60)
    stamp(a, 23)
    for e in range(20):
        a(f"v_fmac_f32 v{xx+e}, v{g+e}, v{u+e}")
    for j in range(5):
        a(f"v_cvt_pk_bf16_f32 v{140+2*j}, v{xx+4*j}, v{xx+1+4*j}\nv_cvt_pk_bf16_f32 v{141+2*j}, v{xx+2+4*j}, v{xx+3+4*j}")
        a(f"buffer_store_dwordx2 {vr(140+2*j,2)}, v{V_OO}, {sq(S_OUT)}, 0 offen offset:{32*j}{os.environ.get('OUTSC','')}")
    stamp(a, 17)
    if STAMP:
        a("s_waitcnt vmcnt(0)")
        stamp(a, 18)
        if os.environ.get("DBG"):
            sel = [0, 3, 4, 6, 7, 12, 13, 14, 15, 16, 23, 17, 18, 16, 17, 18]
            a('s_nop 1')
            for k, x in enumerate(sel):
                a(f"v_readlane_b32 s3, v39, {x}\ns_nop 3" + ("\ns_not_b32 s3, s3" if k in (0, 13, 14, 15) else "") + f"\nv_writelane_b32 v40, s3, {k}")
            srd(a, 4, P_DBG, 64)
            a(f"buffer_atomic_umax v40, v{V_L4}, s[4:7], 0 offen\ns_waitcnt vmcnt(0)")
        srd(a, 4, P_WS, 1 << 20, WS_DBG)
        a(f"s_lshl_b32 s3, s2, 2\ns_add_u32 s3, s3, s{S_WAVE}\ns_lshl_b32 s3, s3, 9\nv_lshlrev_b32 v2, 3, v0\nv_add_u32 v2, s3, v2")
        a("buffer_store_dwordx2 v[38:39], v2, s[4:7], 0 offen\ns_waitcnt vmcnt(0)")
    a("L_end:\ns_endpgm")


def build():
    a = Asm()
    a.l.append("; @launch grid=(256,1,1) block=(256,1,1) lds=163840")
    a('.amdgcn_target "amdgcn-amd-amdhsa--gfx950"\n.text')
    a(f".globl {KNAME}")
    gen_kernel(a)
    a('.section .rodata,"a"\n.p2align 6')
    a.l.append(f""".amdhsa_kernel {KNAME}
  .amdhsa_next_free_vgpr 512
  .amdhsa_next_free_sgpr 102
  .amdhsa_accum_offset 256
  .amdhsa_group_segment_fixed_size 0
  .amdhsa_kernarg_size 104
  .amdhsa_user_sgpr_count 2
  .amdhsa_user_sgpr_kernarg_segment_ptr 1
  .amdhsa_system_sgpr_workgroup_id_x 1
.end_amdhsa_kernel""")
    return a.text()


if __name__ == "__main__":
    STAMP = "stamp" in sys.argv
    open(sys.argv[1], "w").write(build())
```

```python
import sys, math, os, struct

NAME = "recurrent_scan__gqa_block_cached__dense_activation_gelu__prompt"
KNAME = NAME + "_kernel"
WS_XN, WS_H, WS_O, WS_WF, WS_PART, WS_FLAG, WS_DBG = 0, 4 << 20, 16 << 20, 48 << 20, 80 << 20, 112 << 20, 128 << 20
XN_BYTES = 2048 * 640 * 2
H_BYTES = 2048 * 1536 * 2
O_BYTES = 2048 * 6144 * 2
WF_BYTES = 240 * 40960
PART_BYTES = 64 * 64 * 2560
FL_F1, FL_F3, FL_F2, FL_F4, FL_F5, FL_NONCE = 0, 32768, 65536, 98304, 131072, 163840
FL_F6 = 163968
FLAG_BYTES = FL_F6 + 1024 * 128
STAMP = False
OFF = float(os.environ.get("OFF", 102.0))
GUARD_LO = 2.0 ** -110


def fh(x):
    return "0x%08x" % struct.unpack("<I", struct.pack("<f", x))[0]


class Asm:
    def __init__(self):
        self.l = []

    def __call__(self, s):
        for line in s.strip("\n").split("\n"):
            line = line.strip()
            if line:
                self.l.append(line if line.endswith(":") or line.startswith(".") else "    " + line)

    def text(self):
        return "\n".join(self.l) + "\n"


def vr(b, n=4, p="v"):
    return f"{p}[{b}:{b+n-1}]"


def ar(b, n=4):
    return vr(b, n, "a")


def srd(a, d, lo, nbytes, add=None):
    if add is None:
        a(f"s_mov_b32 s{d}, s{lo}\ns_mov_b32 s{d+1}, s{lo+1}")
    else:
        a(f"s_add_u32 s{d}, s{lo}, {add}\ns_addc_u32 s{d+1}, s{lo+1}, 0")
    a(f"s_mov_b32 s{d+2}, {nbytes}\ns_mov_b32 s{d+3}, 0x00020000")


def sq(d):
    return f"s[{d}:{d+3}]"


def mfma(d, a_, b, c):
    return f"v_mfma_f32_16x16x32_bf16 {d}, {a_}, {b}, {c}"


def stamp(a, i):
    if STAMP:
        a(f"""s_memtime s[98:99]
        s_waitcnt lgkmcnt(0)
        v_writelane_b32 v38, s98, {i}
        s_memrealtime s[98:99]
        s_waitcnt lgkmcnt(0)
        v_writelane_b32 v39, s98, {i}""")


SLOT = 24576
LDS_K, LDS_V, LDS_X = 0, 3 * SLOT, 6 * SLOT
LDS_W1 = 2 * SLOT
LDS_FLAG = LDS_X + 12288
STG = 36864
LDS_WOFF = 16384

S_XN, S_WQ, S_W1, S_K, S_V, S_H, S_O, S_MISC = 4, 8, 12, 16, 20, 24, 28, 32
S_HEAD, S_QB, S_WAVE, S_HOOK = 36, 37, 38, 39
S_RD, S_DMA, S_SO0, S_SO1, S_CNT, S_T0, S_T1, S_BOFF = 40, 41, 42, 43, 44, 45, 46, 47
S_W3072, S_SV0, S_SV1, S_PASS, S_RD1, S_DMA1, S_SW0, S_SW1 = 48, 49, 50, 51, 52, 53, 54, 55
S_C0, S_C1, S_M0, S_KC = 56, 57, 58, 59
P_K, P_V, P_WQ, P_WO, P_W1, P_B1, P_W2, P_B2, P_OUT, P_DBG, P_WS, P_X = 60, 62, 64, 66, 68, 70, 72, 74, 76, 78, 80, 82
S_X, S_WF, S_FL = 84, 88, 92
S_RS, S_RO = 96, 97
S_NONCE, S_HS = 100, 101
S_RK, S_DV, S_DKM, S_DVM = S_RD1, S_DMA1, S_DMA, S_BOFF
S_RSA = S_HS
S_PT, S_OUT, S_B2 = 4, 8, 12
S_J, S_MB, S_NB, S_OO, S_WO, S_WO4, S_R3, S_DO, S_DW, S_LO, S_LW, S_TILE, S_WS0, S_PO = 40, 41, 42, 43, 47, 48, 49, 50, 52, 53, 54, 55, 56, 57

V_L, V_KA, V_VA, V_KB, V_VB, V_DK, V_DV = 2, 6, 8, 12, 14, 18, 19
V_F2 = 20
V_RD, V_RR = 32, 33
V_ZERO, V_ONE = 36, 37
V_NM = 40
V_L4, V_L128 = 62, 63
V_Q, V_S, V_P = 64, 128, 192
A_RING, A_Q = 192, 224
P1_ACC, P1_H, P1_RING, P1_B = 64, 0, 48, 88
V1_WA, V1_FA, V1_WB, V1_FB, V1_DW, V1_DF, V1_X = 6, 8, 12, 14, 20, 21, 22
V_RB, V_RA, V_DH, V_DO, V_RB0, V_RA0, V_OO, V_BO, V_PO, V_FV = 6, 7, 12, 14, 16, 17, 18, 19, 32, 33
V_X, V_B2, FR = 64, 74, 0
ACC_S, ACC_G = 96, 176


X_RINGV = os.environ.get("RINGV")
X_QV = os.environ.get("QV")
X_NOCHAIN = os.environ.get("NOCHAIN")


def q_reg(s, t):
    i = 4 * s + t
    if X_QV:
        return vr(V_Q + 4 * (i % 16))
    return vr(V_Q + 4 * i) if i < 16 else ar(A_Q + 4 * (i - 16))


def s_reg(u, t):
    return V_S + 4 * (4 * u + t)


def p_reg(par, ch, t):
    return V_P + 32 * par + 16 * ch + 4 * t


def code_prefetch(a, tag, first, last, sreg, vdst, one=False):
    a(f"""
    s_getpc_b64 s[{sreg}:{sreg+1}]
    L_pc{tag}:
    s_add_u32 s{sreg}, s{sreg}, {first}-L_pc{tag}
    s_addc_u32 s{sreg+1}, s{sreg+1}, 0
    s_mov_b32 s{sreg+2}, {last}-{first}
    s_mov_b32 s{sreg+3}, 0x00020000
    """)
    if one:
        a(f"""s_bfe_u32 s{S_T0}, s2, 0x30003
        s_lshl_b32 s{S_T0}, s{S_T0}, 2
        s_add_u32 s{S_T0}, s{S_T0}, s{S_WAVE}
        s_mul_i32 s{S_T0}, s{S_T0}, 640
        v_min_u32 v{vdst+1}, 512, v{V_L128}
        buffer_load_dword v{vdst}, v{vdst+1}, {sq(sreg)}, s{S_T0} offen""")
        return
    a(f"""
    s_mov_b32 s{S_T0}, 8192
    s_mov_b32 s{S_T1}, 16384
    buffer_load_dword v{vdst}, v{V_L128}, {sq(sreg)}, 0 offen
    buffer_load_dword v{vdst+1}, v{V_L128}, {sq(sreg)}, s{S_T0} offen
    buffer_load_dword v{vdst+2}, v{V_L128}, {sq(sreg)}, s{S_T1} offen
    """)


def half_lanes(a, ins):
    a("s_mov_b32 exec_hi, 0")
    a(ins)
    a("s_mov_b32 exec_hi, -1")


def wait_counts(seq2, period, waits):
    cnt = {}
    for k, wt in waits.items():
        last = max(tm for tm, kk in seq2 if kk == k and tm < wt)
        cnt[k] = (sum(1 for tm, kk in seq2 if last < tm < wt), wt - last)
    return cnt


DMA_GAP = eval(os.environ.get('DG', '[3, 19, 35, 51, 59, 67, 93, 109, 125, 141, 149, 157]'))


AUX_RD, AUX_ST, AUX_DMA = (26, 27), 53, 11


def build_schedule():
    N = 192
    G = [dict(lds=None, exp=None, valu=[], dma=None, wait=None) for _ in range(N)]
    for g in range(24):
        pos = 0
        fk = (g + 2) % 24
        if fk < 12:
            for k in range(2):
                G[8 * g + pos]["lds"] = (fk, k)
                pos += 1
        fv = g + 3
        if 12 <= fv < 24:
            for k in range(4):
                G[8 * g + pos]["lds"] = (fv, k)
                pos += 1
    for i in range(12):
        G[DMA_GAP[i]]["dma"] = i
    for f in range(24):
        G[(8 * f - 1) % N]["wait"] = f
    for k in range(2):
        G[AUX_RD[k]]["lds"] = (24, k)
    G[AUX_ST]["dma"] = 12
    G[AUX_DMA]["dma"] = 13
    free = [i for i in range(N) if G[i]["lds"] is None and G[i]["dma"] is None]
    free2 = free + [N + x for x in free]
    seq = [(u, t, r) for u in range(4) for t in range(4) for r in range(4)]
    start = [k for k, x in enumerate(free2) if x >= 24][0]
    etime = {}
    k = float(start)
    step = len(free) / 64.0
    for e, (u, t, r) in enumerate(seq):
        kk = int(start + e * step)
        ready = 24 * u + 16 + 2 * t + 1 + 4
        while free2[kk] < ready or G[free2[kk] % N]["exp"] is not None:
            kk += 1
        tm = free2[kk]
        G[tm % N]["exp"] = ("prev" if tm >= N else "cur", u, t, r)
        etime[(u, t, r)] = tm
    cap = [0 if (G[i]["dma"] is not None or G[i]["exp"] is not None) else (1 if G[i]["lds"] is not None else 2) for i in range(N)]
    if os.environ.get("CAP1"):
        for i in range(N):
            if G[i]["lds"] is not None and G[(i + 1) % N]["lds"] is not None:
                cap[i] = 0
    if os.environ.get("CAP2"):
        for i in range(N):
            if G[i]["lds"] is not None and G[i - 1]["lds"] is not None:
                cap[i] = 0
    ops = []
    for (u, t, r) in seq:
        ops.append((etime[(u, t, r)] + 1, "add", u, t, r))
        if r & 1:
            ops.append((etime[(u, t, r)] + 1, "cvt", u, t, r >> 1))
    ops.sort(key=lambda o: (o[0], o[1] == "add"))
    used = [0] * N
    for o in ops:
        tm = o[0]
        while used[tm % N] >= cap[tm % N]:
            tm += 1
        assert tm < N + 24 * o[2] + 2 * o[3], (o, tm)
        assert tm < N + 92
        used[tm % N] += 1
        G[tm % N]["valu"].append(("prev" if tm >= N else "cur",) + o[1:])
    return G, [cap[i] - used[i] for i in range(N)]


def att_counts(G, nok=False, aux=False):
    seq = [(rep * 192 + i, G[i]["lds"][0]) for rep in range(2) for i in range(192)
           if G[i]["lds"] is not None and not (nok and rep == 1 and G[i]["lds"][0] < 12) and (aux or G[i]["lds"][0] != 24)]
    ks = range(12, 24) if nok else range(24)
    c = wait_counts(seq, 192, {f: 192 + 8 * f - 1 for f in ks})
    assert all(v[0] <= 15 for v in c.values()), c
    return {k: v[0] for k, v in c.items()}


def soft(kind, which, u, t, x, par_cur):
    par = par_cur if which == "cur" else 1 - par_cur
    s = s_reg(u, t)
    if kind == "exp":
        return f"v_exp_f32 v{s+x}, v{s+x}"
    if kind == "add":
        return f"v_add_f32 v{V_L+t}, v{s+x}, v{V_L+t}"
    return f"v_cvt_pk_bf16_f32 v{p_reg(par, u >> 1, t) + 2*(u&1) + x}, v{s+2*x}, v{s+2*x+1}"


def ring(grp, k):
    return A_RING + 8 * (grp % 4) + 4 * k


def rr(b, n=4):
    return vr(b, n) if X_RINGV else ar(b, n)


def k_read(grp, k):
    u, s = grp // 3, 2 * (grp % 3) + k
    return f"ds_read_b128 {rr(ring(grp, k))}, v{V_KA+k} offset:{2*u*3072 + (s>>1)*1024}"


def v_read(grp, k):
    dt, ch, part = grp - 12, k >> 1, k & 1
    return f"ds_read_b64_tr_b16 {rr(ring(grp, ch) + 2*part, 2)}, v{V_VA+(dt&3)} offset:{(4*ch+2*part)*3072 + (dt>>2)*1024}"


def qk_mfma(grp, p, first_c):
    if X_NOCHAIN:
        p = 2 * (p & 3) + (p >> 2)
    u, s, t = grp // 3, 2 * (grp % 3) + (p & 1), p >> 1
    c = first_c(t) if s == 0 else vr(s_reg(u, t))
    return mfma(vr(s_reg(u, t)), rr(ring(grp, p & 1)), q_reg(s, t), c)


def gen_body(a, G, spare, par, tail=False, tailq=None, lab=""):
    cnt = att_counts(G, nok=tail, aux=not tail)
    buf = 0 if lab == "a" else 1
    ev, es, sp = {}, {}, list(spare)

    def put_v(lo, hi, ins):
        for i in range(lo, hi):
            if sp[i] > 0:
                sp[i] -= 1
                ev.setdefault(i, []).append(ins)
                return
        raise AssertionError(ins)

    def put_s(lo, hi, ins):
        need = ins.count("\ns_")
        for i in range(lo, hi):
            if G[i]["lds"] is None and G[i]["dma"] is None and G[i]["wait"] is None and i not in es and sp[i] >= need:
                es[i] = ins
                sp[i] -= need
                return i
        raise AssertionError(ins)
    if not tail:
        for i in range(12):
            base = S_DKM if i < 6 else S_DVM
            d = i % 6
            assert G[DMA_GAP[i] - 1]["lds"] is None and G[DMA_GAP[i] - 1]["wait"] is None
            es[DMA_GAP[i] - 1] = f"s_add_u32 m0, s{base}, {(d//3)*12288 + (d%3)*896}"
        es[AUX_DMA - 1] = f"s_add_u32 m0, s{S_W3072}, {LDS_X + buf*1024}"
        put_s(12, 30, f"s_add_u32 s{S_RS}, s{S_RS}, s{S_RSA}")
        put_s(12, 66, f"s_cmp_eq_u32 s{S_CNT}, 22\ns_cselect_b32 s{S_MISC+2}, 0, s{S_MISC+2}")
        put_s(54, 66, f"s_add_u32 s{S_RO}, s{S_RO}, 4096")
        put_s(54, 71, f"s_cmp_gt_u32 s{S_CNT}, 21\ns_cselect_b32 s{S_WF+2}, {WF_BYTES}, 0")
        put_s(28, 66, f"s_cmp_eq_u32 s{S_CNT}, s{S_HOOK}\ns_cbranch_scc1 L_hook{lab}\nL_hret{lab}:")
        i = 71
        for x in (f"s_add_u32 s{S_SO0}, s{S_SO0}, {SLOT}", f"s_add_u32 s{S_SO1}, s{S_SO1}, {SLOT}",
                  f"s_sub_u32 s{S_CNT}, s{S_CNT}, 1",
                  f"s_mov_b32 s{S_T1}, s{S_RD}", f"s_mov_b32 s{S_RD}, s{S_RK}", f"s_mov_b32 s{S_RK}, s{S_DV}", f"s_mov_b32 s{S_DV}, s{S_T1}",
                  f"s_add_u32 s{S_DKM}, s{S_RD}, s{S_W3072}"):
            i = put_s(i, 150, x) + 1
        for j in range(2):
            put_v(max(i, 80), 172, f"v_add_u32 v{V_KA+j}, s{S_RK}, v{V_KB+j}")
        for j in range(4):
            put_v(0, 66, f"v_add_u32 v{V_VA+j}, s{S_RD}, v{V_VB+j}")
        i = 158
        for x in (f"s_add_u32 s{S_SV0}, s{S_SV0}, {SLOT}", f"s_add_u32 s{S_SV1}, s{S_SV1}, {SLOT}", f"s_add_u32 s{S_DVM}, s{S_DV}, s{S_M0}"):
            es.setdefault(169, "")
            es.setdefault(170, "")
            i = put_s(i, 184, x) + 1
        es[169] = "s_waitcnt vmcnt(11) lgkmcnt(0)"
        es[170] = "s_barrier"
        put_s(186, 191, f"s_cmp_lg_u32 s{S_CNT}, 0")
    for i in range(192):
        g = G[i]
        grp, p = i // 8, i % 8
        if grp < 12:
            if not tail:
                a(qk_mfma(grp, p, lambda t: vr(V_NM + 4 * t)))
        else:
            pp = 2 * (p & 3) + (p >> 2) if X_NOCHAIN else p
            o = ar(4 * (4 * (grp - 12) + (pp >> 1)))
            a(mfma(o, rr(ring(grp, pp & 1)), vr(p_reg(1 - par, pp & 1, pp >> 1)), o))
        if g["wait"] is not None:
            f = g["wait"]
            if (tail and 12 <= f < 24) or (not tail and f not in (22, 23)):
                a("s_waitcnt lgkmcnt(%d)" % cnt[f])
        elif i in es:
            a(es[i])
        if g["lds"] is not None and not os.environ.get("NOLDS"):
            f, k = g["lds"]
            if f == 24:
                if not tail:
                    a(f"ds_read_b64_tr_b16 {vr(28+2*k,2)}, v{V_RR} offset:{k*6144 + (1-buf)*1024}")
            elif f >= 12:
                if not (tail and f < 15):
                    a(v_read(f, k))
            elif not tail:
                a(k_read(f, k))
        if g["dma"] is not None and not tail and not os.environ.get("NODMA"):
            d = g["dma"]
            if d == 12:
                if True:
                    a(f"buffer_store_dwordx4 v[28:31], v1, {sq(S_WF)}, s{S_RO} offen sc1")
            elif d == 13:
                if True:
                    a(f"buffer_load_dwordx4 v{V_RD}, {sq(S_MISC)}, s{S_RS} offen sc1 lds")
            elif d < 6:
                a(f"buffer_load_dwordx4 v{V_DK}, {sq(S_K)}, s{S_SO0 + d//3} offen offset:{(d%3)*128} lds")
            else:
                d -= 6
                a(f"buffer_load_dwordx4 v{V_DV}, {sq(S_V)}, s{S_SV0 + d//3} offen offset:{(d%3)*128} lds")
        if g["exp"] is not None and not (tail and g["exp"][0] == "cur"):
            w, u, t, r = g["exp"]
            a(soft("exp", w, u, t, r, par))
            if tail and grp < 12:
                a("s_nop 0")
        for (w, kind, u, t, x) in g["valu"]:
            if not (tail and w == "cur") and not os.environ.get("NOVALU"):
                a(soft(kind, w, u, t, x, par))
        for ins in ev.get(i, []):
            a(ins)
        if tail and i == 95:
            a("s_nop 1")
        if tail and i >= 96:
            qd, qv = tailq
            if g["lds"] is not None and g["lds"][0] >= 12:
                if qv:
                    a(qv.pop(0))
            elif qd:
                a(qd.pop(0))
    if tail:
        assert not tailq[0] and not tailq[1], tailq


def p1_acc(f, t):
    if f < 12:
        return vr(P1_ACC + 8 * (4 * (f >> 1) + t) + 4 * (f & 1))
    return ar(P1_H + 4 * (4 * (f - 12) + t))


def p1_read(f, k):
    ks, part = k >> 1, k & 1
    dst = ar(P1_RING + 8 * (f % 5) + 4 * ks + 2 * part, 2)
    if f < 12:
        s, half = f >> 1, f & 1
        return f"ds_read_b64_tr_b16 {dst}, v{V1_WA+(s&1)} offset:{ks*4*3072 + (s>>1)*1024 + part*512 + half*8}"
    return f"ds_read_b64_tr_b16 {dst}, v{V1_FA+f-12} offset:{ks*4096 + part*512}"


def gen_p1_stage(a, sp):
    slots = {g: [] for g in range(15)}
    pend = [(f, k) for f in range(2, 15) for k in range(4)]
    g = 0
    while pend:
        while pend and len(slots[g]) < 6 and g >= pend[0][0] - 4:
            slots[g].append(pend.pop(0))
        g += 1
    assert g <= 11, g
    slots[13] = [(0, k) for k in range(4)]
    slots[14] = [(1, k) for k in range(4)]
    seq = [(rep * 120 + 8 * gg + p, f) for rep in range(2) for gg in range(15) for p, (f, k) in enumerate(slots[gg])]
    cnt = wait_counts(seq, 120, {f: 120 + 8 * f - 1 for f in range(15)})
    assert all(c <= 15 and d >= 8 for c, d in cnt.values()), cnt
    ex = {}

    def put(grp, p, ins):
        assert p >= len(slots[grp]), (grp, p)
        ex.setdefault((grp, p), []).append(ins)
    for j in range(8):
        ks, t = j >> 2, j & 3
        put(j, 6, f"buffer_load_dwordx4 {ar(P1_B + 32*(1-sp) + 16*ks + 4*t)}, v{V1_X+t}, {sq(S_XN)}, s{S_BOFF} offen offset:{ks*1024} sc1")
    for d in range(8):
        grp, p = (4 + d, 4) if d < 7 else (11, 0)
        if d < 6:
            put(grp, p, f"s_add_u32 m0, s{S_DMA}, {LDS_V + (d//3)*12288 + (d%3)*896}")
            put(grp, p + 1, f"buffer_load_dwordx4 v{V1_DW}, {sq(S_WQ)}, s{S_SO0 + d//3} offen offset:{(d%3)*128} lds")
        else:
            put(grp, p, f"s_add_u32 m0, s{S_DMA1}, {LDS_W1 + (d-6)*4096}")
            put(grp, p + 1, f"buffer_load_dwordx4 v{V1_DF}, {sq(S_W1)}, s{S_SW0 + d-6} offen lds")
    put(12, 6, f"buffer_load_dword v47, v46, {sq(S_O)}, s{S_M0} offen")
    put(13, 7, f"s_add_u32 s{S_M0}, s{S_M0}, s{S_HS}")
    nv = 5
    if sp == 0:
        for d, (grp, p) in enumerate(((11, 2), (11, 4), (12, 0))):
            put(grp, p, f"s_add_u32 m0, s{S_C0}, {d*896}")
            put(grp, p + 1, f"buffer_load_dwordx4 v{V_DK}, {sq(S_K)}, s{S_SV0} offen offset:{d*128} lds")
        put(13, 4, f"s_mov_b32 s{S_SV0}, s{S_SV1}\ns_add_u32 s{S_SV1}, s{S_SV1}, 12288")
        put(13, 5, f"s_mov_b32 s{S_C0}, s{S_C1}\ns_add_u32 s{S_C1}, s{S_C1}, 12288\ns_mov_b32 s{S_K+2}, 786432")
        put(13, 6, f"s_cmp_eq_u32 s{S_CNT}, 1\ns_cselect_b32 s{S_XN+2}, 0, s{S_XN+2}")
        nv = 8
    else:
        put(13, 4, f"s_sub_u32 s{S_CNT}, s{S_CNT}, 1")
        put(13, 5, f"s_cmp_eq_u32 s{S_CNT}, 2\ns_cselect_b32 s{S_O}, s{S_HOOK}, s{S_O}\ns_cselect_b32 s{S_O+1}, s{S_KC}, s{S_O+1}")
        put(13, 6, f"s_cselect_b32 s{S_O+2}, s{S_V+2}, s{S_O+2}\ns_cselect_b32 s{S_HS}, s3, s{S_HS}\ns_cselect_b64 vcc, -1, 0")
        put(14, 5, f"s_cmp_eq_u32 s{S_CNT}, 2\ns_cselect_b32 s{S_M0}, 0, s{S_M0}\nv_cndmask_b32 v46, v46, v60, vcc")
    put(9, 6, f"s_mov_b32 s{S_T1}, s{S_RD}\ns_add_u32 s{S_RD}, s{S_RD}, {SLOT}\ns_add_u32 s{S_BOFF}, s{S_BOFF}, 2048")
    put(10, 6, f"s_cmp_eq_u32 s{S_RD}, {3*SLOT}\ns_cselect_b32 s{S_RD}, 0, s{S_RD}\ns_add_u32 s{S_DMA}, s{S_T1}, s{S_W3072}")
    put(11, 6, f"s_lshl_b32 s{S_T0}, s{S_WAVE}, 10\ns_add_u32 s{S_DMA1}, s{S_RD1}, s{S_T0}\ns_add_u32 s{S_RD1}, s{S_RD1}, 8192")
    put(12, 2, f"s_cmp_eq_u32 s{S_RD1}, {3*8192}\ns_cselect_b32 s{S_RD1}, 0, s{S_RD1}")
    put(12, 3, f"v_add_u32 v{V1_WA}, s{S_RD}, v{V1_WB}\nv_add_u32 v{V1_WA+1}, s{S_RD}, v{V1_WB+1}")
    put(8, 6, f"s_add_u32 s{S_SO0}, s{S_SO0}, {64*12288}")
    put(12, 7, f"s_add_u32 s{S_SO1}, s{S_SO1}, {64*12288}\nv_add_u32 v{V1_FA}, s{S_RD1}, v{V1_FB}\nv_add_u32 v{V1_FA+1}, s{S_RD1}, v{V1_FB+1}")
    put(12, 4, f"v_add_u32 v{V1_FA+2}, s{S_RD1}, v{V1_FB+2}")
    put(14, 4, f"s_add_u32 s{S_SW0}, s{S_SW0}, {64*3072}\ns_add_u32 s{S_SW1}, s{S_SW1}, {64*3072}")
    ex[(12, 4)].insert(0, "s_waitcnt vmcnt(16) lgkmcnt(0)")
    put(12, 5, "s_barrier")
    if sp == 1:
        put(14, 6, f"s_cmp_lg_u32 s{S_CNT}, 0")
    for i in range(120):
        grp, p = i // 8, i % 8
        t, ks = p >> 1, p & 1
        acc = p1_acc(grp, t)
        a(mfma(acc, ar(P1_RING + 8 * (grp % 5) + 4 * ks), ar(P1_B + 32 * sp + 16 * ks + 4 * t), acc))
        if p < len(slots[grp]):
            a(p1_read(*slots[grp][p]))
        if p == 7:
            f = (grp + 1) % 15
            w = [f"vmcnt({nv})"] if f == 0 else []
            if f not in (13, 14):
                w.append(f"lgkmcnt({cnt[f][0]})")
            if w:
                a("s_waitcnt " + " ".join(w))
        for x in ex.get((grp, p), []):
            a(x)


def dma_tile(a, voff, srdreg, so0, so1, sbase, lds_const, n=6):
    for d in range(n):
        a(f"s_add_u32 m0, s{sbase}, {lds_const + (d//3)*12288 + (d%3)*896}\ns_nop 0")
        a(f"buffer_load_dwordx4 v{voff}, {sq(srdreg)}, s{so0 if d < 3 else so1} offen offset:{(d%3)*128} lds")


def gen_ln_body(a):
    R, U, T, Q, RO = 64, 96, 86, 136, 144
    for i in range(5):
        a(f"s_waitcnt vmcnt({3 + 4 - i + (2 if os.environ.get('TOUCH') else 0)})")
        for j in range(4):
            r, d = R + 4 * i + j, U + 8 * i + 2 * j
            a(f"v_lshlrev_b32 v{d}, 16, v{r}\nv_and_b32 v{d+1}, 0xffff0000, v{r}")
    stamp(a, 19)
    T2 = 88
    for k in range(2):
        a(f"v_pk_add_f32 {vr(T2+2*k,2)}, {vr(U+2*k,2)}, {vr(U+4+2*k,2)}")
    for e in range(8, 40, 2):
        k = (e >> 1) & 1
        a(f"v_pk_add_f32 {vr(T2+2*k,2)}, {vr(U+e,2)}, {vr(T2+2*k,2)}")
    a(f"v_pk_add_f32 {vr(T2,2)}, {vr(T2,2)}, {vr(T2+2,2)}\nv_add_f32 v{T}, v{T2}, v{T2+1}")
    for sh in (8, 4, 2, 1):
        a(f"s_nop 1\nv_add_f32 v{T}, v{T}, v{T} row_ror:{sh}")
    a(f"v_mul_f32 v{T}, {fh(1/640)}, v{T}")
    for e in range(0, 40, 2):
        k = (e >> 1) & 1
        t = 140 + 2 * k
        a(f"v_pk_add_f32 {vr(t,2)}, {vr(U+e,2)}, {vr(T,2)} op_sel_hi:[1,0] neg_lo:[0,1] neg_hi:[0,1]")
        a(f"v_pk_mul_f32 {vr(Q+2*k,2)}, {vr(t,2)}, {vr(t,2)}" if e < 4 else f"v_pk_fma_f32 {vr(Q+2*k,2)}, {vr(t,2)}, {vr(t,2)}, {vr(Q+2*k,2)}")
    a(f"v_pk_add_f32 {vr(Q,2)}, {vr(Q,2)}, {vr(Q+2,2)}\nv_add_f32 v{Q}, v{Q}, v{Q+1}")
    for sh in (8, 4, 2, 1):
        a(f"s_nop 1\nv_add_f32 v{Q}, v{Q}, v{Q} row_ror:{sh}")
    a(f"""
    v_mul_f32 v{Q}, {fh(1/640)}, v{Q}
    v_cvt_pk_bf16_f32 v{T+1}, v{T}, v{Q}
    v_lshlrev_b32 v{T}, 16, v{T+1}
    v_and_b32 v{Q}, 0xffff0000, v{T+1}
    v_add_f32 v{Q}, {fh(1e-5)}, v{Q}
    v_cvt_pk_bf16_f32 v{Q}, v{Q}, v{Q}
    v_and_b32 v{Q}, 0xffff0000, v{Q}
    v_sqrt_f32 v{Q}, v{Q}
    s_nop 0
    v_cvt_pk_bf16_f32 v{Q}, v{Q}, v{Q}
    v_and_b32 v{Q}, 0xffff0000, v{Q}
    v_rcp_f32 v{Q}, v{Q}
    s_mov_b32 s{S_T0}, 0
    """)
    for i in range(5):
        for j in range(4):
            e = U + 8 * i + 2 * j
            a(f"""
            v_pk_add_f32 {vr(e,2)}, {vr(e,2)}, {vr(T,2)} op_sel_hi:[1,0] neg_lo:[0,1] neg_hi:[0,1]
            v_cvt_pk_bf16_f32 v{e}, v{e}, v{e+1}
            v_and_b32 v{e+1}, 0xffff0000, v{e}
            v_lshlrev_b32 v{e}, 16, v{e}
            v_pk_mul_f32 {vr(e,2)}, {vr(e,2)}, {vr(Q,2)} op_sel_hi:[1,0]
            v_cvt_pk_bf16_f32 v{RO+4*i+j}, v{e}, v{e+1}
            """)
        a(f"buffer_store_dwordx4 {vr(RO+4*i)}, v84, {sq(S_MISC)}, s{S_T0} offen sc1")
        a(f"s_add_u32 s{S_T0}, s{S_T0}, 4096")


def dma3(k, bsrd, bv):
    if k < 4:
        r, ks = k >> 1, k & 1
        pre = [f"s_add_u32 m0, s{S_DO}, {r*2048}"] if ks == 0 else []
        return pre, f"buffer_load_dwordx4 v{bv+r}, {sq(bsrd)}, s{S_OO} offen offset:{ks*1024} sc1 lds"
    i = k - 4
    if i < 4:
        pre = [f"s_mov_b32 m0, s{S_DW}"] if i == 0 else []
        return pre, f"buffer_load_dwordx4 v1, {sq(S_WF)}, s{S_WO} offen offset:{i*1024} sc1 lds"
    return [f"s_add_u32 m0, s{S_DW}, 4096"], f"buffer_load_dwordx4 v1, {sq(S_WF)}, s{S_WO4} offen sc1 lds"


def fr3(par, ks, n):
    return FR + 72 * par + 36 * ks + 4 * n


def rd3(par, ks, n):
    if n < 4:
        return f"ds_read_b128 {ar(fr3(par, ks, n))}, v{V_RB} offset:{(2*n+ks)*1024}"
    return f"ds_read_b128 {ar(fr3(par, ks, n))}, v{V_RA} offset:{(10*ks+n-4)*1024}"


RD3 = [(ks, n) for n in (0, 4, 1, 2, 3, 5, 6, 7, 8) for ks in range(2)]
ADV3 = [f"s_add_u32 s{S_OO}, s{S_OO}, 2048", f"s_add_u32 s{S_WO}, s{S_WO}, {2*40960}", f"s_add_u32 s{S_WO4}, s{S_WO4}, {2*40960}"]


def stage3(a, par, accb, bsrd, bv, wait, hook, last):
    ex = {3: f"s_add_u32 s{S_DO}, s{S_R3}, s{S_LO}\ns_add_u32 s{S_DW}, s{S_R3}, s{S_LW}\ns_add_u32 s{S_R3}, s{S_R3}, {STG}",
          4: f"s_cmp_eq_u32 s{S_R3}, {4*STG}\ns_cselect_b32 s{S_R3}, 0, s{S_R3}",
          5: f"v_add_u32 v{V_RB}, s{S_R3}, v{V_RB0}\nv_add_u32 v{V_RA}, s{S_R3}, v{V_RA0}",
          6: wait, 7: "s_waitcnt lgkmcnt(0)\ns_barrier", 8: hook}
    g = 9
    for k in range(9):
        pre, ld = dma3(k, bsrd, bv)
        ex[g] = rd3(1 - par, *RD3[2 * k])
        ex[g + 1] = rd3(1 - par, *RD3[2 * k + 1]) + "".join("\n" + x for x in pre)
        ex[g + 2] = ld
        g += 3
    ex[36] = "\n".join(ADV3)
    ex[37] = f"s_sub_u32 s{S_CNT}, s{S_CNT}, 1"
    ex[39] = "s_waitcnt lgkmcnt(6)" + (f"\ns_cmp_lg_u32 s{S_CNT}, 0" if last else "")
    for g in range(40):
        i, t, ks = g // 8, (g % 8) >> 1, g & 1
        acc = vr(accb + 20 * t + 4 * i)
        a(mfma(acc, ar(fr3(par, ks, 4 + i)), ar(fr3(par, ks, t)), acc))
        if ex.get(g, "").strip():
            a(ex[g])


def pack_store(a, accb, region):
    a(f"""
    s_lshl_b32 s{S_PO}, s{S_TILE}, 2
    s_mul_i32 s{S_T1}, s{S_WAVE}, 2560
    """)
    for t in range(1, 4):
        o = (0, 20, 40, 50)[t]
        a(f"""
        s_xor_b32 s{S_T0}, s{S_J}, {t}
        s_add_u32 s{S_T0}, s{S_T0}, s{S_PO}
        s_mul_i32 s{S_T0}, s{S_T0}, 40960
        s_add_u32 s{S_T0}, s{S_T0}, s{S_T1}
        s_add_u32 s{S_T0}, s{S_T0}, {region + t*10240}
        """)
        for e in range(10):
            r = accb + 20 * t + 2 * e
            a(f"v_cvt_pk_bf16_f32 v{o+e}, v{r}, v{r+1}")
        a(f"""
        buffer_store_dwordx4 {vr(o)}, v1, {sq(S_PT)}, s{S_T0} offen sc1
        buffer_store_dwordx4 {vr(o+4)}, v1, {sq(S_PT)}, s{S_T0} offen offset:1024 sc1
        buffer_store_dwordx2 {vr(o+8,2)}, v{V_PO}, {sq(S_PT)}, s{S_T0} offen offset:2048 sc1
        """)


def part_loads(a, region, base):
    a(f"""
    s_lshl_b32 s{S_T0}, s{S_TILE}, 2
    s_add_u32 s{S_T0}, s{S_T0}, s{S_J}
    s_mul_i32 s{S_T0}, s{S_T0}, 40960
    s_mul_i32 s{S_T1}, s{S_WAVE}, 2560
    s_add_u32 s{S_T0}, s{S_T0}, s{S_T1}
    s_add_u32 s{S_T0}, s{S_T0}, {region}
    """)
    for k in range(3):
        o = base + 12 * k
        a(f"""
        s_add_u32 s{S_T0}, s{S_T0}, 10240
        buffer_load_dwordx4 {vr(o)}, v1, {sq(S_PT)}, s{S_T0} offen sc1
        buffer_load_dwordx4 {vr(o+4)}, v1, {sq(S_PT)}, s{S_T0} offen offset:1024 sc1
        buffer_load_dwordx2 {vr(o+8,2)}, v{V_PO}, {sq(S_PT)}, s{S_T0} offen offset:2048 sc1
        """)


def part_sum(a, base, dst, younger, tmp):
    for k in range(3):
        o = base + 12 * k
        a(f"s_waitcnt vmcnt({3*(2-k)+younger})")
        for e in range(10):
            q = tmp + 2 * (e & 1)
            a(f"v_lshlrev_b32 v{q}, 16, v{o+e}\nv_and_b32 v{q+1}, 0xffff0000, v{o+e}")
            a(f"v_pk_add_f32 {vr(dst+2*e,2)}, {vr(dst+2*e,2)}, {vr(q,2)}")


def signal(a):
    half_lanes(a, f"buffer_store_dword v{V_ONE}, v{V_L4}, {sq(S_FL)}, s{S_T0} offen sc1")


def swaps(op, src, tmp):
    q = []
    for perm in ("v_permlane32_swap_b32", "v_permlane16_swap_b32"):
        for what in ("v_mov_b32 v{b}, v{l}", perm + " v{l}, v{b}", op + " v{l}, v{l}, v{b}"):
            for t in (0, 2):
                q.append("\n".join(what.format(l=src + tt, b=tmp + tt) for tt in (t, t + 1)))
    return q


def gen_kernel(a):
    G, spare = build_schedule()
    a(f".p2align 8\n.type {KNAME},@function\n{KNAME}:")
    a("s_cmp_ge_u32 s2, 256\ns_cbranch_scc1 L_end")
    stamp(a, 0)
    a(f"""
    s_load_dwordx2 s[{P_X}:{P_X+1}], s[0:1], 0
    s_load_dwordx2 s[{P_WS}:{P_WS+1}], s[0:1], 96
    s_load_dwordx4 s[{P_K}:{P_K+3}], s[0:1], 8
    s_load_dwordx4 s[{P_WQ}:{P_WQ+3}], s[0:1], 24
    s_load_dwordx4 s[{P_W1}:{P_W1+3}], s[0:1], 48
    s_load_dwordx4 s[{P_W2}:{P_W2+3}], s[0:1], 64
    s_load_dwordx4 s[{P_OUT}:{P_OUT+3}], s[0:1], 80
    v_and_b32 v{V_L128}, 63, v0
    v_lshlrev_b32 v{V_L128}, 7, v{V_L128}
    s_getpc_b64 s[{S_XN}:{S_XN+1}]
    L_pc2:
    s_mov_b32 s{S_XN+2}, L_p1_loop-L_pc2
    s_mov_b32 s{S_XN+3}, 0x00020000
    buffer_load_dword v61, v{V_L128}, {sq(S_XN)}, 0 offen
    s_and_b32 s{S_T0}, s2, 7
    s_lshl_b32 s{S_T0}, s{S_T0}, 2
    s_bfe_u32 s{S_T1}, s2, 0x20003
    s_add_u32 s{S_HEAD}, s{S_T0}, s{S_T1}
    s_lshr_b32 s{S_QB}, s2, 5
    s_mov_b32 s{S_PASS}, 0
    v_lshrrev_b32 v85, 4, v0
    v_lshrrev_b32 v1, 6, v0
    v_and_b32 v0, 63, v0
    v_readfirstlane_b32 s{S_WAVE}, v1
    s_lshl_b32 s{S_T0}, s{S_QB}, 8
    s_lshl_b32 s{S_T1}, s{S_HEAD}, 3
    s_add_u32 s{S_T0}, s{S_T0}, s{S_T1}
    v_add_u32 v85, s{S_T0}, v85
    v_and_b32 v31, 15, v0
    v_mul_u32_u24 v86, 1280, v85
    v_lshl_add_u32 v86, v31, 4, v86
    s_waitcnt lgkmcnt(0)
    s_add_u32 s{S_FL}, s{P_WS}, {WS_FLAG}
    s_addc_u32 s{S_FL+1}, s{P_WS+1}, 0
    s_load_dword s{S_NONCE}, s[{S_FL}:{S_FL+1}], {FL_NONCE}
    """)
    srd(a, S_X, P_X, XN_BYTES)
    a(f"s_cmp_ge_u32 s{S_WAVE}, 2\ns_cbranch_scc1 L_restart")
    for i in range(5):
        a(f"buffer_load_dwordx4 {vr(64+4*i)}, v86, {sq(S_X)}, 0 offen offset:{256*i}")
    a(f"""
    L_restart:
    v_lshrrev_b32 v84, 4, v85
    v_mul_u32_u24 v84, 20480, v84
    v_lshrrev_b32 v87, 2, v31
    v_lshl_add_u32 v84, v87, 10, v84
    v_and_b32 v87, 3, v31
    v_lshl_add_u32 v84, v87, 6, v84
    v_bfe_u32 v87, v85, 2, 2
    v_lshl_add_u32 v84, v87, 8, v84
    v_and_b32 v87, 3, v85
    v_lshl_add_u32 v84, v87, 4, v84
    v_and_b32 v26, 7, v0
    v_lshrrev_b32 v27, 3, v0
    v_lshrrev_b32 v28, 4, v0
    v_bfe_u32 v29, v0, 2, 2
    v_and_b32 v30, 3, v0
    v_and_b32 v31, 15, v0
    v_lshlrev_b32 v1, 4, v0
    v_lshlrev_b32 v36, 3, v28
    v_lshlrev_b32 v{V_L4}, 2, v0
    s_mul_i32 s{S_W3072}, s{S_WAVE}, 3072
    s_mul_i32 s{S_T0}, s{S_HEAD}, 96
    s_sub_u32 s{S_T1}, 3072, s{S_T0}
    """)
    srd(a, S_MISC, P_B1, f"s{S_T1}", f"s{S_T0}")
    for ft in range(3):
        a(f"buffer_load_dwordx2 {vr(40+2*ft,2)}, v36, {sq(S_MISC)}, 0 offen offset:{32*ft}")
    a(f"s_sub_u32 s{S_T1}, {640*1536*2}, s{S_T0}")
    srd(a, S_W1, P_W1, f"s{S_T1}", f"s{S_T0}")
    a(f"s_mul_i32 s{S_T0}, s{S_HEAD}, 384\ns_sub_u32 s{S_T1}, {640*6144*2}, s{S_T0}")
    srd(a, S_WQ, P_WQ, f"s{S_T1}", f"s{S_T0}")
    a(f"""
    s_mov_b32 s{S_FL+2}, {FLAG_BYTES}
    s_mov_b32 s{S_FL+3}, 0x00020000
    s_lshl_b32 s{S_T0}, s{S_WAVE}, 3
    v_add_u32 v32, s{S_T0}, v27
    v_mul_u32_u24 v33, 12288, v32
    v_bfe_u32 v34, v27, 1, 1
    v_lshlrev_b32 v35, 2, v34
    v_xor_b32 v35, v35, v26
    v_lshl_add_u32 v{V1_DW}, v35, 4, v33
    s_and_b32 s{S_T0}, s{S_WAVE}, 1
    s_lshl_b32 s{S_T0}, s{S_T0}, 2
    v_lshlrev_b32 v35, 1, v34
    v_or_b32 v35, s{S_T0}, v35
    v_xor_b32 v35, v35, v26
    v_mul_u32_u24 v33, 3072, v32
    v_lshl_add_u32 v{V1_DF}, v35, 4, v33
    s_lshl_b32 s{S_DMA1}, s{S_WAVE}, 10
    v_mov_b32 v{V_ZERO}, 0
    s_lshl_b32 s{S_T0}, s{S_PASS}, 1
    s_or_b32 s{S_T0}, s{S_T0}, s{S_WAVE}
    s_cmp_lt_u32 s{S_T0}, 2
    s_cbranch_scc1 L_ln
    """)
    pf_rest = f"""
    s_cmp_eq_u32 s{S_WAVE}, 2
    s_cselect_b32 s{S_XN}, s{S_W1}, s{S_WQ}
    s_cselect_b32 s{S_XN+1}, s{S_W1+1}, s{S_WQ+1}
    s_cselect_b32 s{S_XN+2}, s{S_W1+2}, s{S_WQ+2}
    s_mov_b32 s{S_T1}, {128*12288}
    s_cselect_b32 s{S_T1}, {128*3072}, s{S_T1}
    s_lshl_b32 s{S_T0}, s{S_T1}, 1
    buffer_load_dword v60, v55, {sq(S_XN)}, s{S_T0} offen
    s_add_u32 s{S_T0}, s{S_T0}, s{S_T1}
    buffer_load_dword v59, v55, {sq(S_XN)}, s{S_T0} offen
    s_add_u32 s{S_T0}, s{S_T0}, s{S_T1}
    buffer_load_dword v54, v55, {sq(S_XN)}, s{S_T0} offen
    """
    early_pf, late_pf = (pf_rest, "") if os.environ.get("PFE") == "1" else ("", pf_rest if os.environ.get("PFE") == "0" else "")
    a(f"""
    s_cmp_lg_u32 s{S_PASS}, 0
    s_cbranch_scc1 L_nopf
    s_lshl_b32 s{S_T0}, s{S_QB}, 4
    v_lshrrev_b32 v52, 2, v0
    v_add_u32 v52, s{S_T0}, v52
    v_mul_u32_u24 v53, 3072, v52
    v_lshlrev_b32 v52, 2, v53
    v_lshl_add_u32 v52, v30, 7, v52
    v_mul_u32_u24 v54, 40, v30
    v_add_u32 v53, v54, v53
    s_cmp_eq_u32 s{S_WAVE}, 2
    s_cbranch_scc1 L_pf2
    s_mov_b32 s{S_T0}, {128*12288}
    v_mov_b32 v55, v52
    buffer_load_dword v56, v52, {sq(S_WQ)}, 0 offen
    buffer_load_dword v57, v52, {sq(S_WQ)}, s{S_T0} offen
    s_branch L_pf3
    L_pf2:
    s_mov_b32 s{S_T0}, {128*3072}
    v_mov_b32 v55, v53
    buffer_load_dword v56, v53, {sq(S_W1)}, 0 offen
    buffer_load_dword v57, v53, {sq(S_W1)}, s{S_T0} offen
    L_pf3:
    s_getpc_b64 s[{S_XN}:{S_XN+1}]
    L_pc0:
    s_add_u32 s{S_XN}, s{S_XN}, L_p1_loop-L_pc0
    s_addc_u32 s{S_XN+1}, s{S_XN+1}, 0
    s_mov_b32 s{S_XN+2}, L_hooka-L_p1_loop
    s_and_b32 s{S_T0}, s{S_QB}, 1
    s_lshl_b32 s{S_T0}, s{S_T0}, 1
    s_add_u32 s{S_T0}, s{S_T0}, s{S_WAVE}
    s_sub_u32 s{S_T0}, s{S_T0}, 2
    s_lshl_b32 s{S_T0}, s{S_T0}, 13
    buffer_load_dword v58, v{V_L128}, {sq(S_XN)}, s{S_T0} offen
    {early_pf}
    s_waitcnt vmcnt({4 if early_pf else 1}) lgkmcnt(0)
    s_add_u32 s{S_NONCE}, s{S_NONCE}, 1
    L_nopf:
    """)
    a(f"""
    v_mov_b32 v52, v{V1_DW}
    v_mov_b32 v53, v{V1_DF}
    s_mov_b32 s{S_RD}, s{S_W3072}
    s_mov_b32 s{S_RD1}, s{S_DMA1}
    s_mov_b32 s{S_CNT}, s{S_PASS}
    L_pre:
    """)
    for st in range(2):
        a(f"s_mov_b32 s{S_SO0}, {64*st*12288}\ns_mov_b32 s{S_SO1}, {(64*st+32)*12288}")
        a(f"s_mov_b32 s{S_SW0}, {64*st*3072}\ns_mov_b32 s{S_SW1}, {(64*st+32)*3072}")
        dma_tile(a, 52, S_WQ, S_SO0, S_SO1, S_RD, LDS_V + st * SLOT)
        for d in range(2):
            a(f"s_add_u32 m0, s{S_RD1}, {LDS_W1 + st*8192 + d*4096}\ns_nop 0")
            a(f"buffer_load_dwordx4 v53, {sq(S_W1)}, s{S_SW0+d} offen lds")
    a(f"""
    s_cmp_lg_u32 s{S_CNT}, 0
    s_cbranch_scc1 L_predone
    s_mov_b32 s{S_CNT}, 1
    v_subrev_u32 v52, {16*12288}, v52
    v_subrev_u32 v53, {16*3072}, v53
    s_sub_u32 s{S_RD}, s{S_RD}, {2*3072}
    s_sub_u32 s{S_RD1}, s{S_RD1}, 2048
    s_branch L_pre
    L_predone:
    s_cmp_lg_u32 s{S_PASS}, 0
    s_cbranch_scc1 L_setup
    {late_pf}
    s_branch L_setup
    L_ln:
    """)
    srd(a, S_MISC, P_WS, XN_BYTES)
    if os.environ.get("TOUCH"):
        a(f"buffer_load_dword v60, v84, {sq(S_MISC)}, 0 offen sc1\nbuffer_load_dword v59, v{V_L128}, {sq(S_FL)}, 0 offen sc1")
    gen_ln_body(a)
    stamp(a, 20)
    a(f"""
    s_waitcnt lgkmcnt(0)
    s_add_u32 s{S_NONCE}, s{S_NONCE}, 1
    v_mov_b32 v52, {LDS_FLAG + 4}
    v_mov_b32 v{V_ONE}, s{S_NONCE}
    s_lshl_b32 s{S_T0}, s{S_QB}, 12
    s_lshl_b32 s{S_T1}, s{S_HEAD}, 7
    s_add_u32 s{S_T0}, s{S_T0}, s{S_T1}
    s_cmp_eq_u32 s{S_WAVE}, 0
    s_waitcnt vmcnt(0)
    s_cbranch_scc1 L_ln0
    ds_write_b32 v52, v{V_ONE}
    s_branch L_setup
    L_ln0:
    ds_read_b32 v53, v52
    s_waitcnt lgkmcnt(0)
    v_cmp_ne_u32 vcc, v53, v{V_ONE}
    s_cbranch_vccnz L_ln0
    v_xor_b32 v53, 0x80000000, v53
    ds_write_b32 v52, v53
    """)
    signal(a)
    a("L_setup:")
    stamp(a, 1)
    a(f"s_add_u32 s{S_T1}, s{S_QB}, 1\ns_mul_i32 s{S_T1}, s{S_T1}, {16*20480}")
    srd(a, S_XN, P_WS, f"s{S_T1}")
    srd(a, S_WF, P_WS, WF_BYTES, WS_WF)
    srd(a, S_H, P_WS, H_BYTES, WS_H)
    a(f"s_mul_i32 s{S_T0}, s{S_HEAD}, 786432")
    srd(a, S_K, P_K, 0, f"s{S_T0}")
    srd(a, S_V, P_V, 786432, f"s{S_T0}")
    a(f"""
    s_mov_b32 s{S_MISC+2}, {48*40960}
    s_cmp_lt_u32 s2, 192
    s_cselect_b32 s{S_MISC}, s{P_WO}, s{P_W2}
    s_cselect_b32 s{S_MISC+1}, s{P_WO+1}, s{P_W2+1}
    s_cselect_b32 s{S_MISC+2}, {6144*1280}, s{S_MISC+2}
    s_cselect_b32 s{S_T0}, 0, 192
    s_sub_u32 s{S_T0}, s2, s{S_T0}
    s_mul_i32 s{S_RS}, s{S_T0}, 40960
    s_mul_i32 s{S_RO}, s2, 40960
    s_lshl_b32 s{S_T0}, s{S_WAVE}, 10
    s_add_u32 s{S_RO}, s{S_RO}, s{S_T0}
    v_mov_b32 v{V_ONE}, s{S_NONCE}
    s_and_b32 s{S_T0}, s{S_WAVE}, 1
    s_lshl_b32 s{S_T0}, s{S_T0}, 2
    v_mul_u32_u24 v33, 384, v27
    v_add_u32 v33, s{S_W3072}, v33
    v_lshrrev_b32 v34, 1, v27
    v_add_u32 v35, s{S_T0}, v34
    v_xor_b32 v35, v35, v26
    v_lshl_add_u32 v{V_DK}, v35, 4, v33
    v_lshlrev_b32 v35, 1, v34
    v_xor_b32 v35, v35, v26
    v_lshl_add_u32 v{V_DV}, v35, 4, v33
    v_mul_u32_u24 v33, 1280, v32
    v_lshl_add_u32 v{V_RD}, v35, 4, v33
    s_lshl_b32 s{S_T0}, s{S_QB}, 3
    v_add_u32 v52, s{S_T0}, v26
    v_mul_u32_u24 v53, 3072, v52
    v_lshlrev_b32 v52, 2, v53
    s_lshl_b32 s{S_T0}, s{S_WAVE}, 7
    v_add_u32 v52, s{S_T0}, v52
    v_and_b32 v54, 1, v27
    v_mul_u32_u24 v54, 124, v54
    v_add_u32 v53, v54, v53
    s_mov_b32 s{S_O+3}, 0x00020000
    s_cmp_eq_u32 s{S_WAVE}, 3
    s_cselect_b32 s{S_O}, s{S_W1}, s{S_WQ}
    s_cselect_b32 s{S_O+1}, s{S_W1+1}, s{S_WQ+1}
    s_cselect_b32 s{S_O+2}, s{S_W1+2}, s{S_WQ+2}
    s_cselect_b64 vcc, -1, 0
    s_mov_b32 s{S_HS}, {64*12288}
    s_cselect_b32 s{S_HS}, {64*3072}, s{S_HS}
    v_cndmask_b32 v46, v52, v53, vcc
    s_cselect_b32 s{S_HOOK}, s{S_K}, s{S_V}
    s_cselect_b32 s{S_KC}, s{S_K+1}, s{S_V+1}
    s_mov_b32 s3, {12*128}
    s_cselect_b32 s3, {6*128}, s3
    s_mul_i32 s{S_T0}, s{S_QB}, 48
    s_lshl_b32 s{S_T1}, s{S_WAVE}, 2
    s_add_u32 s{S_T0}, s{S_T0}, s{S_T1}
    v_add_u32 v52, s{S_T0}, v30
    s_mul_i32 s{S_T0}, s{S_QB}, 24
    s_add_u32 s{S_T0}, s{S_T0}, 384
    v_min_u32 v53, 5, v26
    v_add_u32 v53, s{S_T0}, v53
    v_cndmask_b32 v60, v52, v53, vcc
    v_lshlrev_b32 v60, 7, v60
    s_lshl_b32 s{S_M0}, s{S_HS}, 2
    s_mov_b32 s{S_SV0}, 0
    s_mov_b32 s{S_SV1}, 0
    s_add_u32 s{S_C0}, s{S_W3072}, {LDS_X}
    s_add_u32 s{S_C1}, s{S_W3072}, {LDS_K}
    s_lshl_b32 s{S_T0}, s{S_QB}, 4
    s_lshl_b32 s{S_T1}, s{S_WAVE}, 2
    s_add_u32 s{S_T0}, s{S_T0}, s{S_T1}
    s_mul_i32 s{S_T0}, s{S_T0}, 20480
    v_lshlrev_b32 v33, 8, v29
    v_lshl_add_u32 v33, v28, 6, v33
    v_lshl_add_u32 v33, v30, 4, v33
    v_add_u32 v{V1_X}, s{S_T0}, v33
    v_add_u32 v{V1_X+1}, 20480, v{V1_X}
    v_add_u32 v{V1_X+2}, {2*20480}, v{V1_X}
    v_add_u32 v{V1_X+3}, {3*20480}, v{V1_X}
    s_mov_b32 s{S_SO0}, {128*12288}
    s_mov_b32 s{S_SO1}, {160*12288}
    s_mov_b32 s{S_SW0}, {128*3072}
    s_mov_b32 s{S_SW1}, {160*3072}
    s_mov_b32 s{S_RD}, 0
    s_mov_b32 s{S_RD1}, 0
    s_add_u32 s{S_DMA}, s{S_W3072}, {2*SLOT}
    s_add_u32 s{S_DMA1}, s{S_DMA1}, {2*8192}
    v_mul_u32_u24 v33, 3072, v28
    v_lshl_add_u32 v33, v29, 7, v33
    v_add_u32 v33, {LDS_V}, v33
    v_lshrrev_b32 v34, 1, v29
    v_lshlrev_b32 v35, 2, v34
    v_xor_b32 v35, v35, v30
    v_lshl_add_u32 v{V1_WB}, v35, 4, v33
    v_xor_b32 v{V1_WB+1}, 64, v{V1_WB}
    v_mov_b32 v{V1_WA}, v{V1_WB}
    v_mov_b32 v{V1_WA+1}, v{V1_WB+1}
    v_lshlrev_b32 v33, 10, v28
    v_lshl_add_u32 v33, v29, 7, v33
    v_add_u32 v33, {LDS_W1}, v33
    v_and_b32 v35, 1, v30
    v_lshl_add_u32 v33, v35, 3, v33
    v_lshrrev_b32 v35, 1, v30
    v_lshl_add_u32 v33, v35, 4, v33
    v_and_b32 v35, 1, v28
    v_lshl_add_u32 v35, v35, 1, v34
    v_lshl_add_u32 v{V1_FB}, v35, 5, v33
    v_xor_b32 v{V1_FB+1}, 32, v{V1_FB}
    v_xor_b32 v{V1_FB+2}, 64, v{V1_FB}
    v_mov_b32 v{V1_FA}, v{V1_FB}
    v_mov_b32 v{V1_FA+1}, v{V1_FB+1}
    v_mov_b32 v{V1_FA+2}, v{V1_FB+2}
    v_mov_b32 v48, 0
    v_mov_b32 v49, 0
    v_mov_b32 v50, 0
    v_mov_b32 v51, 0
    s_or_b32 s{S_T0}, s{S_WAVE}, s{S_PASS}
    s_cmp_eq_u32 s{S_T0}, 0
    s_cbranch_scc1 L_nw
    s_waitcnt vmcnt(0)
    L_nw:
    """)
    for i in range(12):
        a(f"v_mfma_f32_32x32x16_bf16 {vr(64+16*i,16)}, v[48:51], v[48:51], 0")
    for ft in range(3):
        a(f"""
        v_lshlrev_b32 v52, 16, v{40+2*ft}
        v_and_b32 v53, 0xffff0000, v{40+2*ft}
        v_lshlrev_b32 v54, 16, v{41+2*ft}
        v_and_b32 v55, 0xffff0000, v{41+2*ft}
        """)
        for t in range(4):
            for r in range(4):
                a(f"v_accvgpr_write_b32 a{P1_H+4*(4*ft+t)+r}, v{52+r}")
    a(f"""
    s_cmp_lg_u32 s{S_PASS}, 0
    s_cbranch_scc1 L_p1go
    s_lshl_b32 s{S_T0}, s{S_QB}, 12
    s_lshl_b32 s{S_T1}, s{S_WAVE}, 10
    s_add_u32 s{S_T0}, s{S_T0}, s{S_T1}
    v_and_b32 v53, {7*128}, v{V_L128}
    L_poll1:
    buffer_load_dword v52, v53, {sq(S_FL)}, s{S_T0} offen sc1
    s_waitcnt vmcnt(0)
    v_cmp_ne_u32 vcc, v52, v{V_ONE}
    s_cbranch_vccnz L_poll1
    L_p1go:
    """)
    stamp(a, 2)
    NPRE = 2
    for ks in range(NPRE):
        for j in range(4):
            a(f"buffer_load_dwordx4 {ar(P1_B+16*ks+4*j)}, v{V1_X+j}, {sq(S_XN)}, 0 offen offset:{1024*ks} sc1")
    a("s_barrier")
    for f in range(2):
        for k in range(4):
            a(p1_read(f, k))
    a(f"s_mov_b32 s{S_BOFF}, 2048\ns_mov_b32 s{S_CNT}, 5\ns_waitcnt vmcnt({4*NPRE-8}) lgkmcnt(4)")
    stamp(a, 3)
    a(".p2align 6\nL_p1_loop:")
    gen_p1_stage(a, 0)
    gen_p1_stage(a, 1)
    a("s_cbranch_scc1 L_p1_loop\ns_waitcnt vmcnt(1) lgkmcnt(0)\ns_barrier")
    stamp(a, 4)
    dm = []
    for (voff, sr, so, goff, lds) in ((V_DV, S_V, S_SV0, 0, LDS_V), (V_DK, S_K, S_SO0, 2 * SLOT, LDS_K + 2 * SLOT), (V_DV, S_V, S_SV0, SLOT, LDS_V + SLOT)):
        for d in range(6):
            pre = f"s_mov_b32 s{so}, {goff}\ns_mov_b32 s{so+1}, {goff+12288}\n" if d == 0 else ""
            dm.append((pre + f"s_add_u32 m0, s{S_W3072}, {lds + (d//3)*12288 + (d%3)*896}",
                       f"buffer_load_dwordx4 v{voff}, {sq(sr)}, s{so + d//3} offen offset:{(d%3)*128} lds"))
    c = (192 ** -0.5) * math.log2(math.e)
    a(f"s_mov_b32 s{S_C0}, {fh(c)}\ns_mov_b32 s{S_C1}, {fh(c)}")
    for i in range(24):
        b = P1_ACC + 8 * i
        if i < 18:
            a(dm[i][0])
        for j in range(4):
            a(f"v_pk_mul_f32 {vr(b+2*j,2)}, {vr(b+2*j,2)}, s[{S_C0}:{S_C1}]")
        if i < 18:
            a(dm[i][1])
        if i % 2 == 1 and i // 2 + 3 < 12:
            a(f"v_mfma_f32_32x32x16_bf16 {ar(16*(i//2+3),16)}, v[48:51], v[48:51], 0")
        for j in range(4):
            a(f"v_cvt_pk_bf16_f32 v{V_Q+4*i+j}, v{b+2*j}, v{b+2*j+1}")
    for e in range(32):
        a(f"v_accvgpr_write_b32 a{A_Q+e}, v{V_Q+64+e}")
    stamp(a, 21)
    srd(a, S_O, P_WS, O_BYTES, WS_O)
    k0 = -2.0 * math.log2(math.e) * math.sqrt(2 / math.pi)
    k1 = k0 * 0.044715
    a(f"""
    s_mov_b32 s{S_SO0}, {3*SLOT}
    s_mov_b32 s{S_SO1}, {3*SLOT+12288}
    s_mov_b32 s{S_SV0}, {2*SLOT}
    s_mov_b32 s{S_SV1}, {2*SLOT+12288}
    s_lshl_b32 s{S_T0}, s{S_QB}, 4
    s_lshl_b32 s{S_T1}, s{S_WAVE}, 2
    s_add_u32 s{S_T0}, s{S_T0}, s{S_T1}
    s_mul_i32 s{S_T0}, s{S_T0}, {48*1024}
    v_add_u32 v52, s{S_T0}, v1
    v_add_u32 v53, {48*1024}, v52
    v_add_u32 v54, {2*48*1024}, v52
    v_add_u32 v55, {3*48*1024}, v52
    v_mov_b32 v56, {fh(k1)}
    v_mov_b32 v57, {fh(k0)}
    v_mov_b32 v58, 1.0
    """)
    stamp(a, 22)

    def gelu(ft, packed):
        o = [(f"""s_mul_i32 s{S_T0}, s{S_HEAD}, 3
        s_add_u32 s{S_T0}, s{S_T0}, {ft}
        s_lshr_b32 s{S_T1}, s{S_T0}, 1
        s_lshl_b32 s{S_T1}, s{S_T1}, 10
        s_and_b32 s{S_T0}, s{S_T0}, 1
        s_lshl_b32 s{S_T0}, s{S_T0}, 3
        s_add_u32 s{S_M0}, s{S_T0}, s{S_T1}""", 0)]
        x, u = 216, 232
        o += [(f"v_accvgpr_read_b32 v{x+e}, a{P1_H+16*ft+e}", 1) for e in range(16)]
        if packed:
            o.append((f"v_mfma_f32_32x32x16_bf16 {ar(16*ft,16)}, v[48:51], v[48:51], 0", 0))
        for pk, sc, sl in (("v_pk_mul_f32 {U}, {X}, {X}", "v_mul_f32 v{u}, v{x}, v{x}", 1),
                           ("v_pk_fma_f32 {U}, {U}, v[56:57], v[56:57] op_sel:[0,0,1] op_sel_hi:[1,0,1]", "v_fma_f32 v{u}, v{u}, v56, v57", 1),
                           ("v_pk_mul_f32 {U}, {U}, {X}", "v_mul_f32 v{u}, v{u}, v{x}", 1),
                           (None, "v_exp_f32 v{u}, v{u}", 2),
                           ("v_pk_add_f32 {U}, {U}, v[58:59] op_sel_hi:[1,0]", "v_add_f32 v{u}, 1.0, v{u}", 1),
                           (None, "v_rcp_f32 v{u}, v{u}", 2),
                           ("v_pk_mul_f32 {X}, {U}, {X}", "v_mul_f32 v{x}, v{u}, v{x}", 1)):
            if packed and pk:
                o += [(pk.format(U=vr(u + e, 2), X=vr(x + e, 2)), 1) for e in range(0, 16, 2)]
            else:
                o += [(sc.format(u=u + e, x=x + e), sl) for e in range(16)]
        o += [(f"v_cvt_pk_bf16_f32 v{192+8*ft+e}, v{x+2*e}, v{x+2*e+1}", 1) for e in range(8)]
        o += [(f"buffer_store_dwordx2 {vr(192+8*ft+2*t,2)}, v{52+t}, {sq(S_H)}, s{S_M0} offen sc1", 2) for t in range(4)]
        return o
    a(f"s_cmp_lg_u32 s{S_PASS}, 0\ns_cbranch_scc1 L_nogelu")
    for ft in range(2):
        for ins, _ in gelu(ft, True):
            a(ins)
    a("L_nogelu:")
    a(f"""
    v_lshrrev_b32 v33, 3, v31
    v_mul_u32_u24 v33, 3072, v33
    v_lshl_add_u32 v33, v26, 7, v33
    v_lshrrev_b32 v34, 1, v31
    v_xor_b32 v34, v34, v28
    v_lshl_add_u32 v{V_KB}, v34, 4, v33
    v_xor_b32 v{V_KB+1}, 64, v{V_KB}
    v_mov_b32 v{V_KA}, v{V_KB}
    v_mov_b32 v{V_KA+1}, v{V_KB+1}
    v_lshrrev_b32 v33, 1, v28
    v_mul_u32_u24 v33, 3072, v33
    v_add_u32 v33, {LDS_V}, v33
    v_and_b32 v34, 1, v28
    v_lshl_add_u32 v34, v34, 2, v29
    v_lshl_add_u32 v33, v34, 7, v33
    v_and_b32 v35, 1, v30
    v_lshl_add_u32 v33, v35, 3, v33
    v_lshrrev_b32 v35, 1, v30
    v_lshl_add_u32 v33, v35, 4, v33
    v_lshrrev_b32 v34, 1, v34
    v_lshl_add_u32 v{V_VB}, v34, 5, v33
    v_xor_b32 v{V_VB+1}, 32, v{V_VB}
    v_xor_b32 v{V_VB+2}, 64, v{V_VB}
    v_xor_b32 v{V_VB+3}, 96, v{V_VB}
    v_mov_b32 v34, {LDS_FLAG}
    ds_write_b32 v34, v{V_ZERO}
    s_lshl_b32 s{S_T0}, s{S_WAVE}, 5
    v_xor_b32 v{V_RR}, s{S_T0}, v{V_VB}
    v_add_u32 v{V_RR}, {LDS_X - LDS_V}, v{V_RR}
    s_mov_b32 s{S_KC}, 0
    s_cmp_eq_u32 s{S_PASS}, 0
    s_cselect_b32 s{S_HOOK}, 19, 3
    s_mov_b32 s{S_RSA}, 128
    s_mov_b32 s{S_WF+2}, 0
    s_sub_u32 s{S_RO}, s{S_RO}, 4096
    s_cmp_eq_u32 s{S_PASS}, 0
    """)
    for j in range(4):
        a(f"v_mov_b32 v{V_L+j}, 0\nv_mov_b32 v{20+j}, 0xff800000")
    a("s_cbranch_scc0 L_maxfirst")
    stamp(a, 5)

    def qk0(fill):
        for g in range(3):
            a(k_read(g, 0) + "\n" + k_read(g, 1))
        for g in range(12):
            if g == 0:
                a("s_waitcnt lgkmcnt(4)")
            mx = []
            if g % 3 == 1 and g >= 4:
                for t in range(4):
                    s0 = s_reg(g // 3 - 1, t)
                    mx += [(f"v_max3_f32 v{20+t}, v{20+t}, v{s0}, v{s0+1}", 1), (f"v_max3_f32 v{20+t}, v{20+t}, v{s0+2}, v{s0+3}", 1)]
            fill[:0] = mx
            for p in range(8):
                a(qk_mfma(g, p, lambda t: "0"))
                room = 2
                if p == 7 and g < 11:
                    a(f"s_waitcnt lgkmcnt({2 if g <= 9 else 0})")
                if p < 2 and 3 <= g + 2 < 12 and g >= 1:
                    a(k_read(g + 2, p))
                    room = 1
                while fill and fill[0][1] <= room:
                    ins, sl = fill.pop(0)
                    a(ins)
                    room -= sl
        for ins, _ in fill:
            a(ins)
        a(f"s_waitcnt vmcnt(24)\ns_barrier\ns_cmp_lg_u32 s{S_KC}, 0\nv_add_u32 v{V_KA}, {SLOT}, v{V_KB}\nv_add_u32 v{V_KA+1}, {SLOT}, v{V_KB+1}\ns_nop 1")
        for t in range(4):
            s0 = s_reg(3, t)
            a(f"v_max3_f32 v{20+t}, v{20+t}, v{s0}, v{s0+1}\nv_max3_f32 v{20+t}, v{20+t}, v{s0+2}, v{s0+3}")
    g2 = gelu(2, False)
    for ins, _ in g2[:17]:
        a(ins)
    a(f"v_mfma_f32_32x32x16_bf16 {ar(32,16)}, v[48:51], v[48:51], 0")
    qk0(g2[17:])
    a("L_qkdone:")
    for g in range(2):
        a(k_read(g, 0) + "\n" + k_read(g, 1))
    for x in swaps("v_max_f32", 20, 24):
        a(x + "\ns_nop 0")
    a(f"s_cmp_eq_u32 s{S_PASS}, 0\ns_cselect_b32 s{S_T0}, {fh(-OFF)}, 0")
    for t in range(4):
        a(f"v_sub_f32 v{V_NM+4*t}, s{S_T0}, v{20+t}")
    for t in range(4):
        for r in range(1, 4):
            a(f"v_mov_b32 v{V_NM+4*t+r}, v{V_NM+4*t}")
    for u in range(4):
        for t in range(4):
            for j in range(2):
                r = s_reg(u, t) + 2 * j
                a(f"v_pk_add_f32 {vr(r,2)}, {vr(r,2)}, {vr(V_NM+4*t,2)}")
    for i in range(192):
        if G[i]["exp"] is not None and G[i]["exp"][0] == "cur":
            a(soft("exp", *G[i]["exp"], 0))
    a("s_nop 0")
    for i in range(192):
        for (w, kind, u, t, x) in G[i]["valu"]:
            if w == "cur":
                a(soft(kind, w, u, t, x, 0))
    a(f"""
    s_mov_b32 s{S_RD}, 0
    s_mov_b32 s{S_RK}, {SLOT}
    s_mov_b32 s{S_DV}, {2*SLOT}
    s_add_u32 s{S_M0}, s{S_W3072}, {LDS_V}
    s_mov_b32 s{S_DKM}, s{S_W3072}
    s_add_u32 s{S_DVM}, s{S_M0}, {2*SLOT}
    s_mov_b32 s{S_CNT}, 31
    s_waitcnt lgkmcnt({att_counts(G)[0]})
    """)
    stamp(a, 6)
    a(".p2align 6")
    for k in range(int(os.environ.get("PADN", 0))):
        a("s_nop 0")
    a("L_att_loop:")
    def lstamp():
        if STAMP and os.environ.get("ATST"):
            a(f"s_memtime s[98:99]\ns_waitcnt lgkmcnt(0)\ns_add_u32 m0, s{S_CNT}, 32\ns_nop 0\nv_writelane_b32 v38, s98, m0\ns_cmp_lg_u32 s{S_CNT}, 0")
    gen_body(a, G, spare, 1, lab="a")
    lstamp()
    a("s_cbranch_scc0 L_att_tail")
    gen_body(a, G, spare, 0, lab="b")
    lstamp()
    a("s_branch L_att_loop")
    f2 = f"s_mov_b32 s{S_T0}, {FL_F2}\nbuffer_load_dwordx4 {vr(V_F2)}, v1, {sq(S_FL)}, s{S_T0} offen sc1"
    a(f"""
    L_hooka:
    s_mov_b32 s{S_KC}, 0
    s_branch L_hook
    L_hookb:
    s_mov_b32 s{S_KC}, 1
    L_hook:
    s_cmp_eq_u32 s{S_CNT}, 3
    s_cbranch_scc1 L_hF
    s_cmp_eq_u32 s{S_CNT}, 15
    s_cbranch_scc1 L_hL
    s_cmp_eq_u32 s{S_CNT}, 13
    s_cbranch_scc1 L_hC
    L_hP:
    s_mov_b32 s{S_HOOK}, 15
    s_cmp_lg_u32 s{S_WAVE}, 0
    s_cbranch_scc1 L_hdone
    s_lshl_b32 s{S_T0}, s2, 2
    s_add_u32 s{S_T0}, s{S_T0}, {FL_F2}
    s_mov_b64 exec, 1
    buffer_store_dword v{V_ONE}, v{V_ZERO}, {sq(S_FL)}, s{S_T0} offen sc1
    s_mov_b64 exec, -1
    """)
    a(f"""
    s_nop 1
    s_branch L_hdone
    L_hL:
    s_mov_b32 s{S_HOOK}, 13
    {f2}
    s_branch L_hdone
    L_hC:
    s_mov_b32 s{S_HOOK}, 3
    v_xor_b32 v{V_F2}, v{V_F2}, v{V_ONE}
    v_xor_b32 v{V_F2+1}, v{V_F2+1}, v{V_ONE}
    v_xor_b32 v{V_F2+2}, v{V_F2+2}, v{V_ONE}
    v_xor_b32 v{V_F2+3}, v{V_F2+3}, v{V_ONE}
    v_or3_b32 v{V_F2}, v{V_F2}, v{V_F2+1}, v{V_F2+2}
    v_or_b32 v{V_F2}, v{V_F2}, v{V_F2+3}
    v_cmp_ne_u32 vcc, 0, v{V_F2}
    s_cbranch_vccnz L_hdone
    s_and_b32 s8, s2, 3
    s_bfe_u32 s9, s2, 0x30003
    s_lshr_b32 s10, s2, 6
    s_cmp_ge_u32 s{S_WAVE}, 2
    s_cbranch_scc1 L_hC2
    s_bfe_u32 s{S_T0}, s2, 0x10002
    s_lshl_b32 s{S_T0}, s{S_T0}, 3
    s_add_u32 s{S_T0}, s{S_T0}, s9
    s_lshl_b32 s{S_T0}, s{S_T0}, 2
    s_add_u32 s{S_T0}, s{S_T0}, s10
    s_lshl_b32 s{S_T0}, s{S_T0}, 1
    s_add_u32 s{S_T0}, s{S_T0}, s{S_WAVE}
    s_mul_i32 s{S_T0}, s{S_T0}, {48*1024}
    s_mul_i32 s{S_T1}, s8, {12*1024}
    s_add_u32 s{S_RS}, s{S_T0}, s{S_T1}
    s_mov_b32 s{S_RSA}, 1024
    s_mov_b32 s{S_MISC}, s{S_H}
    s_mov_b32 s{S_MISC+1}, s{S_H+1}
    s_mov_b32 s{S_MISC+2}, {H_BYTES}
    v_mov_b32 v{V_RD}, v1
    s_branch L_hdone
    L_hC2:
    s_mul_i32 s{S_T0}, s8, {12*40960}
    s_mul_i32 s{S_T1}, s10, 10240
    s_add_u32 s{S_T0}, s{S_T0}, s{S_T1}
    s_mul_i32 s{S_T1}, s9, 1280
    s_add_u32 s{S_T0}, s{S_T0}, s{S_T1}
    s_mul_i32 s{S_T1}, s{S_WAVE}, 640
    s_add_u32 s{S_T0}, s{S_T0}, s{S_T1}
    s_add_u32 s{S_RS}, s{S_T0}, {192*40960 - 1280}
    s_mov_b32 s{S_RSA}, 40960
    s_mov_b32 s{S_MISC}, s{S_WF}
    s_mov_b32 s{S_MISC+1}, s{S_WF+1}
    s_mov_b32 s{S_MISC+2}, {WF_BYTES}
    v_min_u32 v{V_RD}, 624, v1
    s_branch L_hdone
    L_hF:
    """)
    code_prefetch(a, 1, "L_att_tail", "L_end", S_XN, V_F2 + 4, one=True)
    a(f"""
    s_cmp_lg_u32 s{S_WAVE}, 0
    s_cbranch_scc1 L_hdone
    {f2}
    """)
    a(f"""
    L_hdone:
    s_cmp_eq_u32 s{S_KC}, 0
    s_cbranch_scc1 L_hreta
    s_branch L_hretb
    L_maxfirst:
    v_mfma_f32_32x32x16_bf16 a[0:15], v[48:51], v[48:51], 0
    v_mfma_f32_32x32x16_bf16 a[16:31], v[48:51], v[48:51], 0
    v_mfma_f32_32x32x16_bf16 a[32:47], v[48:51], v[48:51], 0
    s_mov_b32 s{S_KC}, {32*SLOT}
    L_maxnext:
    s_sub_u32 s{S_KC}, s{S_KC}, {SLOT}
    s_add_u32 s{S_T0}, s{S_KC}, 12288
    v_mov_b32 v{V_KA}, v{V_KB}
    v_mov_b32 v{V_KA+1}, v{V_KB+1}
    """)
    dma_tile(a, V_DK, S_K, S_KC, S_T0, S_W3072, LDS_K)
    a("s_waitcnt vmcnt(0)\ns_barrier")
    qk0([])
    a(f"""
    s_cbranch_scc1 L_maxnext
    s_branch L_qkdone
    L_fallback:
    s_waitcnt vmcnt(0) lgkmcnt(0)
    s_barrier
    s_mov_b32 s{S_PASS}, 1
    s_branch L_restart
    L_nonce:
    s_mov_b32 s{S_T0}, {FL_NONCE}
    """)
    signal(a)
    a(f"""
    s_nop 1
    s_branch L_nononce
    L_repoll2:
    {f2}
    s_waitcnt vmcnt(0)
    s_branch L_chk2
    L_att_tail:
    v_add_u32 v{V_VA}, s{S_RD}, v{V_VB}
    v_add_u32 v{V_VA+1}, s{S_RD}, v{V_VB+1}
    v_add_u32 v{V_VA+2}, s{S_RD}, v{V_VB+2}
    v_add_u32 v{V_VA+3}, s{S_RD}, v{V_VB+3}
    """)
    for f in (12, 13, 14):
        for k in range(4):
            a(v_read(f, k))
    a(f"""
    s_cmp_lg_u32 s{S_WAVE}, 0
    s_cbranch_scc1 L_ok2
    L_chk2:
    v_xor_b32 v{V_F2}, v{V_F2}, v{V_ONE}
    v_xor_b32 v{V_F2+1}, v{V_F2+1}, v{V_ONE}
    v_xor_b32 v{V_F2+2}, v{V_F2+2}, v{V_ONE}
    v_xor_b32 v{V_F2+3}, v{V_F2+3}, v{V_ONE}
    v_or3_b32 v{V_F2}, v{V_F2}, v{V_F2+1}, v{V_F2+2}
    v_or_b32 v{V_F2}, v{V_F2}, v{V_F2+3}
    v_cmp_ne_u32 vcc, 0, v{V_F2}
    s_cbranch_vccnz L_repoll2
    L_ok2:
    """)
    setup = f"""
    s_and_b32 s{S_J}, s2, 3
    s_bfe_u32 s{S_T0}, s2, 0x10002
    s_lshl_b32 s{S_T0}, s{S_T0}, 3
    s_bfe_u32 s{S_MB}, s2, 0x30003
    s_add_u32 s{S_MB}, s{S_MB}, s{S_T0}
    s_lshr_b32 s{S_NB}, s2, 6
    s_lshl_b32 s{S_TILE}, s{S_MB}, 2
    s_add_u32 s{S_TILE}, s{S_TILE}, s{S_NB}
    s_lshl_b32 s{S_T0}, s{S_MB}, 3
    s_lshl_b32 s{S_T1}, s{S_WAVE}, 1
    s_add_u32 s{S_T0}, s{S_T0}, s{S_T1}
    s_xor_b32 s{S_T0}, s{S_T0}, s{S_J}
    s_mul_i32 s{S_T1}, s{S_T0}, {192*1024}
    v_add_u32 v{V_DO}, s{S_T1}, v1
    s_mul_i32 s{S_T1}, s{S_T0}, {48*1024}
    v_add_u32 v{V_DH}, s{S_T1}, v1
    s_xor_b32 s{S_T0}, s{S_T0}, 1
    s_mul_i32 s{S_T1}, s{S_T0}, {192*1024}
    v_add_u32 v{V_DO+1}, s{S_T1}, v1
    s_mul_i32 s{S_T1}, s{S_T0}, {48*1024}
    v_add_u32 v{V_DH+1}, s{S_T1}, v1
    s_mul_i32 s{S_OO}, s{S_J}, {12*1024}
    s_lshr_b32 s{S_T0}, s{S_WAVE}, 1
    s_mul_i32 s{S_WS0}, s{S_T0}, 40960
    s_mul_i32 s{S_LW}, s{S_T0}, 10240
    s_lshl_b32 s{S_T0}, s{S_T0}, 13
    v_add_u32 v{V_RB0}, s{S_T0}, v1
    s_and_b32 s{S_T0}, s{S_WAVE}, 1
    s_mul_i32 s{S_T0}, s{S_T0}, 5120
    s_add_u32 s{S_WS0}, s{S_WS0}, s{S_T0}
    s_add_u32 s{S_T0}, s{S_T0}, {LDS_WOFF}
    s_add_u32 s{S_LW}, s{S_LW}, s{S_T0}
    v_add_u32 v{V_RA0}, s{S_T0}, v1
    s_mul_i32 s{S_T0}, s{S_NB}, 10240
    s_add_u32 s{S_WS0}, s{S_WS0}, s{S_T0}
    s_mul_i32 s{S_T0}, s{S_J}, {12*40960}
    s_add_u32 s{S_WO}, s{S_WS0}, s{S_T0}
    s_add_u32 s{S_WO}, s{S_WO}, {192*40960}
    s_add_u32 s{S_WO4}, s{S_WO}, 4096
    s_mul_i32 s{S_T0}, s{S_J}, {48*40960}
    s_add_u32 s{S_WS0}, s{S_WS0}, s{S_T0}
    s_lshl_b32 s{S_LO}, s{S_WAVE}, 12
    v_mov_b32 v{V_RB}, v{V_RB0}
    v_mov_b32 v{V_RA}, v{V_RA0}
    s_mov_b32 s{S_WF+2}, {WF_BYTES}
    """
    qd = ["s_waitcnt vmcnt(0)", "s_barrier",
          f"s_or_b32 s{S_T0}, s2, s{S_WAVE}\ns_cmp_eq_u32 s{S_T0}, 0\ns_cbranch_scc1 L_nonce\nL_nononce:"]
    cur, cost = [], 0
    for ln in [x.strip() for x in setup.strip().split("\n")]:
        c1 = 2 if (ln.startswith("v_") and not cur) else 1
        if cost + c1 > 3:
            qd.append("\n".join(cur))
            cur, cost = [], 0
            c1 = 2 if ln.startswith("v_") else 1
        cur.append(ln)
        cost += c1
    qd.append("\n".join(cur))
    gops = []
    for st in range(4):
        for k in range(9):
            pre, ld = dma3(k, S_H, V_DH)
            if k == 0:
                pre = [f"s_add_u32 s{S_DO}, s{S_LO}, {st*STG}", f"s_add_u32 s{S_DW}, s{S_LW}, {st*STG}"] + pre
            gops.append((pre, ld, ADV3 if k == 8 else []))
    for pre, ld, post in gops[:18]:
        if pre:
            qd.append("\n".join(pre))
        qd.append(ld)
        if post:
            qd.append("\n".join(post))
    qv = [y for x in swaps("v_add_f32", V_L, 24) for y in x.split("\n")] + [f"v_rcp_f32 v{20+2*t}, v{V_L+t}" for t in range(4)]
    gen_body(a, G, spare, 0, tail=True, tailq=(qd, qv))
    stamp(a, 7)
    a(f"""
    s_lshl_b32 s{S_T0}, s{S_QB}, 4
    s_lshl_b32 s{S_T1}, s{S_WAVE}, 2
    s_add_u32 s{S_T0}, s{S_T0}, s{S_T1}
    s_mul_i32 s{S_T0}, s{S_T0}, {192*1024}
    s_mul_i32 s{S_T1}, s{S_HEAD}, {6*1024}
    s_add_u32 s{S_T0}, s{S_T0}, s{S_T1}
    v_add_u32 v28, s{S_T0}, v1
    v_add_u32 v29, {192*1024}, v28
    v_add_u32 v30, {2*192*1024}, v28
    v_add_u32 v31, {3*192*1024}, v28
    s_mov_b32 s{S_M0}, 4096
    """)
    for n in range(24):
        s, t = n // 4, n % 4
        b, o = 40 + 8 * (n % 2), 64 + 4 * n
        for h in range(2):
            for r in range(4):
                a(f"v_accvgpr_read_b32 v{b+4*h+r}, a{4*(4*(2*s+h)+t)+r}")
        for j in range(4):
            a(f"v_pk_mul_f32 {vr(b+2*j,2)}, {vr(b+2*j,2)}, {vr(20+2*t,2)} op_sel_hi:[1,0]")
        for j in range(4):
            a(f"v_cvt_pk_bf16_f32 v{o+j}, v{b+2*j}, v{b+2*j+1}")
        a(f"buffer_store_dwordx4 {vr(o)}, v{28+t}, {sq(S_O)}, {'0' if s < 4 else f's{S_M0}'} offen offset:{(s%4)*1024} sc1")
    stamp(a, 8)
    a("v_mov_b32 v48, 0\nv_mov_b32 v49, 0\nv_mov_b32 v50, 0\nv_mov_b32 v51, 0")
    zi = 0
    for t in range(4):
        regs = [64 + 4 * (4 * s + t) + j for s in range(6) for j in range(4)]
        a(f"v_max3_f32 v{40+t}, |v{regs[0]}|, |v{regs[1]}|, |v{regs[2]}|")
        for k in range(3, 23, 2):
            a(f"v_max3_f32 v{40+t}, |v{regs[k]}|, |v{regs[k+1]}|, v{40+t}")
            if k in (3, 11, 19) and zi < 5:
                a(f"v_mfma_f32_32x32x16_bf16 {vr(ACC_G+16*zi,16)}, v[48:51], v[48:51], 0")
                zi += 1
        a(f"v_max_f32 v{40+t}, |v{regs[23]}|, v{40+t}")
    for x in swaps("v_max_f32", 40, 44):
        a(x + "\ns_nop 0")
    for t in range(4):
        a(f"v_mul_f32 v{40+t}, v{40+t}, v{V_L+t}")
    a(f"""
    v_min3_f32 v40, v40, v41, v42
    v_min_f32 v40, v40, v43
    v_add_f32 v41, v{V_L}, v{V_L+1}
    v_add_f32 v42, v{V_L+2}, v{V_L+3}
    v_add_f32 v41, v41, v42
    v_mov_b32 v42, {fh(GUARD_LO)}
    v_cmp_nle_f32 vcc, v42, v40
    v_cmp_ngt_f32 s[{S_M0}:{S_M0+1}], 1.0, v41
    v_mov_b32 v40, {LDS_FLAG}
    v_mov_b32 v41, 1
    """)
    srd(a, S_PT, P_WS, 2 * PART_BYTES, WS_PART)
    a(f"""
    s_or_b64 vcc, vcc, s[{S_M0}:{S_M0+1}]
    s_cbranch_vccz L_good
    ds_write_b32 v40, v41
    L_good:
    """)
    srd(a, S_OUT, P_OUT, 2048 * 1280)
    srd(a, S_B2, P_B2, 1280)
    a(f"""
    s_lshl_b32 s{S_T0}, s{S_MB}, 3
    s_lshr_b32 s{S_T1}, s{S_WAVE}, 1
    s_lshl_b32 s{S_T1}, s{S_T1}, 2
    s_add_u32 s{S_T0}, s{S_T0}, s{S_T1}
    s_add_u32 s{S_T0}, s{S_T0}, s{S_J}
    s_lshl_b32 s{S_T0}, s{S_T0}, 4
    v_and_b32 v42, 15, v0
    v_add_u32 v42, s{S_T0}, v42
    v_mul_u32_u24 v42, 1280, v42
    s_mul_i32 s{S_T0}, s{S_NB}, 320
    s_and_b32 s{S_T1}, s{S_WAVE}, 1
    s_mul_i32 s{S_T1}, s{S_T1}, 160
    s_add_u32 s{S_T0}, s{S_T0}, s{S_T1}
    v_lshrrev_b32 v41, 4, v0
    v_lshlrev_b32 v41, 3, v41
    v_add_u32 v{V_BO}, s{S_T0}, v41
    v_add_u32 v{V_OO}, v42, v{V_BO}
    v_lshlrev_b32 v{V_PO}, 3, v0
    v_and_b32 v{V_FV}, {3*128}, v{V_L128}
    s_lshr_b32 s{S_T0}, s{S_MB}, 1
    s_lshl_b32 s{S_T0}, s{S_T0}, 12
    s_lshl_b32 s{S_T1}, s{S_J}, 10
    s_add_u32 s{S_T0}, s{S_T0}, s{S_T1}
    s_add_u32 s{S_M0}, s{S_T0}, {FL_F3}
    v_and_b32 v61, {7*128}, v{V_L128}
    s_mov_b32 s{S_HOOK}, 4
    s_mov_b32 s{S_R3}, 0
    s_mov_b32 s{S_CNT}, 6
    s_waitcnt vmcnt(24) lgkmcnt(0)
    s_barrier
    ds_read_b32 v41, v40
    """)
    for ks, n in RD3[:14]:
        a(rd3(0, ks, n))
    a(f"""
    s_waitcnt lgkmcnt(14)
    v_readfirstlane_b32 s{S_T0}, v41
    """)
    for ks, n in RD3[14:]:
        a(rd3(0, ks, n))
    if not (X_RINGV or X_QV or os.environ.get('NOFB')):
        a(f"s_cmp_gt_u32 s{S_T0}, s{S_PASS}\ns_cbranch_scc1 L_fallback")
    for zi in range(5):
        a(f"v_mfma_f32_32x32x16_bf16 {vr(ACC_S+16*zi,16)}, v[48:51], v[48:51], 0")
    for pre, ld, post in gops[18:]:
        for x in pre:
            a(x)
        if pre:
            a("s_nop 0")
        a(ld)
        for x in post:
            a(x)
    for j in range(5):
        a(f"buffer_load_dwordx2 {vr(V_X+2*j,2)}, v{V_OO}, {sq(S_X)}, 0 offen offset:{32*j}")
        a(f"buffer_load_dwordx2 {vr(V_B2+2*j,2)}, v{V_BO}, {sq(S_B2)}, 0 offen offset:{32*j}")
    a("s_waitcnt lgkmcnt(0)")
    stamp(a, 9)
    a(".p2align 6\nL_g_loop:")
    stage3(a, 0, ACC_G, S_H, V_DH, f"s_cmp_eq_u32 s{S_CNT}, 6\ns_cbranch_scc1 L_g_nw\ns_waitcnt vmcnt(18)\nL_g_nw:",
           f"s_cmp_eq_u32 s{S_CNT}, s{S_HOOK}\ns_cbranch_scc1 L_g_h0\nL_g_r0:", False)
    stage3(a, 1, ACC_G, S_H, V_DH, "s_waitcnt vmcnt(18)",
           f"s_cmp_eq_u32 s{S_CNT}, 5\ns_cbranch_scc1 L_g_h1\nL_g_r1:", True)
    a(f"""
    s_cbranch_scc1 L_g_loop
    s_branch L_g_done
    L_g_h0:
    s_mov_b32 s{S_H+2}, 0
    s_mov_b32 s{S_WO}, s{S_WS0}
    s_add_u32 s{S_WO4}, s{S_WS0}, 4096
    s_mov_b32 s{S_HOOK}, 2
    s_cmp_eq_u32 s{S_CNT}, 4
    s_cbranch_scc1 L_g_r0
    s_add_u32 s{S_WO}, s{S_WO}, {4*40960}
    s_add_u32 s{S_WO4}, s{S_WO4}, {4*40960}
    buffer_load_dword v60, v61, {sq(S_FL)}, s{S_M0} offen sc1
    s_branch L_g_r0
    L_g_h1:
    s_cmp_lg_u32 s{S_WAVE}, 0
    s_cbranch_scc1 L_g_r1
    s_lshl_b32 s{S_T0}, s{S_QB}, 12
    s_lshl_b32 s{S_T1}, s{S_HEAD}, 7
    s_add_u32 s{S_T0}, s{S_T0}, s{S_T1}
    s_add_u32 s{S_T0}, s{S_T0}, {FL_F3}
    """)
    signal(a)
    a("s_branch L_g_r1\nL_g_done:\ns_waitcnt vmcnt(18) lgkmcnt(0)")
    stamp(a, 10)
    def o_dmas():
        a(f"s_mul_i32 s{S_OO}, s{S_J}, {48*1024}")
        for st in range(4):
            a(f"s_add_u32 s{S_DO}, s{S_LO}, {((st+2)%4)*STG}")
            for k in range(4):
                pre, ld = dma3(k, S_O, V_DO)
                for x in pre:
                    a(x + "\ns_nop 0")
                a(ld)
            a(ADV3[0])
    a(f"""
    s_barrier
    v_cmp_ne_u32 vcc, v{V_ONE}, v60
    s_mov_b32 s{S_KC}, 0
    s_cbranch_vccnz L_late
    s_mov_b32 s{S_KC}, 1
    """)
    o_dmas()
    a("L_late:")
    pack_store(a, ACC_G, PART_BYTES)
    stamp(a, 11)
    a(f"""
    s_cmp_eq_u32 s{S_KC}, 1
    s_cbranch_scc1 L_p3go
    L_poll3:
    buffer_load_dword v60, v61, {sq(S_FL)}, s{S_M0} offen sc1
    s_waitcnt vmcnt(0)
    v_cmp_ne_u32 vcc, v{V_ONE}, v60
    s_cbranch_vccnz L_poll3
    """)
    o_dmas()
    for k in range(9):
        a(f"buffer_load_dword v60, v61, {sq(S_H)}, 0 offen")
    a("L_p3go:")
    a(f"s_mov_b32 s{S_HOOK}, 20\ns_mov_b32 s{S_CNT}, 24\ns_waitcnt vmcnt(17)\ns_barrier")
    for ks, n in RD3:
        a(rd3(0, ks, n))
    a("s_waitcnt lgkmcnt(0)")
    stamp(a, 12)
    touch = f"buffer_load_dword v94, v{V_OO}, {sq(S_OUT)}, 0 offen\nbuffer_load_dword v95, v{V_OO}, {sq(S_OUT)}, 0 offen offset:132" if os.environ.get("TOUCHO") else ""
    a(".p2align 6\nL_s_loop:")
    stage3(a, 0, ACC_S, S_O, V_DO, f"s_waitcnt vmcnt(27)\ns_cmp_gt_u32 s{S_CNT}, 21\ns_cbranch_scc1 L_s_n0\ns_waitcnt vmcnt(18)\nL_s_n0:",
           f"s_cmp_eq_u32 s{S_CNT}, s{S_HOOK}\ns_cbranch_scc1 L_s_h\nL_s_r:", False)
    stage3(a, 1, ACC_S, S_O, V_DO, f"s_waitcnt vmcnt(22)\ns_cmp_gt_u32 s{S_CNT}, 21\ns_cbranch_scc1 L_s_n1\ns_waitcnt vmcnt(18)\nL_s_n1:",
           "", True)
    a(f"""
    s_cbranch_scc1 L_s_loop
    s_branch L_s_done
    L_s_h:
    s_lshl_b32 s{S_PO}, s{S_TILE}, 9
    s_add_u32 s{S_PO}, s{S_PO}, {FL_F5}
    s_cmp_eq_u32 s{S_CNT}, 4
    s_cbranch_scc1 L_s_h2
    s_mov_b32 s{S_HOOK}, 4
    s_cmp_lg_u32 s{S_WAVE}, 0
    s_cbranch_scc1 L_s_r
    s_lshl_b32 s{S_T1}, s{S_J}, 7
    s_add_u32 s{S_T0}, s{S_PO}, s{S_T1}
    """)
    signal(a)
    a(f"""
    s_branch L_s_r
    L_s_h2:
    {touch}
    s_mov_b32 s{S_O+2}, 0
    s_mov_b32 s{S_WF+2}, 0
    buffer_load_dword v60, v{V_FV}, {sq(S_FL)}, s{S_PO} offen sc1
    s_branch L_s_r
    L_repoll5:
    buffer_load_dword v60, v{V_FV}, {sq(S_FL)}, s{S_PO} offen sc1
    s_waitcnt vmcnt(0)
    L_s_done:
    v_cmp_ne_u32 vcc, v{V_ONE}, v60
    s_cbranch_vccnz L_repoll5
    s_waitcnt lgkmcnt(0)
    """)
    stamp(a, 13)
    g, GP, u, xx, sp_, SP = ACC_G, ACC_G + 20, 232, 152, ACC_S, ACC_S + 20
    pack_store(a, ACC_S, 0)
    part_loads(a, PART_BYTES, GP)
    stamp(a, 14)
    a(f"""
    s_lshl_b32 s{S_PO}, s{S_TILE}, 11
    s_lshl_b32 s{S_T0}, s{S_WAVE}, 7
    s_add_u32 s{S_PO}, s{S_PO}, s{S_T0}
    s_add_u32 s{S_PO}, s{S_PO}, {FL_F6}
    s_lshl_b32 s{S_T1}, s{S_J}, 9
    s_add_u32 s{S_T0}, s{S_PO}, s{S_T1}
    v_lshlrev_b32 v{V_FV}, 2, v{V_FV}
    s_waitcnt vmcnt(9)
    """)
    signal(a)
    stamp(a, 15)
    part_sum(a, GP, g, 1, 84)
    nl2e = -math.log2(math.e)
    for e in range(10):
        a(f"v_lshlrev_b32 v{u+2*e}, 16, v{V_B2+e}\nv_and_b32 v{u+1+2*e}, 0xffff0000, v{V_B2+e}")
    for tmpl in ("v_add_f32 v{g}, v{u}, v{g}", "v_mul_f32 v{u}, " + fh(nl2e) + ", v{g}", "v_exp_f32 v{u}, v{u}",
                 "v_add_f32 v{u}, 1.0, v{u}", "v_rcp_f32 v{u}, v{u}"):
        for e in range(20):
            a(tmpl.format(g=g + e, u=u + e))
    for e in range(10):
        a(f"v_lshlrev_b32 v{xx+2*e}, 16, v{V_X+e}\nv_and_b32 v{xx+1+2*e}, 0xffff0000, v{V_X+e}")
    for e in range(20):
        a(f"v_mul_f32 v{g+e}, v{g+e}, v{u+e}")
    a(f"""
    L_poll4:
    buffer_load_dword v60, v{V_FV}, {sq(S_FL)}, s{S_PO} offen sc1
    s_waitcnt vmcnt(0)
    v_cmp_ne_u32 vcc, v{V_ONE}, v60
    s_cbranch_vccnz L_poll4
    """)
    stamp(a, 16)
    part_loads(a, 0, SP)
    part_sum(a, SP, sp_, 0, 84)
    stamp(a, 23)
    for e in range(20):
        a(f"v_fmac_f32 v{xx+e}, v{g+e}, v{sp_+e}")
    for j in range(5):
        a(f"v_cvt_pk_bf16_f32 v{40+2*j}, v{xx+4*j}, v{xx+1+4*j}\nv_cvt_pk_bf16_f32 v{41+2*j}, v{xx+2+4*j}, v{xx+3+4*j}")
        a(f"buffer_store_dwordx2 {vr(40+2*j,2)}, v{V_OO}, {sq(S_OUT)}, 0 offen offset:{32*j}{os.environ.get('OUTSC','')}")
    stamp(a, 17)
    if STAMP:
        a("s_waitcnt vmcnt(0)")
        stamp(a, 18)
        if os.environ.get("DBG"):
            sel = [0, 3, 4, 6, 7, 12, 13, 14, 15, 16, 23, 17, 18, 16, 17, 18]
            a('s_nop 1')
            for k, x in enumerate(sel):
                a(f"v_readlane_b32 s3, v39, {x}\ns_nop 3" + ("\ns_not_b32 s3, s3" if k in (0, 13, 14, 15) else "") + f"\nv_writelane_b32 v40, s3, {k}")
            srd(a, 4, P_DBG, 64)
            a(f"buffer_atomic_umax v40, v{V_L4}, s[4:7], 0 offen\ns_waitcnt vmcnt(0)")
        srd(a, 4, P_WS, 1 << 20, WS_DBG)
        a(f"s_lshl_b32 s3, s2, 2\ns_add_u32 s3, s3, s{S_WAVE}\ns_lshl_b32 s3, s3, 9\nv_lshlrev_b32 v2, 3, v0\nv_add_u32 v2, s3, v2")
        a("buffer_store_dwordx2 v[38:39], v2, s[4:7], 0 offen\ns_waitcnt vmcnt(0)")
    a("L_end:\ns_endpgm")


def build():
    a = Asm()
    a.l.append("; @launch grid=(256,1,1) block=(256,1,1) lds=163840")
    a('.amdgcn_target "amdgcn-amd-amdhsa--gfx950"\n.text')
    a(f".globl {KNAME}")
    gen_kernel(a)
    a('.section .rodata,"a"\n.p2align 6')
    a.l.append(f""".amdhsa_kernel {KNAME}
  .amdhsa_next_free_vgpr 512
  .amdhsa_next_free_sgpr 102
  .amdhsa_accum_offset 256
  .amdhsa_group_segment_fixed_size 0
  .amdhsa_kernarg_size 104
  .amdhsa_user_sgpr_count 2
  .amdhsa_user_sgpr_kernarg_segment_ptr 1
  .amdhsa_system_sgpr_workgroup_id_x 1
.end_amdhsa_kernel""")
    return a.text()


if __name__ == "__main__":
    STAMP = "stamp" in sys.argv
    open(sys.argv[1], "w").write(build())
```

```python
import sys, math, os, struct

NAME = "recurrent_scan__gqa_block_cached__dense_activation_gelu__prompt"
KNAME = NAME + "_kernel"
WS_XN, WS_H, WS_O, WS_WF, WS_PART, WS_FLAG, WS_DBG = 0, 4 << 20, 16 << 20, 48 << 20, 80 << 20, 112 << 20, 128 << 20
XN_BYTES = 2048 * 640 * 2
H_BYTES = 2048 * 1536 * 2
O_BYTES = 2048 * 6144 * 2
WF_BYTES = 240 * 40960
PART_BYTES = 64 * 64 * 2560
FL_F1, FL_F3, FL_F2, FL_F4, FL_F5, FL_NONCE = 0, 32768, 65536, 98304, 131072, 163840
FL_TS = FL_F4
BAL = int(os.environ.get('BAL', 1))
KAP = int(os.environ.get('KAP', 180))
CHK = int(os.environ.get('CHK', 4))
FL_F6 = 163968
FLAG_BYTES = FL_F6 + 1024 * 128
STAMP = False
OFF = float(os.environ.get("OFF", 102.0))
GUARD_LO = 2.0 ** -110


def fh(x):
    return "0x%08x" % struct.unpack("<I", struct.pack("<f", x))[0]


class Asm:
    def __init__(self):
        self.l = []

    def __call__(self, s):
        for line in s.strip("\n").split("\n"):
            line = line.strip()
            if line:
                self.l.append(line if line.endswith(":") or line.startswith(".") else "    " + line)

    def text(self):
        return "\n".join(self.l) + "\n"


def vr(b, n=4, p="v"):
    return f"{p}[{b}:{b+n-1}]"


def ar(b, n=4):
    return vr(b, n, "a")


def srd(a, d, lo, nbytes, add=None):
    if add is None:
        a(f"s_mov_b32 s{d}, s{lo}\ns_mov_b32 s{d+1}, s{lo+1}")
    else:
        a(f"s_add_u32 s{d}, s{lo}, {add}\ns_addc_u32 s{d+1}, s{lo+1}, 0")
    a(f"s_mov_b32 s{d+2}, {nbytes}\ns_mov_b32 s{d+3}, 0x00020000")


def sq(d):
    return f"s[{d}:{d+3}]"


def mfma(d, a_, b, c):
    return f"v_mfma_f32_16x16x32_bf16 {d}, {a_}, {b}, {c}"


def stamp(a, i):
    if STAMP:
        a(f"""s_memtime s[98:99]
        s_waitcnt lgkmcnt(0)
        v_writelane_b32 v38, s98, {i}
        s_memrealtime s[98:99]
        s_waitcnt lgkmcnt(0)
        v_writelane_b32 v39, s98, {i}""")


SLOT = 24576
LDS_K, LDS_V, LDS_X = 0, 3 * SLOT, 6 * SLOT
LDS_W1 = 2 * SLOT
LDS_FLAG = LDS_X + 12288
STG = 36864
LDS_WOFF = 16384

S_XN, S_WQ, S_W1, S_K, S_V, S_H, S_O, S_MISC = 4, 8, 12, 16, 20, 24, 28, 32
S_HEAD, S_QB, S_WAVE, S_HOOK = 36, 37, 38, 39
S_RD, S_DMA, S_SO0, S_SO1, S_CNT, S_T0, S_T1, S_BOFF = 40, 41, 42, 43, 44, 45, 46, 47
S_W3072, S_SV0, S_SV1, S_PASS, S_RD1, S_DMA1, S_SW0, S_SW1 = 48, 49, 50, 51, 52, 53, 54, 55
S_C0, S_C1, S_M0, S_KC = 56, 57, 58, 59
P_K, P_V, P_WQ, P_WO, P_W1, P_B1, P_W2, P_B2, P_OUT, P_DBG, P_WS, P_X = 60, 62, 64, 66, 68, 70, 72, 74, 76, 78, 80, 82
S_X, S_WF, S_FL = 84, 88, 92
S_RS, S_RO = 96, 97
S_NONCE, S_HS = 100, 101
S_RK, S_DV, S_DKM, S_DVM = S_RD1, S_DMA1, S_DMA, S_BOFF
S_RSA = S_HS
S_PT, S_OUT, S_B2 = 4, 8, 12
S_J, S_MB, S_NB, S_OO, S_WO, S_WO4, S_R3, S_DO, S_DW, S_LO, S_LW, S_TILE, S_WS0, S_PO = 40, 41, 42, 43, 47, 48, 49, 50, 52, 53, 54, 55, 56, 57

S_DOO, S_DWO, S_OS0, S_N3, S_MK1, S_MK2 = 16, 17, 18, 19, 20, 22

V_L, V_KA, V_VA, V_KB, V_VB, V_DK, V_DV = 2, 6, 8, 12, 14, 18, 19
V_F2 = 20
V_RD, V_RR = 32, 33
V_ZERO, V_ONE = 36, 37
V_NM = 40
V_L4, V_L128 = 62, 63
V_Q, V_S, V_P = 64, 128, 192
A_RING, A_Q = 192, 224
P1_ACC, P1_H, P1_RING, P1_B = 64, 0, 48, 88
V1_WA, V1_FA, V1_WB, V1_FB, V1_DW, V1_DF, V1_X = 6, 8, 12, 14, 20, 21, 22
V_RB, V_RA, V_DH, V_DO, V_RB0, V_RA0, V_OO, V_BO, V_PO, V_FV = 6, 7, 12, 14, 16, 17, 18, 19, 32, 33
V_X, V_B2, FR = 64, 74, 0
ACC_S, ACC_G = 96, 176


X_RINGV = os.environ.get("RINGV")
X_QV = os.environ.get("QV")
X_NOCHAIN = os.environ.get("NOCHAIN")
SNAKE = int(os.environ.get("SNAKE", 0))


def ksel(p):
    return (p & 1) ^ ((p >> 1) & 1 if SNAKE else 0)


def q_reg(s, t):
    i = 4 * s + t
    if X_QV:
        return vr(V_Q + 4 * (i % 16))
    return vr(V_Q + 4 * i) if i < 16 else ar(A_Q + 4 * (i - 16))


def s_reg(u, t):
    return V_S + 4 * (4 * u + t)


def p_reg(par, ch, t):
    return V_P + 32 * par + 16 * ch + 4 * t


def code_prefetch(a, tag, first, last, sreg, vdst, one=False):
    a(f"""
    s_getpc_b64 s[{sreg}:{sreg+1}]
    L_pc{tag}:
    s_add_u32 s{sreg}, s{sreg}, {first}-L_pc{tag}
    s_addc_u32 s{sreg+1}, s{sreg+1}, 0
    s_mov_b32 s{sreg+2}, {last}-{first}
    s_mov_b32 s{sreg+3}, 0x00020000
    """)
    if one:
        a(f"""s_bfe_u32 s{S_T0}, s2, 0x30003
        s_lshl_b32 s{S_T0}, s{S_T0}, 2
        s_add_u32 s{S_T0}, s{S_T0}, s{S_WAVE}
        s_mul_i32 s{S_T0}, s{S_T0}, 640
        v_min_u32 v{vdst+1}, 512, v{V_L128}
        buffer_load_dword v{vdst}, v{vdst+1}, {sq(sreg)}, s{S_T0} offen""")
        return
    a(f"""
    s_mov_b32 s{S_T0}, 8192
    s_mov_b32 s{S_T1}, 16384
    buffer_load_dword v{vdst}, v{V_L128}, {sq(sreg)}, 0 offen
    buffer_load_dword v{vdst+1}, v{V_L128}, {sq(sreg)}, s{S_T0} offen
    buffer_load_dword v{vdst+2}, v{V_L128}, {sq(sreg)}, s{S_T1} offen
    """)


def half_lanes(a, ins):
    a("s_mov_b32 exec_hi, 0")
    a(ins)
    a("s_mov_b32 exec_hi, -1")


def wait_counts(seq2, period, waits):
    cnt = {}
    for k, wt in waits.items():
        last = max(tm for tm, kk in seq2 if kk == k and tm < wt)
        cnt[k] = (sum(1 for tm, kk in seq2 if last < tm < wt), wt - last)
    return cnt


DMA_GAP = eval(os.environ.get('DG', '[3, 19, 35, 51, 59, 67, 93, 109, 125, 141, 149, 157]'))


AUX_RD, AUX_ST, AUX_DMA = (26, 27), 53, 11


def build_schedule():
    N = 192
    G = [dict(lds=None, exp=None, valu=[], dma=None, wait=None) for _ in range(N)]
    for g in range(24):
        pos = 0
        fk = (g + 2) % 24
        if fk < 12:
            for k in range(2):
                G[8 * g + pos]["lds"] = (fk, k)
                pos += 1
        fv = g + 3
        if 12 <= fv < 24:
            for k in range(4):
                G[8 * g + pos]["lds"] = (fv, k)
                pos += 1
    for i in range(12):
        G[DMA_GAP[i]]["dma"] = i
    for f in range(24):
        G[(8 * f - 1) % N]["wait"] = f
    for k in range(2):
        G[AUX_RD[k]]["lds"] = (24, k)
    G[AUX_ST]["dma"] = 12
    G[AUX_DMA]["dma"] = 13
    free = [i for i in range(N) if G[i]["lds"] is None and G[i]["dma"] is None]
    free2 = free + [N + x for x in free]
    seq = [(u, t, r) for u in range(4) for t in range(4) for r in range(4)]
    start = [k for k, x in enumerate(free2) if x >= 24][0]
    etime = {}
    k = float(start)
    step = len(free) / 64.0
    for e, (u, t, r) in enumerate(seq):
        kk = int(start + e * step)
        ready = 24 * u + 16 + 2 * t + 1 + 4
        while free2[kk] < ready or G[free2[kk] % N]["exp"] is not None:
            kk += 1
        tm = free2[kk]
        G[tm % N]["exp"] = ("prev" if tm >= N else "cur", u, t, r)
        etime[(u, t, r)] = tm
    cap = [0 if (G[i]["dma"] is not None or G[i]["exp"] is not None) else (1 if G[i]["lds"] is not None else 2) for i in range(N)]
    if os.environ.get("CAP1"):
        for i in range(N):
            if G[i]["lds"] is not None and G[(i + 1) % N]["lds"] is not None:
                cap[i] = 0
    if os.environ.get("CAP2"):
        for i in range(N):
            if G[i]["lds"] is not None and G[i - 1]["lds"] is not None:
                cap[i] = 0
    ops = []
    for (u, t, r) in seq:
        ops.append((etime[(u, t, r)] + 1, "add", u, t, r))
        if r & 1:
            ops.append((etime[(u, t, r)] + 1, "cvt", u, t, r >> 1))
    ops.sort(key=lambda o: (o[0], o[1] == "add"))
    used = [0] * N
    for o in ops:
        tm = o[0]
        while used[tm % N] >= cap[tm % N]:
            tm += 1
        assert tm < N + 24 * o[2] + 2 * o[3], (o, tm)
        assert tm < N + 92
        used[tm % N] += 1
        G[tm % N]["valu"].append(("prev" if tm >= N else "cur",) + o[1:])
    return G, [cap[i] - used[i] for i in range(N)]


def att_counts(G, nok=False, aux=False):
    seq = [(rep * 192 + i, G[i]["lds"][0]) for rep in range(2) for i in range(192)
           if G[i]["lds"] is not None and not (nok and rep == 1 and G[i]["lds"][0] < 12) and (aux or G[i]["lds"][0] != 24)]
    ks = range(12, 24) if nok else range(24)
    c = wait_counts(seq, 192, {f: 192 + 8 * f - 1 for f in ks})
    assert all(v[0] <= 15 for v in c.values()), c
    return {k: v[0] for k, v in c.items()}


def soft(kind, which, u, t, x, par_cur):
    par = par_cur if which == "cur" else 1 - par_cur
    s = s_reg(u, t)
    if kind == "exp":
        return f"v_exp_f32 v{s+x}, v{s+x}"
    if kind == "add":
        return f"v_add_f32 v{V_L+t}, v{s+x}, v{V_L+t}"
    return f"v_cvt_pk_bf16_f32 v{p_reg(par, u >> 1, t) + 2*(u&1) + x}, v{s+2*x}, v{s+2*x+1}"


def ring(grp, k):
    return A_RING + 8 * (grp % 4) + 4 * k


def rr(b, n=4):
    return vr(b, n) if X_RINGV else ar(b, n)


def k_read(grp, k):
    u, s = grp // 3, 2 * (grp % 3) + k
    return f"ds_read_b128 {rr(ring(grp, k))}, v{V_KA+k} offset:{2*u*3072 + (s>>1)*1024}"


def v_read(grp, k):
    dt, ch, part = grp - 12, k >> 1, k & 1
    return f"ds_read_b64_tr_b16 {rr(ring(grp, ch) + 2*part, 2)}, v{V_VA+(dt&3)} offset:{(4*ch+2*part)*3072 + (dt>>2)*1024}"


def qk_mfma(grp, p, first_c):
    if X_NOCHAIN:
        p = 2 * (p & 3) + (p >> 2)
    u, s, t = grp // 3, 2 * (grp % 3) + ksel(p), p >> 1
    c = first_c(t) if (grp % 3 == 0 and p & 1 == 0) else vr(s_reg(u, t))
    return mfma(vr(s_reg(u, t)), rr(ring(grp, ksel(p))), q_reg(s, t), c)


def gen_body(a, G, spare, par, tail=False, tailq=None, lab=""):
    cnt = att_counts(G, nok=tail, aux=not tail)
    buf = 0 if lab == "a" else 1
    ev, es, sp = {}, {}, list(spare)

    def put_v(lo, hi, ins):
        for i in range(lo, hi):
            if sp[i] > 0:
                sp[i] -= 1
                ev.setdefault(i, []).append(ins)
                return
        raise AssertionError(ins)

    def put_s(lo, hi, ins):
        need = ins.count("\ns_")
        for i in range(lo, hi):
            if G[i]["lds"] is None and G[i]["dma"] is None and G[i]["wait"] is None and i not in es and sp[i] >= need:
                es[i] = ins
                sp[i] -= need
                return i
        raise AssertionError(ins)
    if not tail:
        for i in range(12):
            base = S_DKM if i < 6 else S_DVM
            d = i % 6
            assert G[DMA_GAP[i] - 1]["lds"] is None and G[DMA_GAP[i] - 1]["wait"] is None
            es[DMA_GAP[i] - 1] = f"s_add_u32 m0, s{base}, {(d//3)*12288 + (d%3)*896}"
        es[AUX_DMA - 1] = f"s_add_u32 m0, s{S_W3072}, {LDS_X + buf*1024}"
        put_s(12, 30, f"s_add_u32 s{S_RS}, s{S_RS}, s{S_RSA}")
        put_s(12, 66, f"s_cmp_eq_u32 s{S_CNT}, 22\ns_cselect_b32 s{S_MISC+2}, 0, s{S_MISC+2}")
        put_s(54, 66, f"s_add_u32 s{S_RO}, s{S_RO}, 4096")
        put_s(54, 71, f"s_cmp_gt_u32 s{S_CNT}, 21\ns_cselect_b32 s{S_WF+2}, {WF_BYTES}, 0")
        put_s(28, 66, f"s_cmp_eq_u32 s{S_CNT}, s{S_HOOK}\ns_cbranch_scc1 L_hook{lab}\nL_hret{lab}:")
        i = 71
        for x in (f"s_add_u32 s{S_SO0}, s{S_SO0}, {SLOT}", f"s_add_u32 s{S_SO1}, s{S_SO1}, {SLOT}",
                  f"s_sub_u32 s{S_CNT}, s{S_CNT}, 1",
                  f"s_mov_b32 s{S_T1}, s{S_RD}", f"s_mov_b32 s{S_RD}, s{S_RK}", f"s_mov_b32 s{S_RK}, s{S_DV}", f"s_mov_b32 s{S_DV}, s{S_T1}",
                  f"s_add_u32 s{S_DKM}, s{S_RD}, s{S_W3072}"):
            i = put_s(i, 150, x) + 1
        for j in range(2):
            put_v(max(i, 80), 172, f"v_add_u32 v{V_KA+j}, s{S_RK}, v{V_KB+j}")
        for j in range(4):
            put_v(0, 66, f"v_add_u32 v{V_VA+j}, s{S_RD}, v{V_VB+j}")
        i = 158
        for x in (f"s_add_u32 s{S_SV0}, s{S_SV0}, {SLOT}", f"s_add_u32 s{S_SV1}, s{S_SV1}, {SLOT}", f"s_add_u32 s{S_DVM}, s{S_DV}, s{S_M0}"):
            es.setdefault(169, "")
            es.setdefault(170, "")
            i = put_s(i, 184, x) + 1
        es[169] = "s_waitcnt vmcnt(11) lgkmcnt(0)"
        es[170] = "s_barrier"
        put_s(186, 191, f"s_cmp_lg_u32 s{S_CNT}, 0")
    for i in range(192):
        g = G[i]
        grp, p = i // 8, i % 8
        if grp < 12:
            if not tail:
                a(qk_mfma(grp, p, lambda t: vr(V_NM + 4 * t)))
        else:
            pp = 2 * (p & 3) + (p >> 2) if X_NOCHAIN else p
            o = ar(4 * (4 * (grp - 12) + (pp >> 1)))
            a(mfma(o, rr(ring(grp, ksel(pp))), vr(p_reg(1 - par, ksel(pp), pp >> 1)), o))
        if g["wait"] is not None:
            f = g["wait"]
            if (tail and 12 <= f < 24) or (not tail and f not in (22, 23)):
                a("s_waitcnt lgkmcnt(%d)" % cnt[f])
        elif i in es:
            a(es[i])
        if g["lds"] is not None and not os.environ.get("NOLDS"):
            f, k = g["lds"]
            if f == 24:
                if not tail:
                    a(f"ds_read_b64_tr_b16 {vr(28+2*k,2)}, v{V_RR} offset:{k*6144 + (1-buf)*1024}")
            elif f >= 12:
                if not (tail and f < 15):
                    a(v_read(f, k))
            elif not tail:
                a(k_read(f, k))
        if g["dma"] is not None and not tail and not os.environ.get("NODMA"):
            d = g["dma"]
            if d == 12:
                if True:
                    a(f"buffer_store_dwordx4 v[28:31], v1, {sq(S_WF)}, s{S_RO} offen sc1")
            elif d == 13:
                if True:
                    a(f"buffer_load_dwordx4 v{V_RD}, {sq(S_MISC)}, s{S_RS} offen sc1 lds")
            elif d < 6:
                a(f"buffer_load_dwordx4 v{V_DK}, {sq(S_K)}, s{S_SO0 + d//3} offen offset:{(d%3)*128} lds")
            else:
                d -= 6
                a(f"buffer_load_dwordx4 v{V_DV}, {sq(S_V)}, s{S_SV0 + d//3} offen offset:{(d%3)*128} lds")
        if g["exp"] is not None and not (tail and g["exp"][0] == "cur"):
            w, u, t, r = g["exp"]
            a(soft("exp", w, u, t, r, par))
            if tail and grp < 12:
                a("s_nop 0")
        for (w, kind, u, t, x) in g["valu"]:
            if not (tail and w == "cur") and not os.environ.get("NOVALU"):
                a(soft(kind, w, u, t, x, par))
        for ins in ev.get(i, []):
            a(ins)
        if tail and i == 95:
            a("s_nop 1")
        if tail and i >= 96:
            qd, qv = tailq
            if g["lds"] is not None and g["lds"][0] >= 12:
                if qv:
                    a(qv.pop(0))
            elif qd:
                a(qd.pop(0))
    if tail:
        assert not tailq[0] and not tailq[1], tailq


def p1_acc(f, t):
    if f < 12:
        return vr(P1_ACC + 8 * (4 * (f >> 1) + t) + 4 * (f & 1))
    return ar(P1_H + 4 * (4 * (f - 12) + t))


def p1_read(f, k):
    ks, part = k >> 1, k & 1
    dst = ar(P1_RING + 8 * (f % 5) + 4 * ks + 2 * part, 2)
    if f < 12:
        s, half = f >> 1, f & 1
        return f"ds_read_b64_tr_b16 {dst}, v{V1_WA+(s&1)} offset:{ks*4*3072 + (s>>1)*1024 + part*512 + half*8}"
    return f"ds_read_b64_tr_b16 {dst}, v{V1_FA+f-12} offset:{ks*4096 + part*512}"


def gen_p1_stage(a, sp):
    slots = {g: [] for g in range(15)}
    pend = [(f, k) for f in range(2, 15) for k in range(4)]
    g = 0
    while pend:
        while pend and len(slots[g]) < 6 and g >= pend[0][0] - 4:
            slots[g].append(pend.pop(0))
        g += 1
    assert g <= 11, g
    slots[13] = [(0, k) for k in range(4)]
    slots[14] = [(1, k) for k in range(4)]
    seq = [(rep * 120 + 8 * gg + p, f) for rep in range(2) for gg in range(15) for p, (f, k) in enumerate(slots[gg])]
    cnt = wait_counts(seq, 120, {f: 120 + 8 * f - 1 for f in range(15)})
    assert all(c <= 15 and d >= 8 for c, d in cnt.values()), cnt
    ex = {}

    def put(grp, p, ins):
        assert p >= len(slots[grp]), (grp, p)
        ex.setdefault((grp, p), []).append(ins)
    for j in range(8):
        ks, t = j >> 2, j & 3
        put(j, 6, f"buffer_load_dwordx4 {ar(P1_B + 32*(1-sp) + 16*ks + 4*t)}, v{V1_X+t}, {sq(S_XN)}, s{S_BOFF} offen offset:{ks*1024} sc1")
    for d in range(8):
        grp, p = (4 + d, 4) if d < 7 else (11, 0)
        if d < 6:
            put(grp, p, f"s_add_u32 m0, s{S_DMA}, {LDS_V + (d//3)*12288 + (d%3)*896}")
            put(grp, p + 1, f"buffer_load_dwordx4 v{V1_DW}, {sq(S_WQ)}, s{S_SO0 + d//3} offen offset:{(d%3)*128} lds")
        else:
            put(grp, p, f"s_add_u32 m0, s{S_DMA1}, {LDS_W1 + (d-6)*4096}")
            put(grp, p + 1, f"buffer_load_dwordx4 v{V1_DF}, {sq(S_W1)}, s{S_SW0 + d-6} offen lds")
    put(12, 6, f"buffer_load_dword v47, v46, {sq(S_O)}, s{S_M0} offen")
    put(13, 7, f"s_add_u32 s{S_M0}, s{S_M0}, s{S_HS}")
    nv = 5
    if sp == 0:
        for d, (grp, p) in enumerate(((11, 2), (11, 4), (12, 0))):
            put(grp, p, f"s_add_u32 m0, s{S_C0}, {d*896}")
            put(grp, p + 1, f"buffer_load_dwordx4 v{V_DK}, {sq(S_K)}, s{S_SV0} offen offset:{d*128} lds")
        put(13, 4, f"s_mov_b32 s{S_SV0}, s{S_SV1}\ns_add_u32 s{S_SV1}, s{S_SV1}, 12288")
        put(13, 5, f"s_mov_b32 s{S_C0}, s{S_C1}\ns_add_u32 s{S_C1}, s{S_C1}, 12288\ns_mov_b32 s{S_K+2}, 786432")
        put(13, 6, f"s_cmp_eq_u32 s{S_CNT}, 1\ns_cselect_b32 s{S_XN+2}, 0, s{S_XN+2}")
        nv = 8
    else:
        put(13, 4, f"s_sub_u32 s{S_CNT}, s{S_CNT}, 1")
        put(13, 5, f"s_cmp_eq_u32 s{S_CNT}, 2\ns_cselect_b32 s{S_O}, s{S_HOOK}, s{S_O}\ns_cselect_b32 s{S_O+1}, s{S_KC}, s{S_O+1}")
        put(13, 6, f"s_cselect_b32 s{S_O+2}, s{S_V+2}, s{S_O+2}\ns_cselect_b32 s{S_HS}, s3, s{S_HS}\ns_cselect_b64 vcc, -1, 0")
        put(14, 5, f"s_cmp_eq_u32 s{S_CNT}, 2\ns_cselect_b32 s{S_M0}, 0, s{S_M0}\nv_cndmask_b32 v46, v46, v60, vcc")
    put(9, 6, f"s_mov_b32 s{S_T1}, s{S_RD}\ns_add_u32 s{S_RD}, s{S_RD}, {SLOT}\ns_add_u32 s{S_BOFF}, s{S_BOFF}, 2048")
    put(10, 6, f"s_cmp_eq_u32 s{S_RD}, {3*SLOT}\ns_cselect_b32 s{S_RD}, 0, s{S_RD}\ns_add_u32 s{S_DMA}, s{S_T1}, s{S_W3072}")
    put(11, 6, f"s_lshl_b32 s{S_T0}, s{S_WAVE}, 10\ns_add_u32 s{S_DMA1}, s{S_RD1}, s{S_T0}\ns_add_u32 s{S_RD1}, s{S_RD1}, 8192")
    put(12, 2, f"s_cmp_eq_u32 s{S_RD1}, {3*8192}\ns_cselect_b32 s{S_RD1}, 0, s{S_RD1}")
    put(12, 3, f"v_add_u32 v{V1_WA}, s{S_RD}, v{V1_WB}\nv_add_u32 v{V1_WA+1}, s{S_RD}, v{V1_WB+1}")
    put(8, 6, f"s_add_u32 s{S_SO0}, s{S_SO0}, {64*12288}")
    put(12, 7, f"s_add_u32 s{S_SO1}, s{S_SO1}, {64*12288}\nv_add_u32 v{V1_FA}, s{S_RD1}, v{V1_FB}\nv_add_u32 v{V1_FA+1}, s{S_RD1}, v{V1_FB+1}")
    put(12, 4, f"v_add_u32 v{V1_FA+2}, s{S_RD1}, v{V1_FB+2}")
    put(14, 4, f"s_add_u32 s{S_SW0}, s{S_SW0}, {64*3072}\ns_add_u32 s{S_SW1}, s{S_SW1}, {64*3072}")
    ex[(12, 4)].insert(0, "s_waitcnt vmcnt(16) lgkmcnt(0)")
    put(12, 5, "s_barrier")
    if sp == 1:
        put(14, 6, f"s_cmp_lg_u32 s{S_CNT}, 0")
    for i in range(120):
        grp, p = i // 8, i % 8
        t, ks = p >> 1, ksel(p)
        acc = p1_acc(grp, t)
        a(mfma(acc, ar(P1_RING + 8 * (grp % 5) + 4 * ks), ar(P1_B + 32 * sp + 16 * ks + 4 * t), acc))
        if p < len(slots[grp]):
            a(p1_read(*slots[grp][p]))
        if p == 7:
            f = (grp + 1) % 15
            w = [f"vmcnt({nv})"] if f == 0 else []
            if f not in (13, 14):
                w.append(f"lgkmcnt({cnt[f][0]})")
            if w:
                a("s_waitcnt " + " ".join(w))
        for x in ex.get((grp, p), []):
            a(x)


def dma_tile(a, voff, srdreg, so0, so1, sbase, lds_const, n=6):
    for d in range(n):
        a(f"s_add_u32 m0, s{sbase}, {lds_const + (d//3)*12288 + (d%3)*896}\ns_nop 0")
        a(f"buffer_load_dwordx4 v{voff}, {sq(srdreg)}, s{so0 if d < 3 else so1} offen offset:{(d%3)*128} lds")


def gen_ln_body(a):
    R, U, T, Q, RO = 64, 96, 86, 136, 144
    for i in range(5):
        a(f"s_waitcnt vmcnt({3 + 4 - i + (2 if os.environ.get('TOUCH') else 0)})")
        for j in range(4):
            r, d = R + 4 * i + j, U + 8 * i + 2 * j
            a(f"v_lshlrev_b32 v{d}, 16, v{r}\nv_and_b32 v{d+1}, 0xffff0000, v{r}")
    stamp(a, 19)
    T2 = 88
    for k in range(2):
        a(f"v_pk_add_f32 {vr(T2+2*k,2)}, {vr(U+2*k,2)}, {vr(U+4+2*k,2)}")
    for e in range(8, 40, 2):
        k = (e >> 1) & 1
        a(f"v_pk_add_f32 {vr(T2+2*k,2)}, {vr(U+e,2)}, {vr(T2+2*k,2)}")
    a(f"v_pk_add_f32 {vr(T2,2)}, {vr(T2,2)}, {vr(T2+2,2)}\nv_add_f32 v{T}, v{T2}, v{T2+1}")
    for sh in (8, 4, 2, 1):
        a(f"s_nop 1\nv_add_f32 v{T}, v{T}, v{T} row_ror:{sh}")
    a(f"v_mul_f32 v{T}, {fh(1/640)}, v{T}")
    for e in range(0, 40, 2):
        k = (e >> 1) & 1
        t = 140 + 2 * k
        a(f"v_pk_add_f32 {vr(t,2)}, {vr(U+e,2)}, {vr(T,2)} op_sel_hi:[1,0] neg_lo:[0,1] neg_hi:[0,1]")
        a(f"v_pk_mul_f32 {vr(Q+2*k,2)}, {vr(t,2)}, {vr(t,2)}" if e < 4 else f"v_pk_fma_f32 {vr(Q+2*k,2)}, {vr(t,2)}, {vr(t,2)}, {vr(Q+2*k,2)}")
    a(f"v_pk_add_f32 {vr(Q,2)}, {vr(Q,2)}, {vr(Q+2,2)}\nv_add_f32 v{Q}, v{Q}, v{Q+1}")
    for sh in (8, 4, 2, 1):
        a(f"s_nop 1\nv_add_f32 v{Q}, v{Q}, v{Q} row_ror:{sh}")
    a(f"""
    v_mul_f32 v{Q}, {fh(1/640)}, v{Q}
    v_cvt_pk_bf16_f32 v{T+1}, v{T}, v{Q}
    v_lshlrev_b32 v{T}, 16, v{T+1}
    v_and_b32 v{Q}, 0xffff0000, v{T+1}
    v_add_f32 v{Q}, {fh(1e-5)}, v{Q}
    v_cvt_pk_bf16_f32 v{Q}, v{Q}, v{Q}
    v_and_b32 v{Q}, 0xffff0000, v{Q}
    v_sqrt_f32 v{Q}, v{Q}
    s_nop 0
    v_cvt_pk_bf16_f32 v{Q}, v{Q}, v{Q}
    v_and_b32 v{Q}, 0xffff0000, v{Q}
    v_rcp_f32 v{Q}, v{Q}
    s_mov_b32 s{S_T0}, 0
    """)
    for i in range(5):
        for j in range(4):
            e = U + 8 * i + 2 * j
            a(f"""
            v_pk_add_f32 {vr(e,2)}, {vr(e,2)}, {vr(T,2)} op_sel_hi:[1,0] neg_lo:[0,1] neg_hi:[0,1]
            v_cvt_pk_bf16_f32 v{e}, v{e}, v{e+1}
            v_and_b32 v{e+1}, 0xffff0000, v{e}
            v_lshlrev_b32 v{e}, 16, v{e}
            v_pk_mul_f32 {vr(e,2)}, {vr(e,2)}, {vr(Q,2)} op_sel_hi:[1,0]
            v_cvt_pk_bf16_f32 v{RO+4*i+j}, v{e}, v{e+1}
            """)
        a(f"buffer_store_dwordx4 {vr(RO+4*i)}, v84, {sq(S_MISC)}, s{S_T0} offen sc1")
        a(f"s_add_u32 s{S_T0}, s{S_T0}, 4096")


def dma3(k, bsrd, bv):
    if k < 4:
        r, ks = k >> 1, k & 1
        pre = [f"s_add_u32 m0, s{S_DO}, {r*2048}"] if ks == 0 else []
        return pre, f"buffer_load_dwordx4 v{bv+r}, {sq(bsrd)}, s{S_OO} offen offset:{ks*1024} sc1 lds"
    i = k - 4
    if i < 4:
        pre = [f"s_mov_b32 m0, s{S_DW}"] if i == 0 else []
        return pre, f"buffer_load_dwordx4 v1, {sq(S_WF)}, s{S_WO} offen offset:{i*1024} sc1 lds"
    return [f"s_add_u32 m0, s{S_DW}, 4096"], f"buffer_load_dwordx4 v1, {sq(S_WF)}, s{S_WO4} offen sc1 lds"


def fr3(par, ks, n):
    return FR + 72 * par + 36 * ks + 4 * n


def rd3(par, ks, n):
    if n < 4:
        return f"ds_read_b128 {ar(fr3(par, ks, n))}, v{V_RB} offset:{(2*n+ks)*1024}"
    return f"ds_read_b128 {ar(fr3(par, ks, n))}, v{V_RA} offset:{(10*ks+n-4)*1024}"


RD3 = [(ks, n) for n in (0, 4, 1, 2, 3, 5, 6, 7, 8) for ks in range(2)]
ADV3 = [f"s_add_u32 s{S_OO}, s{S_OO}, 2048", f"s_add_u32 s{S_WO}, s{S_WO}, {2*40960}", f"s_add_u32 s{S_WO4}, s{S_WO4}, {2*40960}"]
ADVS = [f"s_add_u32 s{S_OO}, s{S_OO}, s{S_DOO}", f"s_add_u32 s{S_WO}, s{S_WO}, s{S_DWO}", f"s_add_u32 s{S_WO4}, s{S_WO4}, s{S_DWO}"]


def stage3(a, par, accb, bsrd, bv, wait, hook, last, early=None, late=None, fin=None, stop=0):
    if fin is not None:
        ex = {8: hook}
        if par == 0:
            ex.update({5: f"v_add_u32 v{V_RB}, s{S_R3}, v{V_RB0}\nv_add_u32 v{V_RA}, s{S_R3}, v{V_RA0}", 6: wait, 7: "s_waitcnt lgkmcnt(0)\ns_barrier",
                       3: f"s_add_u32 s{S_R3}, s{S_R3}, {STG}", 4: f"s_cmp_eq_u32 s{S_R3}, {4*STG}\ns_cselect_b32 s{S_R3}, 0, s{S_R3}"})
            pat = "RRD" * 9
        else:
            ex[7] = "s_waitcnt lgkmcnt(0)"
            pat = "-D" * len(fin)
        todo = list(fin)
    elif early is None:
        ex = {3: f"s_add_u32 s{S_DO}, s{S_R3}, s{S_LO}\ns_add_u32 s{S_DW}, s{S_R3}, s{S_LW}\ns_add_u32 s{S_R3}, s{S_R3}, {STG}",
              4: f"s_cmp_eq_u32 s{S_R3}, {4*STG}\ns_cselect_b32 s{S_R3}, 0, s{S_R3}",
              5: f"v_add_u32 v{V_RB}, s{S_R3}, v{V_RB0}\nv_add_u32 v{V_RA}, s{S_R3}, v{V_RA0}",
              6: wait, 7: "s_waitcnt lgkmcnt(0)\ns_barrier", 8: hook}
        todo = [dma3(k, bsrd, bv) for k in range(9)]
        pat = "RRD" * 9
        ex[36] = "\n".join(ADVS)
        ex[37] = f"s_sub_u32 s{S_CNT}, s{S_CNT}, 1"
    else:
        ex = {7: wait + "\ns_waitcnt lgkmcnt(0)\ns_barrier", 8: hook + f"\nv_add_u32 v{V_RB}, {(par+1)*STG}, v{V_RB0}\nv_add_u32 v{V_RA}, {(par+1)*STG}, v{V_RA0}"}
        for g, (pre, ld) in enumerate(early):
            ex[g] = "".join(x + "\n" for x in pre) + ("s_nop 0\n" if pre else "") + ld
        todo = list(late)
        pat = "RRD" * 4 + "RD" * 7 + "RRR"
        assert len(early) == 7 and len(todo) == 11
    g, kr = 9, 0
    for ch in pat:
        if ch == "R":
            ex[g] = rd3(1 - par, *RD3[kr])
            kr += 1
        elif ch == "D":
            pre, ld = todo.pop(0)
            ex[g - 1] = ex.get(g - 1, "") + "".join("\n" + x for x in pre)
            ex[g] = ld
        g += 1
    assert (kr == 18 or fin is not None) and not todo and g <= 38
    if kr:
        ex[39] = "s_waitcnt lgkmcnt(6)" + (f"\ns_cmp_lg_u32 s{S_CNT}, {stop}" if last else "")
    for g in range(40):
        i, t, ks = g // 8, (g % 8) >> 1, ksel(g % 8)
        acc = vr(accb + 20 * t + 4 * i)
        a(mfma(acc, ar(fr3(par, ks, 4 + i)), ar(fr3(par, ks, t)), acc))
        if ex.get(g, "").strip():
            a(ex[g])


def pack_store(a, accb, region):
    a(f"""
    s_lshl_b32 s{S_PO}, s{S_TILE}, 2
    s_mul_i32 s{S_T1}, s{S_WAVE}, 2560
    """)
    for t in range(1, 4):
        o = (0, 20, 40, 50)[t]
        a(f"""
        s_xor_b32 s{S_T0}, s{S_J}, {t}
        s_add_u32 s{S_T0}, s{S_T0}, s{S_PO}
        s_mul_i32 s{S_T0}, s{S_T0}, 40960
        s_add_u32 s{S_T0}, s{S_T0}, s{S_T1}
        s_add_u32 s{S_T0}, s{S_T0}, {region + t*10240}
        """)
        for e in range(10):
            r = accb + 20 * t + 2 * e
            a(f"v_cvt_pk_bf16_f32 v{o+e}, v{r}, v{r+1}")
        a(f"""
        buffer_store_dwordx4 {vr(o)}, v1, {sq(S_PT)}, s{S_T0} offen sc1
        buffer_store_dwordx4 {vr(o+4)}, v1, {sq(S_PT)}, s{S_T0} offen offset:1024 sc1
        buffer_store_dwordx2 {vr(o+8,2)}, v{V_PO}, {sq(S_PT)}, s{S_T0} offen offset:2048 sc1
        """)


def part_loads(a, region, base):
    a(f"""
    s_lshl_b32 s{S_T0}, s{S_TILE}, 2
    s_add_u32 s{S_T0}, s{S_T0}, s{S_J}
    s_mul_i32 s{S_T0}, s{S_T0}, 40960
    s_mul_i32 s{S_T1}, s{S_WAVE}, 2560
    s_add_u32 s{S_T0}, s{S_T0}, s{S_T1}
    s_add_u32 s{S_T0}, s{S_T0}, {region}
    """)
    for k in range(3):
        o = base + 12 * k
        a(f"""
        s_add_u32 s{S_T0}, s{S_T0}, 10240
        buffer_load_dwordx4 {vr(o)}, v1, {sq(S_PT)}, s{S_T0} offen sc1
        buffer_load_dwordx4 {vr(o+4)}, v1, {sq(S_PT)}, s{S_T0} offen offset:1024 sc1
        buffer_load_dwordx2 {vr(o+8,2)}, v{V_PO}, {sq(S_PT)}, s{S_T0} offen offset:2048 sc1
        """)


def part_sum(a, base, dst, younger, tmp, nowait=False):
    for k in range(3):
        o = base + 12 * k
        if not nowait or k == 0:
            a(f"s_waitcnt vmcnt({younger if nowait else 3*(2-k)+younger})")
        for e in range(10):
            q = tmp + 2 * (e & 1)
            a(f"v_lshlrev_b32 v{q}, 16, v{o+e}\nv_and_b32 v{q+1}, 0xffff0000, v{o+e}")
            a(f"v_pk_add_f32 {vr(dst+2*e,2)}, {vr(dst+2*e,2)}, {vr(q,2)}")


def signal(a):
    half_lanes(a, f"buffer_store_dword v{V_ONE}, v{V_L4}, {sq(S_FL)}, s{S_T0} offen sc1")


def swaps(op, src, tmp):
    q = []
    for perm in ("v_permlane32_swap_b32", "v_permlane16_swap_b32"):
        for what in ("v_mov_b32 v{b}, v{l}", perm + " v{l}, v{b}", op + " v{l}, v{l}, v{b}"):
            for t in (0, 2):
                q.append("\n".join(what.format(l=src + tt, b=tmp + tt) for tt in (t, t + 1)))
    return q


def gen_kernel(a):
    G, spare = build_schedule()
    a(f".p2align 8\n.type {KNAME},@function\n{KNAME}:")
    a("s_cmp_ge_u32 s2, 256\ns_cbranch_scc1 L_end")
    stamp(a, 0)
    a(f"""
    s_load_dwordx2 s[{P_X}:{P_X+1}], s[0:1], 0
    s_load_dwordx2 s[{P_WS}:{P_WS+1}], s[0:1], 96
    s_load_dwordx4 s[{P_K}:{P_K+3}], s[0:1], 8
    s_load_dwordx4 s[{P_WQ}:{P_WQ+3}], s[0:1], 24
    s_load_dwordx4 s[{P_W1}:{P_W1+3}], s[0:1], 48
    s_load_dwordx4 s[{P_W2}:{P_W2+3}], s[0:1], 64
    s_load_dwordx4 s[{P_OUT}:{P_OUT+3}], s[0:1], 80
    v_and_b32 v{V_L128}, 63, v0
    v_lshlrev_b32 v{V_L128}, 7, v{V_L128}
    s_getpc_b64 s[{S_XN}:{S_XN+1}]
    L_pc2:
    s_mov_b32 s{S_XN+2}, L_p1_loop-L_pc2
    s_mov_b32 s{S_XN+3}, 0x00020000
    buffer_load_dword v61, v{V_L128}, {sq(S_XN)}, 0 offen
    s_and_b32 s{S_T0}, s2, 7
    s_lshl_b32 s{S_T0}, s{S_T0}, 2
    s_bfe_u32 s{S_T1}, s2, 0x20003
    s_add_u32 s{S_HEAD}, s{S_T0}, s{S_T1}
    s_lshr_b32 s{S_QB}, s2, 5
    s_mov_b32 s{S_PASS}, 0
    v_lshrrev_b32 v85, 4, v0
    v_lshrrev_b32 v1, 6, v0
    v_and_b32 v0, 63, v0
    v_readfirstlane_b32 s{S_WAVE}, v1
    s_lshl_b32 s{S_T0}, s{S_QB}, 8
    s_lshl_b32 s{S_T1}, s{S_HEAD}, 3
    s_add_u32 s{S_T0}, s{S_T0}, s{S_T1}
    v_add_u32 v85, s{S_T0}, v85
    v_and_b32 v31, 15, v0
    v_mul_u32_u24 v86, 1280, v85
    v_lshl_add_u32 v86, v31, 4, v86
    s_waitcnt lgkmcnt(0)
    s_add_u32 s{S_FL}, s{P_WS}, {WS_FLAG}
    s_addc_u32 s{S_FL+1}, s{P_WS+1}, 0
    s_load_dword s{S_NONCE}, s[{S_FL}:{S_FL+1}], {FL_NONCE}
    """)
    srd(a, S_X, P_X, XN_BYTES)
    a(f"s_cmp_ge_u32 s{S_WAVE}, 2\ns_cbranch_scc1 L_restart")
    for i in range(5):
        a(f"buffer_load_dwordx4 {vr(64+4*i)}, v86, {sq(S_X)}, 0 offen offset:{256*i}")
    a(f"""
    L_restart:
    v_lshrrev_b32 v84, 4, v85
    v_mul_u32_u24 v84, 20480, v84
    v_lshrrev_b32 v87, 2, v31
    v_lshl_add_u32 v84, v87, 10, v84
    v_and_b32 v87, 3, v31
    v_lshl_add_u32 v84, v87, 6, v84
    v_bfe_u32 v87, v85, 2, 2
    v_lshl_add_u32 v84, v87, 8, v84
    v_and_b32 v87, 3, v85
    v_lshl_add_u32 v84, v87, 4, v84
    v_and_b32 v26, 7, v0
    v_lshrrev_b32 v27, 3, v0
    v_lshrrev_b32 v28, 4, v0
    v_bfe_u32 v29, v0, 2, 2
    v_and_b32 v30, 3, v0
    v_and_b32 v31, 15, v0
    v_lshlrev_b32 v1, 4, v0
    v_lshlrev_b32 v36, 3, v28
    v_lshlrev_b32 v{V_L4}, 2, v0
    s_mul_i32 s{S_W3072}, s{S_WAVE}, 3072
    s_mul_i32 s{S_T0}, s{S_HEAD}, 96
    s_sub_u32 s{S_T1}, 3072, s{S_T0}
    """)
    srd(a, S_MISC, P_B1, f"s{S_T1}", f"s{S_T0}")
    for ft in range(3):
        a(f"buffer_load_dwordx2 {vr(40+2*ft,2)}, v36, {sq(S_MISC)}, 0 offen offset:{32*ft}")
    a(f"s_sub_u32 s{S_T1}, {640*1536*2}, s{S_T0}")
    srd(a, S_W1, P_W1, f"s{S_T1}", f"s{S_T0}")
    a(f"s_mul_i32 s{S_T0}, s{S_HEAD}, 384\ns_sub_u32 s{S_T1}, {640*6144*2}, s{S_T0}")
    srd(a, S_WQ, P_WQ, f"s{S_T1}", f"s{S_T0}")
    a(f"""
    s_mov_b32 s{S_FL+2}, {FLAG_BYTES}
    s_mov_b32 s{S_FL+3}, 0x00020000
    s_lshl_b32 s{S_T0}, s{S_WAVE}, 3
    v_add_u32 v32, s{S_T0}, v27
    v_mul_u32_u24 v33, 12288, v32
    v_bfe_u32 v34, v27, 1, 1
    v_lshlrev_b32 v35, 2, v34
    v_xor_b32 v35, v35, v26
    v_lshl_add_u32 v{V1_DW}, v35, 4, v33
    s_and_b32 s{S_T0}, s{S_WAVE}, 1
    s_lshl_b32 s{S_T0}, s{S_T0}, 2
    v_lshlrev_b32 v35, 1, v34
    v_or_b32 v35, s{S_T0}, v35
    v_xor_b32 v35, v35, v26
    v_mul_u32_u24 v33, 3072, v32
    v_lshl_add_u32 v{V1_DF}, v35, 4, v33
    s_lshl_b32 s{S_DMA1}, s{S_WAVE}, 10
    v_mov_b32 v{V_ZERO}, 0
    s_lshl_b32 s{S_T0}, s{S_PASS}, 1
    s_or_b32 s{S_T0}, s{S_T0}, s{S_WAVE}
    s_cmp_lt_u32 s{S_T0}, 2
    s_cbranch_scc1 L_ln
    """)
    pf_rest = f"""
    s_cmp_eq_u32 s{S_WAVE}, 2
    s_cselect_b32 s{S_XN}, s{S_W1}, s{S_WQ}
    s_cselect_b32 s{S_XN+1}, s{S_W1+1}, s{S_WQ+1}
    s_cselect_b32 s{S_XN+2}, s{S_W1+2}, s{S_WQ+2}
    s_mov_b32 s{S_T1}, {128*12288}
    s_cselect_b32 s{S_T1}, {128*3072}, s{S_T1}
    s_lshl_b32 s{S_T0}, s{S_T1}, 1
    buffer_load_dword v60, v55, {sq(S_XN)}, s{S_T0} offen
    s_add_u32 s{S_T0}, s{S_T0}, s{S_T1}
    buffer_load_dword v59, v55, {sq(S_XN)}, s{S_T0} offen
    s_add_u32 s{S_T0}, s{S_T0}, s{S_T1}
    buffer_load_dword v54, v55, {sq(S_XN)}, s{S_T0} offen
    """
    early_pf, late_pf = (pf_rest, "") if os.environ.get("PFE") == "1" else ("", pf_rest if os.environ.get("PFE") == "0" else "")
    a(f"""
    s_cmp_lg_u32 s{S_PASS}, 0
    s_cbranch_scc1 L_nopf
    s_lshl_b32 s{S_T0}, s{S_QB}, 4
    v_lshrrev_b32 v52, 2, v0
    v_add_u32 v52, s{S_T0}, v52
    v_mul_u32_u24 v53, 3072, v52
    v_lshlrev_b32 v52, 2, v53
    v_lshl_add_u32 v52, v30, 7, v52
    v_mul_u32_u24 v54, 40, v30
    v_add_u32 v53, v54, v53
    s_cmp_eq_u32 s{S_WAVE}, 2
    s_cbranch_scc1 L_pf2
    s_mov_b32 s{S_T0}, {128*12288}
    v_mov_b32 v55, v52
    buffer_load_dword v56, v52, {sq(S_WQ)}, 0 offen
    buffer_load_dword v57, v52, {sq(S_WQ)}, s{S_T0} offen
    s_branch L_pf3
    L_pf2:
    s_mov_b32 s{S_T0}, {128*3072}
    v_mov_b32 v55, v53
    buffer_load_dword v56, v53, {sq(S_W1)}, 0 offen
    buffer_load_dword v57, v53, {sq(S_W1)}, s{S_T0} offen
    L_pf3:
    s_getpc_b64 s[{S_XN}:{S_XN+1}]
    L_pc0:
    s_add_u32 s{S_XN}, s{S_XN}, L_p1_loop-L_pc0
    s_addc_u32 s{S_XN+1}, s{S_XN+1}, 0
    s_mov_b32 s{S_XN+2}, L_hooka-L_p1_loop
    s_and_b32 s{S_T0}, s{S_QB}, 1
    s_lshl_b32 s{S_T0}, s{S_T0}, 1
    s_add_u32 s{S_T0}, s{S_T0}, s{S_WAVE}
    s_sub_u32 s{S_T0}, s{S_T0}, 2
    s_lshl_b32 s{S_T0}, s{S_T0}, 13
    buffer_load_dword v58, v{V_L128}, {sq(S_XN)}, s{S_T0} offen
    {early_pf}
    s_waitcnt vmcnt({4 if early_pf else 1}) lgkmcnt(0)
    s_add_u32 s{S_NONCE}, s{S_NONCE}, 1
    L_nopf:
    """)
    a(f"""
    v_mov_b32 v52, v{V1_DW}
    v_mov_b32 v53, v{V1_DF}
    s_mov_b32 s{S_RD}, s{S_W3072}
    s_mov_b32 s{S_RD1}, s{S_DMA1}
    s_mov_b32 s{S_CNT}, s{S_PASS}
    L_pre:
    """)
    for st in range(2):
        a(f"s_mov_b32 s{S_SO0}, {64*st*12288}\ns_mov_b32 s{S_SO1}, {(64*st+32)*12288}")
        a(f"s_mov_b32 s{S_SW0}, {64*st*3072}\ns_mov_b32 s{S_SW1}, {(64*st+32)*3072}")
        dma_tile(a, 52, S_WQ, S_SO0, S_SO1, S_RD, LDS_V + st * SLOT)
        for d in range(2):
            a(f"s_add_u32 m0, s{S_RD1}, {LDS_W1 + st*8192 + d*4096}\ns_nop 0")
            a(f"buffer_load_dwordx4 v53, {sq(S_W1)}, s{S_SW0+d} offen lds")
    a(f"""
    s_cmp_lg_u32 s{S_CNT}, 0
    s_cbranch_scc1 L_predone
    s_mov_b32 s{S_CNT}, 1
    v_subrev_u32 v52, {16*12288}, v52
    v_subrev_u32 v53, {16*3072}, v53
    s_sub_u32 s{S_RD}, s{S_RD}, {2*3072}
    s_sub_u32 s{S_RD1}, s{S_RD1}, 2048
    s_branch L_pre
    L_predone:
    s_cmp_lg_u32 s{S_PASS}, 0
    s_cbranch_scc1 L_setup
    {late_pf}
    s_branch L_setup
    L_ln:
    """)
    srd(a, S_MISC, P_WS, XN_BYTES)
    if os.environ.get("TOUCH"):
        a(f"buffer_load_dword v60, v84, {sq(S_MISC)}, 0 offen sc1\nbuffer_load_dword v59, v{V_L128}, {sq(S_FL)}, 0 offen sc1")
    gen_ln_body(a)
    stamp(a, 20)
    a(f"""
    s_waitcnt lgkmcnt(0)
    s_add_u32 s{S_NONCE}, s{S_NONCE}, 1
    v_mov_b32 v52, {LDS_FLAG + 4}
    v_mov_b32 v{V_ONE}, s{S_NONCE}
    s_lshl_b32 s{S_T0}, s{S_QB}, 12
    s_lshl_b32 s{S_T1}, s{S_HEAD}, 7
    s_add_u32 s{S_T0}, s{S_T0}, s{S_T1}
    s_cmp_eq_u32 s{S_WAVE}, 0
    s_waitcnt vmcnt(0)
    s_cbranch_scc1 L_ln0
    ds_write_b32 v52, v{V_ONE}
    s_branch L_setup
    L_ln0:
    ds_read_b32 v53, v52
    s_waitcnt lgkmcnt(0)
    v_cmp_ne_u32 vcc, v53, v{V_ONE}
    s_cbranch_vccnz L_ln0
    v_xor_b32 v53, 0x80000000, v53
    ds_write_b32 v52, v53
    """)
    signal(a)
    a("L_setup:")
    stamp(a, 1)
    a(f"s_add_u32 s{S_T1}, s{S_QB}, 1\ns_mul_i32 s{S_T1}, s{S_T1}, {16*20480}")
    srd(a, S_XN, P_WS, f"s{S_T1}")
    srd(a, S_WF, P_WS, WF_BYTES, WS_WF)
    srd(a, S_H, P_WS, H_BYTES, WS_H)
    a(f"s_mul_i32 s{S_T0}, s{S_HEAD}, 786432")
    srd(a, S_K, P_K, 0, f"s{S_T0}")
    srd(a, S_V, P_V, 786432, f"s{S_T0}")
    a(f"""
    s_mov_b32 s{S_MISC+2}, {48*40960}
    s_cmp_lt_u32 s2, 192
    s_cselect_b32 s{S_MISC}, s{P_WO}, s{P_W2}
    s_cselect_b32 s{S_MISC+1}, s{P_WO+1}, s{P_W2+1}
    s_cselect_b32 s{S_MISC+2}, {6144*1280}, s{S_MISC+2}
    s_cselect_b32 s{S_T0}, 0, 192
    s_sub_u32 s{S_T0}, s2, s{S_T0}
    s_mul_i32 s{S_RS}, s{S_T0}, 40960
    s_mul_i32 s{S_RO}, s2, 40960
    s_lshl_b32 s{S_T0}, s{S_WAVE}, 10
    s_add_u32 s{S_RO}, s{S_RO}, s{S_T0}
    v_mov_b32 v{V_ONE}, s{S_NONCE}
    s_and_b32 s{S_T0}, s{S_WAVE}, 1
    s_lshl_b32 s{S_T0}, s{S_T0}, 2
    v_mul_u32_u24 v33, 384, v27
    v_add_u32 v33, s{S_W3072}, v33
    v_lshrrev_b32 v34, 1, v27
    v_add_u32 v35, s{S_T0}, v34
    v_xor_b32 v35, v35, v26
    v_lshl_add_u32 v{V_DK}, v35, 4, v33
    v_lshlrev_b32 v35, 1, v34
    v_xor_b32 v35, v35, v26
    v_lshl_add_u32 v{V_DV}, v35, 4, v33
    v_mul_u32_u24 v33, 1280, v32
    v_lshl_add_u32 v{V_RD}, v35, 4, v33
    s_lshl_b32 s{S_T0}, s{S_QB}, 3
    v_add_u32 v52, s{S_T0}, v26
    v_mul_u32_u24 v53, 3072, v52
    v_lshlrev_b32 v52, 2, v53
    s_lshl_b32 s{S_T0}, s{S_WAVE}, 7
    v_add_u32 v52, s{S_T0}, v52
    v_and_b32 v54, 1, v27
    v_mul_u32_u24 v54, 124, v54
    v_add_u32 v53, v54, v53
    s_mov_b32 s{S_O+3}, 0x00020000
    s_cmp_eq_u32 s{S_WAVE}, 3
    s_cselect_b32 s{S_O}, s{S_W1}, s{S_WQ}
    s_cselect_b32 s{S_O+1}, s{S_W1+1}, s{S_WQ+1}
    s_cselect_b32 s{S_O+2}, s{S_W1+2}, s{S_WQ+2}
    s_cselect_b64 vcc, -1, 0
    s_mov_b32 s{S_HS}, {64*12288}
    s_cselect_b32 s{S_HS}, {64*3072}, s{S_HS}
    v_cndmask_b32 v46, v52, v53, vcc
    s_cselect_b32 s{S_HOOK}, s{S_K}, s{S_V}
    s_cselect_b32 s{S_KC}, s{S_K+1}, s{S_V+1}
    s_mov_b32 s3, {12*128}
    s_cselect_b32 s3, {6*128}, s3
    s_mul_i32 s{S_T0}, s{S_QB}, 48
    s_lshl_b32 s{S_T1}, s{S_WAVE}, 2
    s_add_u32 s{S_T0}, s{S_T0}, s{S_T1}
    v_add_u32 v52, s{S_T0}, v30
    s_mul_i32 s{S_T0}, s{S_QB}, 24
    s_add_u32 s{S_T0}, s{S_T0}, 384
    v_min_u32 v53, 5, v26
    v_add_u32 v53, s{S_T0}, v53
    v_cndmask_b32 v60, v52, v53, vcc
    v_lshlrev_b32 v60, 7, v60
    s_lshl_b32 s{S_M0}, s{S_HS}, 2
    s_mov_b32 s{S_SV0}, 0
    s_mov_b32 s{S_SV1}, 0
    s_add_u32 s{S_C0}, s{S_W3072}, {LDS_X}
    s_add_u32 s{S_C1}, s{S_W3072}, {LDS_K}
    s_lshl_b32 s{S_T0}, s{S_QB}, 4
    s_lshl_b32 s{S_T1}, s{S_WAVE}, 2
    s_add_u32 s{S_T0}, s{S_T0}, s{S_T1}
    s_mul_i32 s{S_T0}, s{S_T0}, 20480
    v_lshlrev_b32 v33, 8, v29
    v_lshl_add_u32 v33, v28, 6, v33
    v_lshl_add_u32 v33, v30, 4, v33
    v_add_u32 v{V1_X}, s{S_T0}, v33
    v_add_u32 v{V1_X+1}, 20480, v{V1_X}
    v_add_u32 v{V1_X+2}, {2*20480}, v{V1_X}
    v_add_u32 v{V1_X+3}, {3*20480}, v{V1_X}
    s_mov_b32 s{S_SO0}, {128*12288}
    s_mov_b32 s{S_SO1}, {160*12288}
    s_mov_b32 s{S_SW0}, {128*3072}
    s_mov_b32 s{S_SW1}, {160*3072}
    s_mov_b32 s{S_RD}, 0
    s_mov_b32 s{S_RD1}, 0
    s_add_u32 s{S_DMA}, s{S_W3072}, {2*SLOT}
    s_add_u32 s{S_DMA1}, s{S_DMA1}, {2*8192}
    v_mul_u32_u24 v33, 3072, v28
    v_lshl_add_u32 v33, v29, 7, v33
    v_add_u32 v33, {LDS_V}, v33
    v_lshrrev_b32 v34, 1, v29
    v_lshlrev_b32 v35, 2, v34
    v_xor_b32 v35, v35, v30
    v_lshl_add_u32 v{V1_WB}, v35, 4, v33
    v_xor_b32 v{V1_WB+1}, 64, v{V1_WB}
    v_mov_b32 v{V1_WA}, v{V1_WB}
    v_mov_b32 v{V1_WA+1}, v{V1_WB+1}
    v_lshlrev_b32 v33, 10, v28
    v_lshl_add_u32 v33, v29, 7, v33
    v_add_u32 v33, {LDS_W1}, v33
    v_and_b32 v35, 1, v30
    v_lshl_add_u32 v33, v35, 3, v33
    v_lshrrev_b32 v35, 1, v30
    v_lshl_add_u32 v33, v35, 4, v33
    v_and_b32 v35, 1, v28
    v_lshl_add_u32 v35, v35, 1, v34
    v_lshl_add_u32 v{V1_FB}, v35, 5, v33
    v_xor_b32 v{V1_FB+1}, 32, v{V1_FB}
    v_xor_b32 v{V1_FB+2}, 64, v{V1_FB}
    v_mov_b32 v{V1_FA}, v{V1_FB}
    v_mov_b32 v{V1_FA+1}, v{V1_FB+1}
    v_mov_b32 v{V1_FA+2}, v{V1_FB+2}
    v_mov_b32 v48, 0
    v_mov_b32 v49, 0
    v_mov_b32 v50, 0
    v_mov_b32 v51, 0
    s_or_b32 s{S_T0}, s{S_WAVE}, s{S_PASS}
    s_cmp_eq_u32 s{S_T0}, 0
    s_cbranch_scc1 L_nw
    s_waitcnt vmcnt(0)
    L_nw:
    """)
    for i in range(12):
        a(f"v_mfma_f32_32x32x16_bf16 {vr(64+16*i,16)}, v[48:51], v[48:51], 0")
    for ft in range(3):
        a(f"""
        v_lshlrev_b32 v52, 16, v{40+2*ft}
        v_and_b32 v53, 0xffff0000, v{40+2*ft}
        v_lshlrev_b32 v54, 16, v{41+2*ft}
        v_and_b32 v55, 0xffff0000, v{41+2*ft}
        """)
        for t in range(4):
            for r in range(4):
                a(f"v_accvgpr_write_b32 a{P1_H+4*(4*ft+t)+r}, v{52+r}")
    a(f"""
    s_cmp_lg_u32 s{S_PASS}, 0
    s_cbranch_scc1 L_p1go
    s_lshl_b32 s{S_T0}, s{S_QB}, 12
    s_lshl_b32 s{S_T1}, s{S_WAVE}, 10
    s_add_u32 s{S_T0}, s{S_T0}, s{S_T1}
    v_and_b32 v53, {7*128}, v{V_L128}
    L_poll1:
    buffer_load_dword v52, v53, {sq(S_FL)}, s{S_T0} offen sc1
    s_waitcnt vmcnt(0)
    v_cmp_ne_u32 vcc, v52, v{V_ONE}
    s_cbranch_vccnz L_poll1
    L_p1go:
    """)
    stamp(a, 2)
    NPRE = 2
    for ks in range(NPRE):
        for j in range(4):
            a(f"buffer_load_dwordx4 {ar(P1_B+16*ks+4*j)}, v{V1_X+j}, {sq(S_XN)}, 0 offen offset:{1024*ks} sc1")
    a("s_barrier")
    for f in range(2):
        for k in range(4):
            a(p1_read(f, k))
    a(f"s_mov_b32 s{S_BOFF}, 2048\ns_mov_b32 s{S_CNT}, 5\ns_waitcnt vmcnt({4*NPRE-8}) lgkmcnt(4)")
    stamp(a, 3)
    a(".p2align 6\nL_p1_loop:")
    gen_p1_stage(a, 0)
    gen_p1_stage(a, 1)
    a("s_cbranch_scc1 L_p1_loop\ns_waitcnt vmcnt(1) lgkmcnt(0)\ns_barrier")
    stamp(a, 4)
    dm = []
    for (voff, sr, so, goff, lds) in ((V_DV, S_V, S_SV0, 0, LDS_V), (V_DK, S_K, S_SO0, 2 * SLOT, LDS_K + 2 * SLOT), (V_DV, S_V, S_SV0, SLOT, LDS_V + SLOT)):
        for d in range(6):
            pre = f"s_mov_b32 s{so}, {goff}\ns_mov_b32 s{so+1}, {goff+12288}\n" if d == 0 else ""
            dm.append((pre + f"s_add_u32 m0, s{S_W3072}, {lds + (d//3)*12288 + (d%3)*896}",
                       f"buffer_load_dwordx4 v{voff}, {sq(sr)}, s{so + d//3} offen offset:{(d%3)*128} lds"))
    c = (192 ** -0.5) * math.log2(math.e)
    a(f"s_mov_b32 s{S_C0}, {fh(c)}\ns_mov_b32 s{S_C1}, {fh(c)}")
    for i in range(24):
        b = P1_ACC + 8 * i
        if i < 18:
            a(dm[i][0])
        for j in range(4):
            a(f"v_pk_mul_f32 {vr(b+2*j,2)}, {vr(b+2*j,2)}, s[{S_C0}:{S_C1}]")
        if i < 18:
            a(dm[i][1])
        if i % 2 == 1 and i // 2 + 3 < 12:
            a(f"v_mfma_f32_32x32x16_bf16 {ar(16*(i//2+3),16)}, v[48:51], v[48:51], 0")
        for j in range(4):
            a(f"v_cvt_pk_bf16_f32 v{V_Q+4*i+j}, v{b+2*j}, v{b+2*j+1}")
    for e in range(32):
        a(f"v_accvgpr_write_b32 a{A_Q+e}, v{V_Q+64+e}")
    stamp(a, 21)
    srd(a, S_O, P_WS, O_BYTES, WS_O)
    k0 = -2.0 * math.log2(math.e) * math.sqrt(2 / math.pi)
    k1 = k0 * 0.044715
    a(f"""
    s_mov_b32 s{S_SO0}, {3*SLOT}
    s_mov_b32 s{S_SO1}, {3*SLOT+12288}
    s_mov_b32 s{S_SV0}, {2*SLOT}
    s_mov_b32 s{S_SV1}, {2*SLOT+12288}
    s_lshl_b32 s{S_T0}, s{S_QB}, 4
    s_lshl_b32 s{S_T1}, s{S_WAVE}, 2
    s_add_u32 s{S_T0}, s{S_T0}, s{S_T1}
    s_mul_i32 s{S_T0}, s{S_T0}, {48*1024}
    v_add_u32 v52, s{S_T0}, v1
    v_add_u32 v53, {48*1024}, v52
    v_add_u32 v54, {2*48*1024}, v52
    v_add_u32 v55, {3*48*1024}, v52
    v_mov_b32 v56, {fh(k1)}
    v_mov_b32 v57, {fh(k0)}
    v_mov_b32 v58, 1.0
    """)
    stamp(a, 22)

    def gelu(ft, packed):
        o = [(f"""s_mul_i32 s{S_T0}, s{S_HEAD}, 3
        s_add_u32 s{S_T0}, s{S_T0}, {ft}
        s_lshr_b32 s{S_T1}, s{S_T0}, 1
        s_lshl_b32 s{S_T1}, s{S_T1}, 10
        s_and_b32 s{S_T0}, s{S_T0}, 1
        s_lshl_b32 s{S_T0}, s{S_T0}, 3
        s_add_u32 s{S_M0}, s{S_T0}, s{S_T1}""", 0)]
        x, u = 216, 232
        o += [(f"v_accvgpr_read_b32 v{x+e}, a{P1_H+16*ft+e}", 1) for e in range(16)]
        if packed:
            o.append((f"v_mfma_f32_32x32x16_bf16 {ar(16*ft,16)}, v[48:51], v[48:51], 0", 0))
        for pk, sc, sl in (("v_pk_mul_f32 {U}, {X}, {X}", "v_mul_f32 v{u}, v{x}, v{x}", 1),
                           ("v_pk_fma_f32 {U}, {U}, v[56:57], v[56:57] op_sel:[0,0,1] op_sel_hi:[1,0,1]", "v_fma_f32 v{u}, v{u}, v56, v57", 1),
                           ("v_pk_mul_f32 {U}, {U}, {X}", "v_mul_f32 v{u}, v{u}, v{x}", 1),
                           (None, "v_exp_f32 v{u}, v{u}", 2),
                           ("v_pk_add_f32 {U}, {U}, v[58:59] op_sel_hi:[1,0]", "v_add_f32 v{u}, 1.0, v{u}", 1),
                           (None, "v_rcp_f32 v{u}, v{u}", 2),
                           ("v_pk_mul_f32 {X}, {U}, {X}", "v_mul_f32 v{x}, v{u}, v{x}", 1)):
            if packed and pk:
                o += [(pk.format(U=vr(u + e, 2), X=vr(x + e, 2)), 1) for e in range(0, 16, 2)]
            else:
                o += [(sc.format(u=u + e, x=x + e), sl) for e in range(16)]
        o += [(f"v_cvt_pk_bf16_f32 v{192+8*ft+e}, v{x+2*e}, v{x+2*e+1}", 1) for e in range(8)]
        o += [(f"buffer_store_dwordx2 {vr(192+8*ft+2*t,2)}, v{52+t}, {sq(S_H)}, s{S_M0} offen sc1", 2) for t in range(4)]
        return o
    a(f"s_cmp_lg_u32 s{S_PASS}, 0\ns_cbranch_scc1 L_nogelu")
    for ft in range(2):
        for ins, _ in gelu(ft, True):
            a(ins)
    a("L_nogelu:")
    a(f"""
    v_lshrrev_b32 v33, 3, v31
    v_mul_u32_u24 v33, 3072, v33
    v_lshl_add_u32 v33, v26, 7, v33
    v_lshrrev_b32 v34, 1, v31
    v_xor_b32 v34, v34, v28
    v_lshl_add_u32 v{V_KB}, v34, 4, v33
    v_xor_b32 v{V_KB+1}, 64, v{V_KB}
    v_mov_b32 v{V_KA}, v{V_KB}
    v_mov_b32 v{V_KA+1}, v{V_KB+1}
    v_lshrrev_b32 v33, 1, v28
    v_mul_u32_u24 v33, 3072, v33
    v_add_u32 v33, {LDS_V}, v33
    v_and_b32 v34, 1, v28
    v_lshl_add_u32 v34, v34, 2, v29
    v_lshl_add_u32 v33, v34, 7, v33
    v_and_b32 v35, 1, v30
    v_lshl_add_u32 v33, v35, 3, v33
    v_lshrrev_b32 v35, 1, v30
    v_lshl_add_u32 v33, v35, 4, v33
    v_lshrrev_b32 v34, 1, v34
    v_lshl_add_u32 v{V_VB}, v34, 5, v33
    v_xor_b32 v{V_VB+1}, 32, v{V_VB}
    v_xor_b32 v{V_VB+2}, 64, v{V_VB}
    v_xor_b32 v{V_VB+3}, 96, v{V_VB}
    v_mov_b32 v34, {LDS_FLAG}
    ds_write_b32 v34, v{V_ZERO}
    s_lshl_b32 s{S_T0}, s{S_WAVE}, 5
    v_xor_b32 v{V_RR}, s{S_T0}, v{V_VB}
    v_add_u32 v{V_RR}, {LDS_X - LDS_V}, v{V_RR}
    s_mov_b32 s{S_KC}, 0
    s_cmp_eq_u32 s{S_PASS}, 0
    s_cselect_b32 s{S_HOOK}, 19, 3
    s_mov_b32 s{S_RSA}, 128
    s_mov_b32 s{S_WF+2}, 0
    s_sub_u32 s{S_RO}, s{S_RO}, 4096
    s_cmp_eq_u32 s{S_PASS}, 0
    """)
    for j in range(4):
        a(f"v_mov_b32 v{V_L+j}, 0\nv_mov_b32 v{20+j}, 0xff800000")
    a("s_cbranch_scc0 L_maxfirst")
    stamp(a, 5)

    def qk0(fill):
        for g in range(3):
            a(k_read(g, 0) + "\n" + k_read(g, 1))
        for g in range(12):
            if g == 0:
                a("s_waitcnt lgkmcnt(4)")
            mx = []
            if g % 3 == 1 and g >= 4:
                for t in range(4):
                    s0 = s_reg(g // 3 - 1, t)
                    mx += [(f"v_max3_f32 v{20+t}, v{20+t}, v{s0}, v{s0+1}", 1), (f"v_max3_f32 v{20+t}, v{20+t}, v{s0+2}, v{s0+3}", 1)]
            fill[:0] = mx
            for p in range(8):
                a(qk_mfma(g, p, lambda t: "0"))
                room = 2
                if p == 7 and g < 11:
                    a(f"s_waitcnt lgkmcnt({2 if g <= 9 else 0})")
                if p < 2 and 3 <= g + 2 < 12 and g >= 1:
                    a(k_read(g + 2, p))
                    room = 1
                while fill and fill[0][1] <= room:
                    ins, sl = fill.pop(0)
                    a(ins)
                    room -= sl
        for ins, _ in fill:
            a(ins)
        a(f"s_waitcnt vmcnt(24)\ns_barrier\ns_cmp_lg_u32 s{S_KC}, 0\nv_add_u32 v{V_KA}, {SLOT}, v{V_KB}\nv_add_u32 v{V_KA+1}, {SLOT}, v{V_KB+1}\ns_nop 1")
        for t in range(4):
            s0 = s_reg(3, t)
            a(f"v_max3_f32 v{20+t}, v{20+t}, v{s0}, v{s0+1}\nv_max3_f32 v{20+t}, v{20+t}, v{s0+2}, v{s0+3}")
    g2 = gelu(2, False)
    for ins, _ in g2[:17]:
        a(ins)
    a(f"v_mfma_f32_32x32x16_bf16 {ar(32,16)}, v[48:51], v[48:51], 0")
    qk0(g2[17:])
    a("L_qkdone:")
    for g in range(2):
        a(k_read(g, 0) + "\n" + k_read(g, 1))
    for x in swaps("v_max_f32", 20, 24):
        a(x + "\ns_nop 0")
    a(f"s_cmp_eq_u32 s{S_PASS}, 0\ns_cselect_b32 s{S_T0}, {fh(-OFF)}, 0")
    for t in range(4):
        a(f"v_sub_f32 v{V_NM+4*t}, s{S_T0}, v{20+t}")
    for t in range(4):
        for r in range(1, 4):
            a(f"v_mov_b32 v{V_NM+4*t+r}, v{V_NM+4*t}")
    for u in range(4):
        for t in range(4):
            for j in range(2):
                r = s_reg(u, t) + 2 * j
                a(f"v_pk_add_f32 {vr(r,2)}, {vr(r,2)}, {vr(V_NM+4*t,2)}")
    for i in range(192):
        if G[i]["exp"] is not None and G[i]["exp"][0] == "cur":
            a(soft("exp", *G[i]["exp"], 0))
    a("s_nop 0")
    for i in range(192):
        for (w, kind, u, t, x) in G[i]["valu"]:
            if w == "cur":
                a(soft(kind, w, u, t, x, 0))
    a(f"""
    s_mov_b32 s{S_RD}, 0
    s_mov_b32 s{S_RK}, {SLOT}
    s_mov_b32 s{S_DV}, {2*SLOT}
    s_add_u32 s{S_M0}, s{S_W3072}, {LDS_V}
    s_mov_b32 s{S_DKM}, s{S_W3072}
    s_add_u32 s{S_DVM}, s{S_M0}, {2*SLOT}
    s_mov_b32 s{S_CNT}, 31
    s_waitcnt lgkmcnt({att_counts(G)[0]})
    """)
    stamp(a, 6)
    a(".p2align 6")
    for k in range(int(os.environ.get("PADN", 0))):
        a("s_nop 0")
    a("L_att_loop:")
    def lstamp():
        if STAMP and os.environ.get("ATST"):
            a(f"s_memtime s[98:99]\ns_waitcnt lgkmcnt(0)\ns_add_u32 m0, s{S_CNT}, 32\ns_nop 0\nv_writelane_b32 v38, s98, m0\ns_cmp_lg_u32 s{S_CNT}, 0")
    gen_body(a, G, spare, 1, lab="a")
    lstamp()
    a("s_cbranch_scc0 L_att_tail")
    gen_body(a, G, spare, 0, lab="b")
    lstamp()
    a("s_branch L_att_loop")
    f2 = f"s_mov_b32 s{S_T0}, {FL_F2}\nbuffer_load_dwordx4 {vr(V_F2)}, v1, {sq(S_FL)}, s{S_T0} offen sc1"
    a(f"""
    L_hooka:
    s_mov_b32 s{S_KC}, 0
    s_branch L_hook
    L_hookb:
    s_mov_b32 s{S_KC}, 1
    L_hook:
    s_cmp_eq_u32 s{S_CNT}, 3
    s_cbranch_scc1 L_hF
    s_cmp_eq_u32 s{S_CNT}, 15
    s_cbranch_scc1 L_hL
    s_cmp_eq_u32 s{S_CNT}, 13
    s_cbranch_scc1 L_hC
    s_cmp_eq_u32 s{S_CNT}, 7
    s_cbranch_scc1 L_hT
    L_hP:
    s_mov_b32 s{S_HOOK}, 15
    s_cmp_lg_u32 s{S_WAVE}, 0
    s_cbranch_scc1 L_hdone
    s_lshl_b32 s{S_T0}, s2, 2
    s_add_u32 s{S_T0}, s{S_T0}, {FL_F2}
    s_mov_b64 exec, 1
    buffer_store_dword v{V_ONE}, v{V_ZERO}, {sq(S_FL)}, s{S_T0} offen sc1
    s_mov_b64 exec, -1
    """)
    a(f"""
    s_nop 1
    s_branch L_hdone
    L_hL:
    s_mov_b32 s{S_HOOK}, 13
    {f2}
    s_branch L_hdone
    L_hT:
    s_mov_b32 s{S_HOOK}, 3
    s_lshr_b32 s{S_T0}, s2, 3
    s_or_b32 s{S_T0}, s{S_T0}, s{S_WAVE}
    s_cmp_lg_u32 s{S_T0}, 0
    s_cbranch_scc1 L_hdone
    s_memrealtime s[8:9]
    s_lshl_b32 s{S_T0}, s2, 3
    s_add_u32 s{S_T0}, s{S_T0}, {FL_TS}
    v_mov_b32 v58, v{V_ONE}
    s_waitcnt lgkmcnt(0)
    v_mov_b32 v59, s8
    s_mov_b64 exec, 1
    buffer_store_dwordx2 v[58:59], v{V_ZERO}, {sq(S_FL)}, s{S_T0} offen sc1
    s_mov_b64 exec, -1
    s_nop 1
    s_branch L_hdone
    L_hC:
    s_mov_b32 s{S_HOOK}, 7
    v_xor_b32 v{V_F2}, v{V_F2}, v{V_ONE}
    v_xor_b32 v{V_F2+1}, v{V_F2+1}, v{V_ONE}
    v_xor_b32 v{V_F2+2}, v{V_F2+2}, v{V_ONE}
    v_xor_b32 v{V_F2+3}, v{V_F2+3}, v{V_ONE}
    v_or3_b32 v{V_F2}, v{V_F2}, v{V_F2+1}, v{V_F2+2}
    v_or_b32 v{V_F2}, v{V_F2}, v{V_F2+3}
    v_cmp_ne_u32 vcc, 0, v{V_F2}
    s_cbranch_vccnz L_hdone
    s_and_b32 s8, s2, 3
    s_bfe_u32 s9, s2, 0x30003
    s_lshr_b32 s10, s2, 6
    s_cmp_ge_u32 s{S_WAVE}, 2
    s_cbranch_scc1 L_hC2
    s_bfe_u32 s{S_T0}, s2, 0x10002
    s_lshl_b32 s{S_T0}, s{S_T0}, 3
    s_add_u32 s{S_T0}, s{S_T0}, s9
    s_lshl_b32 s{S_T0}, s{S_T0}, 2
    s_add_u32 s{S_T0}, s{S_T0}, s10
    s_lshl_b32 s{S_T0}, s{S_T0}, 1
    s_add_u32 s{S_T0}, s{S_T0}, s{S_WAVE}
    s_mul_i32 s{S_T0}, s{S_T0}, {48*1024}
    s_mul_i32 s{S_T1}, s8, {12*1024}
    s_add_u32 s{S_RS}, s{S_T0}, s{S_T1}
    s_mov_b32 s{S_RSA}, 1024
    s_mov_b32 s{S_MISC}, s{S_H}
    s_mov_b32 s{S_MISC+1}, s{S_H+1}
    s_mov_b32 s{S_MISC+2}, {H_BYTES}
    v_mov_b32 v{V_RD}, v1
    s_branch L_hdone
    L_hC2:
    s_mul_i32 s{S_T0}, s8, {12*40960}
    s_mul_i32 s{S_T1}, s10, 10240
    s_add_u32 s{S_T0}, s{S_T0}, s{S_T1}
    s_mul_i32 s{S_T1}, s9, 1280
    s_add_u32 s{S_T0}, s{S_T0}, s{S_T1}
    s_mul_i32 s{S_T1}, s{S_WAVE}, 640
    s_add_u32 s{S_T0}, s{S_T0}, s{S_T1}
    s_add_u32 s{S_RS}, s{S_T0}, {192*40960 - 1280}
    s_mov_b32 s{S_RSA}, 40960
    s_mov_b32 s{S_MISC}, s{S_WF}
    s_mov_b32 s{S_MISC+1}, s{S_WF+1}
    s_mov_b32 s{S_MISC+2}, {WF_BYTES}
    v_min_u32 v{V_RD}, 624, v1
    s_branch L_hdone
    L_hF:
    """)
    code_prefetch(a, 1, "L_att_tail", "L_end", S_XN, V_F2 + 4, one=True)
    ts_ld = f"s_mov_b32 s{S_T0}, {FL_TS}\nv_and_b32 v57, 7, v0\nv_lshlrev_b32 v57, 3, v57\nbuffer_load_dwordx2 v[58:59], v57, {sq(S_FL)}, s{S_T0} offen sc1"
    a(ts_ld)
    a(f"""
    s_cmp_lg_u32 s{S_WAVE}, 0
    s_cbranch_scc1 L_hdone
    {f2}
    """)
    a(f"""
    L_hdone:
    s_cmp_eq_u32 s{S_KC}, 0
    s_cbranch_scc1 L_hreta
    s_branch L_hretb
    L_maxfirst:
    v_mfma_f32_32x32x16_bf16 a[0:15], v[48:51], v[48:51], 0
    v_mfma_f32_32x32x16_bf16 a[16:31], v[48:51], v[48:51], 0
    v_mfma_f32_32x32x16_bf16 a[32:47], v[48:51], v[48:51], 0
    s_mov_b32 s{S_KC}, {32*SLOT}
    L_maxnext:
    s_sub_u32 s{S_KC}, s{S_KC}, {SLOT}
    s_add_u32 s{S_T0}, s{S_KC}, 12288
    v_mov_b32 v{V_KA}, v{V_KB}
    v_mov_b32 v{V_KA+1}, v{V_KB+1}
    """)
    dma_tile(a, V_DK, S_K, S_KC, S_T0, S_W3072, LDS_K)
    a("s_waitcnt vmcnt(0)\ns_barrier")
    qk0([])
    a(f"""
    s_cbranch_scc1 L_maxnext
    s_branch L_qkdone
    L_fallback:
    s_waitcnt vmcnt(0) lgkmcnt(0)
    s_barrier
    s_mov_b32 s{S_PASS}, 1
    s_branch L_restart
    L_nonce:
    s_mov_b32 s{S_T0}, {FL_NONCE}
    """)
    signal(a)
    a(f"""
    s_nop 1
    s_branch L_nononce
    L_repoll2:
    {f2}
    s_waitcnt vmcnt(0)
    s_branch L_chk2
    L_rets:
    {ts_ld}
    s_waitcnt vmcnt(0)
    s_branch L_ok2
    L_att_tail:
    v_add_u32 v{V_VA}, s{S_RD}, v{V_VB}
    v_add_u32 v{V_VA+1}, s{S_RD}, v{V_VB+1}
    v_add_u32 v{V_VA+2}, s{S_RD}, v{V_VB+2}
    v_add_u32 v{V_VA+3}, s{S_RD}, v{V_VB+3}
    """)
    for f in (12, 13, 14):
        for k in range(4):
            a(v_read(f, k))
    a(f"""
    s_cmp_lg_u32 s{S_WAVE}, 0
    s_cbranch_scc1 L_ok2
    L_chk2:
    v_xor_b32 v{V_F2}, v{V_F2}, v{V_ONE}
    v_xor_b32 v{V_F2+1}, v{V_F2+1}, v{V_ONE}
    v_xor_b32 v{V_F2+2}, v{V_F2+2}, v{V_ONE}
    v_xor_b32 v{V_F2+3}, v{V_F2+3}, v{V_ONE}
    v_or3_b32 v{V_F2}, v{V_F2}, v{V_F2+1}, v{V_F2+2}
    v_or_b32 v{V_F2}, v{V_F2}, v{V_F2+3}
    v_cmp_ne_u32 vcc, 0, v{V_F2}
    s_cbranch_vccnz L_repoll2
    L_ok2:
    v_cmp_ne_u32 vcc, v{V_ONE}, v58
    s_cbranch_vccnz L_rets
    """)
    setup = f"""
    s_and_b32 s{S_J}, s2, 3
    s_bfe_u32 s{S_T0}, s2, 0x10002
    s_lshl_b32 s{S_T0}, s{S_T0}, 3
    s_bfe_u32 s{S_MB}, s2, 0x30003
    s_add_u32 s{S_MB}, s{S_MB}, s{S_T0}
    s_lshr_b32 s{S_NB}, s2, 6
    s_lshl_b32 s{S_TILE}, s{S_MB}, 2
    s_add_u32 s{S_TILE}, s{S_TILE}, s{S_NB}
    s_lshl_b32 s{S_T0}, s{S_MB}, 3
    s_lshl_b32 s{S_T1}, s{S_WAVE}, 1
    s_add_u32 s{S_T0}, s{S_T0}, s{S_T1}
    s_xor_b32 s{S_T0}, s{S_T0}, s{S_J}
    s_mul_i32 s{S_T1}, s{S_T0}, {192*1024}
    v_add_u32 v{V_DO}, s{S_T1}, v1
    s_mul_i32 s{S_T1}, s{S_T0}, {48*1024}
    v_add_u32 v{V_DH}, s{S_T1}, v1
    s_xor_b32 s{S_T0}, s{S_T0}, 1
    s_mul_i32 s{S_T1}, s{S_T0}, {192*1024}
    v_add_u32 v{V_DO+1}, s{S_T1}, v1
    s_mul_i32 s{S_T1}, s{S_T0}, {48*1024}
    v_add_u32 v{V_DH+1}, s{S_T1}, v1
    s_mul_i32 s{S_OO}, s{S_J}, {12*1024}
    s_lshr_b32 s{S_T0}, s{S_WAVE}, 1
    s_mul_i32 s{S_WS0}, s{S_T0}, 40960
    s_mul_i32 s{S_LW}, s{S_T0}, 10240
    s_lshl_b32 s{S_T0}, s{S_T0}, 13
    v_add_u32 v{V_RB0}, s{S_T0}, v1
    s_and_b32 s{S_T0}, s{S_WAVE}, 1
    s_mul_i32 s{S_T0}, s{S_T0}, 5120
    s_add_u32 s{S_WS0}, s{S_WS0}, s{S_T0}
    s_add_u32 s{S_T0}, s{S_T0}, {LDS_WOFF}
    s_add_u32 s{S_LW}, s{S_LW}, s{S_T0}
    v_add_u32 v{V_RA0}, s{S_T0}, v1
    s_mul_i32 s{S_T0}, s{S_NB}, 10240
    s_add_u32 s{S_WS0}, s{S_WS0}, s{S_T0}
    s_mul_i32 s{S_T0}, s{S_J}, {12*40960}
    s_add_u32 s{S_WO}, s{S_WS0}, s{S_T0}
    s_add_u32 s{S_WO}, s{S_WO}, {192*40960}
    s_add_u32 s{S_WO4}, s{S_WO}, 4096
    s_lshl_b32 s{S_LO}, s{S_WAVE}, 12
    v_mov_b32 v{V_RB}, v{V_RB0}
    v_mov_b32 v{V_RA}, v{V_RA0}
    s_mov_b32 s{S_WF+2}, {WF_BYTES}
    """
    qd = ["s_waitcnt vmcnt(0)", "s_barrier",
          f"s_or_b32 s{S_T0}, s2, s{S_WAVE}\ns_cmp_eq_u32 s{S_T0}, 0\ns_cbranch_scc1 L_nonce\nL_nononce:"]
    cur, cost = [], 0
    for ln in [x.strip() for x in setup.strip().split("\n")]:
        c1 = 2 if (ln.startswith("v_") and not cur) else 1
        if cost + c1 > 3:
            qd.append("\n".join(cur))
            cur, cost = [], 0
            c1 = 2 if ln.startswith("v_") else 1
        cur.append(ln)
        cost += c1
    qd.append("\n".join(cur))
    gops = []
    for st in range(6):
        for k in range(9):
            pre, ld = dma3(k, S_H, V_DH)
            if k == 0:
                pre = (ADV3 if st else []) + [f"s_add_u32 s{S_DO}, s{S_LO}, {(st%4)*STG}", f"s_add_u32 s{S_DW}, s{S_LW}, {(st%4)*STG}"] + pre
            gops.append((pre, ld))
    for pre, ld in gops[:18]:
        for k in range(0, len(pre), 3):
            qd.append("\n".join(pre[k:k + 3]))
        qd.append(ld)
    qv = [y for x in swaps("v_add_f32", V_L, 24) for y in x.split("\n")] + [f"v_rcp_f32 v{20+2*t}, v{V_L+t}" for t in range(4)]
    gen_body(a, G, spare, 0, tail=True, tailq=(qd, qv))
    stamp(a, 7)
    a(f"""
    s_lshl_b32 s{S_T0}, s{S_QB}, 4
    s_lshl_b32 s{S_T1}, s{S_WAVE}, 2
    s_add_u32 s{S_T0}, s{S_T0}, s{S_T1}
    s_mul_i32 s{S_T0}, s{S_T0}, {192*1024}
    s_mul_i32 s{S_T1}, s{S_HEAD}, {6*1024}
    s_add_u32 s{S_T0}, s{S_T0}, s{S_T1}
    v_add_u32 v28, s{S_T0}, v1
    v_add_u32 v29, {192*1024}, v28
    v_add_u32 v30, {2*192*1024}, v28
    v_add_u32 v31, {3*192*1024}, v28
    s_mov_b32 s{S_M0}, 4096
    """)
    GM, GT, GZ = 160, 164, 168

    def guard():
        for t in range(4):
            regs = [64 + 4 * (4 * s + t) + j for s in range(3) for j in range(4)]
            a(f"v_max3_f32 v{GM+t}, |v{regs[0]}|, |v{regs[1]}|, |v{regs[2]}|")
            for k in range(3, 11, 2):
                a(f"v_max3_f32 v{GM+t}, |v{regs[k]}|, |v{regs[k+1]}|, v{GM+t}")
            a(f"v_max_f32 v{GM+t}, |v{regs[11]}|, v{GM+t}")
        for x in swaps("v_max_f32", GM, GT):
            a(x + "\ns_nop 0")
        for t in range(4):
            a(f"v_mul_f32 v{GM+t}, v{GM+t}, v{V_L+t}")
        a(f"""
        v_min3_f32 v{GM}, v{GM}, v{GM+1}, v{GM+2}
        v_min_f32 v{GM}, v{GM}, v{GM+3}
        v_add_f32 v{GM+1}, v{V_L}, v{V_L+1}
        v_add_f32 v{GM+2}, v{V_L+2}, v{V_L+3}
        v_add_f32 v{GM+1}, v{GM+1}, v{GM+2}
        v_mov_b32 v{GM+2}, {fh(GUARD_LO)}
        v_cmp_nle_f32 vcc, v{GM+2}, v{GM}
        v_cmp_ngt_f32 s[96:97], 1.0, v{GM+1}
        v_mov_b32 v172, {LDS_FLAG}
        v_mov_b32 v173, 1
        """)
        srd(a, S_PT, P_WS, 2 * PART_BYTES, WS_PART)
        a(f"""
        s_or_b64 vcc, vcc, s[96:97]
        s_cbranch_vccz L_good
        ds_write_b32 v172, v173
        L_good:
        """)

    def split():
        a(f"""
        s_and_b32 s8, s2, 4
        s_add_u32 s9, s8, 1
        s_add_u32 s10, s8, 2
        s_add_u32 s11, s8, 3
        v_readlane_b32 s8, v59, s8
        v_readlane_b32 s9, v59, s9
        v_readlane_b32 s10, v59, s10
        v_readlane_b32 s11, v59, s11
        s_nop 3
        s_sub_u32 s9, s9, s8
        s_sub_u32 s10, s10, s8
        s_sub_u32 s11, s11, s8
        s_add_u32 s14, s9, s10
        s_add_u32 s14, s14, s11
        s_mov_b32 s8, 0
        """)
        for k, hi_cap in ((8, 60), (9, 72), (10, 84)):
            a(f"""
            s_lshl_b32 s{k}, s{k}, 2
            s_sub_u32 s{k}, s{k}, s14
            s_max_i32 s{k}, s{k}, -4000
            s_min_i32 s{k}, s{k}, 4000
            s_mul_i32 s{k}, s{k}, {KAP if BAL else 0}
            s_add_u32 s{k}, s{k}, 32768
            s_ashr_i32 s{k}, s{k}, 16
            s_max_i32 s{k}, s{k}, -6
            s_min_i32 s{k}, s{k}, 6
            s_lshl_b32 s{k}, s{k}, 1
            s_sub_u32 s{k}, 24, s{k}
            """)
            if k > 8:
                a(f"s_add_u32 s{k}, s{k}, s{k-1}")
            a(f"s_min_u32 s{k}, s{k}, {hi_cap}")
        a(f"""
        s_mov_b32 s14, 0
        s_mov_b32 s15, s8
        s_cmp_eq_u32 s{S_J}, 1
        s_cselect_b32 s14, s8, s14
        s_cselect_b32 s15, s9, s15
        s_cmp_eq_u32 s{S_J}, 2
        s_cselect_b32 s14, s9, s14
        s_cselect_b32 s15, s10, s15
        s_cmp_eq_u32 s{S_J}, 3
        s_cselect_b32 s14, s10, s14
        s_cselect_b32 s15, 96, s15
        s_sub_u32 s{S_N3}, s15, s14
        s_sub_u32 s{S_N3}, s{S_N3}, 3
        s_sub_u32 s15, s15, 1
        s_mov_b32 s11, 0x55555556
        s_mul_hi_u32 s8, s14, s11
        s_mul_hi_u32 s9, s15, s11
        s_sub_u32 s10, s9, s8
        s_add_u32 s10, s10, 1
        s_bfm_b32 s{S_MK2}, s10, s8
        s_add_u32 s8, s14, {CHK+3}
        s_sub_u32 s9, s15, {CHK+3}
        s_mov_b32 s10, 0x15555556
        s_mul_hi_u32 s12, s14, s10
        s_mul_hi_u32 s13, s8, s10
        s_mul_hi_u32 s{S_DOO}, s9, s10
        s_mul_hi_u32 s{S_DWO}, s15, s10
        v_readlane_b32 s12, v59, s12
        v_readlane_b32 s13, v59, s13
        v_readlane_b32 s{S_DOO}, v59, s{S_DOO}
        v_readlane_b32 s{S_DWO}, v59, s{S_DWO}
        s_nop 3
        s_sub_u32 s13, s13, s12
        s_sub_u32 s{S_DOO}, s{S_DOO}, s12
        s_sub_u32 s{S_DWO}, s{S_DWO}, s12
        s_max_i32 s13, s13, 0
        s_max_i32 s{S_DOO}, s{S_DOO}, s{S_DWO}
        s_sub_u32 s12, s13, s{S_DOO}
        s_cmp_gt_i32 s12, {0 if BAL else 0x7fffffff}
        s_cselect_b32 s12, s15, s14
        s_cselect_b32 s14, s9, s14
        s_cselect_b32 s15, s15, s8
        s_cselect_b32 s13, -1, 1
        s_mul_hi_u32 s8, s14, s11
        s_mul_hi_u32 s9, s15, s11
        s_sub_u32 s10, s9, s8
        s_add_u32 s10, s10, 1
        s_bfm_b32 s{S_MK1}, s10, s8
        s_mov_b32 s{S_MK1+1}, 0
        s_mov_b32 s{S_MK2+1}, 0
        s_lshl_b32 s{S_OS0}, s12, 11
        s_mul_i32 s12, s12, 81920
        s_add_u32 s{S_WS0}, s{S_WS0}, s12
        s_lshl_b32 s{S_DOO}, s13, 11
        s_mul_i32 s{S_DWO}, s13, 81920
        """)

    def setup2():
        srd(a, S_OUT, P_OUT, 2048 * 1280)
        srd(a, S_B2, P_B2, 1280)
        a(f"""
        s_lshl_b32 s{S_T0}, s{S_MB}, 3
        s_lshr_b32 s{S_T1}, s{S_WAVE}, 1
        s_lshl_b32 s{S_T1}, s{S_T1}, 2
        s_add_u32 s{S_T0}, s{S_T0}, s{S_T1}
        s_add_u32 s{S_T0}, s{S_T0}, s{S_J}
        s_lshl_b32 s{S_T0}, s{S_T0}, 4
        v_and_b32 v174, 15, v0
        v_add_u32 v174, s{S_T0}, v174
        v_mul_u32_u24 v174, 1280, v174
        s_mul_i32 s{S_T0}, s{S_NB}, 320
        s_and_b32 s{S_T1}, s{S_WAVE}, 1
        s_mul_i32 s{S_T1}, s{S_T1}, 160
        s_add_u32 s{S_T0}, s{S_T0}, s{S_T1}
        v_lshrrev_b32 v175, 4, v0
        v_lshlrev_b32 v175, 3, v175
        v_add_u32 v{V_BO}, s{S_T0}, v175
        v_add_u32 v{V_OO}, v174, v{V_BO}
        v_lshlrev_b32 v{V_PO}, 3, v0
        v_and_b32 v{V_FV}, {3*128}, v{V_L128}
        """)
    a(f"v_mov_b32 v{GZ}, 0\nv_mov_b32 v{GZ+1}, 0\nv_mov_b32 v{GZ+2}, 0\nv_mov_b32 v{GZ+3}, 0")
    for n in range(24):
        s, t = n // 4, n % 4
        b, o = 40 + 8 * (n % 2), 64 + 4 * n
        for h in range(2):
            for r in range(4):
                a(f"v_accvgpr_read_b32 v{b+4*h+r}, a{4*(4*(2*s+h)+t)+r}")
        if 2 <= n < 7:
            a(f"v_mfma_f32_32x32x16_bf16 {vr(ACC_G+16*(n-2),16)}, {vr(GZ)}, {vr(GZ)}, 0")
        for j in range(4):
            a(f"v_pk_mul_f32 {vr(b+2*j,2)}, {vr(b+2*j,2)}, {vr(20+2*t,2)} op_sel_hi:[1,0]")
        for j in range(4):
            a(f"v_cvt_pk_bf16_f32 v{o+j}, v{b+2*j}, v{b+2*j+1}")
        a(f"buffer_store_dwordx4 {vr(o)}, v{28+t}, {sq(S_O)}, {'0' if s < 4 else f's{S_M0}'} offen offset:{(s%4)*1024} sc1")
        if n == 13:
            guard()
        if n == 16:
            split()
        if n == 19:
            setup2()
    stamp(a, 8)
    a(f"""
    s_lshr_b32 s{S_T0}, s{S_MB}, 1
    s_lshl_b32 s{S_T0}, s{S_T0}, 12
    s_add_u32 s{S_M0}, s{S_T0}, {FL_F3}
    v_mov_b32 v48, 0
    v_mov_b32 v49, 0
    v_mov_b32 v50, 0
    v_mov_b32 v51, 0
    s_waitcnt vmcnt(24) lgkmcnt(0)
    s_barrier
    ds_read_b32 v41, v172
    """)
    for ks, n in RD3[:14]:
        a(rd3(0, ks, n))
    a(f"""
    s_waitcnt lgkmcnt(14)
    v_readfirstlane_b32 s{S_T0}, v41
    """)
    for ks, n in RD3[14:]:
        a(rd3(0, ks, n))
    if not (X_RINGV or X_QV or os.environ.get('NOFB')):
        a(f"s_cmp_gt_u32 s{S_T0}, s{S_PASS}\ns_cbranch_scc1 L_fallback")
    for zi in range(5):
        a(f"v_mfma_f32_32x32x16_bf16 {vr(ACC_S+16*zi,16)}, v[48:51], v[48:51], 0")
    a("s_waitcnt lgkmcnt(0)")
    stamp(a, 9)
    stage3(a, 0, ACC_G, S_H, V_DH, "", "", False, early=gops[18:25], late=gops[25:36])
    stage3(a, 1, ACC_G, S_H, V_DH, "s_waitcnt vmcnt(16)", f"s_cmp_eq_u32 s{S_WAVE}, 0\ns_cbranch_scc1 L_g_h1\nL_g_r1:", False,
           early=gops[36:43], late=gops[43:54])
    a(f"""
    s_mov_b32 s{S_R3}, {2*STG}
    s_mov_b32 s{S_H+2}, 0
    s_mov_b32 s{S_WO}, s{S_WS0}
    s_add_u32 s{S_WO4}, s{S_WS0}, 4096
    s_mov_b32 s{S_CNT}, 4
    L_g_loop:
    """)
    xb = "\n".join(f"buffer_load_dwordx2 {vr(V_X+2*j,2)}, v{V_OO}, {sq(S_X)}, 0 offen offset:{32*j}\nbuffer_load_dwordx2 {vr(V_B2+2*j,2)}, v{V_BO}, {sq(S_B2)}, 0 offen offset:{32*j}" for j in range(5))
    stage3(a, 0, ACC_G, S_H, V_DH, "s_waitcnt vmcnt(18)", f"s_cmp_eq_u32 s{S_CNT}, 2\ns_cbranch_scc1 L_g_h0\nL_g_r0:", False)
    stage3(a, 1, ACC_G, S_H, V_DH, "s_waitcnt vmcnt(18)", "", True)
    a(f"""
    s_cbranch_scc1 L_g_loop
    s_branch L_g_done
    L_g_h0:
    s_mov_b64 exec, s[{S_MK1}:{S_MK1+1}]
    buffer_load_dword v60, v{V_L128}, {sq(S_FL)}, s{S_M0} offen sc1
    s_mov_b64 exec, -1
    s_branch L_g_r0
    L_g_h1:
    s_lshl_b32 s{S_T0}, s{S_QB}, 12
    s_lshl_b32 s{S_T1}, s{S_HEAD}, 7
    s_add_u32 s{S_T0}, s{S_T0}, s{S_T1}
    s_add_u32 s{S_T0}, s{S_T0}, {FL_F3}
    """)
    signal(a)
    a("s_branch L_g_r1\nL_g_done:\ns_waitcnt vmcnt(18) lgkmcnt(0)")
    stamp(a, 10)
    def o_dmas():
        a(f"s_mov_b32 s{S_OO}, s{S_OS0}")
        for st in range(4):
            a(f"s_add_u32 s{S_DO}, s{S_LO}, {((st+2)%4)*STG}")
            for k in range(4):
                pre, ld = dma3(k, S_O, V_DO)
                for x in pre:
                    a(x + "\ns_nop 0")
                a(ld)
            a(ADVS[0])
    a(f"""
    s_barrier
    v_cmp_ne_u32 vcc, v{V_ONE}, v60
    s_nop 3
    s_and_b64 vcc, vcc, s[{S_MK1}:{S_MK1+1}]
    s_mov_b32 s{S_KC}, 0
    s_cbranch_vccnz L_late
    s_mov_b32 s{S_KC}, 1
    """)
    o_dmas()
    a("L_late:")
    pack_store(a, ACC_G, PART_BYTES)
    stamp(a, 11)
    a(f"""
    s_cmp_eq_u32 s{S_KC}, 1
    s_cbranch_scc1 L_p3go
    L_poll3:
    s_mov_b64 exec, s[{S_MK1}:{S_MK1+1}]
    buffer_load_dword v60, v{V_L128}, {sq(S_FL)}, s{S_M0} offen sc1
    s_mov_b64 exec, -1
    s_waitcnt vmcnt(0)
    v_cmp_ne_u32 vcc, v{V_ONE}, v60
    s_nop 3
    s_and_b64 vcc, vcc, s[{S_MK1}:{S_MK1+1}]
    s_cbranch_vccnz L_poll3
    """)
    o_dmas()
    for k in range(9):
        a(f"buffer_load_dword v61, v1, {sq(S_H)}, 0 offen")
    a("L_p3go:")
    a(f"s_sub_u32 s{S_HOOK}, s{S_N3}, {CHK-5}\ns_add_u32 s{S_CNT}, s{S_N3}, 3\ns_mov_b32 s{S_KC}, 0\ns_waitcnt vmcnt(17)\ns_barrier")
    for ks, n in RD3:
        a(rd3(0, ks, n))
    a("s_waitcnt lgkmcnt(0)")
    stamp(a, 12)
    touch = f"buffer_load_dword v94, v{V_OO}, {sq(S_OUT)}, 0 offen\nbuffer_load_dword v95, v{V_OO}, {sq(S_OUT)}, 0 offen offset:132" if os.environ.get("TOUCHO") else ""
    a(".p2align 6\nL_s_loop:")
    stage3(a, 0, ACC_S, S_O, V_DO, f"s_waitcnt vmcnt(27)\ns_cmp_gt_u32 s{S_CNT}, s{S_N3}\ns_cbranch_scc1 L_s_n0\ns_waitcnt vmcnt(18)\nL_s_n0:",
           f"s_cmp_eq_u32 s{S_CNT}, s{S_HOOK}\ns_cbranch_scc1 L_s_h\nL_s_r:", False)
    stage3(a, 1, ACC_S, S_O, V_DO, f"s_waitcnt vmcnt(22)\ns_cmp_gt_u32 s{S_CNT}, s{S_N3}\ns_cbranch_scc1 L_s_n1\ns_waitcnt vmcnt(18)\nL_s_n1:",
           "", True, stop=2)
    g, GP, u, xx, sp_, SP = ACC_G, ACC_G + 20, 232, 152, ACC_S, ACC_S + 20
    fin = []
    for k in range(3):
        o = GP + 12 * k
        fin += [([f"s_add_u32 s{S_T0}, s{S_T0}, 10240"], f"buffer_load_dwordx4 {vr(o)}, v1, {sq(S_PT)}, s{S_T0} offen sc1"),
                ([], f"buffer_load_dwordx4 {vr(o+4)}, v1, {sq(S_PT)}, s{S_T0} offen offset:1024 sc1"),
                ([], f"buffer_load_dwordx2 {vr(o+8,2)}, v{V_PO}, {sq(S_PT)}, s{S_T0} offen offset:2048 sc1")]
    a(f"""
    s_cbranch_scc1 L_s_loop
    s_lshl_b32 s{S_T0}, s{S_TILE}, 2
    s_add_u32 s{S_T0}, s{S_T0}, s{S_J}
    s_mul_i32 s{S_T0}, s{S_T0}, 40960
    s_mul_i32 s{S_T1}, s{S_WAVE}, 2560
    s_add_u32 s{S_T0}, s{S_T0}, s{S_T1}
    s_add_u32 s{S_T0}, s{S_T0}, {PART_BYTES}
    """)
    stage3(a, 0, ACC_S, S_O, V_DO, "s_waitcnt vmcnt(18)", f"v_cmp_ne_u32 vcc, v{V_ONE}, v60\ns_cbranch_vccnz L_repoll5\nL_f5ok:", False, fin=fin)
    stage3(a, 1, ACC_S, S_O, V_DO, "", "", False, fin=[([], x) for x in xb.split("\n")[1::2]])
    a(f"""
    s_branch L_s_done
    L_s_h:
    s_lshl_b32 s{S_PO}, s{S_TILE}, 9
    s_add_u32 s{S_PO}, s{S_PO}, {FL_F5}
    s_cmp_eq_u32 s{S_CNT}, 4
    s_cbranch_scc1 L_s_h2
    s_cmp_eq_u32 s{S_KC}, 1
    s_cbranch_scc1 L_s_h4
    s_mov_b32 s{S_KC}, 1
    s_sub_u32 s{S_HOOK}, s{S_HOOK}, 2
    s_mov_b64 exec, s[{S_MK2}:{S_MK2+1}]
    buffer_load_dword v60, v{V_L128}, {sq(S_FL)}, s{S_M0} offen sc1
    s_mov_b64 exec, -1
    s_branch L_s_r
    L_s_h5:
    s_mov_b64 exec, s[{S_MK2}:{S_MK2+1}]
    buffer_load_dword v60, v{V_L128}, {sq(S_FL)}, s{S_M0} offen sc1
    s_mov_b64 exec, -1
    s_waitcnt vmcnt(0)
    L_s_h4:
    v_cmp_ne_u32 vcc, v{V_ONE}, v60
    s_mov_b32 s{S_HOOK}, 4
    s_lshl_b32 s{S_T1}, s{S_J}, 7
    s_add_u32 s{S_T0}, s{S_PO}, s{S_T1}
    s_nop 0
    s_and_b64 vcc, vcc, s[{S_MK2}:{S_MK2+1}]
    s_cbranch_vccnz L_s_h5
    s_cmp_lg_u32 s{S_WAVE}, 0
    s_cbranch_scc1 L_s_r
    """)
    signal(a)
    a(f"""
    s_branch L_s_r
    L_s_h2:
    {touch}
    s_mov_b32 s{S_O+2}, 0
    s_mov_b32 s{S_WF+2}, 0
    buffer_load_dword v60, v{V_FV}, {sq(S_FL)}, s{S_PO} offen sc1
    s_branch L_s_r
    L_repoll5:
    buffer_load_dword v60, v{V_FV}, {sq(S_FL)}, s{S_PO} offen sc1
    s_waitcnt vmcnt(0)
    v_cmp_ne_u32 vcc, v{V_ONE}, v60
    s_cbranch_vccnz L_repoll5
    s_branch L_f5ok
    L_s_done:
    s_nop 5
    """)
    stamp(a, 13)
    if STAMP:
        a(f"v_writelane_b32 v38, s{S_N3}, 30\nv_writelane_b32 v38, s{S_DOO}, 31")
    pack_store(a, ACC_S, 0)
    stamp(a, 14)
    a(f"""
    s_lshl_b32 s{S_PO}, s{S_TILE}, 11
    s_lshl_b32 s{S_T0}, s{S_WAVE}, 7
    s_add_u32 s{S_PO}, s{S_PO}, s{S_T0}
    s_add_u32 s{S_PO}, s{S_PO}, {FL_F6}
    s_lshl_b32 s{S_T1}, s{S_J}, 9
    s_add_u32 s{S_T0}, s{S_PO}, s{S_T1}
    v_lshlrev_b32 v{V_FV}, 2, v{V_FV}
    """)
    part_sum(a, GP, g, 9, 84, nowait=True)
    nl2e = -math.log2(math.e)
    for e in range(10):
        a(f"v_lshlrev_b32 v{u+2*e}, 16, v{V_B2+e}\nv_and_b32 v{u+1+2*e}, 0xffff0000, v{V_B2+e}")
    for tmpl in ("v_add_f32 v{g}, v{u}, v{g}", "v_mul_f32 v{u}, " + fh(nl2e) + ", v{g}", "v_exp_f32 v{u}, v{u}",
                 "v_add_f32 v{u}, 1.0, v{u}", "v_rcp_f32 v{u}, v{u}"):
        for e in range(20):
            a(tmpl.format(g=g + e, u=u + e))
        if tmpl.startswith("v_mul"):
            a("s_waitcnt vmcnt(0) lgkmcnt(0)")
            signal(a)
            a("\n".join(xb.split("\n")[0::2]))
            stamp(a, 15)
    for e in range(20):
        a(f"v_mul_f32 v{g+e}, v{g+e}, v{u+e}")
    a(f"""
    L_poll4:
    buffer_load_dword v60, v{V_FV}, {sq(S_FL)}, s{S_PO} offen sc1
    s_waitcnt vmcnt(0)
    v_cmp_ne_u32 vcc, v{V_ONE}, v60
    s_cbranch_vccnz L_poll4
    """)
    stamp(a, 16)
    part_loads(a, 0, SP)
    for e in range(10):
        a(f"v_lshlrev_b32 v{xx+2*e}, 16, v{V_X+e}\nv_and_b32 v{xx+1+2*e}, 0xffff0000, v{V_X+e}")
    part_sum(a, SP, sp_, 0, 84)
    stamp(a, 23)
    for e in range(20):
        a(f"v_fmac_f32 v{xx+e}, v{g+e}, v{sp_+e}")
    for j in range(5):
        a(f"v_cvt_pk_bf16_f32 v{40+2*j}, v{xx+4*j}, v{xx+1+4*j}\nv_cvt_pk_bf16_f32 v{41+2*j}, v{xx+2+4*j}, v{xx+3+4*j}")
        a(f"buffer_store_dwordx2 {vr(40+2*j,2)}, v{V_OO}, {sq(S_OUT)}, 0 offen offset:{32*j}{os.environ.get('OUTSC','')}")
    stamp(a, 17)
    if STAMP:
        a("s_waitcnt vmcnt(0)")
        stamp(a, 18)
        if os.environ.get("DBG"):
            sel = [0, 3, 4, 6, 7, 12, 13, 14, 15, 16, 23, 17, 18, 16, 17, 18]
            a('s_nop 1')
            for k, x in enumerate(sel):
                a(f"v_readlane_b32 s3, v39, {x}\ns_nop 3" + ("\ns_not_b32 s3, s3" if k in (0, 13, 14, 15) else "") + f"\nv_writelane_b32 v40, s3, {k}")
            srd(a, 4, P_DBG, 64)
            a(f"buffer_atomic_umax v40, v{V_L4}, s[4:7], 0 offen\ns_waitcnt vmcnt(0)")
        srd(a, 4, P_WS, 1 << 20, WS_DBG)
        a(f"s_lshl_b32 s3, s2, 2\ns_add_u32 s3, s3, s{S_WAVE}\ns_lshl_b32 s3, s3, 9\nv_lshlrev_b32 v2, 3, v0\nv_add_u32 v2, s3, v2")
        a("buffer_store_dwordx2 v[38:39], v2, s[4:7], 0 offen\ns_waitcnt vmcnt(0)")
    a("L_end:\ns_endpgm")


def build():
    a = Asm()
    a.l.append("; @launch grid=(256,1,1) block=(256,1,1) lds=163840")
    a('.amdgcn_target "amdgcn-amd-amdhsa--gfx950"\n.text')
    a(f".globl {KNAME}")
    gen_kernel(a)
    a('.section .rodata,"a"\n.p2align 6')
    a.l.append(f""".amdhsa_kernel {KNAME}
  .amdhsa_next_free_vgpr 512
  .amdhsa_next_free_sgpr 102
  .amdhsa_accum_offset 256
  .amdhsa_group_segment_fixed_size 0
  .amdhsa_kernarg_size 104
  .amdhsa_user_sgpr_count 2
  .amdhsa_user_sgpr_kernarg_segment_ptr 1
  .amdhsa_system_sgpr_workgroup_id_x 1
.end_amdhsa_kernel""")
    return a.text()


if __name__ == "__main__":
    STAMP = "stamp" in sys.argv
    open(sys.argv[1], "w").write(build())
```
